```python
import torch

def _softmax(x, axis=-1):
    return torch.softmax(x, dim=axis)

def _gelu(x):
    return torch.nn.functional.gelu(x, approximate='tanh')

def _silu(x):
    return torch.nn.functional.silu(x)

def _sigmoid(x):
    return torch.sigmoid(x)

def _layernorm(x, axis=-1, eps=1e-05):
    m = x.mean(dim=axis, keepdim=True)
    v = x.var(dim=axis, keepdim=True, unbiased=False)
    return (x - m) / torch.sqrt(v + eps)

def _scatter_add(tgt, idx, src, axis=0):
    return tgt.clone().index_add_(axis, idx, src)

def _segment_sum(src, seg, n):
    out = torch.zeros((n,) + src.shape[1:], dtype=src.dtype)
    return out.index_add_(0, seg, src)

def _pad(x, pw):
    flat = tuple((v for pair in reversed(pw) for v in pair))
    return torch.nn.functional.pad(x, flat)
kernel_name = 'sequential_preLN__spectral_fnet__mixer_gmlp__prompt'

def setup_inputs():

    _w = lambda a: (lambda t: t.to(torch.bfloat16) if t.is_floating_point() else t)(torch.as_tensor(a))

    def _A_setup():
        B, S, D = (1, 2048, 640)
        ns = torch.arange(S)[:, None] * torch.arange(S)[None, :]
        nd = torch.arange(D)[:, None] * torch.arange(D)[None, :]
        Ws_re = torch.cos(-2.0 * torch.pi * ns / S).to(float)
        Ws_im = torch.sin(-2.0 * torch.pi * ns / S).to(float)
        Wd_re = torch.cos(-2.0 * torch.pi * nd / D).to(float)
        Wd_im = torch.sin(-2.0 * torch.pi * nd / D).to(float)
        return {'x': _w((lambda *s: torch.randn(*s, dtype=torch.bfloat16) * 0.05)(B, S, D)), 'dft_seq_re': _w(Ws_re), 'dft_seq_im': _w(Ws_im), 'dft_hid_re': _w(Wd_re), 'dft_hid_im': _w(Wd_im)}
    _A_in = _A_setup()

    def _B_setup():
        B, S, D, F = (1, 2048, 640, 1536)
        Fh = F // 2
        return {'x': _w((lambda *s: torch.randn(*s, dtype=torch.bfloat16) * 0.05)(B, S, D)), 'w_in': _w((lambda *s: torch.randn(*s, dtype=torch.bfloat16) * 0.8)(D, 2 * Fh)), 'w_sp': _w(0.01 * (lambda *s: torch.randn(*s, dtype=torch.bfloat16) * 0.8)(S, S)), 'b_sp': _w(1.0 + 0.01 * (lambda *s: torch.randn(*s, dtype=torch.bfloat16) * 0.8)(S)), 'w_out': _w((lambda *s: torch.randn(*s, dtype=torch.bfloat16) * 0.8)(Fh, D))}
    _B_in = _B_setup()
    return {'A_x': _A_in['x'], 'A_dft_seq_re': _A_in['dft_seq_re'], 'A_dft_seq_im': _A_in['dft_seq_im'], 'A_dft_hid_re': _A_in['dft_hid_re'], 'A_dft_hid_im': _A_in['dft_hid_im'], 'B_x': _B_in['x'], 'B_w_in': _B_in['w_in'], 'B_w_sp': _B_in['w_sp'], 'B_b_sp': _B_in['b_sp'], 'B_w_out': _B_in['w_out']}

def reference(A_x, A_dft_seq_re, A_dft_seq_im, A_dft_hid_re, A_dft_hid_im, B_x, B_w_in, B_w_sp, B_b_sp, B_w_out):

    def _A_ref(x, dft_seq_re, dft_seq_im, dft_hid_re, dft_hid_im):
        a = torch.einsum('bsd,ed->bse', x, dft_hid_re)
        b = torch.einsum('bsd,ed->bse', x, dft_hid_im)
        y = torch.einsum('ts,bse->bte', dft_seq_re, a) - torch.einsum('ts,bse->bte', dft_seq_im, b)
        return y

    def _B_ref(x, w_in, w_sp, b_sp, w_out):
        B, S, D = x.shape
        F = w_in.shape[-1]
        Fh = F // 2
        z = _gelu(torch.einsum('bsd,df->bsf', x, w_in))
        z1 = z[..., :Fh].clone()
        z2 = _layernorm(z[..., Fh:], axis=-1)
        g = torch.einsum('ts,bsf->btf', w_sp, z2) + b_sp[None, :, None]
        return torch.einsum('bsf,fd->bsd', z1 * g, w_out)
    x = A_x
    h = x + _A_ref(_layernorm(x, axis=-1), A_dft_seq_re, A_dft_seq_im, A_dft_hid_re, A_dft_hid_im)
    h2 = h + _B_ref(_layernorm(h, axis=-1), B_w_in, B_w_sp, B_b_sp, B_w_out)
    return h2
```

```python
import re

TRANS = ("v_exp_f32", "v_log_f32", "v_rcp_f32", "v_rsq_f32", "v_sqrt_f32", "v_sin_f32", "v_cos_f32", "v_rcp_iflag_f32")
_REG = re.compile(r"^(-|abs\()?([vas])(\d+)\)?$")
_RNG = re.compile(r"^(-|abs\()?([vas])\[(\d+):(\d+)\]\)?$")

def regs_of(tok):
    tok = tok.strip()
    m = _REG.match(tok)
    if m: return [(m.group(2), int(m.group(3)))]
    m = _RNG.match(tok)
    if m: return [(m.group(2), i) for i in range(int(m.group(3)), int(m.group(4)) + 1)]
    if tok in ("vcc",): return [("s", "vcc_lo"), ("s", "vcc_hi")]
    if tok in ("vcc_lo", "vcc_hi", "m0"): return [("s", tok)]
    if tok == "exec": return [("s", "exec_lo"), ("s", "exec_hi")]
    if tok in ("exec_lo", "exec_hi"): return [("s", tok)]
    return []

class Ins:
    def __init__(self, text):
        self.text = text
        t = text.split(";")[0].strip()
        self.label = t.endswith(":")
        self.directive = t.startswith(".")
        self.op = ""
        self.dst = []; self.src = []
        self.kind = "other"
        if self.label or self.directive or not t: return
        parts = t.split(None, 1)
        op = parts[0]; self.op = op
        rest = parts[1] if len(parts) > 1 else ""
        ops = []; cur = ""; depth = 0
        for ch in rest:
            if ch in "[(": depth += 1
            if ch in "])": depth -= 1
            if ch == "," and depth == 0: ops.append(cur.strip()); cur = ""
            else: cur += ch
        if cur.strip(): ops.append(cur.strip())
        mods = ""
        if ops:
            sp = ops[-1].split(None, 1)
            if len(sp) > 1 and not sp[0].endswith("("):
                ops[-1] = sp[0]; mods = sp[1]
        self.ops = ops; self.mods = mods
        R = [regs_of(o) for o in ops]
        flat = lambda l: [x for y in l for x in y]
        base = op.replace("_e32", "").replace("_e64", "").replace("_dpp", "").replace("_sdwa", "")
        self.base = base
        if op.startswith("v_mfma"):
            self.kind = "mfma"; self.dst = R[0]; self.A = R[1]; self.B = R[2]; self.C = R[3]; self.src = flat(R[1:])
            self.passes = 8 if "32x32x16" in op else 4
            assert "32x32x16" in op or "16x16x32" in op
        elif op.startswith("v_"):
            self.kind = "valu"
            self.trans = base in TRANS
            self.dpp = ("_dpp" in op) or any(k in mods for k in ("row_", "quad_perm", "wave_"))
            self.perm = base.startswith("v_permlane")
            self.rdlane = base in ("v_readfirstlane_b32", "v_readlane_b32")
            assert not base.startswith("v_cmpx"), "avoid v_cmpx"
            if self.perm: self.dst = flat(R[:2]); self.src = flat(R[:2])
            elif base in ("v_add_co_u32", "v_sub_co_u32", "v_addc_co_u32", "v_subb_co_u32", "v_subrev_co_u32"):
                self.dst = flat(R[:2]); self.src = flat(R[2:])
            else:
                self.dst = R[0]; self.src = flat(R[1:])
                if base in ("v_fmac_f32", "v_dot2c_f32_bf16", "v_pk_fmac_f16", "v_writelane_b32") or self.dpp or "d16" in base: self.src += R[0]
                if base == "v_cndmask_b32" and len(ops) == 3: self.src += regs_of("vcc")
        elif op.startswith("ds_"):
            self.kind = "ds"
            if op.startswith("ds_read") or op.startswith("ds_bpermute") or op.startswith("ds_swizzle") or "_rtn" in op:
                self.dst = R[0]; self.src = flat(R[1:])
            else: self.src = flat(R)
        elif op.startswith("buffer_") or op.startswith("global_"):
            self.kind = "vmem"
            self.lds = (" lds" in (" " + mods)) or "load_lds" in op
            self.store = "store" in op or "atomic" in op
            if op in ("buffer_wbl2", "buffer_inv"): pass
            elif self.lds: self.src = flat(R) + [("s", "m0")]
            elif self.store:
                self.src = flat(R)
                self.data = R[0] if op.startswith("buffer_") else R[1]
                self.wide = op.endswith("x3") or op.endswith("x4")
            else:
                self.dst = R[0]; self.src = flat(R[1:])
                if "d16" in op: self.src += R[0]
        elif op.startswith("s_"):
            self.kind = "salu"
            if op in ("s_nop", "s_waitcnt", "s_barrier", "s_endpgm", "s_sleep", "s_setprio", "s_branch") or op.startswith("s_cbranch") or op.startswith("s_cmp") or op.startswith("s_bitcmp"):
                self.src = flat(R)
            else:
                self.dst = R[0] if R else []; self.src = flat(R[1:])
                if "saveexec" in op: self.dst = self.dst + regs_of("exec")
    def states(self):
        if self.label or self.directive or not self.op: return 0
        if self.op == "s_nop": return int(self.ops[0], 0) + 1
        return 1

def need(prev, cur):
    n = 0
    P, C = prev, cur
    pd = set(P.dst); cs = set(C.src); cd = set(C.dst)
    if P.kind == "valu":
        vd = {r for r in pd if r[0] in "va"}; sd = {r for r in pd if r[0] == "s"}
        if vd:
            if C.kind == "mfma" and vd & cs: n = max(n, 2)
            if C.kind == "valu":
                if C.rdlane and vd & cs: n = max(n, 1)
                if (C.dpp or C.perm) and vd & cs: n = max(n, 2)
                if P.trans and vd & cs: n = max(n, 1)
                if ("sdwa" in P.op or "op_sel" in P.mods and not P.base.startswith("v_pk")) and vd & (cs | cd): n = max(n, 1)
        if sd:
            if C.kind == "valu" and sd & cs: n = max(n, 4 if C.rdlane else 2)
            if C.kind == "vmem" and sd & cs: n = max(n, 5)
            if C.kind == "salu" and sd & cs: n = max(n, 1)
    if P.kind == "mfma":
        big = 12 if P.passes == 8 else 8
        if C.kind == "mfma":
            if pd & (set(C.A) | set(C.B)): n = max(n, big)
            if pd & set(C.C):
                if not (C.C == P.dst and C.passes == P.passes): n = max(n, big - 2)
            elif pd & cd: n = max(n, big)
        elif C.kind in ("valu", "ds", "vmem"):
            if pd & (cs | cd): n = max(n, big)
            if C.kind == "valu" and set(P.C) & cd: n = max(n, 7 if P.passes == 8 else 3)
    if P.kind == "salu" and ("s", "m0") in pd and C.kind == "vmem" and getattr(C, "lds", False): n = max(n, 1)
    if P.kind == "vmem" and getattr(P, "store", False) and getattr(P, "wide", False):
        if set(P.data) & cd: n = max(n, 2 if C.kind == "valu" else 1)
    return n

class Prog:
    def __init__(self):
        self.lines = []
        self.nlabel = 0
    def __call__(self, s):
        for l in s.split("\n"):
            l = l.strip()
            if l: self.lines.append(l)
    def label(self, base="L"):
        self.nlabel += 1
        return f"{base}_{self.nlabel}"
    def finish(self):
        out = []; hist = []
        for l in self.lines:
            I = Ins(l)
            if I.states() == 0:
                out.append(l); continue
            req = 0; dist = 0
            for P in reversed(hist):
                r = need(P, I) - dist
                if r > req: req = r
                dist += P.states()
                if dist >= 13: break
            while req > 0:
                k = min(req, 16)
                nop = Ins(f"s_nop {k-1}"); hist.append(nop); out.append(f"s_nop {k-1}")
                req -= k
            hist.append(I); out.append(l)
            if len(hist) > 40: hist = hist[-20:]
        return "\n".join(("" if (x.endswith(":") or x.startswith(".") or x.startswith(";")) else "    ") + x for x in out) + "\n"

def vr(a, n=1, p="v"):
    return f"{p}{a}" if n == 1 else f"{p}[{a}:{a+n-1}]"
def ar(a, n=1): return vr(a, n, "a")
def sr(a, n=1): return vr(a, n, "s")
```

```python
import sys
from asmlib import Prog, vr, ar, sr

NAME = "sequential_preLN__spectral_fnet__mixer_gmlp__prompt"
WS_AB   = 0x000000
WS_XB   = 0x148000
WS_H    = 0x180000
WS_HS   = 0x400000
WS_Z2   = 0x480000
WS_Z1   = 0x800000
WS_ZS   = 0xB00000
WS_V    = 0xC00000
WS_FL   = 0xF00000
WS_SIZE = 0x1000000
SX, SCS, SSS, SCD, SSD, SWI, SWS, SBS, SWO, SOUT, SW, ST = 4, 8, 12, 16, 20, 24, 28, 32, 36, 40, 44, 48
sWAVE, sC, sL = 52, 53, 54
sMASKHI = 55
SRDS = [(SX, 0, 2621440), (SCS, 8, 8388608), (SSS, 16, 8388608), (SCD, 24, 819200), (SSD, 32, 819200),
        (SWI, 48, 1966080), (SWS, 56, 8388608), (SBS, 64, 4096), (SWO, 72, 983040), (SOUT, 80, 2621440), (SW, 96, WS_SIZE)]
vLANE = 1
vL16 = 2

def prologue(p, kname, end):
    p(f".globl {kname}\n.p2align 8\n.type {kname},@function\n{kname}:")
    p(f"s_cmp_ge_u32 s2, 256\ns_cbranch_scc1 {end}")
    for (s, off, size) in SRDS:
        p(f"s_load_dwordx2 {sr(s,2)}, s[0:1], {off}")
    for (s, off, size) in SRDS:
        p(f"s_mov_b32 s{s+2}, {size}\ns_mov_b32 s{s+3}, 0x20000")
    p(f"s_mov_b32 s{ST+3}, 0x20000")
    p(f"v_lshrrev_b32 v3, 6, v0\nv_and_b32 v{vLANE}, 63, v0\nv_readfirstlane_b32 s{sWAVE}, v3")
    p(f"v_lshlrev_b32 v{vL16}, 4, v{vLANE}")
    p(f"s_and_b32 s{sC}, s2, 7\ns_lshr_b32 s{sL}, s2, 3\ns_mov_b32 s{sMASKHI}, 0xffff0000")
    p("s_waitcnt lgkmcnt(0)")

def sel_srd(p, a, b):
    p(f"s_cselect_b32 s{ST}, s{a}, s{b}\ns_cselect_b32 s{ST+1}, s{a+1}, s{b+1}\ns_cselect_b32 s{ST+2}, s{a+2}, s{b+2}")

def swz_src(p, vdst, row_bytes, tmp, rowmul=1, st=95):
    p(f"v_lshrrev_b32 v{tmp}, 3, v{vLANE}")
    p(f"s_mov_b32 s{st}, {row_bytes*rowmul}")
    p(f"v_mul_lo_u32 v{vdst}, v{tmp}, s{st}")
    p(f"v_lshrrev_b32 v{tmp}, 4, v{vLANE}")
    p(f"v_and_b32 v{tmp+1}, 7, v{vLANE}")
    p(f"v_xor_b32 v{tmp}, v{tmp}, v{tmp+1}")
    p(f"v_lshl_add_u32 v{vdst}, v{tmp}, 4, v{vdst}")
    p(f"v_xor_b32 v{vdst+1}, 64, v{vdst}")
    p(f"v_add_u32 v{vdst+1}, {8*row_bytes*rowmul}, v{vdst+1}")

def swz_rd(p, vdst, tmp):
    p(f"v_and_b32 v{tmp}, 15, v{vLANE}")
    p(f"v_lshlrev_b32 v{vdst}, 7, v{tmp}")
    p(f"v_lshrrev_b32 v{tmp}, 1, v{tmp}")
    p(f"v_lshrrev_b32 v{tmp+1}, 4, v{vLANE}")
    p(f"v_xor_b32 v{tmp}, v{tmp}, v{tmp+1}")
    p(f"v_lshl_add_u32 v{vdst}, v{tmp}, 4, v{vdst}")
    p(f"v_xor_b32 v{vdst+1}, 64, v{vdst}")

P1_XR = 10272
P1_B = 41216
P1_XA = P1_B + 102400
P1_T = P1_XA + 640
P1_LDS = P1_T + 128

def P1(p, st="sc1"):
    sRG, sQ, sG, sPI, sTY, sNT = 60, 61, 62, 63, 64, 65
    sG0M, sJ0M, sJ31M = 66, 68, 70
    t = 72
    p(f"s_lshr_b32 s{sRG}, s{sL}, 2\ns_lshl_b32 s{t}, s{sC}, 3\ns_add_u32 s{sRG}, s{sRG}, s{t}\ns_and_b32 s{sQ}, s{sL}, 3")
    p(f"s_lshl_b32 s{sG}, s{sRG}, 3\ns_lshl_b32 s{t}, s{sWAVE}, 1\ns_add_u32 s{sG}, s{sG}, s{t}")
    vL4 = 4
    p(f"v_lshlrev_b32 v{vL4}, 2, v{vLANE}")
    p(f"s_mul_i32 s{t+2}, s{sWAVE}, {P1_XR}")
    for gb in range(2):
        p(f"s_add_u32 s{t}, s{sG}, {gb}\ns_mul_i32 s{t}, s{t}, 1280")
        for kk in range(4):
            if kk == 0: p(f"s_mov_b32 s{t+1}, s{t}")
            elif kk == 1: p(f"s_sub_u32 s{t+1}, {2048*1280}, s{t}")
            elif kk == 2: p(f"s_sub_u32 s{t+1}, {1024*1280}, s{t}")
            else: p(f"s_add_u32 s{t+1}, {1024*1280}, s{t}")
            if gb == 0 and kk in (1, 3):
                p(f"s_cmp_eq_u32 s{t}, 0\ns_cselect_b32 s{t+1}, {(512 if kk==1 else 1536)*1280}, s{t+1}")
            p(f"s_add_u32 m0, s{t+2}, {(gb*4+kk)*1280}")
            p(f"buffer_load_dwordx4 v{vL16}, {sr(SX,4)}, s{t+1} offen lds")
            p(f"buffer_load_dword v{vL4}, {sr(SX,4)}, s{t+1} offen offset:1024 lds")
    vBS = 6
    swz_src(p, vBS, 1280, 10)
    p(f"s_mul_i32 s{sPI}, s{sWAVE}, 3\ns_add_u32 s{sPI}, s{sPI}, 4")
    p(f"s_lshl_b32 s{t}, s{sWAVE}, 1\ns_sub_u32 s{t}, s{t}, 4\ns_cmp_ge_u32 s{sWAVE}, 2\ns_cselect_b32 s{sPI}, s{t}, s{sPI}")
    p(f"s_or_b32 s{t}, s{sQ}, s{sPI}\ns_cmp_eq_u32 s{t}, 0\ns_cselect_b32 s{t}, {320*1280}, 0")
    p(f"v_cmp_gt_u32 vcc, 8, v{vLANE}\nv_mov_b32 v10, s{t}\nv_cndmask_b32 v10, 0, v10, vcc\nv_add_u32 v8, v{vBS}, v10")
    def bdma(slot):
        p(f"s_add_u32 s{t}, s{sPI}, {slot}")
        p(f"s_mul_i32 s{t+1}, s{t}, 10240\ns_add_u32 s{t+1}, s{t+1}, {P1_B}")
        p(f"s_cmp_ge_u32 s{t}, 5\ns_cselect_b32 s{t+3}, 5, 0")
        sel_srd(p, SSD, SCD)
        p(f"s_sub_u32 s{t}, s{t}, s{t+3}\ns_mul_i32 s{t+3}, s{sQ}, 5\ns_add_u32 s{t}, s{t}, s{t+3}\ns_mul_i32 s{t}, s{t}, {16*1280}")
        for pc in range(5):
            for hf in range(2):
                p(f"s_add_u32 m0, s{t+1}, {pc*2048 + hf*1024 - pc*128}")
                v = vBS + hf if not (slot == 0 and hf == 0) else 8
                p(f"buffer_load_dwordx4 v{v}, {sr(ST,4)}, s{t} offen offset:{pc*128} lds")
    bdma(0); bdma(1)
    vJ, vD, vM = 10, 12, 16
    p(f"v_and_b32 v{vJ}, 31, v{vLANE}")
    p(f"v_cmp_eq_u32 {sr(sJ0M,2)}, 0, v{vJ}\nv_cmp_eq_u32 {sr(sJ31M,2)}, 31, v{vJ}")
    p(f"v_lshrrev_b32 v11, 5, v{vLANE}\nv_mul_u32_u24 v11, 5120, v11\nv_add_u32 v11, s{t+2}, v11")
    p(f"v_mul_u32_u24 v{vJ}, 20, v{vJ}")
    p(f"v_add_u32 v{vD}, v11, v{vJ}\nv_sub_u32 v{vM}, v11, v{vJ}\nv_add_u32 v{vM}, 1260, v{vM}")
    for kk in range(1, 4):
        p(f"v_add_u32 v{vD+kk}, {1280*kk}, v{vD}\nv_add_u32 v{vM+kk}, {1280*kk}, v{vM}")
    p(f"s_cmp_eq_u32 s{sG}, 0\ns_cselect_b32 s{sG0M}, -1, 0\ns_mov_b32 s{sG0M+1}, 0")
    vFJ0 = 20
    p(f"v_cndmask_b32 v{vFJ0}, 0, 1.0, {sr(sJ0M,2)}")
    vAW = 21
    p(f"v_lshrrev_b32 v11, 5, v{vLANE}\nv_mul_u32_u24 v11, 640, v11\nv_add3_u32 v{vAW}, v11, v{vJ}, s{t+2}")
    for cmb in range(1, 4): p(f"v_add_u32 v{vAW+cmb}, {1280*cmb}, v{vAW}")
    p("s_waitcnt vmcnt(20)")
    RAW = 64
    for kk in range(4):
        r = RAW + 12*kk
        p(f"ds_read2_b32 {vr(r,2)}, v{vD+kk} offset0:0 offset1:1")
        p(f"ds_read2_b32 {vr(r+6,2)}, v{vM+kk} offset0:0 offset1:1")
        p(f"ds_read2_b32 {vr(r+8,2)}, v{vM+kk} offset0:2 offset1:3")
        p(f"ds_read2_b32 {vr(r+10,2)}, v{vM+kk} offset0:4 offset1:5")
        p(f"ds_read2_b32 {vr(r+2,2)}, v{vD+kk} offset0:2 offset1:3")
        p(f"ds_read_b32 v{r+4}, v{vD+kk} offset:16")
    lab = p.label("P1_no3")
    p(f"s_cmp_ge_u32 s{sWAVE}, 2\ns_cbranch_scc1 {lab}")
    bdma(2)
    p(f"{lab}:")
    T, CA = 112, 152
    S2, Q2, Y = 192, 200, 208
    tA = 212
    for kk in range(4):
        r = RAW + 12*kk
        p(f"s_waitcnt lgkmcnt({min(15, 18-6*kk)})" if kk < 3 else "s_waitcnt lgkmcnt(0)")
        if kk == 0: p("s_waitcnt lgkmcnt(15)")
        for k in range(5):
            a = tA + 4*(k & 1); b = a + 2
            p(f"v_lshlrev_b32 v{a}, 16, v{r+k}\nv_and_b32 v{a+1}, s{sMASKHI}, v{r+k}")
            p(f"v_lshlrev_b32 v{b}, 16, v{r+6+5-k}\nv_and_b32 v{b+1}, s{sMASKHI}, v{r+6+4-k}")
            if k == 0: p(f"v_cndmask_b32 v{b}, v{b}, 0, {sr(sJ0M,2)}")
            tt, cc = T+10*kk+2*k, CA+10*kk+2*k
            p(f"v_pk_add_f32 {vr(tt,2)}, {vr(a,2)}, {vr(b,2)}")
            p(f"v_pk_add_f32 {vr(cc,2)}, {vr(a,2)}, {vr(b,2)} neg_lo:[0,1] neg_hi:[0,1]")
            if k == 0:
                p(f"v_pk_mul_f32 {vr(Q2+2*kk,2)}, {vr(tt,2)}, {vr(tt,2)}")
            else:
                p(f"v_pk_add_f32 {vr(S2+2*kk,2)}, {vr(tt,2)}, {vr(S2+2*kk if k > 1 else tt-2,2)}")
                p(f"v_pk_fma_f32 {vr(Q2+2*kk,2)}, {vr(tt,2)}, {vr(tt,2)}, {vr(Q2+2*kk,2)}")
            p(f"v_pk_fma_f32 {vr(Q2+2*kk,2)}, {vr(cc,2)}, {vr(cc,2)}, {vr(Q2+2*kk,2)}")
        p(f"v_lshlrev_b32 v{Y+kk}, 16, v{r+6}\nv_cndmask_b32 v{Y+kk}, 0, v{Y+kk}, {sr(sJ31M,2)}")
        p(f"v_add_f32 v{S2+2*kk}, v{S2+2*kk}, v{S2+2*kk+1}\nv_add_f32 v{Q2+2*kk}, v{Q2+2*kk}, v{Q2+2*kk+1}")
        p(f"v_add_f32 v{S2+2*kk}, v{S2+2*kk}, v{Y+kk}\nv_add_f32 v{tA}, v{Y+kk}, v{Y+kk}\nv_fmac_f32 v{Q2+2*kk}, v{tA}, v{Y+kk}")
    red = [S2+2*k for k in range(4)] + [Q2+2*k for k in range(4)]
    for mod in ("quad_perm:[1,0,3,2]", "quad_perm:[2,3,0,1]", "row_half_mirror", "row_mirror"):
        for x in red: p(f"v_add_f32_dpp v{x}, v{x}, v{x} {mod} row_mask:0xf bank_mask:0xf")
    for x in red: p(f"v_mov_b32 v{x+1}, v{x}")
    for x in red: p(f"v_permlane16_swap_b32 v{x}, v{x+1}")
    for x in red: p(f"v_add_f32 v{x}, v{x}, v{x+1}")
    p(f"s_mov_b32 s{t}, 0x3acccccd\ns_mov_b32 s{t+1}, 0x3a4ccccd\ns_mov_b32 s{t+3}, 0x3727c5ac")
    for k in range(4): p(f"v_mul_f32 v{S2+2*k}, s{t}, v{S2+2*k}")
    for k in range(4): p(f"v_mul_f32 v{S2+2*k+1}, v{S2+2*k}, v{S2+2*k}")
    for k in range(4): p(f"v_fma_f32 v{Q2+2*k}, v{Q2+2*k}, s{t+1}, -v{S2+2*k+1}")
    for k in range(4): p(f"v_add_f32 v{Q2+2*k}, s{t+3}, v{Q2+2*k}")
    for k in range(4): p(f"v_rsq_f32 v{Q2+2*k}, v{Q2+2*k}")
    M = lambda k: S2+2*k
    R = lambda k: Q2+2*k
    for k in range(4): p(f"v_fmac_f32 v{T+10*k}, v{vFJ0}, v{M(k)}")
    for k in range(4): p(f"v_sub_f32 v{Y+k}, v{Y+k}, v{M(k)}")
    A1, A3, B0, B2, B1, K1, K2 = 220, 222, 224, 226, 228, 230, 232
    g0 = sr(sG0M, 2)
    p(f"v_cndmask_b32 v{A1}, v{R(1)}, 0, {g0}\nv_cndmask_b32 v{A3}, v{R(3)}, 0, {g0}")
    p(f"v_cndmask_b32 v{B0}, v{R(0)}, 0, {g0}\nv_cndmask_b32 v{B2}, v{R(2)}, 0, {g0}")
    p(f"v_cndmask_b32 v{B1}, -v{R(1)}, v{R(1)}, {g0}")
    p(f"v_mul_f32 v{K1}, v{R(0)}, v{M(0)}\nv_mul_f32 v{K2}, v{R(2)}, v{M(2)}")
    p(f"v_fmac_f32 v{K1}, v{A1}, v{M(1)}\nv_fmac_f32 v{K2}, v{A3}, v{M(3)}")
    p(f"v_mul_f32 v{K1}, -2.0, v{K1}\nv_mul_f32 v{K2}, -2.0, v{K2}")
    bc = "op_sel_hi:[0,1,0]"; bc1 = "op_sel_hi:[0,1,1]"
    OUT = 64
    U, W = 236, 240
    for k in range(5):
        tt = lambda r_: vr(T+10*r_+2*k, 2)
        cc = lambda r_: vr(CA+10*r_+2*k, 2)
        u, w = U, U+2; u2, w2 = W, W+2
        p(f"v_pk_fma_f32 {vr(u,2)}, {vr(R(0),2)}, {tt(0)}, {vr(K1,2)} {bc}")
        p(f"v_pk_fma_f32 {vr(w,2)}, {vr(R(2),2)}, {tt(2)}, {vr(K2,2)} {bc}")
        p(f"v_pk_mul_f32 {vr(u2,2)}, {vr(B0,2)}, {cc(0)} op_sel_hi:[0,1]")
        p(f"v_pk_mul_f32 {vr(w2,2)}, {vr(B2,2)}, {cc(2)} op_sel_hi:[0,1]")
        p(f"v_pk_fma_f32 {vr(u,2)}, {vr(A1,2)}, {tt(1)}, {vr(u,2)} {bc1}")
        p(f"v_pk_fma_f32 {vr(w,2)}, {vr(A3,2)}, {tt(3)}, {vr(w,2)} {bc1}")
        p(f"v_pk_fma_f32 {vr(u2,2)}, {vr(B1,2)}, {cc(1)}, {vr(u2,2)} {bc1}")
        p(f"v_pk_fma_f32 {vr(w2,2)}, {vr(R(3),2)}, {cc(3)}, {vr(w2,2)} {bc1} neg_lo:[1,0,0] neg_hi:[1,0,0]")
        e = 244
        p(f"v_pk_add_f32 {vr(e,2)}, {vr(u,2)}, {vr(w,2)}")
        p(f"v_pk_add_f32 {vr(e+2,2)}, {vr(u,2)}, {vr(w,2)} neg_lo:[0,1] neg_hi:[0,1]")
        p(f"v_pk_add_f32 {vr(e+4,2)}, {vr(u2,2)}, {vr(w2,2)} neg_lo:[0,1] neg_hi:[0,1]")
        p(f"v_pk_add_f32 {vr(e+6,2)}, {vr(u2,2)}, {vr(w2,2)}")
        for cmb in range(4): p(f"v_cvt_pk_bf16_f32 v{OUT+6*cmb+k}, v{e+2*cmb}, v{e+2*cmb+1}")
    for cmb in range(4):
        o = OUT+6*cmb
        p(f"ds_write2_b32 v{vAW+cmb}, v{o}, v{o+1} offset0:0 offset1:1")
        p(f"ds_write2_b32 v{vAW+cmb}, v{o+2}, v{o+3} offset0:2 offset1:3")
        p(f"ds_write_b32 v{vAW+cmb}, v{o+4} offset:16")
    p(f"v_mul_f32 v{U}, v{R(0)}, v{Y}\nv_mul_f32 v{U+1}, v{R(2)}, v{Y+2}")
    p(f"v_fmac_f32 v{U}, v{A1}, v{Y+1}\nv_fmac_f32 v{U+1}, v{A3}, v{Y+3}")
    p(f"v_add_f32 v{U+2}, v{U}, v{U+1}\nv_sub_f32 v{U+3}, v{U}, v{U+1}")
    p(f"v_lshrrev_b32 v11, 5, v{vLANE}\ns_lshl_b32 s{t}, s{sWAVE}, 3\ns_add_u32 s{t}, s{t}, {P1_T}\nv_lshl_add_u32 v11, v11, 2, s{t}")
    p(f"s_mov_b64 exec, {sr(sJ31M,2)}\nds_write2_b32 v11, v{U+2}, v{U+3} offset0:0 offset1:8\ns_mov_b64 exec, -1")
    lab = p.label("P1_nox")
    p(f"s_cmp_lg_u32 s{sG}, 0\ns_cbranch_scc1 {lab}")
    p(f"v_mul_f32 v{K1}, v{R(1)}, v{M(1)}\nv_fmac_f32 v{K1}, v{R(3)}, v{M(3)}\nv_mul_f32 v{K1}, -2.0, v{K1}")
    for k in range(5):
        p(f"v_pk_fma_f32 {vr(U,2)}, {vr(R(1),2)}, {vr(T+10+2*k,2)}, {vr(K1,2)} {bc}")
        p(f"v_pk_fma_f32 {vr(U,2)}, {vr(R(3),2)}, {vr(T+30+2*k,2)}, {vr(U,2)} {bc1}")
        p(f"v_cvt_pk_bf16_f32 v{100+k}, v{U}, v{U+1}")
    p(f"v_mul_f32 v{U}, v{R(1)}, v{Y+1}\nv_fmac_f32 v{U}, v{R(3)}, v{Y+3}")
    p(f"v_add_u32 v11, {P1_XA}, v{vJ}\nv_mov_b32 v25, {P1_T+64}")
    p(f"s_mov_b64 exec, {g0}")
    p(f"ds_write2_b32 v11, v100, v101 offset0:0 offset1:1\nds_write2_b32 v11, v102, v103 offset0:2 offset1:3\nds_write_b32 v11, v104 offset:16")
    p(f"s_mov_b64 exec, 0x80000000\nds_write_b32 v25, v{U}\ns_mov_b64 exec, -1")
    p(f"{lab}:")
    vA, vB, vSG, vT, vST, vXA, vXS = 26, 28, 30, 31, 32, 33, 34
    p(f"v_and_b32 v10, 7, v{vLANE}\nv_lshrrev_b32 v11, 1, v10\nv_mul_u32_u24 v{vA}, {P1_XR}, v11")
    p(f"v_and_b32 v10, 1, v{vLANE}\nv_mul_u32_u24 v11, 640, v10\nv_add_u32 v{vA}, v{vA}, v11")
    p(f"v_lshlrev_b32 v{vSG}, 31, v10\nv_or_b32 v{vSG}, 1.0, v{vSG}")
    p(f"v_bfe_u32 v10, v{vLANE}, 3, 1\nv_mul_u32_u24 v11, 1280, v10\nv_add_u32 v{vA}, v{vA}, v11")
    p(f"v_lshrrev_b32 v10, 4, v{vLANE}\nv_lshl_add_u32 v{vA}, v10, 4, v{vA}")
    p(f"v_lshlrev_b32 v{vT}, 4, v10\nv_add_u32 v{vXA}, {P1_XA}, v{vT}\nv_add_u32 v{vT}, {P1_T}, v{vT}")
    swz_rd(p, vB, 10)
    p(f"v_lshrrev_b32 v10, 5, v{vLANE}\nv_mul_u32_u24 v{vST}, 327680, v10\nv_and_b32 v10, 15, v{vLANE}\nv_lshlrev_b32 v{vXS}, 2, v10\nv_lshl_add_u32 v{vST}, v10, 4, v{vST}")
    p(f"v_bfe_u32 v10, v{vLANE}, 4, 1\nv_lshl_add_u32 v{vST}, v10, 3, v{vST}")
    sBASE = t+4
    p(f"s_mul_i32 s{sBASE}, s{sQ}, 81920\ns_lshr_b32 s{t}, s{sRG}, 2\ns_mul_i32 s{t}, s{t}, 5120\ns_add_u32 s{sBASE}, s{sBASE}, s{t}")
    p(f"s_and_b32 s{t}, s{sRG}, 3\ns_lshl_b32 s{t}, s{t}, 8\ns_add_u32 s{sBASE}, s{sBASE}, s{t}\ns_add_u32 s{sBASE}, s{sBASE}, {WS_AB}")
    p("s_waitcnt vmcnt(0) lgkmcnt(0)\ns_barrier")
    FA, FB, FX, ACC, ACX, TI = 64, 104, 144, 184, 188, 192
    p(f"ds_read_b128 {vr(TI,4)}, v{vT}\nv_mov_b32 v10, {P1_T+64}\nds_read_b32 v{TI+4}, v10")
    done = p.label("P1_done")
    for slot in range(3):
        if slot == 2: p(f"s_cmp_ge_u32 s{sWAVE}, 2\ns_cbranch_scc1 {done}")
        p(f"s_add_u32 s{t}, s{sPI}, {slot}\ns_cmp_ge_u32 s{t}, 5\ns_cselect_b32 s{sTY}, 1, 0\ns_cselect_b32 s{t+1}, 0, 1.0")
        p(f"s_mul_i32 s{sNT}, s{sTY}, 5\ns_sub_u32 s{sNT}, s{t}, s{sNT}")
        p(f"s_mul_i32 s{t}, s{t}, 10240\ns_add_u32 s{t}, s{t}, {P1_B}\ns_mul_i32 s{t+2}, s{sTY}, 2560")
        p(f"v_add_u32 v10, s{t+2}, v{vA}\nv_add_u32 v12, s{t}, v{vB}\nv_add_u32 v13, s{t}, v{vB+1}\nv_mul_f32 v11, s{t+1}, v{vSG}")
        for ks in range(10):
            p(f"ds_read_b128 {vr(FA+4*ks,4)}, v10 offset:{64*ks}")
            p(f"ds_read_b128 {vr(FB+4*ks,4)}, v{12+(ks&1)} offset:{2048*(ks>>1)}")
        p("s_waitcnt lgkmcnt(15)")
        for r_ in range(4): p(f"v_mul_f32 v{ACC+r_}, v11, v{TI+r_}")
        for ks in range(10):
            if ks >= 2: p(f"s_waitcnt lgkmcnt({18-2*ks})")
            p(f"v_mfma_f32_16x16x32_bf16 {vr(ACC,4)}, {vr(FA+4*ks,4)}, {vr(FB+4*ks,4)}, {vr(ACC,4)}")
        p(f"s_mul_i32 s{t}, s{sTY}, 655360\ns_lshl_b32 s{t+1}, s{sNT}, 10\ns_add_u32 s{t}, s{t}, s{t+1}\ns_add_u32 s{t}, s{t}, s{sBASE}")
        p(f"v_cvt_pk_bf16_f32 v14, v{ACC}, v{ACC+1}\nv_cvt_pk_bf16_f32 v15, v{ACC+2}, v{ACC+3}")
        p(f"buffer_store_dwordx2 v[14:15], v{vST}, {sr(SW,4)}, s{t} offen {st}")
        lab = p.label("P1_nx"); lab2 = p.label("P1_sinx")
        p(f"s_cmp_lg_u32 s{sRG}, 0\ns_cbranch_scc1 {lab}")
        p(f"s_mul_i32 s{t}, s{sQ}, 320\ns_lshl_b32 s{t+1}, s{sNT}, 6\ns_add_u32 s{t}, s{t}, s{t+1}\ns_add_u32 s{t}, s{t}, {WS_XB}")
        p(f"s_cmp_lg_u32 s{sTY}, 0\ns_cbranch_scc1 {lab2}")
        for ks in range(10): p(f"ds_read_b128 {vr(FX+4*ks,4)}, v{vXA} offset:{64*ks}")
        for r_ in range(4): p(f"v_mul_f32 v{ACX+r_}, v{vSG}, v{TI+4}")
        p("s_waitcnt lgkmcnt(0)")
        for ks in range(10): p(f"v_mfma_f32_16x16x32_bf16 {vr(ACX,4)}, {vr(FX+4*ks,4)}, {vr(FB+4*ks,4)}, {vr(ACX,4)}")
        p(f"s_mov_b64 exec, 0xffff\nbuffer_store_dword v{ACX}, v{vXS}, {sr(SW,4)}, s{t} offen {st}\ns_mov_b64 exec, -1\ns_branch {lab}")
        p(f"{lab2}:")
        p(f"s_mov_b32 exec_lo, 0\ns_mov_b32 exec_hi, 0xffff\nbuffer_store_dword v{ACC}, v{vXS}, {sr(SW,4)}, s{t} offen offset:1280 {st}\ns_mov_b64 exec, -1")
        p(f"{lab}:")
    p(f"{done}:")


P2_W = 9216
sI2, sP2, sQ2 = 56, 57, 58
P2_MF, P2_MX, P2_XD, P2_RING, P2_ACC, P2_ACX, P2_XB = 16, 48, 80, 112, 192, 212, 232

def P2_params(p):
    t = 72
    p(f"s_lshl_b32 s{sI2}, s{sC}, 2\ns_lshr_b32 s{t}, s{sL}, 3\ns_add_u32 s{sI2}, s{sI2}, s{t}")
    p(f"s_bfe_u32 s{sP2}, s{sL}, 0x10002\ns_and_b32 s{sQ2}, s{sL}, 3")

def P2_pre_issue(p, lds0):
    t = 72
    swz_src(p, 6, 4096, 10, rowmul=2)
    p(f"s_cmp_ge_u32 s{sWAVE}, 2")
    sel_srd(p, SSS, SCS)
    p(f"s_lshl_b32 s{t}, s{sI2}, 5\ns_add_u32 s{t+1}, s{t}, 32\ns_add_u32 s{t}, s{t}, s{sP2}")
    p(f"s_lshl_b32 s{t}, s{t}, 12\ns_lshl_b32 s{t+1}, s{t+1}, 12")
    p(f"s_and_b32 s{t+2}, s{sWAVE}, 1\ns_lshl_b32 s{t+2}, s{t+2}, 9\ns_add_u32 s{t}, s{t}, s{t+2}\ns_add_u32 s{t+1}, s{t+1}, s{t+2}")
    p(f"s_mul_i32 s{t+2}, s{sWAVE}, {P2_W}\ns_add_u32 s{t+2}, s{t+2}, {lds0}")
    p(f"s_and_b32 s{t+3}, s{sI2}, 3")
    for pc in range(4):
        p(f"s_add_u32 s{t+4}, s{t+3}, {pc}\ns_and_b32 s{t+4}, s{t+4}, 3\ns_lshl_b32 s{t+4}, s{t+4}, 7\ns_add_u32 s{t+4}, s{t+4}, s{t}")
        for hf in range(2):
            p(f"s_add_u32 m0, s{t+2}, {pc*2048 + hf*1024}")
            p(f"buffer_load_dwordx4 v{6+hf}, {sr(ST,4)}, s{t+4} offen lds")
    p(f"s_lshl_b32 s{t+4}, s{t+3}, 3\nv_add_u32 v10, s{t+4}, v{vLANE}\nv_and_b32 v10, 31, v10\nv_lshlrev_b32 v10, 4, v10")
    p(f"s_add_u32 m0, s{t+2}, 8192\nbuffer_load_dwordx4 v10, {sr(ST,4)}, s{t+1} offen lds")
    R = P2_RING
    p(f"v_and_b32 v10, 3, v{vLANE}\ns_lshl_b32 s{t+3}, s{sWAVE}, 2\nv_add_u32 v10, s{t+3}, v10\nv_mul_u32_u24 v10, 2560, v10")
    p(f"v_lshrrev_b32 v11, 2, v{vLANE}\nv_lshlrev_b32 v11, 4, v11\ns_mul_i32 s{t+3}, s{sQ2}, 160\nv_add_u32 v11, s{t+3}, v11")
    p(f"v_sub_u32 v12, 1264, v11\nv_add_u32 v13, 16, v12\nv_cmp_eq_u32 vcc, 0, v11\nv_mov_b32 v14, 640\nv_cndmask_b32 v13, v13, v14, vcc")
    p(f"s_lshl_b32 s{t}, s{sI2}, 5\ns_add_u32 s{t+1}, s{t}, s{sP2}\ns_mul_i32 s{t+1}, s{t+1}, 1280")
    p(f"s_sub_u32 s{t}, s{sP2}, s{t}\ns_add_u32 s{t}, s{t}, 2046\ns_mul_i32 s{t}, s{t}, 1280")
    p(f"v_add_u32 v8, s{t+1}, v10\nv_sub_u32 v9, s{t}, v10")
    for sd in range(2):
        r = R + 12*sd
        p(f"v_add_u32 v14, v{8+sd}, v11\nbuffer_load_dwordx4 {vr(r,4)}, v14, {sr(SX,4)}, 0 offen")
        p(f"v_add_u32 v15, v{8+sd}, v12\nbuffer_load_dwordx4 {vr(r+4,4)}, v15, {sr(SX,4)}, 0 offen")
        p(f"v_add_u32 v14, v{8+sd}, v13\nbuffer_load_dword v{r+8}, v14, {sr(SX,4)}, 0 offen")

def P2_pre_finish(p, lds0):
    t = 72
    swz_rd(p, 6, 10)
    p(f"s_mul_i32 s{t+2}, s{sWAVE}, {P2_W}\ns_add_u32 s{t+2}, s{t+2}, {lds0}")
    p(f"v_add_u32 v6, s{t+2}, v6\nv_add_u32 v7, s{t+2}, v7\nv_lshrrev_b32 v10, 4, v{vLANE}\nv_lshl_add_u32 v10, v10, 4, s{t+2}")
    for ks in range(8):
        p(f"ds_read_b128 {vr(P2_MF+4*ks,4)}, v{6+(ks&1)} offset:{2048*(ks>>1)}")
        p(f"ds_read_b128 {vr(P2_MX+4*ks,4)}, v10 offset:{8192+64*ks}")
    for sd in range(2):
        r = P2_RING + 12*sd; x = P2_XD + 16*sd
        for k in range(4):
            p(f"v_lshlrev_b32 v{x+2*k}, 16, v{r+k}\nv_and_b32 v{x+2*k+1}, s{sMASKHI}, v{r+k}")
        p(f"v_lshlrev_b32 v{x+8}, 16, v{r+8}")
        for i in range(1, 8):
            wi = 8 - i
            if wi & 1: p(f"v_and_b32 v{x+8+i}, s{sMASKHI}, v{r+4+(wi>>1)}")
            else: p(f"v_lshlrev_b32 v{x+8+i}, 16, v{r+4+(wi>>1)}")
    p("s_waitcnt lgkmcnt(0)")

def P2_main(p, lds0, st=""):
    t = 72
    RING, ACC, ACX = P2_RING, P2_ACC, P2_ACX
    p(f"s_lshr_b32 s{t}, s{sWAVE}, 1\ns_lshl_b32 s{t}, s{t}, 1\ns_add_u32 s{t}, s{t}, s{sP2}\ns_lshl_b32 s{t}, s{t}, 2\ns_add_u32 s{t}, s{t}, s{sQ2}")
    p(f"s_lshl_b32 s{t}, s{t}, 1\ns_and_b32 s{t+1}, s{sWAVE}, 1\ns_add_u32 s{t}, s{t}, s{t+1}\ns_mul_i32 s{t}, s{t}, 40960\ns_add_u32 s{t}, s{t}, {WS_AB}")
    p(f"s_and_b32 s{t+1}, s{sI2}, 3\ns_lshl_b32 s{t+1}, s{t+1}, 1")
    sK = 80
    for k in range(8):
        p(f"s_add_u32 s{t+2}, s{t+1}, {k}\ns_and_b32 s{t+2}, s{t+2}, 7\ns_mul_i32 s{t+2}, s{t+2}, 5120\ns_add_u32 s{sK+k}, s{t+2}, s{t}")
    p(f"v_add_u32 v3, 4096, v{vL16}")
    def ld(k):
        for nt in range(5):
            r = RING + ((k & 3)*5 + nt)*4
            if nt < 4: p(f"buffer_load_dwordx4 {vr(r,4)}, v{vL16}, {sr(SW,4)}, s{sK+k} offen offset:{nt*1024} sc1")
            else: p(f"buffer_load_dwordx4 {vr(r,4)}, v3, {sr(SW,4)}, s{sK+k} offen sc1")
    for k in range(4): ld(k)
    p(f"v_lshrrev_b32 v10, 2, v{vLANE}\nv_lshlrev_b32 v11, 5, v10\ns_mul_i32 s{t}, s{sQ2}, 320\ns_mul_i32 s{t+1}, s{sP2}, 1280\ns_add_u32 s{t}, s{t}, s{t+1}\ns_add_u32 s{t}, s{t}, {WS_XB}")
    p(f"buffer_load_dwordx4 {vr(P2_XB,4)}, v11, {sr(SW,4)}, s{t} offen sc1\nbuffer_load_dwordx4 {vr(P2_XB+4,4)}, v11, {sr(SW,4)}, s{t} offen offset:16 sc1")
    for r in range(40): p(f"v_mov_b32 v{ACC+r}, 0")
    vPW, vRA, vRB, vHA, vHB, vSG, vSP = 240, 241, 242, 243, 244, 246, 248
    p(f"s_mul_i32 s{t+2}, s{sWAVE}, {P2_W}\ns_add_u32 s{t+2}, s{t+2}, {lds0}")
    p(f"v_and_b32 v12, 15, v{vLANE}\nv_mul_u32_u24 v12, 336, v12\nv_lshrrev_b32 v13, 4, v{vLANE}\nv_lshl_add_u32 v12, v13, 4, v12\nv_add_u32 v{vPW}, s{t+2}, v12")
    p(f"v_and_b32 v12, 3, v{vLANE}\ns_lshl_b32 s{t+3}, s{sWAVE}, 2\nv_add_u32 v12, s{t+3}, v12")
    p(f"v_mul_u32_u24 v13, 336, v12\nv_add3_u32 v{vRA}, v13, v11, {lds0}" if lds0 <= 64 else f"v_mul_u32_u24 v13, 336, v12\nv_add_u32 v13, {lds0}, v13\nv_add_u32 v{vRA}, v13, v11")
    p(f"s_cmp_eq_u32 s{sP2}, 0\ns_cselect_b32 s{t+3}, 336, 0\ns_cselect_b32 s{t+4}, 0, 0x80000000\nv_add_u32 v{vRB}, s{t+3}, v{vRA}")
    p(f"v_lshlrev_b32 v13, 8, v10\nv_lshl_add_u32 v{vHA}, v12, 4, v13\nv_sub_u32 v14, 15, v12\nv_lshl_add_u32 v{vHB}, v14, 4, v13")
    p(f"v_lshlrev_b32 v{vSG}, 31, v{vLANE}\nv_or_b32 v{vSG}, 1.0, v{vSG}\nv_xor_b32 v{vSP}, s{t+4}, v{vSG}")
    vSA, vSB = 250, 251
    p(f"v_lshlrev_b32 v{vSA}, 3, v12\nv_lshlrev_b32 v{vSB}, 3, v14")
    sZ = 66
    p(f"s_cmp_eq_u32 s{sQ2}, 0\ns_cselect_b32 s{sZ}, 15, 0\ns_mov_b32 s{sZ+1}, 0")
    sHA, sHB, sSA, sSB = 88, 90, 92, 93
    p(f"s_lshl_b32 s{t}, s{sI2}, 1\ns_add_u32 s{t}, s{t}, s{sP2}\ns_sub_u32 s{t+1}, 126, s{t}\ns_lshl_b32 s{t+3}, s{sP2}, 1\ns_add_u32 s{t+1}, s{t+1}, s{t+3}")
    p(f"s_mul_i32 s{t+3}, s{sQ2}, 2560\ns_add_u32 s{t+3}, s{t+3}, {WS_H}\ns_lshl_b32 s{t+4}, s{sQ2}, 7\ns_add_u32 s{t+4}, s{t+4}, {WS_HS}")
    for (sh, ss, src) in ((sHA, sSA, t), (sHB, sSB, t+1)):
        p(f"s_mul_i32 s{sh}, s{src}, 20480\ns_add_u32 s{sh}, s{sh}, s{t+3}\ns_add_u32 s{sh+1}, s{sh}, 10240")
        p(f"s_lshl_b32 s{ss}, s{src}, 9\ns_add_u32 s{ss}, s{ss}, s{t+4}")
    for k in range(8):
        p(f"s_waitcnt vmcnt({17 if k < 4 else (7-k)*5})" if k != 0 else "s_waitcnt vmcnt(17)")
        if 1 <= k <= 4: pass
        for nt in range(5):
            r = RING + ((k & 3)*5 + nt)*4
            p(f"v_mfma_f32_16x16x32_bf16 {vr(ACC+4*nt,4)}, {vr(r,4)}, {vr(P2_MF+4*k,4)}, {vr(ACC+4*nt,4)}")
            p(f"v_mfma_f32_16x16x32_bf16 {vr(ACX+4*nt,4)}, {vr(r,4)}, {vr(P2_MX+4*k,4)}, {vr(ACX+4*nt,4)}")
        if k < 4: ld(k+4)
    for nt in range(5): p(f"ds_write_b128 v{vPW}, {vr(ACC+4*nt,4)} offset:{64*nt}")
    p("s_mov_b32 exec_lo, 0x00010001\ns_mov_b32 exec_hi, 0x00010001")
    for nt in range(5): p(f"ds_write_b128 v{vPW}, {vr(ACX+4*nt,4)} offset:{16*336+64*nt}")
    p("s_mov_b64 exec, -1")
    STt = 16
    for r in range(8): p(f"v_mov_b32 v{STt+r}, 0")
    p("s_waitcnt lgkmcnt(0)\ns_barrier")
    p("s_mov_b32 exec_lo, -1\ns_mov_b32 exec_hi, 0xff")
    L = RING
    for sd in range(2):
        for wv in range(4):
            for hh in range(2):
                p(f"ds_read_b128 {vr(L+32*sd+8*wv+4*hh,4)}, v{vRA if sd == 0 else vRB} offset:{wv*P2_W+16*hh}")
    for sd in range(2):
        b = L + 32*sd; x = P2_XD + 16*sd; o = 24 + 8*sd
        p(f"s_waitcnt lgkmcnt({8 if sd == 0 else 0})")
        su = (vSG, 0) if sd == 0 else (vSP, 1)
        sw = (vSP, 0) if sd == 0 else (vSG, 1)
        for k in range(4):
            P0, P1_, Q0, Q1 = b+2*k, b+8+2*k, b+16+2*k, b+24+2*k
            p(f"v_pk_add_f32 {vr(P0,2)}, {vr(P0,2)}, {vr(P1_,2)}\nv_pk_add_f32 {vr(Q0,2)}, {vr(Q0,2)}, {vr(Q1,2)}")
            p(f"v_pk_add_f32 {vr(P1_,2)}, {vr(P0,2)}, {vr(Q0,2)} neg_lo:[0,1] neg_hi:[0,1]")
            p(f"v_pk_add_f32 {vr(Q1,2)}, {vr(P0,2)}, {vr(Q0,2)}")
            for (dst, (sv, ng)) in ((P1_, su), (Q1, sw)):
                p(f"v_pk_fma_f32 {vr(dst,2)}, {vr(sv,2)}, {vr(P2_XB+2*k,2)}, {vr(dst,2)} op_sel_hi:[0,1,1]" + (" neg_lo:[1,0,0] neg_hi:[1,0,0]" if ng else ""))
            lo, hi = (P1_, Q1) if sd == 0 else (Q1, P1_)
            if k == 0: p(f"v_cndmask_b32 v{lo}, v{lo}, 0, {sr(sZ,2)}")
            p(f"v_pk_add_f32 {vr(x+2*k,2)}, {vr(x+2*k,2)}, {vr(lo,2)}\nv_pk_add_f32 {vr(x+8+2*k,2)}, {vr(x+8+2*k,2)}, {vr(hi,2)}")
            p(f"v_cvt_pk_bf16_f32 v{o+k}, v{x+2*k}, v{x+2*k+1}\nv_cvt_pk_bf16_f32 v{o+4+k}, v{x+8+2*k}, v{x+8+2*k+1}")
        sh = sHA if sd == 0 else sHB; vh = vHA if sd == 0 else vHB
        p(f"buffer_store_dwordx4 {vr(o,4)}, v{vh}, {sr(SW,4)}, s{sh} offen {st}")
        p(f"buffer_store_dwordx4 {vr(o+4,4)}, v{vh}, {sr(SW,4)}, s{sh+1} offen {st}")
        s_, q_ = STt+4*sd, STt+4*sd+2
        for k in range(8):
            p(f"v_pk_add_f32 {vr(s_,2)}, {vr(s_,2)}, {vr(x+2*k,2)}\nv_pk_fma_f32 {vr(q_,2)}, {vr(x+2*k,2)}, {vr(x+2*k,2)}, {vr(q_,2)}")
    p("s_mov_b64 exec, -1")
    red = [STt, STt+2, STt+4, STt+6]
    for x in red: p(f"v_add_f32 v{x}, v{x}, v{x+1}")
    for mod in ("row_ror:4", "row_ror:8"):
        for x in red: p(f"v_add_f32_dpp v{x}, v{x}, v{x} {mod} row_mask:0xf bank_mask:0xf")
    for sw in ("v_permlane16_swap_b32", "v_permlane32_swap_b32"):
        for x in red: p(f"v_mov_b32 v{x+1}, v{x}")
        for x in red: p(f"{sw} v{x}, v{x+1}")
        for x in red: p(f"v_add_f32 v{x}, v{x}, v{x+1}")
    p(f"v_mov_b32 v{STt+1}, v{STt+2}\nv_mov_b32 v{STt+5}, v{STt+6}")
    p("s_mov_b64 exec, 15")
    p(f"buffer_store_dwordx2 {vr(STt,2)}, v{vSA}, {sr(SW,4)}, s{sSA} offen {st}")
    p(f"buffer_store_dwordx2 {vr(STt+4,2)}, v{vSB}, {sr(SW,4)}, s{sSB} offen {st}")
    p("s_mov_b64 exec, -1")

def P2(p):
    P2_params(p); P2_pre_issue(p, 0); p("s_waitcnt vmcnt(0)"); P2_pre_finish(p, 0); P2_main(p, 0)


WI_RB = 61472
WI_SIZE = 122912
sRB3, sJ3 = 59, 60
P3_AZ2, P3_AZ1, P3_HF, P3_BF = 16, 40, 64, 224
import struct
def fhex(x): return hex(struct.unpack("<I", struct.pack("<f", x))[0])
LOG2E = 1.4426950408889634
GK0, GK1 = -LOG2E*1.5957691216057308, -LOG2E*0.07135481282

def P3_params(p):
    t = 72
    p(f"s_lshl_b32 s{t}, s{sC}, 2\ns_sub_u32 s{t+1}, 60, s{t}\ns_cmp_ge_u32 s{sL}, 16\ns_cselect_b32 s{sRB3}, s{t+1}, s{t}")
    p(f"s_add_u32 s{sRB3}, s{sRB3}, s{sWAVE}\ns_and_b32 s{sJ3}, s{sL}, 15")

def P3_win_issue(p, wi0):
    t = 72
    p(f"s_mul_i32 s{t}, s{sJ3}, 96\ns_add_u32 s{t+1}, s{t}, 1536\ns_sub_u32 s{t}, s{t}, 96")
    p(f"s_cmp_ge_u32 s{sWAVE}, 2\ns_cselect_b32 s{t+2}, -1, 1\ns_cselect_b32 s{t+3}, 23, 0")
    p(f"s_mov_b32 s{t+4}, 43691\ns_mov_b32 s{t+5}, 3072")
    for u in range(3):
        p(f"v_add_u32 v10, {64*u}, v{vLANE}\nv_mul_u32_u24 v11, s{t+4}, v10\nv_lshrrev_b32 v11, 19, v11")
        p(f"v_mul_u32_u24 v12, 12, v11\nv_sub_u32 v10, v10, v12")
        p(f"v_lshrrev_b32 v12, 3, v11\nv_lshl_add_u32 v11, v12, 3, v11")
        p(f"v_mul_lo_u32 v11, v11, s{t+2}\nv_add_u32 v11, s{t+3}, v11\nv_mul_u32_u24 v11, s{t+5}, v11")
        p(f"v_cmp_gt_u32 vcc, 6, v10\nv_mov_b32 v12, s{t}\nv_mov_b32 v13, s{t+1}\nv_cndmask_b32 v12, v12, v13, vcc")
        p(f"v_lshl_add_u32 v10, v10, 4, v12\nv_add_u32 v{6+u}, v10, v11")
    p(f"s_mul_i32 s{t}, s{sWAVE}, 160\ns_sub_u32 s{t+1}, 937, s{t}\ns_cmp_ge_u32 s{sWAVE}, 2\ns_cselect_b32 s{t}, s{t+1}, s{t}\ns_mul_i32 s{t}, s{t}, 3072")
    p(f"s_mul_i32 s{t+3}, s{t+2}, {8*3072}")
    p(f"s_mul_i32 s{t+4}, s{sWAVE}, {5*3072}\ns_add_u32 s{t+4}, s{t+4}, {wi0}")
    p(f"s_cmp_eq_u32 s{sWAVE}, 2\ns_cselect_b32 s{t+5}, {320*3072}, 0\nv_cmp_gt_u32 vcc, 12, v{vLANE}\nv_mov_b32 v10, s{t+5}\nv_cndmask_b32 v10, 0, v10, vcc")
    p(f"v_add_u32 v9, s{t}, v6\nv_sub_u32 v9, v9, v10")
    for b in range(5):
        for rg in range(2):
            for u in range(3):
                p(f"s_add_u32 m0, s{t+4}, {rg*WI_RB + b*3072 + u*1024}")
                if b == 0 and rg == 0 and u == 0: p(f"buffer_load_dwordx4 v9, {sr(SWI,4)}, 0 offen lds")
                else: p(f"buffer_load_dwordx4 v{6+u}, {sr(SWI,4)}, s{t} offen lds")
            p(f"s_add_u32 s{t}, s{t}, s{t+3}")
        if b < 4: p(f"s_add_u32 s{t}, s{t}, s{t+3}\ns_add_u32 s{t}, s{t}, s{t+3}")

vWB = 248
def P3_wbase(p, wi0):
    p(f"v_bfe_u32 v10, v{vLANE}, 4, 1\nv_mul_u32_u24 v{vWB}, {WI_RB}, v10")
    p(f"v_lshrrev_b32 v10, 5, v{vLANE}\nv_bfe_u32 v11, v{vLANE}, 2, 2\nv_lshl_add_u32 v10, v10, 3, v11\nv_mul_u32_u24 v10, 192, v10")
    p(f"v_and_b32 v11, 3, v{vLANE}\nv_lshl_add_u32 v10, v11, 3, v10\nv_add3_u32 v{vWB}, v{vWB}, v10, 0" )
    if wi0: p(f"v_add_u32 v{vWB}, {wi0}, v{vWB}")

def wfrag(p, dst, ks, nt, base=None):
    b = vWB if base is None else base
    p(f"ds_read_b64_tr_b16 {vr(dst,2)}, v{b} offset:{ks*3072+nt*32}")
    p(f"ds_read_b64_tr_b16 {vr(dst+2,2)}, v{b} offset:{ks*3072+768+nt*32}")

def P3_colsum(p, scr):
    t = 72
    ONE = 64; F = 68; A = 16
    for r in range(4): p(f"v_mov_b32 v{ONE+r}, 0x3f803f80")
    for r in range(24): p(f"v_mov_b32 v{A+r}, 0")
    p(f"s_mul_i32 s{t}, s{sWAVE}, {5*3072}\nv_add_u32 v10, s{t}, v{vWB}")
    for k in range(5):
        for nt in range(6): wfrag(p, F+(k*6+nt)*4, k, nt, base=10)
        if k >= 1:
            p("s_waitcnt lgkmcnt(12)")
            for nt in range(6): p(f"v_mfma_f32_16x16x32_bf16 {vr(A+4*nt,4)}, {vr(F+((k-1)*6+nt)*4,4)}, {vr(ONE,4)}, {vr(A+4*nt,4)}")
    p("s_waitcnt lgkmcnt(0)")
    for nt in range(6): p(f"v_mfma_f32_16x16x32_bf16 {vr(A+4*nt,4)}, {vr(F+(24+nt)*4,4)}, {vr(ONE,4)}, {vr(A+4*nt,4)}")
    p(f"s_mul_i32 s{t}, s{sWAVE}, 384\ns_add_u32 s{t}, s{t}, {scr}\nv_add_u32 v10, s{t}, v{vLANE}")
    p("s_mov_b32 exec_lo, 0x00010001\ns_mov_b32 exec_hi, 0x00010001")
    for nt in range(6): p(f"ds_write_b128 v10, {vr(A+4*nt,4)} offset:{64*nt}")
    p("s_mov_b64 exec, -1\ns_waitcnt lgkmcnt(0)\ns_barrier")

def gelu2(p, x, tmp, sK1, vK0, vONE):
    a, b = tmp, tmp+2
    p(f"v_pk_mul_f32 {vr(a,2)}, {vr(x,2)}, {vr(x,2)}")
    p(f"v_pk_fma_f32 {vr(a,2)}, {vr(a,2)}, {sr(sK1,2)}, {vr(vK0,2)}")
    p(f"v_pk_mul_f32 {vr(a,2)}, {vr(a,2)}, {vr(x,2)}")
    p(f"v_exp_f32 v{b}, v{a}\nv_exp_f32 v{b+1}, v{a+1}")
    p(f"v_pk_add_f32 {vr(b,2)}, {vr(b,2)}, {vr(vONE,2)}")
    p(f"v_rcp_f32 v{a}, v{b}\nv_rcp_f32 v{a+1}, v{b+1}")
    p(f"v_pk_mul_f32 {vr(x,2)}, {vr(x,2)}, {vr(a,2)}")

def gelu4(p, x, tmp, sK1, vK0, vONE):
    for step in range(6):
        for h in range(2):
            xx = x+2*h; a = tmp+4*h; b = a+2
            if step == 0: p(f"v_pk_mul_f32 {vr(a,2)}, {vr(xx,2)}, {vr(xx,2)}")
            if step == 1: p(f"v_pk_fma_f32 {vr(a,2)}, {vr(a,2)}, {sr(sK1,2)}, {vr(vK0,2)}")
            if step == 2: p(f"v_pk_mul_f32 {vr(a,2)}, {vr(a,2)}, {vr(xx,2)}")
            if step == 3: p(f"v_exp_f32 v{b}, v{a}\nv_exp_f32 v{b+1}, v{a+1}")
            if step == 4: p(f"v_pk_add_f32 {vr(b,2)}, {vr(b,2)}, {vr(vONE,2)}")
            if step == 5: p(f"v_rcp_f32 v{a}, v{b}\nv_rcp_f32 v{a+1}, v{b+1}")
    for h in range(2):
        xx = x+2*h; a = tmp+4*h
        p(f"v_pk_mul_f32 {vr(xx,2)}, {vr(xx,2)}, {vr(a,2)}")

def P3_pass(p, z1, k0=0, k1=20, waits=None):
    acc = P3_AZ1 if z1 else P3_AZ2
    n0 = 3 if z1 else 0
    for nt in range(3): wfrag(p, P3_BF + ((k0 & 1)*3+nt)*4, k0, n0+nt)
    for ks in range(k0, k1):
        if ks+1 < k1:
            for nt in range(3): wfrag(p, P3_BF + (((ks+1) & 1)*3+nt)*4, ks+1, n0+nt)
        w = f"lgkmcnt({6 if ks+1 < k1 else 0})"
        if waits: w = f"vmcnt({waits(ks)}) " + w
        p("s_waitcnt " + w)
        for nt in range(3):
            bf = vr(P3_BF + ((ks & 1)*3+nt)*4, 4)
            for par in range(2):
                hf = vr(P3_HF + (2*ks+par)*4, 4); a = vr(acc + (par*3+nt)*4, 4)
                if z1: p(f"v_mfma_f32_16x16x32_bf16 {a}, {bf}, {hf}, {a}")
                else: p(f"v_mfma_f32_16x16x32_bf16 {a}, {hf}, {bf}, {a}")

sGK1 = 90
def P3_loads(p):
    t = 72
    p(f"s_lshl_b32 s{t}, s{sRB3}, 10\ns_add_u32 s{t}, s{t}, {WS_HS}\nbuffer_load_dwordx4 v[4:7], v{vL16}, {sr(SW,4)}, s{t} offen sc1")
    p(f"s_mul_i32 s{t}, s{sRB3}, 40960\ns_add_u32 s{t}, s{t}, {WS_H}\ns_add_u32 s{t+1}, s{t}, 20480")
    for ks in range(20):
        for par in range(2):
            p(f"buffer_load_dwordx4 {vr(P3_HF+(2*ks+par)*4,4)}, v{vL16}, {sr(SW,4)}, s{t+par} offen offset:{(ks&3)*1024} sc1")
        if (ks & 3) == 3 and ks < 19: p(f"s_add_u32 s{t}, s{t}, 4096\ns_add_u32 s{t+1}, s{t+1}, 4096")
    for r in range(48): p(f"v_mov_b32 v{P3_AZ2+r}, 0")

def P3_ln1(p, scr):
    t = 72
    for x in range(4, 8): p(f"v_add_f32_dpp v{x}, v{x}, v{x} row_ror:8 row_mask:0xf bank_mask:0xf")
    for x in range(4): p(f"v_mov_b32 v{8+x}, v{4+x}")
    for x in range(4): p(f"v_permlane16_swap_b32 v{4+x}, v{8+x}")
    for x in range(4): p(f"v_add_f32 v{4+x}, v{4+x}, v{8+x}")
    p(f"s_mov_b32 s{t}, {fhex(1/640)}\ns_mov_b32 s{t+1}, {fhex(1e-5)}")
    p(f"v_mul_f32 v8, s{t}, v4\nv_mul_f32 v9, s{t}, v6\nv_mul_f32 v4, v8, v8\nv_mul_f32 v6, v9, v9")
    p(f"v_fma_f32 v5, v5, s{t}, -v4\nv_fma_f32 v7, v7, s{t}, -v6\nv_add_f32 v5, s{t+1}, v5\nv_add_f32 v7, s{t+1}, v7")
    p(f"v_rsq_f32 v10, v5\nv_rsq_f32 v11, v7\nv_sub_f32 v8, 0, v8\nv_sub_f32 v9, 0, v9")
    p(f"s_lshl_b32 s{t}, s{sWAVE}, 8\ns_add_u32 s{t}, s{t}, {scr+1536}")
    p(f"v_lshrrev_b32 v4, 5, v{vLANE}\nv_lshlrev_b32 v4, 6, v4\nv_and_b32 v5, 7, v{vLANE}\nv_lshl_add_u32 v4, v5, 3, v4\nv_add_u32 v4, s{t}, v4")
    p(f"ds_write_b64 v4, v[8:9]\nds_write_b64 v4, v[10:11] offset:128")

def P3_z2a(p, scr, st):
    t = 72
    B = P3_BF
    NM, RR, CS, TMP, K0, ONE = B, B+8, 4, B+16, 250, 252
    SUM = 8
    p(f"s_lshl_b32 s{t}, s{sWAVE}, 8\ns_add_u32 s{t}, s{t}, {scr+1536}\nv_lshrrev_b32 v12, 4, v{vLANE}\nv_lshl_add_u32 v12, v12, 4, s{t}")
    p(f"v_and_b32 v13, 15, v{vLANE}\nv_lshlrev_b32 v13, 2, v13\nv_add_u32 v13, {scr}, v13")
    p("s_waitcnt lgkmcnt(0)")
    for par in range(2):
        p(f"ds_read_b128 {vr(NM+4*par,4)}, v12 offset:{64*par}\nds_read_b128 {vr(RR+4*par,4)}, v12 offset:{128+64*par}")
    for nt in range(3):
        p(f"ds_read2_b32 {vr(TMP+2*nt,2)}, v13 offset0:{16*nt} offset1:{96+16*nt}")
    p(f"v_add_u32 v13, 768, v13")
    for nt in range(3):
        p(f"ds_read2_b32 {vr(8+2*nt,2)}, v13 offset0:{16*nt} offset1:{96+16*nt}")
    p(f"s_mov_b32 s{sGK1}, {fhex(GK1)}\ns_mov_b32 s{sGK1+1}, {fhex(GK1)}")
    p(f"v_mov_b32 v{K0}, {fhex(GK0)}\nv_mov_b32 v{K0+1}, {fhex(GK0)}\nv_mov_b32 v{ONE}, 1.0\nv_mov_b32 v{ONE+1}, 1.0")
    p("s_waitcnt lgkmcnt(0)")
    CSr = [4, 6, 254]
    for nt in range(3):
        p(f"v_add_f32 v{TMP+2*nt}, v{TMP+2*nt}, v{TMP+2*nt+1}\nv_add_f32 v{8+2*nt}, v{8+2*nt}, v{9+2*nt}\nv_add_f32 v{CSr[nt]}, v{TMP+2*nt}, v{8+2*nt}")
    for par in range(2):
        for nt in range(3):
            a = P3_AZ2 + (par*3+nt)*4
            for h in range(2):
                p(f"v_pk_fma_f32 {vr(a+2*h,2)}, {vr(NM+4*par+2*h,2)}, {vr(CSr[nt],2)}, {vr(a+2*h,2)} op_sel_hi:[1,0,1]")
            for h in range(2):
                p(f"v_pk_mul_f32 {vr(a+2*h,2)}, {vr(a+2*h,2)}, {vr(RR+4*par+2*h,2)}")
            gelu4(p, a, TMP, sGK1, K0, ONE)
    for par in range(2):
        for h in range(2):
            a = lambda nt: vr(P3_AZ2 + (par*3+nt)*4 + 2*h, 2)
            S_, Q_ = vr(NM+4*par+2*h, 2), vr(RR+4*par+2*h, 2)
            p(f"v_pk_add_f32 {S_}, {a(0)}, {a(1)}\nv_pk_mul_f32 {Q_}, {a(0)}, {a(0)}")
            p(f"v_pk_add_f32 {S_}, {S_}, {a(2)}\nv_pk_fma_f32 {Q_}, {a(1)}, {a(1)}, {Q_}\nv_pk_fma_f32 {Q_}, {a(2)}, {a(2)}, {Q_}")
    full = "row_mask:0xf bank_mask:0xf"
    for base in (NM, RR):
        for r in range(4): p(f"v_add_f32_dpp v{base+r}, v{base+r}, v{base+r} row_ror:8 {full}")
    for base in (NM, RR):
        for r in range(4): p(f"v_add_f32_dpp v{base+r}, v{base+4+r}, v{base+4+r} row_ror:8 row_mask:0xf bank_mask:0xc")
    for i, (base, r) in enumerate(((NM, 0), (RR, 0), (NM, 1), (RR, 1))):
        p(f"v_add_f32_dpp v{TMP+i}, v{base+r}, v{base+r} row_half_mirror {full}")
    for i, (base, r) in enumerate(((NM, 2), (RR, 2), (NM, 3), (RR, 3))):
        p(f"v_add_f32_dpp v{TMP+i}, v{base+r}, v{base+r} row_half_mirror row_mask:0xf bank_mask:0xa")
    for mod in ("quad_perm:[1,0,3,2]", "quad_perm:[2,3,0,1]"):
        for i in range(4): p(f"v_add_f32_dpp v{TMP+i}, v{TMP+i}, v{TMP+i} {mod} {full}")
    p(f"v_lshrrev_b32 v12, 2, v{vLANE}\nv_lshlrev_b32 v12, 8, v12")
    p(f"s_lshl_b32 s{t}, s{sRB3}, 12\ns_add_u32 s{t}, s{t}, {WS_ZS}\ns_lshl_b32 s{t+1}, s{sJ3}, 4\ns_add_u32 s{t+1}, s{t+1}, s{t}")
    p("s_mov_b32 exec_lo, 0x11111111\ns_mov_b32 exec_hi, 0x11111111")
    p(f"buffer_store_dwordx4 {vr(TMP,4)}, v12, {sr(SW,4)}, s{t+1} offen {st}")
    p("s_mov_b64 exec, -1")

def P3_z2b_load(p):
    t = 72
    p(f"v_lshrrev_b32 v12, 2, v{vLANE}\nv_lshlrev_b32 v12, 8, v12\nv_and_b32 v13, 3, v{vLANE}\nv_lshl_add_u32 v12, v13, 4, v12")
    p(f"s_lshl_b32 s{t}, s{sRB3}, 12\ns_add_u32 s{t}, s{t}, {WS_ZS}")
    for i in range(4): p(f"buffer_load_dwordx4 {vr(P3_BF+4*i,4)}, v12, {sr(SW,4)}, s{t} offen offset:{64*i} sc1")

def P3_z2b(p, st):
    t = 72
    B = P3_BF
    for h in range(2):
        p(f"v_pk_add_f32 {vr(B+2*h,2)}, {vr(B+2*h,2)}, {vr(B+4+2*h,2)}\nv_pk_add_f32 {vr(B+8+2*h,2)}, {vr(B+8+2*h,2)}, {vr(B+12+2*h,2)}")
    for h in range(2): p(f"v_pk_add_f32 {vr(B+2*h,2)}, {vr(B+2*h,2)}, {vr(B+8+2*h,2)}")
    for mod in ("quad_perm:[1,0,3,2]", "quad_perm:[2,3,0,1]"):
        for i in range(4): p(f"v_add_f32_dpp v{B+i}, v{B+i}, v{B+i} {mod} row_mask:0xf bank_mask:0xf")
    p(f"s_mov_b32 s{t}, {fhex(1/768)}\ns_mov_b32 s{t+1}, {fhex(1e-5)}")
    p(f"v_mul_f32 v{B}, s{t}, v{B}\nv_mul_f32 v{B+2}, s{t}, v{B+2}\nv_mul_f32 v{B+4}, v{B}, v{B}\nv_mul_f32 v{B+5}, v{B+2}, v{B+2}")
    p(f"v_fma_f32 v{B+1}, v{B+1}, s{t}, -v{B+4}\nv_fma_f32 v{B+3}, v{B+3}, s{t}, -v{B+5}\nv_add_f32 v{B+1}, s{t+1}, v{B+1}\nv_add_f32 v{B+3}, s{t+1}, v{B+3}")
    p(f"v_rsq_f32 v{B+1}, v{B+1}\nv_rsq_f32 v{B+3}, v{B+3}")
    p(f"v_mul_f32 v{B}, -v{B}, v{B+1}\nv_mul_f32 v{B+2}, -v{B+2}, v{B+3}")
    NM, RR = B+8, B+16
    for bk in range(4):
        for i in range(2):
            p(f"v_mov_b32_dpp v{NM+2*bk+i}, v{B+2*i} row_newbcast:{4*bk} row_mask:0xf bank_mask:0xf")
            p(f"v_mov_b32_dpp v{RR+2*bk+i}, v{B+2*i+1} row_newbcast:{4*bk} row_mask:0xf bank_mask:0xf")
    p(f"s_lshr_b32 s{t}, s{sJ3}, 1\ns_lshl_b32 s{t}, s{t}, 6\ns_add_u32 s{t}, s{t}, s{sRB3}\ns_mul_i32 s{t}, s{t}, 6144")
    p(f"s_and_b32 s{t+1}, s{sJ3}, 1\ns_mul_i32 s{t+1}, s{t+1}, 3072\ns_add_u32 s{t}, s{t}, s{t+1}\ns_add_u32 s{t}, s{t}, {WS_Z2}")
    for nt in range(3):
        for par in range(2):
            a = P3_AZ2 + (par*3+nt)*4
            for h in range(2):
                p(f"v_pk_fma_f32 {vr(a+2*h,2)}, {vr(a+2*h,2)}, {vr(RR+4*par+2*h,2)}, {vr(NM+4*par+2*h,2)}")
        o = 4 + 4*nt
        for r in range(4): p(f"v_cvt_pk_bf16_f32 v{o+r}, v{P3_AZ2+nt*4+r}, v{P3_AZ2+(3+nt)*4+r}")
        p(f"buffer_store_dwordx4 {vr(o,4)}, v{vL16}, {sr(SW,4)}, s{t} offen offset:{1024*nt} {st}")

def P3_z1e(p, scr, st):
    t = 72
    B = P3_AZ2
    CS, TMP, NR, K0, ONE = P3_BF, B, B+8, 250, 252
    p(f"s_lshl_b32 s{t}, s{sWAVE}, 8\ns_add_u32 s{t}, s{t}, {scr+1536}\nv_and_b32 v12, 15, v{vLANE}\nv_lshl_add_u32 v12, v12, 2, s{t}")
    p(f"v_lshrrev_b32 v13, 4, v{vLANE}\nv_lshlrev_b32 v13, 4, v13\nv_add_u32 v13, {scr+192}, v13")
    for par in range(2):
        p(f"ds_read_b32 v{NR+4*par}, v12 offset:{64*par}\nds_read_b32 v{NR+4*par+2}, v12 offset:{128+64*par}")
    HF = P3_HF
    for nt in range(3):
        for wv in range(4): p(f"ds_read_b128 {vr(HF+(nt*4+wv)*4,4)}, v13 offset:{wv*384+nt*64}")
    p(f"v_lshlrev_b32 v14, 3, v{vLANE}")
    p(f"s_mul_i32 s{t}, s{sRB3}, {2*48*512}\ns_mul_i32 s{t+1}, s{sJ3}, 1536\ns_add_u32 s{t}, s{t}, s{t+1}\ns_add_u32 s{t}, s{t}, {WS_Z1}\ns_add_u32 s{t+1}, s{t}, {48*512}")
    p("s_waitcnt lgkmcnt(0)")
    for nt in range(3):
        for h in range(2):
            q = lambda wv: vr(HF+(nt*4+wv)*4+2*h, 2)
            p(f"v_pk_add_f32 {q(0)}, {q(0)}, {q(1)}\nv_pk_add_f32 {q(2)}, {q(2)}, {q(3)}\nv_pk_add_f32 {vr(CS+4*nt+2*h,2)}, {q(0)}, {q(2)}")
    for par in range(2):
        for nt in range(3):
            a = P3_AZ1 + (par*3+nt)*4
            for h in range(2):
                p(f"v_pk_fma_f32 {vr(a+2*h,2)}, {vr(CS+4*nt+2*h,2)}, {vr(NR+4*par,2)}, {vr(a+2*h,2)} op_sel_hi:[1,0,1]")
            for h in range(2):
                p(f"v_pk_mul_f32 {vr(a+2*h,2)}, {vr(a+2*h,2)}, {vr(NR+4*par+2,2)} op_sel_hi:[1,0]")
            gelu4(p, a, TMP, sGK1, K0, ONE)
            o = HF + 64 + (par*3+nt)*2
            p(f"v_cvt_pk_bf16_f32 v{o}, v{a}, v{a+1}\nv_cvt_pk_bf16_f32 v{o+1}, v{a+2}, v{a+3}")
            p(f"buffer_store_dwordx2 {vr(o,2)}, v14, {sr(SW,4)}, s{t+par} offen offset:{512*nt} {st}")

def P3a(p):
    scr = WI_SIZE
    P3_params(p); P3_win_issue(p, 0); P3_wbase(p, 0); p("s_waitcnt vmcnt(0)\ns_barrier"); P3_colsum(p, scr)
    P3_loads(p); p("s_waitcnt vmcnt(40)"); P3_ln1(p, scr)
    P3_pass(p, False, waits=lambda ks: 38-2*ks); P3_z2a(p, scr, "")
def P3b(p):
    scr = WI_SIZE
    P3a(p)
    P3_pass(p, True)
    P3_z2b_load(p); p("s_waitcnt vmcnt(0)"); P3_z2b(p, ""); P3_z1e(p, scr, "")


sRB4, sJ4, sRG4 = 61, 62, 63
sTT = 64
WO_SIZE = 122880
P4_RING, P4_ACC, P4_OWN, P4_Z1, P4_BIAS = 64, 160, 184, 208, 220
P4_NR = 24

def P4_params(p):
    t = 72
    p(f"s_lshr_b32 s{sRG4}, s{sL}, 3\ns_and_b32 s{sJ4}, s{sL}, 7")
    p(f"s_lshl_b32 s{t}, s{sC}, 2\ns_sub_u32 s{t+1}, 60, s{t}\ns_cmp_ge_u32 s{sRG4}, 2\ns_cselect_b32 s{sRB4}, s{t+1}, s{t}")
    p(f"s_and_b32 s{t}, s{sRG4}, 1\ns_lshl_b32 s{t}, s{t}, 1\ns_add_u32 s{sRB4}, s{sRB4}, s{t}")
    p(f"s_lshl_b32 s{sTT}, s{sRB4}, 1\ns_add_u32 s{sTT}, s{sTT}, s{sWAVE}")

def WSP_issue(p, chunk, stg, vsrc):
    t = 72
    slot, hf4 = chunk >> 1, chunk & 1
    p(f"s_add_u32 s{t}, s{sWAVE}, {slot}\ns_and_b32 s{t}, s{t}, 3\ns_lshr_b32 s{t+1}, s{t}, 1\ns_add_u32 s{t+1}, s{t+1}, s{sRB4}\ns_lshl_b32 s{t+1}, s{t+1}, 5")
    p(f"s_and_b32 s{t}, s{t}, 1\ns_add_u32 s{t}, s{t}, s{t+1}\ns_lshl_b32 s{t}, s{t}, 12\ns_lshl_b32 s{t+1}, s{sWAVE}, 10\ns_add_u32 s{t}, s{t}, s{t+1}")
    p(f"s_lshl_b32 s{t+1}, s{sWAVE}, 13\ns_add_u32 s{t+1}, s{t+1}, {stg}\ns_lshl_b32 s{t+2}, s{sRG4}, 1")
    for pc in range(4):
        p(f"s_add_u32 s{t+3}, s{t+2}, {4*hf4+pc}\ns_and_b32 s{t+3}, s{t+3}, 7\ns_lshl_b32 s{t+3}, s{t+3}, 7\ns_add_u32 s{t+3}, s{t+3}, s{t}")
        for hf in range(2):
            p(f"s_add_u32 m0, s{t+1}, {pc*2048+hf*1024}")
            p(f"buffer_load_dwordx4 v{vsrc+hf}, {sr(SWS,4)}, s{t+3} offen lds")

def WSP_read(p, chunk, vrd):
    slot, hf4 = chunk >> 1, chunk & 1
    for k in range(8):
        p(f"ds_read_b128 {ar((slot*16+8*hf4+k)*4,4)}, v{vrd+(k&1)} offset:{2048*(k>>1)}")

def WSP_addr(p, stg, vsrc, vrd):
    t = 72
    swz_src(p, vsrc, 4096, 10, rowmul=2)
    swz_rd(p, vrd, 10)
    p(f"s_lshl_b32 s{t+1}, s{sWAVE}, 13\ns_add_u32 s{t+1}, s{t+1}, {stg}\nv_add_u32 v{vrd}, s{t+1}, v{vrd}\nv_add_u32 v{vrd+1}, s{t+1}, v{vrd+1}")

def WO_issue(p, wo0):
    t = 72
    p(f"s_mov_b32 s{t+4}, 52429\ns_mul_i32 s{t}, s{sJ4}, 160")
    for u in range(5):
        p(f"v_add_u32 v10, {64*u}, v{vLANE}\nv_mul_u32_u24 v11, s{t+4}, v10\nv_lshrrev_b32 v11, 19, v11")
        p(f"v_mul_u32_u24 v12, 10, v11\nv_sub_u32 v10, v10, v12\nv_mul_u32_u24 v11, 1280, v11\nv_lshl_add_u32 v10, v10, 4, v11\nv_add_u32 v{4+u}, s{t}, v10")
    p(f"s_mul_i32 s{t}, s{sWAVE}, {6*32*1280}\ns_mul_i32 s{t+1}, s{sWAVE}, {6*5120}\ns_add_u32 s{t+1}, s{t+1}, {wo0}")
    for b in range(6):
        for u in range(5):
            p(f"s_add_u32 m0, s{t+1}, {b*5120+u*1024}\nbuffer_load_dwordx4 v{4+u}, {sr(SWO,4)}, s{t} offen lds")
        if b < 5: p(f"s_add_u32 s{t}, s{t}, {32*1280}")

def P4_side_loads(p):
    t = 72
    p(f"v_lshlrev_b32 v10, 3, v{vLANE}\ns_mul_i32 s{t}, s{sTT}, {48*512}\ns_mul_i32 s{t+1}, s{sJ4}, 3072\ns_add_u32 s{t}, s{t}, s{t+1}\ns_add_u32 s{t}, s{t}, {WS_Z1}")
    for ft in range(6): p(f"buffer_load_dwordx2 {vr(P4_Z1+2*ft,2)}, v10, {sr(SW,4)}, s{t} offen offset:{512*ft} sc1")

def P4_bias(p):
    t = 72
    p(f"v_and_b32 v10, 15, v{vLANE}\nv_lshlrev_b32 v10, 2, v10\ns_lshr_b32 s{t}, s{sTT}, 1\ns_lshl_b32 s{t}, s{t}, 5\ns_and_b32 s{t+1}, s{sTT}, 1\ns_add_u32 s{t}, s{t}, s{t+1}\ns_lshl_b32 s{t}, s{t}, 1")
    p(f"v_mov_b32 v{P4_BIAS}, 0\nbuffer_load_short_d16_hi v{P4_BIAS}, v10, {sr(SBS,4)}, s{t} offen")
    p("s_waitcnt vmcnt(0)")
    for r in range(1, 4): p(f"v_mov_b32 v{P4_BIAS+r}, v{P4_BIAS}")

def P4_main(p, mbx, st, extra_after=None):
    t = 72
    R = P4_NR
    sK = 80
    p(f"s_lshl_b32 s{t}, s{sJ4}, 6\ns_lshl_b32 s{t+1}, s{sWAVE}, 4\ns_add_u32 s{t}, s{t}, s{t+1}\ns_mul_i32 s{t}, s{t}, 6144\ns_add_u32 s{t}, s{t}, {WS_Z2}\ns_lshl_b32 s{t+1}, s{sRG4}, 2")
    for k in range(16):
        p(f"s_add_u32 s{t+2}, s{t+1}, {k}\ns_and_b32 s{t+2}, s{t+2}, 15\ns_mul_i32 s{t+2}, s{t+2}, 6144\ns_add_u32 s{sK+k}, s{t+2}, s{t}")
    p(f"v_add_u32 v3, 4096, v{vL16}")
    def ld(n):
        ft, k = n >> 4, n & 15
        p(f"buffer_load_dwordx4 {vr(P4_RING+(n%R)*4,4)}, v{vL16 if ft < 4 else 3}, {sr(SW,4)}, s{sK+k} offen offset:{(ft&3)*1024} sc1")
    for n in range(R): ld(n)
    vMB = 4
    for s_ in range(1, 4):
        p(f"s_add_u32 s{t}, s{sWAVE}, {s_}\ns_and_b32 s{t}, s{t}, 3\ns_mul_i32 s{t}, s{t}, 9216\ns_add_u32 s{t}, s{t}, {mbx+(s_-1)*3072}\nv_add_u32 v{vMB+s_-1}, s{t}, v{vL16}")
    p(f"s_mul_i32 s{t}, s{sWAVE}, 9216\ns_add_u32 s{t}, s{t}, {mbx}\nv_add_u32 v7, s{t}, v{vL16}")
    MT = 224
    def mb_read(f0):
        for f in range(3):
            for s_ in range(3):
                i = f*3+s_
                p(f"ds_read_b128 {vr(16+4*i,4)}, v7 offset:{s_*3072+f*1024}")
    def mb_add(f0):
        for f in range(3):
            for h in range(2):
                o = vr(P4_OWN+(f0+f)*4+2*h, 2)
                q = lambda s_: vr(16+4*(f*3+s_)+2*h, 2)
                p(f"v_pk_add_f32 {q(0)}, {q(0)}, {q(1)}\nv_pk_add_f32 {o}, {o}, {q(2)}\nv_pk_add_f32 {o}, {o}, {q(0)}")
    def wr(ft):
        for s_ in range(1, 4):
            p(f"ds_write_b128 v{vMB+s_-1}, {vr(P4_ACC+((ft&1)*3+s_-1)*4,4)} offset:{(ft%3)*1024}")
    for n in range(96):
        ft, k = n >> 4, n & 15
        p(f"s_waitcnt vmcnt({min(R-1, 95-n)})")
        z = vr(P4_RING+(n%R)*4, 4)
        for s_ in range(4):
            d = vr(P4_OWN+ft*4, 4) if s_ == 0 else vr(P4_ACC+((ft&1)*3+s_-1)*4, 4)
            c = d if k else (vr(P4_BIAS, 4) if s_ == 0 else "0")
            p(f"v_mfma_f32_16x16x32_bf16 {d}, {z}, {ar((s_*16+k)*4,4)}, {c}")
        if n + R < 96: ld(n+R)
        if k == 2 and ft >= 1:
            if ft == 4: p("s_barrier")
            wr(ft-1)
        if ft == 3 and k == 6: p("s_waitcnt lgkmcnt(0)\ns_barrier"); mb_read(0)
        if ft == 3 and k == 12: p("s_waitcnt lgkmcnt(0)"); mb_add(0)
        if extra_after and n in extra_after: extra_after[n]()
    wr(5)
    p("s_waitcnt lgkmcnt(0)\ns_barrier")
    mb_read(3)
    p(f"s_mul_i32 s{t}, s{sTT}, 24576\ns_mul_i32 s{t+1}, s{sJ4}, 3072\ns_add_u32 s{t}, s{t}, s{t+1}\ns_add_u32 s{t}, s{t}, {WS_V}")
    def vout(u):
        o = P4_RING + 4*u
        for ff in range(2):
            ft = 2*u+ff; z = P4_RING+16+4*ff; g = P4_OWN+4*ft
            for h in range(2):
                p(f"v_lshlrev_b32 v{z+2*h}, 16, v{P4_Z1+2*ft+h}\nv_and_b32 v{z+2*h+1}, s{sMASKHI}, v{P4_Z1+2*ft+h}")
            for h in range(2):
                p(f"v_pk_mul_f32 {vr(z+2*h,2)}, {vr(z+2*h,2)}, {vr(g+2*h,2)}")
            for h in range(2):
                p(f"v_cvt_pk_bf16_f32 v{o+2*ff+h}, v{z+2*h}, v{z+2*h+1}")
        p(f"buffer_store_dwordx4 {vr(o,4)}, v{vL16}, {sr(SW,4)}, s{t} offen offset:{1024*u} {st}")
    vout(0)
    p("s_waitcnt lgkmcnt(0)")
    mb_add(3)
    vout(1); vout(2)

P5_H, P5_V, P5_BF = 228, 64, 160
def P5_hload(p):
    t = 72
    p(f"s_cmp_ge_u32 s{sJ4}, 4\ns_cselect_b32 s{t}, -1, 1\ns_cselect_b32 s{t+1}, 960, 0\ns_mul_i32 s{t+2}, s{sJ4}, 80")
    p(f"v_lshrrev_b32 v10, 4, v{vLANE}\nv_lshl_add_u32 v10, v10, 2, s{t+2}\nv_mul_lo_u32 v10, v10, s{t}\nv_add_u32 v10, s{t+1}, v10")
    p(f"v_and_b32 v11, 15, v{vLANE}\nv_lshlrev_b32 v11, 4, v11")
    p(f"s_mul_i32 s{t+3}, s{sTT}, 20480\ns_add_u32 s{t+3}, s{t+3}, {WS_H}")
    for et in range(5):
        for r in range(4):
            i = et*4+r
            p(f"s_mul_i32 s{t+4}, s{t}, {16*et+r}\nv_add_u32 v12, s{t+4}, v10")
            if i == 0: p(f"v_cmp_eq_u32 vcc, 640, v12\nv_mov_b32 v13, 320\nv_cndmask_b32 v12, v12, v13, vcc")
            p(f"v_lshrrev_b32 v13, 3, v12\nv_lshl_add_u32 v13, v13, 8, v11\nv_and_b32 v12, 7, v12\nv_lshl_add_u32 v12, v12, 1, v13")
            p(f"v_mov_b32 v{P5_H+i}, 0\nbuffer_load_short_d16_hi v{P5_H+i}, v12, {sr(SW,4)}, s{t+3} offen sc1")

def P5_main(p, wo0):
    t = 72
    p(f"s_mul_i32 s{t}, s{sTT}, 24576\ns_add_u32 s{t}, s{t}, {WS_V}")
    for ks in range(24):
        p(f"buffer_load_dwordx4 {vr(P5_V+4*ks,4)}, v{vL16}, {sr(SW,4)}, s{t} offen offset:{(ks&3)*1024} sc1")
        if (ks & 3) == 3 and ks < 23: p(f"s_add_u32 s{t}, s{t}, 4096")
    p(f"v_lshrrev_b32 v10, 2, v{vLANE}\nv_mul_u32_u24 v10, 160, v10\nv_and_b32 v11, 3, v{vLANE}\nv_lshl_add_u32 v4, v11, 3, v10")
    if wo0: p(f"v_add_u32 v4, {wo0}, v4")
    p(f"v_add_u32 v5, 61440, v4")
    def bl(ks):
        for et in range(5):
            d = P5_BF + ((ks & 1)*5+et)*4; b = 4 if ks < 12 else 5; o = (ks % 12)*5120 + et*32
            p(f"ds_read_b64_tr_b16 {vr(d,2)}, v{b} offset:{o}\nds_read_b64_tr_b16 {vr(d+2,2)}, v{b} offset:{o+2560}")
    bl(0)
    p(f"v_and_b32 v10, 15, v{vLANE}\nv_mul_u32_u24 v10, 2560, v10\nv_lshrrev_b32 v11, 4, v{vLANE}\nv_lshl_add_u32 v6, v11, 3, v10")
    p(f"s_lshr_b32 s{t}, s{sTT}, 1\ns_lshl_b32 s{t}, s{t}, 5\ns_and_b32 s{t+1}, s{sTT}, 1\ns_add_u32 s{t}, s{t}, s{t+1}\ns_mul_i32 s{t}, s{t}, 1280\ns_mul_i32 s{t+1}, s{sJ4}, 160\ns_add_u32 s{t}, s{t}, s{t+1}")
    for ks in range(24):
        if ks < 23: bl(ks+1)
        p(f"s_waitcnt vmcnt({23-ks}) lgkmcnt({10 if ks < 23 else 0})")
        for et in range(5):
            a = vr(P5_H+4*et, 4)
            p(f"v_mfma_f32_16x16x32_bf16 {a}, {vr(P5_BF+((ks&1)*5+et)*4,4)}, {vr(P5_V+4*ks,4)}, {a}")
    for et in range(5):
        a = P5_H+4*et; o = 16+2*et
        p(f"v_cvt_pk_bf16_f32 v{o}, v{a}, v{a+1}\nv_cvt_pk_bf16_f32 v{o+1}, v{a+2}, v{a+3}")
        p(f"buffer_store_dwordx2 {vr(o,2)}, v6, {sr(SOUT,4)}, s{t} offen offset:{32*et}")

def P4(p):
    P4_params(p); WSP_addr(p, 0, 6, 8)
    for ch in range(8):
        WSP_issue(p, ch, 0, 6); p("s_waitcnt vmcnt(0)"); WSP_read(p, ch, 8); p("s_waitcnt lgkmcnt(0)")
    P4_bias(p); P4_side_loads(p); p("s_waitcnt vmcnt(0)\ns_barrier")
    P4_main(p, 0, "")
def P5(p):
    P4_params(p); WO_issue(p, 0); P5_hload(p); p("s_waitcnt vmcnt(0)\ns_barrier"); P5_main(p, 0)

def kernel_desc(kname, vgpr=512, acc=256):
    return f""".section .rodata,"a"
.p2align 6
.amdhsa_kernel {kname}
  .amdhsa_next_free_vgpr {vgpr}
  .amdhsa_next_free_sgpr 102
  .amdhsa_accum_offset {acc}
  .amdhsa_group_segment_fixed_size 0
  .amdhsa_kernarg_size 104
  .amdhsa_user_sgpr_count 2
  .amdhsa_user_sgpr_kernarg_segment_ptr 1
  .amdhsa_system_sgpr_workgroup_id_x 1
.end_amdhsa_kernel
"""

def multi(phases):
    hdr = "".join(f"; @launch kernel={n}_kernel grid=(256,1,1) block=(256,1,1) lds=163840\n" for n, _ in phases)
    body = '.amdgcn_target "amdgcn-amd-amdhsa--gfx950"\n.text\n'
    desc = ""
    for n, fn in phases:
        p = Prog(); p.nlabel = 1000*(1+[x for x, _ in phases].index(n))
        end = f"END_{n}"
        prologue(p, f"{n}_kernel", end)
        fn(p)
        p(f"s_waitcnt vmcnt(0)\n{end}:\ns_endpgm")
        body += p.finish()
        desc += kernel_desc(f"{n}_kernel")
    return hdr + body + desc

if __name__ == "__main__":
    open(sys.argv[1], "w").write(multi([("p1", P1), ("p2", P2), ("p3a", P3a), ("p3b", P3b), ("p4", P4), ("p5", P5)]))
```

```python
import sys
from asmlib import Prog, vr, ar, sr

NAME = "sequential_preLN__spectral_fnet__mixer_gmlp__prompt"
WS_AB   = 0x010000
WS_XB   = 0x158000
WS_H    = 0x180000
WS_HS   = 0x400000
WS_Z2   = 0x480000
WS_Z1   = 0x800000
WS_ZS   = 0xB00000
WS_V    = 0xC00000
WS_FL   = 0x000000
FL_F1, FL_F2, FL_FS, FL_F3, FL_F3B, FL_F4, FL_X = 0x1000, 0x2000, 0x3000, 0x5000, 0x6000, 0x7000, 0x8000
WS_STAMP = 0xF00000
WS_SIZE = 0x1000000
SX, SCS, SSS, SCD, SSD, SWI, SWS, SBS, SWO, SOUT, SW, ST = 4, 8, 12, 16, 20, 24, 28, 32, 36, 40, 44, 48
sWAVE, sC, sL = 52, 53, 54
sMASKHI = 55
SRDS = [(SX, 0, 2621440), (SCS, 8, 8388608), (SSS, 16, 8388608), (SCD, 24, 819200), (SSD, 32, 819200),
        (SWI, 48, 1966080), (SWS, 56, 8388608), (SBS, 64, 4096), (SWO, 72, 983040), (SOUT, 80, 2621440), (SW, 96, WS_SIZE)]
vLANE = 1
vL16 = 2

def prologue(p, kname, end):
    p(f".globl {kname}\n.p2align 8\n.type {kname},@function\n{kname}:")
    p(f"s_cmp_ge_u32 s2, 256\ns_cbranch_scc1 {end}")
    for (s, off, size) in SRDS:
        p(f"s_load_dwordx2 {sr(s,2)}, s[0:1], {off}")
    for (s, off, size) in SRDS:
        p(f"s_mov_b32 s{s+2}, {size}\ns_mov_b32 s{s+3}, 0x20000")
    p(f"s_mov_b32 s{ST+3}, 0x20000")
    p(f"v_lshrrev_b32 v3, 6, v0\nv_and_b32 v{vLANE}, 63, v0\nv_readfirstlane_b32 s{sWAVE}, v3")
    p(f"v_lshlrev_b32 v{vL16}, 4, v{vLANE}")
    p(f"s_and_b32 s{sC}, s2, 7\ns_lshr_b32 s{sL}, s2, 3\ns_mov_b32 s{sMASKHI}, 0xffff0000")
    p("s_waitcnt lgkmcnt(0)")

def sel_srd(p, a, b):
    p(f"s_cselect_b32 s{ST}, s{a}, s{b}\ns_cselect_b32 s{ST+1}, s{a+1}, s{b+1}\ns_cselect_b32 s{ST+2}, s{a+2}, s{b+2}")

def swz_src(p, vdst, row_bytes, tmp, rowmul=1, st=95):
    p(f"v_lshrrev_b32 v{tmp}, 3, v{vLANE}")
    p(f"s_mov_b32 s{st}, {row_bytes*rowmul}")
    p(f"v_mul_lo_u32 v{vdst}, v{tmp}, s{st}")
    p(f"v_lshrrev_b32 v{tmp}, 4, v{vLANE}")
    p(f"v_and_b32 v{tmp+1}, 7, v{vLANE}")
    p(f"v_xor_b32 v{tmp}, v{tmp}, v{tmp+1}")
    p(f"v_lshl_add_u32 v{vdst}, v{tmp}, 4, v{vdst}")
    p(f"v_xor_b32 v{vdst+1}, 64, v{vdst}")
    p(f"v_add_u32 v{vdst+1}, {8*row_bytes*rowmul}, v{vdst+1}")

def swz_rd(p, vdst, tmp):
    p(f"v_and_b32 v{tmp}, 15, v{vLANE}")
    p(f"v_lshlrev_b32 v{vdst}, 7, v{tmp}")
    p(f"v_lshrrev_b32 v{tmp}, 1, v{tmp}")
    p(f"v_lshrrev_b32 v{tmp+1}, 4, v{vLANE}")
    p(f"v_xor_b32 v{tmp}, v{tmp}, v{tmp+1}")
    p(f"v_lshl_add_u32 v{vdst}, v{tmp}, 4, v{vdst}")
    p(f"v_xor_b32 v{vdst+1}, 64, v{vdst}")

P1_XR = 10272
P1_B = 41216
P1_XA = P1_B + 102400
P1_T = P1_XA + 640
P1_LDS = P1_T + 128

def P1(p, st="sc1"):
    sRG, sQ, sG, sPI, sTY, sNT = 60, 61, 62, 63, 64, 65
    sG0M, sJ0M, sJ31M = 66, 68, 70
    t = 72
    p(f"s_lshr_b32 s{sRG}, s{sL}, 2\ns_lshl_b32 s{t}, s{sC}, 3\ns_add_u32 s{sRG}, s{sRG}, s{t}\ns_and_b32 s{sQ}, s{sL}, 3")
    p(f"s_lshl_b32 s{sG}, s{sRG}, 3\ns_lshl_b32 s{t}, s{sWAVE}, 1\ns_add_u32 s{sG}, s{sG}, s{t}")
    vL4 = 4
    p(f"v_lshlrev_b32 v{vL4}, 2, v{vLANE}")
    p(f"s_mul_i32 s{t+2}, s{sWAVE}, {P1_XR}")
    for gb in range(2):
        p(f"s_add_u32 s{t}, s{sG}, {gb}\ns_mul_i32 s{t}, s{t}, 1280")
        for kk in range(4):
            if kk == 0: p(f"s_mov_b32 s{t+1}, s{t}")
            elif kk == 1: p(f"s_sub_u32 s{t+1}, {2048*1280}, s{t}")
            elif kk == 2: p(f"s_sub_u32 s{t+1}, {1024*1280}, s{t}")
            else: p(f"s_add_u32 s{t+1}, {1024*1280}, s{t}")
            if gb == 0 and kk in (1, 3):
                p(f"s_cmp_eq_u32 s{t}, 0\ns_cselect_b32 s{t+1}, {(512 if kk==1 else 1536)*1280}, s{t+1}")
            p(f"s_add_u32 m0, s{t+2}, {(gb*4+kk)*1280}")
            p(f"buffer_load_dwordx4 v{vL16}, {sr(SX,4)}, s{t+1} offen lds")
            p(f"buffer_load_dword v{vL4}, {sr(SX,4)}, s{t+1} offen offset:1024 lds")
    vBS = 6
    swz_src(p, vBS, 1280, 10)
    p(f"s_mul_i32 s{sPI}, s{sWAVE}, 3\ns_add_u32 s{sPI}, s{sPI}, 4")
    p(f"s_lshl_b32 s{t}, s{sWAVE}, 1\ns_sub_u32 s{t}, s{t}, 4\ns_cmp_ge_u32 s{sWAVE}, 2\ns_cselect_b32 s{sPI}, s{t}, s{sPI}")
    p(f"s_or_b32 s{t}, s{sQ}, s{sPI}\ns_cmp_eq_u32 s{t}, 0\ns_cselect_b32 s{t}, {320*1280}, 0")
    p(f"v_cmp_gt_u32 vcc, 8, v{vLANE}\nv_mov_b32 v10, s{t}\nv_cndmask_b32 v10, 0, v10, vcc\nv_add_u32 v8, v{vBS}, v10")
    def bdma(slot):
        p(f"s_add_u32 s{t}, s{sPI}, {slot}")
        p(f"s_mul_i32 s{t+1}, s{t}, 10240\ns_add_u32 s{t+1}, s{t+1}, {P1_B}")
        p(f"s_cmp_ge_u32 s{t}, 5\ns_cselect_b32 s{t+3}, 5, 0")
        sel_srd(p, SSD, SCD)
        p(f"s_sub_u32 s{t}, s{t}, s{t+3}\ns_mul_i32 s{t+3}, s{sQ}, 5\ns_add_u32 s{t}, s{t}, s{t+3}\ns_mul_i32 s{t}, s{t}, {16*1280}")
        for pc in range(5):
            for hf in range(2):
                p(f"s_add_u32 m0, s{t+1}, {pc*2048 + hf*1024 - pc*128}")
                v = vBS + hf if not (slot == 0 and hf == 0) else 8
                p(f"buffer_load_dwordx4 v{v}, {sr(ST,4)}, s{t} offen offset:{pc*128} lds")
    bdma(0); bdma(1)
    vJ, vD, vM = 10, 12, 16
    p(f"v_and_b32 v{vJ}, 31, v{vLANE}")
    p(f"v_cmp_eq_u32 {sr(sJ0M,2)}, 0, v{vJ}\nv_cmp_eq_u32 {sr(sJ31M,2)}, 31, v{vJ}")
    p(f"v_lshrrev_b32 v11, 5, v{vLANE}\nv_mul_u32_u24 v11, 5120, v11\nv_add_u32 v11, s{t+2}, v11")
    p(f"v_mul_u32_u24 v{vJ}, 20, v{vJ}")
    p(f"v_add_u32 v{vD}, v11, v{vJ}\nv_sub_u32 v{vM}, v11, v{vJ}\nv_add_u32 v{vM}, 1260, v{vM}")
    for kk in range(1, 4):
        p(f"v_add_u32 v{vD+kk}, {1280*kk}, v{vD}\nv_add_u32 v{vM+kk}, {1280*kk}, v{vM}")
    p(f"s_cmp_eq_u32 s{sG}, 0\ns_cselect_b32 s{sG0M}, -1, 0\ns_mov_b32 s{sG0M+1}, 0")
    vFJ0 = 20
    p(f"v_cndmask_b32 v{vFJ0}, 0, 1.0, {sr(sJ0M,2)}")
    vAW = 21
    p(f"v_lshrrev_b32 v11, 5, v{vLANE}\nv_mul_u32_u24 v11, 640, v11\nv_add3_u32 v{vAW}, v11, v{vJ}, s{t+2}")
    for cmb in range(1, 4): p(f"v_add_u32 v{vAW+cmb}, {1280*cmb}, v{vAW}")
    p("s_waitcnt vmcnt(20)")
    RAW = 64
    for kk in range(4):
        r = RAW + 12*kk
        p(f"ds_read2_b32 {vr(r,2)}, v{vD+kk} offset0:0 offset1:1")
        p(f"ds_read2_b32 {vr(r+6,2)}, v{vM+kk} offset0:0 offset1:1")
        p(f"ds_read2_b32 {vr(r+8,2)}, v{vM+kk} offset0:2 offset1:3")
        p(f"ds_read2_b32 {vr(r+10,2)}, v{vM+kk} offset0:4 offset1:5")
        p(f"ds_read2_b32 {vr(r+2,2)}, v{vD+kk} offset0:2 offset1:3")
        p(f"ds_read_b32 v{r+4}, v{vD+kk} offset:16")
    lab = p.label("P1_no3")
    p(f"s_cmp_ge_u32 s{sWAVE}, 2\ns_cbranch_scc1 {lab}")
    bdma(2)
    p(f"{lab}:")
    T, CA = 112, 152
    S2, Q2, Y = 192, 200, 208
    tA = 212
    for kk in range(4):
        r = RAW + 12*kk
        p(f"s_waitcnt lgkmcnt({min(15, 18-6*kk)})" if kk < 3 else "s_waitcnt lgkmcnt(0)")
        if kk == 0: p("s_waitcnt lgkmcnt(15)")
        for k in range(5):
            a = tA + 4*(k & 1); b = a + 2
            p(f"v_lshlrev_b32 v{a}, 16, v{r+k}\nv_and_b32 v{a+1}, s{sMASKHI}, v{r+k}")
            p(f"v_lshlrev_b32 v{b}, 16, v{r+6+5-k}\nv_and_b32 v{b+1}, s{sMASKHI}, v{r+6+4-k}")
            if k == 0: p(f"v_cndmask_b32 v{b}, v{b}, 0, {sr(sJ0M,2)}")
            tt, cc = T+10*kk+2*k, CA+10*kk+2*k
            p(f"v_pk_add_f32 {vr(tt,2)}, {vr(a,2)}, {vr(b,2)}")
            p(f"v_pk_add_f32 {vr(cc,2)}, {vr(a,2)}, {vr(b,2)} neg_lo:[0,1] neg_hi:[0,1]")
            if k == 0:
                p(f"v_pk_mul_f32 {vr(Q2+2*kk,2)}, {vr(tt,2)}, {vr(tt,2)}")
            else:
                p(f"v_pk_add_f32 {vr(S2+2*kk,2)}, {vr(tt,2)}, {vr(S2+2*kk if k > 1 else tt-2,2)}")
                p(f"v_pk_fma_f32 {vr(Q2+2*kk,2)}, {vr(tt,2)}, {vr(tt,2)}, {vr(Q2+2*kk,2)}")
            p(f"v_pk_fma_f32 {vr(Q2+2*kk,2)}, {vr(cc,2)}, {vr(cc,2)}, {vr(Q2+2*kk,2)}")
        p(f"v_lshlrev_b32 v{Y+kk}, 16, v{r+6}\nv_cndmask_b32 v{Y+kk}, 0, v{Y+kk}, {sr(sJ31M,2)}")
        p(f"v_add_f32 v{S2+2*kk}, v{S2+2*kk}, v{S2+2*kk+1}\nv_add_f32 v{Q2+2*kk}, v{Q2+2*kk}, v{Q2+2*kk+1}")
        p(f"v_add_f32 v{S2+2*kk}, v{S2+2*kk}, v{Y+kk}\nv_add_f32 v{tA}, v{Y+kk}, v{Y+kk}\nv_fmac_f32 v{Q2+2*kk}, v{tA}, v{Y+kk}")
    red = [S2+2*k for k in range(4)] + [Q2+2*k for k in range(4)]
    for mod in ("quad_perm:[1,0,3,2]", "quad_perm:[2,3,0,1]", "row_half_mirror", "row_mirror"):
        for x in red: p(f"v_add_f32_dpp v{x}, v{x}, v{x} {mod} row_mask:0xf bank_mask:0xf")
    for x in red: p(f"v_mov_b32 v{x+1}, v{x}")
    for x in red: p(f"v_permlane16_swap_b32 v{x}, v{x+1}")
    for x in red: p(f"v_add_f32 v{x}, v{x}, v{x+1}")
    p(f"s_mov_b32 s{t}, 0x3acccccd\ns_mov_b32 s{t+1}, 0x3a4ccccd\ns_mov_b32 s{t+3}, 0x3727c5ac")
    for k in range(4): p(f"v_mul_f32 v{S2+2*k}, s{t}, v{S2+2*k}")
    for k in range(4): p(f"v_mul_f32 v{S2+2*k+1}, v{S2+2*k}, v{S2+2*k}")
    for k in range(4): p(f"v_fma_f32 v{Q2+2*k}, v{Q2+2*k}, s{t+1}, -v{S2+2*k+1}")
    for k in range(4): p(f"v_add_f32 v{Q2+2*k}, s{t+3}, v{Q2+2*k}")
    for k in range(4): p(f"v_rsq_f32 v{Q2+2*k}, v{Q2+2*k}")
    M = lambda k: S2+2*k
    R = lambda k: Q2+2*k
    for k in range(4): p(f"v_fmac_f32 v{T+10*k}, v{vFJ0}, v{M(k)}")
    for k in range(4): p(f"v_sub_f32 v{Y+k}, v{Y+k}, v{M(k)}")
    A1, A3, B0, B2, B1, K1, K2 = 220, 222, 224, 226, 228, 230, 232
    g0 = sr(sG0M, 2)
    p(f"v_cndmask_b32 v{A1}, v{R(1)}, 0, {g0}\nv_cndmask_b32 v{A3}, v{R(3)}, 0, {g0}")
    p(f"v_cndmask_b32 v{B0}, v{R(0)}, 0, {g0}\nv_cndmask_b32 v{B2}, v{R(2)}, 0, {g0}")
    p(f"v_cndmask_b32 v{B1}, -v{R(1)}, v{R(1)}, {g0}")
    p(f"v_mul_f32 v{K1}, v{R(0)}, v{M(0)}\nv_mul_f32 v{K2}, v{R(2)}, v{M(2)}")
    p(f"v_fmac_f32 v{K1}, v{A1}, v{M(1)}\nv_fmac_f32 v{K2}, v{A3}, v{M(3)}")
    p(f"v_mul_f32 v{K1}, -2.0, v{K1}\nv_mul_f32 v{K2}, -2.0, v{K2}")
    bc = "op_sel_hi:[0,1,0]"; bc1 = "op_sel_hi:[0,1,1]"
    OUT = 64
    U, W = 236, 240
    for k in range(5):
        tt = lambda r_: vr(T+10*r_+2*k, 2)
        cc = lambda r_: vr(CA+10*r_+2*k, 2)
        u, w = U, U+2; u2, w2 = W, W+2
        p(f"v_pk_fma_f32 {vr(u,2)}, {vr(R(0),2)}, {tt(0)}, {vr(K1,2)} {bc}")
        p(f"v_pk_fma_f32 {vr(w,2)}, {vr(R(2),2)}, {tt(2)}, {vr(K2,2)} {bc}")
        p(f"v_pk_mul_f32 {vr(u2,2)}, {vr(B0,2)}, {cc(0)} op_sel_hi:[0,1]")
        p(f"v_pk_mul_f32 {vr(w2,2)}, {vr(B2,2)}, {cc(2)} op_sel_hi:[0,1]")
        p(f"v_pk_fma_f32 {vr(u,2)}, {vr(A1,2)}, {tt(1)}, {vr(u,2)} {bc1}")
        p(f"v_pk_fma_f32 {vr(w,2)}, {vr(A3,2)}, {tt(3)}, {vr(w,2)} {bc1}")
        p(f"v_pk_fma_f32 {vr(u2,2)}, {vr(B1,2)}, {cc(1)}, {vr(u2,2)} {bc1}")
        p(f"v_pk_fma_f32 {vr(w2,2)}, {vr(R(3),2)}, {cc(3)}, {vr(w2,2)} {bc1} neg_lo:[1,0,0] neg_hi:[1,0,0]")
        e = 244
        p(f"v_pk_add_f32 {vr(e,2)}, {vr(u,2)}, {vr(w,2)}")
        p(f"v_pk_add_f32 {vr(e+2,2)}, {vr(u,2)}, {vr(w,2)} neg_lo:[0,1] neg_hi:[0,1]")
        p(f"v_pk_add_f32 {vr(e+4,2)}, {vr(u2,2)}, {vr(w2,2)} neg_lo:[0,1] neg_hi:[0,1]")
        p(f"v_pk_add_f32 {vr(e+6,2)}, {vr(u2,2)}, {vr(w2,2)}")
        for cmb in range(4): p(f"v_cvt_pk_bf16_f32 v{OUT+6*cmb+k}, v{e+2*cmb}, v{e+2*cmb+1}")
    for cmb in range(4):
        o = OUT+6*cmb
        p(f"ds_write2_b32 v{vAW+cmb}, v{o}, v{o+1} offset0:0 offset1:1")
        p(f"ds_write2_b32 v{vAW+cmb}, v{o+2}, v{o+3} offset0:2 offset1:3")
        p(f"ds_write_b32 v{vAW+cmb}, v{o+4} offset:16")
    p(f"v_mul_f32 v{U}, v{R(0)}, v{Y}\nv_mul_f32 v{U+1}, v{R(2)}, v{Y+2}")
    p(f"v_fmac_f32 v{U}, v{A1}, v{Y+1}\nv_fmac_f32 v{U+1}, v{A3}, v{Y+3}")
    p(f"v_add_f32 v{U+2}, v{U}, v{U+1}\nv_sub_f32 v{U+3}, v{U}, v{U+1}")
    p(f"v_lshrrev_b32 v11, 5, v{vLANE}\ns_lshl_b32 s{t}, s{sWAVE}, 3\ns_add_u32 s{t}, s{t}, {P1_T}\nv_lshl_add_u32 v11, v11, 2, s{t}")
    p(f"s_mov_b64 exec, {sr(sJ31M,2)}\nds_write2_b32 v11, v{U+2}, v{U+3} offset0:0 offset1:8\ns_mov_b64 exec, -1")
    lab = p.label("P1_nox")
    p(f"s_cmp_lg_u32 s{sG}, 0\ns_cbranch_scc1 {lab}")
    p(f"v_mul_f32 v{K1}, v{R(1)}, v{M(1)}\nv_fmac_f32 v{K1}, v{R(3)}, v{M(3)}\nv_mul_f32 v{K1}, -2.0, v{K1}")
    for k in range(5):
        p(f"v_pk_fma_f32 {vr(U,2)}, {vr(R(1),2)}, {vr(T+10+2*k,2)}, {vr(K1,2)} {bc}")
        p(f"v_pk_fma_f32 {vr(U,2)}, {vr(R(3),2)}, {vr(T+30+2*k,2)}, {vr(U,2)} {bc1}")
        p(f"v_cvt_pk_bf16_f32 v{100+k}, v{U}, v{U+1}")
    p(f"v_mul_f32 v{U}, v{R(1)}, v{Y+1}\nv_fmac_f32 v{U}, v{R(3)}, v{Y+3}")
    p(f"v_add_u32 v11, {P1_XA}, v{vJ}\nv_mov_b32 v25, {P1_T+64}")
    p(f"s_mov_b64 exec, {g0}")
    p(f"ds_write2_b32 v11, v100, v101 offset0:0 offset1:1\nds_write2_b32 v11, v102, v103 offset0:2 offset1:3\nds_write_b32 v11, v104 offset:16")
    p(f"s_mov_b64 exec, 0x80000000\nds_write_b32 v25, v{U}\ns_mov_b64 exec, -1")
    p(f"{lab}:")
    vA, vB, vSG, vT, vST, vXA, vXS = 26, 28, 30, 31, 32, 33, 34
    p(f"v_and_b32 v10, 7, v{vLANE}\nv_lshrrev_b32 v11, 1, v10\nv_mul_u32_u24 v{vA}, {P1_XR}, v11")
    p(f"v_and_b32 v10, 1, v{vLANE}\nv_mul_u32_u24 v11, 640, v10\nv_add_u32 v{vA}, v{vA}, v11")
    p(f"v_lshlrev_b32 v{vSG}, 31, v10\nv_or_b32 v{vSG}, 1.0, v{vSG}")
    p(f"v_bfe_u32 v10, v{vLANE}, 3, 1\nv_mul_u32_u24 v11, 1280, v10\nv_add_u32 v{vA}, v{vA}, v11")
    p(f"v_lshrrev_b32 v10, 4, v{vLANE}\nv_lshl_add_u32 v{vA}, v10, 4, v{vA}")
    p(f"v_lshlrev_b32 v{vT}, 4, v10\nv_add_u32 v{vXA}, {P1_XA}, v{vT}\nv_add_u32 v{vT}, {P1_T}, v{vT}")
    swz_rd(p, vB, 10)
    p(f"v_lshrrev_b32 v10, 5, v{vLANE}\nv_mul_u32_u24 v{vST}, 327680, v10\nv_and_b32 v10, 15, v{vLANE}\nv_lshlrev_b32 v{vXS}, 2, v10\nv_lshl_add_u32 v{vST}, v10, 4, v{vST}")
    p(f"v_bfe_u32 v10, v{vLANE}, 4, 1\nv_lshl_add_u32 v{vST}, v10, 3, v{vST}")
    sBASE = t+4
    p(f"s_mul_i32 s{sBASE}, s{sQ}, 81920\ns_lshr_b32 s{t}, s{sRG}, 2\ns_mul_i32 s{t}, s{t}, 5120\ns_add_u32 s{sBASE}, s{sBASE}, s{t}")
    p(f"s_and_b32 s{t}, s{sRG}, 3\ns_lshl_b32 s{t}, s{t}, 8\ns_add_u32 s{sBASE}, s{sBASE}, s{t}\ns_add_u32 s{sBASE}, s{sBASE}, {WS_AB}")
    p("s_waitcnt vmcnt(0) lgkmcnt(0)\ns_barrier")
    FA, FB, FX, ACC, ACX, TI = 64, 104, 144, 184, 188, 192
    p(f"ds_read_b128 {vr(TI,4)}, v{vT}\nv_mov_b32 v10, {P1_T+64}\nds_read_b32 v{TI+4}, v10")
    done = p.label("P1_done")
    for slot in range(3):
        if slot == 2: p(f"s_cmp_ge_u32 s{sWAVE}, 2\ns_cbranch_scc1 {done}")
        p(f"s_add_u32 s{t}, s{sPI}, {slot}\ns_cmp_ge_u32 s{t}, 5\ns_cselect_b32 s{sTY}, 1, 0\ns_cselect_b32 s{t+1}, 0, 1.0")
        p(f"s_mul_i32 s{sNT}, s{sTY}, 5\ns_sub_u32 s{sNT}, s{t}, s{sNT}")
        p(f"s_mul_i32 s{t}, s{t}, 10240\ns_add_u32 s{t}, s{t}, {P1_B}\ns_mul_i32 s{t+2}, s{sTY}, 2560")
        p(f"v_add_u32 v10, s{t+2}, v{vA}\nv_add_u32 v12, s{t}, v{vB}\nv_add_u32 v13, s{t}, v{vB+1}\nv_mul_f32 v11, s{t+1}, v{vSG}")
        for ks in range(10):
            p(f"ds_read_b128 {vr(FA+4*ks,4)}, v10 offset:{64*ks}")
            p(f"ds_read_b128 {vr(FB+4*ks,4)}, v{12+(ks&1)} offset:{2048*(ks>>1)}")
        p("s_waitcnt lgkmcnt(15)")
        for r_ in range(4): p(f"v_mul_f32 v{ACC+r_}, v11, v{TI+r_}")
        for ks in range(10):
            if ks >= 2: p(f"s_waitcnt lgkmcnt({18-2*ks})")
            p(f"v_mfma_f32_16x16x32_bf16 {vr(ACC,4)}, {vr(FA+4*ks,4)}, {vr(FB+4*ks,4)}, {vr(ACC,4)}")
        p(f"s_mul_i32 s{t}, s{sTY}, 655360\ns_lshl_b32 s{t+1}, s{sNT}, 10\ns_add_u32 s{t}, s{t}, s{t+1}\ns_add_u32 s{t}, s{t}, s{sBASE}")
        p(f"v_cvt_pk_bf16_f32 v14, v{ACC}, v{ACC+1}\nv_cvt_pk_bf16_f32 v15, v{ACC+2}, v{ACC+3}")
        p(f"buffer_store_dwordx2 v[14:15], v{vST}, {sr(SW,4)}, s{t} offen {st}")
        lab = p.label("P1_nx"); lab2 = p.label("P1_sinx")
        p(f"s_cmp_lg_u32 s{sRG}, 0\ns_cbranch_scc1 {lab}")
        p(f"s_mul_i32 s{t}, s{sQ}, 320\ns_lshl_b32 s{t+1}, s{sNT}, 6\ns_add_u32 s{t}, s{t}, s{t+1}\ns_add_u32 s{t}, s{t}, {WS_XB}")
        p(f"s_cmp_lg_u32 s{sTY}, 0\ns_cbranch_scc1 {lab2}")
        for ks in range(10): p(f"ds_read_b128 {vr(FX+4*ks,4)}, v{vXA} offset:{64*ks}")
        for r_ in range(4): p(f"v_mul_f32 v{ACX+r_}, v{vSG}, v{TI+4}")
        p("s_waitcnt lgkmcnt(0)")
        for ks in range(10): p(f"v_mfma_f32_16x16x32_bf16 {vr(ACX,4)}, {vr(FX+4*ks,4)}, {vr(FB+4*ks,4)}, {vr(ACX,4)}")
        p(f"s_mov_b64 exec, 0xffff\nbuffer_store_dword v{ACX}, v{vXS}, {sr(SW,4)}, s{t} offen {st}\ns_mov_b64 exec, -1\ns_branch {lab}")
        p(f"{lab2}:")
        p(f"s_mov_b32 exec_lo, 0\ns_mov_b32 exec_hi, 0xffff\nbuffer_store_dword v{ACC}, v{vXS}, {sr(SW,4)}, s{t} offen offset:1280 {st}\ns_mov_b64 exec, -1")
        p(f"{lab}:")
    p(f"{done}:")


P2_W = 9216
sI2, sP2, sQ2 = 56, 57, 58
P2_MF, P2_MX, P2_XD, P2_RING, P2_ACC, P2_ACX, P2_XB = 16, 48, 80, 112, 192, 212, 232

def P2_params(p):
    t = 72
    p(f"s_lshl_b32 s{sI2}, s{sC}, 2\ns_lshr_b32 s{t}, s{sL}, 3\ns_add_u32 s{sI2}, s{sI2}, s{t}")
    p(f"s_bfe_u32 s{sP2}, s{sL}, 0x10002\ns_and_b32 s{sQ2}, s{sL}, 3")

def P2_pre_issue(p, lds0):
    t = 72
    swz_src(p, 6, 4096, 10, rowmul=2)
    p(f"s_cmp_ge_u32 s{sWAVE}, 2")
    sel_srd(p, SSS, SCS)
    p(f"s_lshl_b32 s{t}, s{sI2}, 5\ns_add_u32 s{t+1}, s{t}, 32\ns_add_u32 s{t}, s{t}, s{sP2}")
    p(f"s_lshl_b32 s{t}, s{t}, 12\ns_lshl_b32 s{t+1}, s{t+1}, 12")
    p(f"s_and_b32 s{t+2}, s{sWAVE}, 1\ns_lshl_b32 s{t+2}, s{t+2}, 9\ns_add_u32 s{t}, s{t}, s{t+2}\ns_add_u32 s{t+1}, s{t+1}, s{t+2}")
    p(f"s_mul_i32 s{t+2}, s{sWAVE}, {P2_W}\ns_add_u32 s{t+2}, s{t+2}, {lds0}")
    p(f"s_and_b32 s{t+3}, s{sI2}, 3")
    for pc in range(4):
        p(f"s_add_u32 s{t+4}, s{t+3}, {pc}\ns_and_b32 s{t+4}, s{t+4}, 3\ns_lshl_b32 s{t+4}, s{t+4}, 7\ns_add_u32 s{t+4}, s{t+4}, s{t}")
        for hf in range(2):
            p(f"s_add_u32 m0, s{t+2}, {pc*2048 + hf*1024}")
            p(f"buffer_load_dwordx4 v{6+hf}, {sr(ST,4)}, s{t+4} offen lds")
    p(f"s_lshl_b32 s{t+4}, s{t+3}, 3\nv_add_u32 v10, s{t+4}, v{vLANE}\nv_and_b32 v10, 31, v10\nv_lshlrev_b32 v10, 4, v10")
    p(f"s_add_u32 m0, s{t+2}, 8192\nbuffer_load_dwordx4 v10, {sr(ST,4)}, s{t+1} offen lds")
    R = P2_RING
    p(f"v_and_b32 v10, 3, v{vLANE}\ns_lshl_b32 s{t+3}, s{sWAVE}, 2\nv_add_u32 v10, s{t+3}, v10\nv_mul_u32_u24 v10, 2560, v10")
    p(f"v_lshrrev_b32 v11, 2, v{vLANE}\nv_lshlrev_b32 v11, 4, v11\ns_mul_i32 s{t+3}, s{sQ2}, 160\nv_add_u32 v11, s{t+3}, v11")
    p(f"v_sub_u32 v12, 1264, v11\nv_add_u32 v13, 16, v12\nv_cmp_eq_u32 vcc, 0, v11\nv_mov_b32 v14, 640\nv_cndmask_b32 v13, v13, v14, vcc")
    p(f"s_lshl_b32 s{t}, s{sI2}, 5\ns_add_u32 s{t+1}, s{t}, s{sP2}\ns_mul_i32 s{t+1}, s{t+1}, 1280")
    p(f"s_sub_u32 s{t}, s{sP2}, s{t}\ns_add_u32 s{t}, s{t}, 2046\ns_mul_i32 s{t}, s{t}, 1280")
    p(f"v_add_u32 v8, s{t+1}, v10\nv_sub_u32 v9, s{t}, v10")
    for sd in range(2):
        r = R + 12*sd
        p(f"v_add_u32 v14, v{8+sd}, v11\nbuffer_load_dwordx4 {vr(r,4)}, v14, {sr(SX,4)}, 0 offen")
        p(f"v_add_u32 v15, v{8+sd}, v12\nbuffer_load_dwordx4 {vr(r+4,4)}, v15, {sr(SX,4)}, 0 offen")
        p(f"v_add_u32 v14, v{8+sd}, v13\nbuffer_load_dword v{r+8}, v14, {sr(SX,4)}, 0 offen")

def P2_pre_finish(p, lds0):
    t = 72
    swz_rd(p, 6, 10)
    p(f"s_mul_i32 s{t+2}, s{sWAVE}, {P2_W}\ns_add_u32 s{t+2}, s{t+2}, {lds0}")
    p(f"v_add_u32 v6, s{t+2}, v6\nv_add_u32 v7, s{t+2}, v7\nv_lshrrev_b32 v10, 4, v{vLANE}\nv_lshl_add_u32 v10, v10, 4, s{t+2}")
    for ks in range(8):
        p(f"ds_read_b128 {vr(P2_MF+4*ks,4)}, v{6+(ks&1)} offset:{2048*(ks>>1)}")
        p(f"ds_read_b128 {vr(P2_MX+4*ks,4)}, v10 offset:{8192+64*ks}")
    for sd in range(2):
        r = P2_RING + 12*sd; x = P2_XD + 16*sd
        for k in range(4):
            p(f"v_lshlrev_b32 v{x+2*k}, 16, v{r+k}\nv_and_b32 v{x+2*k+1}, s{sMASKHI}, v{r+k}")
        p(f"v_lshlrev_b32 v{x+8}, 16, v{r+8}")
        for i in range(1, 8):
            wi = 8 - i
            if wi & 1: p(f"v_and_b32 v{x+8+i}, s{sMASKHI}, v{r+4+(wi>>1)}")
            else: p(f"v_lshlrev_b32 v{x+8+i}, 16, v{r+4+(wi>>1)}")
    p("s_waitcnt lgkmcnt(0)")

def P2_main(p, lds0, st=""):
    t = 72
    RING, ACC, ACX = P2_RING, P2_ACC, P2_ACX
    p(f"s_lshr_b32 s{t}, s{sWAVE}, 1\ns_lshl_b32 s{t}, s{t}, 1\ns_add_u32 s{t}, s{t}, s{sP2}\ns_lshl_b32 s{t}, s{t}, 2\ns_add_u32 s{t}, s{t}, s{sQ2}")
    p(f"s_lshl_b32 s{t}, s{t}, 1\ns_and_b32 s{t+1}, s{sWAVE}, 1\ns_add_u32 s{t}, s{t}, s{t+1}\ns_mul_i32 s{t}, s{t}, 40960\ns_add_u32 s{t}, s{t}, {WS_AB}")
    p(f"s_and_b32 s{t+1}, s{sI2}, 3\ns_lshl_b32 s{t+1}, s{t+1}, 1")
    sK = 80
    for k in range(8):
        p(f"s_add_u32 s{t+2}, s{t+1}, {k}\ns_and_b32 s{t+2}, s{t+2}, 7\ns_mul_i32 s{t+2}, s{t+2}, 5120\ns_add_u32 s{sK+k}, s{t+2}, s{t}")
    p(f"v_add_u32 v3, 4096, v{vL16}")
    def ld(k):
        for nt in range(5):
            r = RING + ((k & 3)*5 + nt)*4
            if nt < 4: p(f"buffer_load_dwordx4 {vr(r,4)}, v{vL16}, {sr(SW,4)}, s{sK+k} offen offset:{nt*1024} sc1")
            else: p(f"buffer_load_dwordx4 {vr(r,4)}, v3, {sr(SW,4)}, s{sK+k} offen sc1")
    for k in range(4): ld(k)
    p(f"v_lshrrev_b32 v10, 2, v{vLANE}\nv_lshlrev_b32 v11, 5, v10\ns_mul_i32 s{t}, s{sQ2}, 320\ns_mul_i32 s{t+1}, s{sP2}, 1280\ns_add_u32 s{t}, s{t}, s{t+1}\ns_add_u32 s{t}, s{t}, {WS_XB}")
    p(f"buffer_load_dwordx4 {vr(P2_XB,4)}, v11, {sr(SW,4)}, s{t} offen sc1\nbuffer_load_dwordx4 {vr(P2_XB+4,4)}, v11, {sr(SW,4)}, s{t} offen offset:16 sc1")
    for r in range(40): p(f"v_mov_b32 v{ACC+r}, 0")
    vPW, vRA, vRB, vHA, vHB, vSG, vSP = 240, 241, 242, 243, 244, 246, 248
    p(f"s_mul_i32 s{t+2}, s{sWAVE}, {P2_W}\ns_add_u32 s{t+2}, s{t+2}, {lds0}")
    p(f"v_and_b32 v12, 15, v{vLANE}\nv_mul_u32_u24 v12, 336, v12\nv_lshrrev_b32 v13, 4, v{vLANE}\nv_lshl_add_u32 v12, v13, 4, v12\nv_add_u32 v{vPW}, s{t+2}, v12")
    p(f"v_and_b32 v12, 3, v{vLANE}\ns_lshl_b32 s{t+3}, s{sWAVE}, 2\nv_add_u32 v12, s{t+3}, v12")
    p(f"v_mul_u32_u24 v13, 336, v12\nv_add3_u32 v{vRA}, v13, v11, {lds0}" if lds0 <= 64 else f"v_mul_u32_u24 v13, 336, v12\nv_add_u32 v13, {lds0}, v13\nv_add_u32 v{vRA}, v13, v11")
    p(f"s_cmp_eq_u32 s{sP2}, 0\ns_cselect_b32 s{t+3}, 336, 0\ns_cselect_b32 s{t+4}, 0, 0x80000000\nv_add_u32 v{vRB}, s{t+3}, v{vRA}")
    p(f"v_lshlrev_b32 v13, 8, v10\nv_lshl_add_u32 v{vHA}, v12, 4, v13\nv_sub_u32 v14, 15, v12\nv_lshl_add_u32 v{vHB}, v14, 4, v13")
    p(f"v_lshlrev_b32 v{vSG}, 31, v{vLANE}\nv_or_b32 v{vSG}, 1.0, v{vSG}\nv_xor_b32 v{vSP}, s{t+4}, v{vSG}")
    vSA, vSB = 250, 251
    p(f"v_lshlrev_b32 v{vSA}, 3, v12\nv_lshlrev_b32 v{vSB}, 3, v14")
    sZ = 66
    p(f"s_cmp_eq_u32 s{sQ2}, 0\ns_cselect_b32 s{sZ}, 15, 0\ns_mov_b32 s{sZ+1}, 0")
    sHA, sHB, sSA, sSB = 88, 90, 92, 93
    p(f"s_lshl_b32 s{t}, s{sI2}, 1\ns_add_u32 s{t}, s{t}, s{sP2}\ns_sub_u32 s{t+1}, 126, s{t}\ns_lshl_b32 s{t+3}, s{sP2}, 1\ns_add_u32 s{t+1}, s{t+1}, s{t+3}")
    p(f"s_mul_i32 s{t+3}, s{sQ2}, 2560\ns_add_u32 s{t+3}, s{t+3}, {WS_H}\ns_lshl_b32 s{t+4}, s{sQ2}, 7\ns_add_u32 s{t+4}, s{t+4}, {WS_HS}")
    for (sh, ss, src) in ((sHA, sSA, t), (sHB, sSB, t+1)):
        p(f"s_mul_i32 s{sh}, s{src}, 20480\ns_add_u32 s{sh}, s{sh}, s{t+3}\ns_add_u32 s{sh+1}, s{sh}, 10240")
        p(f"s_lshl_b32 s{ss}, s{src}, 9\ns_add_u32 s{ss}, s{ss}, s{t+4}")
    for k in range(8):
        p(f"s_waitcnt vmcnt({17 if k < 4 else (7-k)*5})" if k != 0 else "s_waitcnt vmcnt(17)")
        if 1 <= k <= 4: pass
        for nt in range(5):
            r = RING + ((k & 3)*5 + nt)*4
            p(f"v_mfma_f32_16x16x32_bf16 {vr(ACC+4*nt,4)}, {vr(r,4)}, {vr(P2_MF+4*k,4)}, {vr(ACC+4*nt,4)}")
            p(f"v_mfma_f32_16x16x32_bf16 {vr(ACX+4*nt,4)}, {vr(r,4)}, {vr(P2_MX+4*k,4)}, {vr(ACX+4*nt,4)}")
        if k < 4: ld(k+4)
    for nt in range(5): p(f"ds_write_b128 v{vPW}, {vr(ACC+4*nt,4)} offset:{64*nt}")
    p("s_mov_b32 exec_lo, 0x00010001\ns_mov_b32 exec_hi, 0x00010001")
    for nt in range(5): p(f"ds_write_b128 v{vPW}, {vr(ACX+4*nt,4)} offset:{16*336+64*nt}")
    p("s_mov_b64 exec, -1")
    STt = 16
    for r in range(8): p(f"v_mov_b32 v{STt+r}, 0")
    p("s_waitcnt lgkmcnt(0)\ns_barrier")
    p("s_mov_b32 exec_lo, -1\ns_mov_b32 exec_hi, 0xff")
    L = RING
    for sd in range(2):
        for wv in range(4):
            for hh in range(2):
                p(f"ds_read_b128 {vr(L+32*sd+8*wv+4*hh,4)}, v{vRA if sd == 0 else vRB} offset:{wv*P2_W+16*hh}")
    for sd in range(2):
        b = L + 32*sd; x = P2_XD + 16*sd; o = 24 + 8*sd
        p(f"s_waitcnt lgkmcnt({8 if sd == 0 else 0})")
        su = (vSG, 0) if sd == 0 else (vSP, 1)
        sw = (vSP, 0) if sd == 0 else (vSG, 1)
        for k in range(4):
            P0, P1_, Q0, Q1 = b+2*k, b+8+2*k, b+16+2*k, b+24+2*k
            p(f"v_pk_add_f32 {vr(P0,2)}, {vr(P0,2)}, {vr(P1_,2)}\nv_pk_add_f32 {vr(Q0,2)}, {vr(Q0,2)}, {vr(Q1,2)}")
            p(f"v_pk_add_f32 {vr(P1_,2)}, {vr(P0,2)}, {vr(Q0,2)} neg_lo:[0,1] neg_hi:[0,1]")
            p(f"v_pk_add_f32 {vr(Q1,2)}, {vr(P0,2)}, {vr(Q0,2)}")
            for (dst, (sv, ng)) in ((P1_, su), (Q1, sw)):
                p(f"v_pk_fma_f32 {vr(dst,2)}, {vr(sv,2)}, {vr(P2_XB+2*k,2)}, {vr(dst,2)} op_sel_hi:[0,1,1]" + (" neg_lo:[1,0,0] neg_hi:[1,0,0]" if ng else ""))
            lo, hi = (P1_, Q1) if sd == 0 else (Q1, P1_)
            if k == 0: p(f"v_cndmask_b32 v{lo}, v{lo}, 0, {sr(sZ,2)}")
            p(f"v_pk_add_f32 {vr(x+2*k,2)}, {vr(x+2*k,2)}, {vr(lo,2)}\nv_pk_add_f32 {vr(x+8+2*k,2)}, {vr(x+8+2*k,2)}, {vr(hi,2)}")
            p(f"v_cvt_pk_bf16_f32 v{o+k}, v{x+2*k}, v{x+2*k+1}\nv_cvt_pk_bf16_f32 v{o+4+k}, v{x+8+2*k}, v{x+8+2*k+1}")
        sh = sHA if sd == 0 else sHB; vh = vHA if sd == 0 else vHB
        p(f"buffer_store_dwordx4 {vr(o,4)}, v{vh}, {sr(SW,4)}, s{sh} offen {st}")
        p(f"buffer_store_dwordx4 {vr(o+4,4)}, v{vh}, {sr(SW,4)}, s{sh+1} offen {st}")
        s_, q_ = STt+4*sd, STt+4*sd+2
        for k in range(8):
            p(f"v_pk_add_f32 {vr(s_,2)}, {vr(s_,2)}, {vr(x+2*k,2)}\nv_pk_fma_f32 {vr(q_,2)}, {vr(x+2*k,2)}, {vr(x+2*k,2)}, {vr(q_,2)}")
    p("s_mov_b64 exec, -1")
    red = [STt, STt+2, STt+4, STt+6]
    for x in red: p(f"v_add_f32 v{x}, v{x}, v{x+1}")
    for mod in ("row_ror:4", "row_ror:8"):
        for x in red: p(f"v_add_f32_dpp v{x}, v{x}, v{x} {mod} row_mask:0xf bank_mask:0xf")
    for sw in ("v_permlane16_swap_b32", "v_permlane32_swap_b32"):
        for x in red: p(f"v_mov_b32 v{x+1}, v{x}")
        for x in red: p(f"{sw} v{x}, v{x+1}")
        for x in red: p(f"v_add_f32 v{x}, v{x}, v{x+1}")
    p(f"v_mov_b32 v{STt+1}, v{STt+2}\nv_mov_b32 v{STt+5}, v{STt+6}")
    p("s_mov_b64 exec, 15")
    p(f"buffer_store_dwordx2 {vr(STt,2)}, v{vSA}, {sr(SW,4)}, s{sSA} offen {st}")
    p(f"buffer_store_dwordx2 {vr(STt+4,2)}, v{vSB}, {sr(SW,4)}, s{sSB} offen {st}")
    p("s_mov_b64 exec, -1")

def P2(p):
    P2_params(p); P2_pre_issue(p, 0); p("s_waitcnt vmcnt(0)"); P2_pre_finish(p, 0); P2_main(p, 0)


WI_RB = 61472
WI_SIZE = 122912
sRB3, sJ3 = 59, 60
P3_AZ2, P3_AZ1, P3_HF, P3_BF = 16, 40, 64, 224
import struct
def fhex(x): return hex(struct.unpack("<I", struct.pack("<f", x))[0])
LOG2E = 1.4426950408889634
GK0, GK1 = -LOG2E*1.5957691216057308, -LOG2E*0.07135481282

def P3_params(p):
    t = 72
    p(f"s_lshl_b32 s{t}, s{sC}, 2\ns_sub_u32 s{t+1}, 60, s{t}\ns_cmp_ge_u32 s{sL}, 16\ns_cselect_b32 s{sRB3}, s{t+1}, s{t}")
    p(f"s_add_u32 s{sRB3}, s{sRB3}, s{sWAVE}\ns_and_b32 s{sJ3}, s{sL}, 15")

def P3_win_issue(p, wi0):
    t = 72
    p(f"s_mul_i32 s{t}, s{sJ3}, 96\ns_add_u32 s{t+1}, s{t}, 1536\ns_sub_u32 s{t}, s{t}, 96")
    p(f"s_cmp_ge_u32 s{sWAVE}, 2\ns_cselect_b32 s{t+2}, -1, 1\ns_cselect_b32 s{t+3}, 23, 0")
    p(f"s_mov_b32 s{t+4}, 43691\ns_mov_b32 s{t+5}, 3072")
    for u in range(3):
        p(f"v_add_u32 v10, {64*u}, v{vLANE}\nv_mul_u32_u24 v11, s{t+4}, v10\nv_lshrrev_b32 v11, 19, v11")
        p(f"v_mul_u32_u24 v12, 12, v11\nv_sub_u32 v10, v10, v12")
        p(f"v_lshrrev_b32 v12, 3, v11\nv_lshl_add_u32 v11, v12, 3, v11")
        p(f"v_mul_lo_u32 v11, v11, s{t+2}\nv_add_u32 v11, s{t+3}, v11\nv_mul_u32_u24 v11, s{t+5}, v11")
        p(f"v_cmp_gt_u32 vcc, 6, v10\nv_mov_b32 v12, s{t}\nv_mov_b32 v13, s{t+1}\nv_cndmask_b32 v12, v12, v13, vcc")
        p(f"v_lshl_add_u32 v10, v10, 4, v12\nv_add_u32 v{6+u}, v10, v11")
    p(f"s_mul_i32 s{t}, s{sWAVE}, 160\ns_sub_u32 s{t+1}, 937, s{t}\ns_cmp_ge_u32 s{sWAVE}, 2\ns_cselect_b32 s{t}, s{t+1}, s{t}\ns_mul_i32 s{t}, s{t}, 3072")
    p(f"s_mul_i32 s{t+3}, s{t+2}, {8*3072}")
    p(f"s_mul_i32 s{t+4}, s{sWAVE}, {5*3072}\ns_add_u32 s{t+4}, s{t+4}, {wi0}")
    p(f"s_cmp_eq_u32 s{sWAVE}, 2\ns_cselect_b32 s{t+5}, {320*3072}, 0\nv_cmp_gt_u32 vcc, 12, v{vLANE}\nv_mov_b32 v10, s{t+5}\nv_cndmask_b32 v10, 0, v10, vcc")
    p(f"v_add_u32 v9, s{t}, v6\nv_sub_u32 v9, v9, v10")
    for b in range(5):
        for rg in range(2):
            for u in range(3):
                p(f"s_add_u32 m0, s{t+4}, {rg*WI_RB + b*3072 + u*1024}")
                if b == 0 and rg == 0 and u == 0: p(f"buffer_load_dwordx4 v9, {sr(SWI,4)}, 0 offen lds")
                else: p(f"buffer_load_dwordx4 v{6+u}, {sr(SWI,4)}, s{t} offen lds")
            p(f"s_add_u32 s{t}, s{t}, s{t+3}")
        if b < 4: p(f"s_add_u32 s{t}, s{t}, s{t+3}\ns_add_u32 s{t}, s{t}, s{t+3}")

vWB = 248
def P3_wbase(p, wi0):
    p(f"v_bfe_u32 v10, v{vLANE}, 4, 1\nv_mul_u32_u24 v{vWB}, {WI_RB}, v10")
    p(f"v_lshrrev_b32 v10, 5, v{vLANE}\nv_bfe_u32 v11, v{vLANE}, 2, 2\nv_lshl_add_u32 v10, v10, 3, v11\nv_mul_u32_u24 v10, 192, v10")
    p(f"v_and_b32 v11, 3, v{vLANE}\nv_lshl_add_u32 v10, v11, 3, v10\nv_add3_u32 v{vWB}, v{vWB}, v10, 0" )
    if wi0: p(f"v_add_u32 v{vWB}, {wi0}, v{vWB}")

def wfrag(p, dst, ks, nt, base=None):
    b = vWB if base is None else base
    p(f"ds_read_b64_tr_b16 {vr(dst,2)}, v{b} offset:{ks*3072+nt*32}")
    p(f"ds_read_b64_tr_b16 {vr(dst+2,2)}, v{b} offset:{ks*3072+768+nt*32}")

def P3_colsum(p, scr):
    t = 72
    ONE = 64; F = 68; A = 16
    for r in range(4): p(f"v_mov_b32 v{ONE+r}, 0x3f803f80")
    for r in range(24): p(f"v_mov_b32 v{A+r}, 0")
    p(f"s_mul_i32 s{t}, s{sWAVE}, {5*3072}\nv_add_u32 v10, s{t}, v{vWB}")
    for k in range(5):
        for nt in range(6): wfrag(p, F+(k*6+nt)*4, k, nt, base=10)
        if k >= 1:
            p("s_waitcnt lgkmcnt(12)")
            for nt in range(6): p(f"v_mfma_f32_16x16x32_bf16 {vr(A+4*nt,4)}, {vr(F+((k-1)*6+nt)*4,4)}, {vr(ONE,4)}, {vr(A+4*nt,4)}")
    p("s_waitcnt lgkmcnt(0)")
    for nt in range(6): p(f"v_mfma_f32_16x16x32_bf16 {vr(A+4*nt,4)}, {vr(F+(24+nt)*4,4)}, {vr(ONE,4)}, {vr(A+4*nt,4)}")
    p(f"s_mul_i32 s{t}, s{sWAVE}, 384\ns_add_u32 s{t}, s{t}, {scr}\nv_add_u32 v10, s{t}, v{vLANE}")
    p("s_mov_b32 exec_lo, 0x00010001\ns_mov_b32 exec_hi, 0x00010001")
    for nt in range(6): p(f"ds_write_b128 v10, {vr(A+4*nt,4)} offset:{64*nt}")
    p("s_mov_b64 exec, -1\ns_waitcnt lgkmcnt(0)\ns_barrier")

def gelu2(p, x, tmp, sK1, vK0, vONE):
    a, b = tmp, tmp+2
    p(f"v_pk_mul_f32 {vr(a,2)}, {vr(x,2)}, {vr(x,2)}")
    p(f"v_pk_fma_f32 {vr(a,2)}, {vr(a,2)}, {sr(sK1,2)}, {vr(vK0,2)}")
    p(f"v_pk_mul_f32 {vr(a,2)}, {vr(a,2)}, {vr(x,2)}")
    p(f"v_exp_f32 v{b}, v{a}\nv_exp_f32 v{b+1}, v{a+1}")
    p(f"v_pk_add_f32 {vr(b,2)}, {vr(b,2)}, {vr(vONE,2)}")
    p(f"v_rcp_f32 v{a}, v{b}\nv_rcp_f32 v{a+1}, v{b+1}")
    p(f"v_pk_mul_f32 {vr(x,2)}, {vr(x,2)}, {vr(a,2)}")

def gelu4(p, x, tmp, sK1, vK0, vONE):
    for step in range(6):
        for h in range(2):
            xx = x+2*h; a = tmp+4*h; b = a+2
            if step == 0: p(f"v_pk_mul_f32 {vr(a,2)}, {vr(xx,2)}, {vr(xx,2)}")
            if step == 1: p(f"v_pk_fma_f32 {vr(a,2)}, {vr(a,2)}, {sr(sK1,2)}, {vr(vK0,2)}")
            if step == 2: p(f"v_pk_mul_f32 {vr(a,2)}, {vr(a,2)}, {vr(xx,2)}")
            if step == 3: p(f"v_exp_f32 v{b}, v{a}\nv_exp_f32 v{b+1}, v{a+1}")
            if step == 4: p(f"v_pk_add_f32 {vr(b,2)}, {vr(b,2)}, {vr(vONE,2)}")
            if step == 5: p(f"v_rcp_f32 v{a}, v{b}\nv_rcp_f32 v{a+1}, v{b+1}")
    for h in range(2):
        xx = x+2*h; a = tmp+4*h
        p(f"v_pk_mul_f32 {vr(xx,2)}, {vr(xx,2)}, {vr(a,2)}")

def P3_pass(p, z1, k0=0, k1=20, waits=None):
    acc = P3_AZ1 if z1 else P3_AZ2
    n0 = 3 if z1 else 0
    for nt in range(3): wfrag(p, P3_BF + ((k0 & 1)*3+nt)*4, k0, n0+nt)
    for ks in range(k0, k1):
        if ks+1 < k1:
            for nt in range(3): wfrag(p, P3_BF + (((ks+1) & 1)*3+nt)*4, ks+1, n0+nt)
        w = f"lgkmcnt({6 if ks+1 < k1 else 0})"
        if waits: w = f"vmcnt({waits(ks)}) " + w
        p("s_waitcnt " + w)
        for nt in range(3):
            bf = vr(P3_BF + ((ks & 1)*3+nt)*4, 4)
            for par in range(2):
                hf = vr(P3_HF + (2*ks+par)*4, 4); a = vr(acc + (par*3+nt)*4, 4)
                if z1: p(f"v_mfma_f32_16x16x32_bf16 {a}, {bf}, {hf}, {a}")
                else: p(f"v_mfma_f32_16x16x32_bf16 {a}, {hf}, {bf}, {a}")

sGK1 = 90
def P3_loads(p):
    t = 72
    p(f"s_lshl_b32 s{t}, s{sRB3}, 10\ns_add_u32 s{t}, s{t}, {WS_HS}\nbuffer_load_dwordx4 v[4:7], v{vL16}, {sr(SW,4)}, s{t} offen sc1")
    p(f"s_mul_i32 s{t}, s{sRB3}, 40960\ns_add_u32 s{t}, s{t}, {WS_H}\ns_add_u32 s{t+1}, s{t}, 20480")
    for ks in range(20):
        for par in range(2):
            p(f"buffer_load_dwordx4 {vr(P3_HF+(2*ks+par)*4,4)}, v{vL16}, {sr(SW,4)}, s{t+par} offen offset:{(ks&3)*1024} sc1")
        if (ks & 3) == 3 and ks < 19: p(f"s_add_u32 s{t}, s{t}, 4096\ns_add_u32 s{t+1}, s{t+1}, 4096")
    for r in range(48): p(f"v_mov_b32 v{P3_AZ2+r}, 0")

def P3_ln1(p, scr):
    t = 72
    for x in range(4, 8): p(f"v_add_f32_dpp v{x}, v{x}, v{x} row_ror:8 row_mask:0xf bank_mask:0xf")
    for x in range(4): p(f"v_mov_b32 v{8+x}, v{4+x}")
    for x in range(4): p(f"v_permlane16_swap_b32 v{4+x}, v{8+x}")
    for x in range(4): p(f"v_add_f32 v{4+x}, v{4+x}, v{8+x}")
    p(f"s_mov_b32 s{t}, {fhex(1/640)}\ns_mov_b32 s{t+1}, {fhex(1e-5)}")
    p(f"v_mul_f32 v8, s{t}, v4\nv_mul_f32 v9, s{t}, v6\nv_mul_f32 v4, v8, v8\nv_mul_f32 v6, v9, v9")
    p(f"v_fma_f32 v5, v5, s{t}, -v4\nv_fma_f32 v7, v7, s{t}, -v6\nv_add_f32 v5, s{t+1}, v5\nv_add_f32 v7, s{t+1}, v7")
    p(f"v_rsq_f32 v10, v5\nv_rsq_f32 v11, v7\nv_sub_f32 v8, 0, v8\nv_sub_f32 v9, 0, v9")
    p(f"s_lshl_b32 s{t}, s{sWAVE}, 8\ns_add_u32 s{t}, s{t}, {scr+1536}")
    p(f"v_lshrrev_b32 v4, 5, v{vLANE}\nv_lshlrev_b32 v4, 6, v4\nv_and_b32 v5, 7, v{vLANE}\nv_lshl_add_u32 v4, v5, 3, v4\nv_add_u32 v4, s{t}, v4")
    p(f"ds_write_b64 v4, v[8:9]\nds_write_b64 v4, v[10:11] offset:128")

def P3_z2a(p, scr, st):
    t = 72
    B = P3_BF
    NM, RR, CS, TMP, K0, ONE = B, B+8, 4, B+16, 250, 252
    SUM = 8
    p(f"s_lshl_b32 s{t}, s{sWAVE}, 8\ns_add_u32 s{t}, s{t}, {scr+1536}\nv_lshrrev_b32 v12, 4, v{vLANE}\nv_lshl_add_u32 v12, v12, 4, s{t}")
    p(f"v_and_b32 v13, 15, v{vLANE}\nv_lshlrev_b32 v13, 2, v13\nv_add_u32 v13, {scr}, v13")
    p("s_waitcnt lgkmcnt(0)")
    for par in range(2):
        p(f"ds_read_b128 {vr(NM+4*par,4)}, v12 offset:{64*par}\nds_read_b128 {vr(RR+4*par,4)}, v12 offset:{128+64*par}")
    for nt in range(3):
        p(f"ds_read2_b32 {vr(TMP+2*nt,2)}, v13 offset0:{16*nt} offset1:{96+16*nt}")
    p(f"v_add_u32 v13, 768, v13")
    for nt in range(3):
        p(f"ds_read2_b32 {vr(8+2*nt,2)}, v13 offset0:{16*nt} offset1:{96+16*nt}")
    p(f"s_mov_b32 s{sGK1}, {fhex(GK1)}\ns_mov_b32 s{sGK1+1}, {fhex(GK1)}")
    p(f"v_mov_b32 v{K0}, {fhex(GK0)}\nv_mov_b32 v{K0+1}, {fhex(GK0)}\nv_mov_b32 v{ONE}, 1.0\nv_mov_b32 v{ONE+1}, 1.0")
    p("s_waitcnt lgkmcnt(0)")
    CSr = [4, 6, 254]
    for nt in range(3):
        p(f"v_add_f32 v{TMP+2*nt}, v{TMP+2*nt}, v{TMP+2*nt+1}\nv_add_f32 v{8+2*nt}, v{8+2*nt}, v{9+2*nt}\nv_add_f32 v{CSr[nt]}, v{TMP+2*nt}, v{8+2*nt}")
    for par in range(2):
        for nt in range(3):
            a = P3_AZ2 + (par*3+nt)*4
            for h in range(2):
                p(f"v_pk_fma_f32 {vr(a+2*h,2)}, {vr(NM+4*par+2*h,2)}, {vr(CSr[nt],2)}, {vr(a+2*h,2)} op_sel_hi:[1,0,1]")
            for h in range(2):
                p(f"v_pk_mul_f32 {vr(a+2*h,2)}, {vr(a+2*h,2)}, {vr(RR+4*par+2*h,2)}")
            gelu4(p, a, TMP, sGK1, K0, ONE)
    for par in range(2):
        for h in range(2):
            a = lambda nt: vr(P3_AZ2 + (par*3+nt)*4 + 2*h, 2)
            S_, Q_ = vr(NM+4*par+2*h, 2), vr(RR+4*par+2*h, 2)
            p(f"v_pk_add_f32 {S_}, {a(0)}, {a(1)}\nv_pk_mul_f32 {Q_}, {a(0)}, {a(0)}")
            p(f"v_pk_add_f32 {S_}, {S_}, {a(2)}\nv_pk_fma_f32 {Q_}, {a(1)}, {a(1)}, {Q_}\nv_pk_fma_f32 {Q_}, {a(2)}, {a(2)}, {Q_}")
    full = "row_mask:0xf bank_mask:0xf"
    for base in (NM, RR):
        for r in range(4): p(f"v_add_f32_dpp v{base+r}, v{base+r}, v{base+r} row_ror:8 {full}")
    for base in (NM, RR):
        for r in range(4): p(f"v_add_f32_dpp v{base+r}, v{base+4+r}, v{base+4+r} row_ror:8 row_mask:0xf bank_mask:0xc")
    for i, (base, r) in enumerate(((NM, 0), (RR, 0), (NM, 1), (RR, 1))):
        p(f"v_add_f32_dpp v{TMP+i}, v{base+r}, v{base+r} row_half_mirror {full}")
    for i, (base, r) in enumerate(((NM, 2), (RR, 2), (NM, 3), (RR, 3))):
        p(f"v_add_f32_dpp v{TMP+i}, v{base+r}, v{base+r} row_half_mirror row_mask:0xf bank_mask:0xa")
    for mod in ("quad_perm:[1,0,3,2]", "quad_perm:[2,3,0,1]"):
        for i in range(4): p(f"v_add_f32_dpp v{TMP+i}, v{TMP+i}, v{TMP+i} {mod} {full}")
    p(f"v_lshrrev_b32 v12, 2, v{vLANE}\nv_lshlrev_b32 v12, 8, v12")
    p(f"s_lshl_b32 s{t}, s{sRB3}, 12\ns_add_u32 s{t}, s{t}, {WS_ZS}\ns_lshl_b32 s{t+1}, s{sJ3}, 4\ns_add_u32 s{t+1}, s{t+1}, s{t}")
    p("s_mov_b32 exec_lo, 0x11111111\ns_mov_b32 exec_hi, 0x11111111")
    p(f"buffer_store_dwordx4 {vr(TMP,4)}, v12, {sr(SW,4)}, s{t+1} offen {st}")
    p("s_mov_b64 exec, -1")

def P3_z2b_load(p):
    t = 72
    p(f"v_lshrrev_b32 v12, 2, v{vLANE}\nv_lshlrev_b32 v12, 8, v12\nv_and_b32 v13, 3, v{vLANE}\nv_lshl_add_u32 v12, v13, 4, v12")
    p(f"s_lshl_b32 s{t}, s{sRB3}, 12\ns_add_u32 s{t}, s{t}, {WS_ZS}")
    for i in range(4): p(f"buffer_load_dwordx4 {vr(P3_BF+4*i,4)}, v12, {sr(SW,4)}, s{t} offen offset:{64*i} sc1")

def P3_z2b(p, st):
    t = 72
    B = P3_BF
    for h in range(2):
        p(f"v_pk_add_f32 {vr(B+2*h,2)}, {vr(B+2*h,2)}, {vr(B+4+2*h,2)}\nv_pk_add_f32 {vr(B+8+2*h,2)}, {vr(B+8+2*h,2)}, {vr(B+12+2*h,2)}")
    for h in range(2): p(f"v_pk_add_f32 {vr(B+2*h,2)}, {vr(B+2*h,2)}, {vr(B+8+2*h,2)}")
    for mod in ("quad_perm:[1,0,3,2]", "quad_perm:[2,3,0,1]"):
        for i in range(4): p(f"v_add_f32_dpp v{B+i}, v{B+i}, v{B+i} {mod} row_mask:0xf bank_mask:0xf")
    p(f"s_mov_b32 s{t}, {fhex(1/768)}\ns_mov_b32 s{t+1}, {fhex(1e-5)}")
    p(f"v_mul_f32 v{B}, s{t}, v{B}\nv_mul_f32 v{B+2}, s{t}, v{B+2}\nv_mul_f32 v{B+4}, v{B}, v{B}\nv_mul_f32 v{B+5}, v{B+2}, v{B+2}")
    p(f"v_fma_f32 v{B+1}, v{B+1}, s{t}, -v{B+4}\nv_fma_f32 v{B+3}, v{B+3}, s{t}, -v{B+5}\nv_add_f32 v{B+1}, s{t+1}, v{B+1}\nv_add_f32 v{B+3}, s{t+1}, v{B+3}")
    p(f"v_rsq_f32 v{B+1}, v{B+1}\nv_rsq_f32 v{B+3}, v{B+3}")
    p(f"v_mul_f32 v{B}, -v{B}, v{B+1}\nv_mul_f32 v{B+2}, -v{B+2}, v{B+3}")
    NM, RR = B+8, B+16
    for bk in range(4):
        for i in range(2):
            p(f"v_mov_b32_dpp v{NM+2*bk+i}, v{B+2*i} row_newbcast:{4*bk} row_mask:0xf bank_mask:0xf")
            p(f"v_mov_b32_dpp v{RR+2*bk+i}, v{B+2*i+1} row_newbcast:{4*bk} row_mask:0xf bank_mask:0xf")
    p(f"s_lshr_b32 s{t}, s{sJ3}, 1\ns_lshl_b32 s{t}, s{t}, 6\ns_add_u32 s{t}, s{t}, s{sRB3}\ns_mul_i32 s{t}, s{t}, 6144")
    p(f"s_and_b32 s{t+1}, s{sJ3}, 1\ns_mul_i32 s{t+1}, s{t+1}, 3072\ns_add_u32 s{t}, s{t}, s{t+1}\ns_add_u32 s{t}, s{t}, {WS_Z2}")
    for nt in range(3):
        for par in range(2):
            a = P3_AZ2 + (par*3+nt)*4
            for h in range(2):
                p(f"v_pk_fma_f32 {vr(a+2*h,2)}, {vr(a+2*h,2)}, {vr(RR+4*par+2*h,2)}, {vr(NM+4*par+2*h,2)}")
        o = 4 + 4*nt
        for r in range(4): p(f"v_cvt_pk_bf16_f32 v{o+r}, v{P3_AZ2+nt*4+r}, v{P3_AZ2+(3+nt)*4+r}")
        p(f"buffer_store_dwordx4 {vr(o,4)}, v{vL16}, {sr(SW,4)}, s{t} offen offset:{1024*nt} {st}")

def P3_z1e(p, scr, st):
    t = 72
    B = P3_AZ2
    CS, TMP, NR, K0, ONE = P3_BF, B, B+8, 250, 252
    p(f"s_lshl_b32 s{t}, s{sWAVE}, 8\ns_add_u32 s{t}, s{t}, {scr+1536}\nv_and_b32 v12, 15, v{vLANE}\nv_lshl_add_u32 v12, v12, 2, s{t}")
    p(f"v_lshrrev_b32 v13, 4, v{vLANE}\nv_lshlrev_b32 v13, 4, v13\nv_add_u32 v13, {scr+192}, v13")
    for par in range(2):
        p(f"ds_read_b32 v{NR+4*par}, v12 offset:{64*par}\nds_read_b32 v{NR+4*par+2}, v12 offset:{128+64*par}")
    HF = P3_HF
    for nt in range(3):
        for wv in range(4): p(f"ds_read_b128 {vr(HF+(nt*4+wv)*4,4)}, v13 offset:{wv*384+nt*64}")
    p(f"v_lshlrev_b32 v14, 3, v{vLANE}")
    p(f"s_mul_i32 s{t}, s{sRB3}, {2*48*512}\ns_mul_i32 s{t+1}, s{sJ3}, 1536\ns_add_u32 s{t}, s{t}, s{t+1}\ns_add_u32 s{t}, s{t}, {WS_Z1}\ns_add_u32 s{t+1}, s{t}, {48*512}")
    p("s_waitcnt lgkmcnt(0)")
    for nt in range(3):
        for h in range(2):
            q = lambda wv: vr(HF+(nt*4+wv)*4+2*h, 2)
            p(f"v_pk_add_f32 {q(0)}, {q(0)}, {q(1)}\nv_pk_add_f32 {q(2)}, {q(2)}, {q(3)}\nv_pk_add_f32 {vr(CS+4*nt+2*h,2)}, {q(0)}, {q(2)}")
    for par in range(2):
        for nt in range(3):
            a = P3_AZ1 + (par*3+nt)*4
            for h in range(2):
                p(f"v_pk_fma_f32 {vr(a+2*h,2)}, {vr(CS+4*nt+2*h,2)}, {vr(NR+4*par,2)}, {vr(a+2*h,2)} op_sel_hi:[1,0,1]")
            for h in range(2):
                p(f"v_pk_mul_f32 {vr(a+2*h,2)}, {vr(a+2*h,2)}, {vr(NR+4*par+2,2)} op_sel_hi:[1,0]")
            gelu4(p, a, TMP, sGK1, K0, ONE)
            o = HF + 64 + (par*3+nt)*2
            p(f"v_cvt_pk_bf16_f32 v{o}, v{a}, v{a+1}\nv_cvt_pk_bf16_f32 v{o+1}, v{a+2}, v{a+3}")
            p(f"buffer_store_dwordx2 {vr(o,2)}, v14, {sr(SW,4)}, s{t+par} offen offset:{512*nt} {st}")

def P3a(p):
    scr = WI_SIZE
    P3_params(p); P3_win_issue(p, 0); P3_wbase(p, 0); p("s_waitcnt vmcnt(0)\ns_barrier"); P3_colsum(p, scr)
    P3_loads(p); p("s_waitcnt vmcnt(40)"); P3_ln1(p, scr)
    P3_pass(p, False, waits=lambda ks: 38-2*ks); P3_z2a(p, scr, "")
def P3b(p):
    scr = WI_SIZE
    P3a(p)
    P3_pass(p, True)
    P3_z2b_load(p); p("s_waitcnt vmcnt(0)"); P3_z2b(p, ""); P3_z1e(p, scr, "")


sRB4, sJ4, sRG4 = 61, 62, 63
sTT = 64
WO_SIZE = 122880
P4_RING, P4_ACC, P4_OWN, P4_Z1, P4_BIAS = 64, 160, 184, 208, 220
P4_NR = 24

def P4_params(p):
    t = 72
    p(f"s_lshr_b32 s{sRG4}, s{sL}, 3\ns_and_b32 s{sJ4}, s{sL}, 7")
    p(f"s_lshl_b32 s{t}, s{sC}, 2\ns_sub_u32 s{t+1}, 60, s{t}\ns_cmp_ge_u32 s{sRG4}, 2\ns_cselect_b32 s{sRB4}, s{t+1}, s{t}")
    p(f"s_and_b32 s{t}, s{sRG4}, 1\ns_lshl_b32 s{t}, s{t}, 1\ns_add_u32 s{sRB4}, s{sRB4}, s{t}")
    p(f"s_lshl_b32 s{sTT}, s{sRB4}, 1\ns_add_u32 s{sTT}, s{sTT}, s{sWAVE}")

def WSP_issue(p, chunk, stg, vsrc, wstride=8192):
    t = 72
    slot, hf4 = chunk >> 1, chunk & 1
    p(f"s_add_u32 s{t}, s{sWAVE}, {slot}\ns_and_b32 s{t}, s{t}, 3\ns_lshr_b32 s{t+1}, s{t}, 1\ns_add_u32 s{t+1}, s{t+1}, s{sRB4}\ns_lshl_b32 s{t+1}, s{t+1}, 5")
    p(f"s_and_b32 s{t}, s{t}, 1\ns_add_u32 s{t}, s{t}, s{t+1}\ns_lshl_b32 s{t}, s{t}, 12\ns_lshl_b32 s{t+1}, s{sWAVE}, 10\ns_add_u32 s{t}, s{t}, s{t+1}")
    p(f"s_mul_i32 s{t+1}, s{sWAVE}, {wstride}\ns_add_u32 s{t+1}, s{t+1}, {stg}\ns_lshl_b32 s{t+2}, s{sRG4}, 1")
    for pc in range(4):
        p(f"s_add_u32 s{t+3}, s{t+2}, {4*hf4+pc}\ns_and_b32 s{t+3}, s{t+3}, 7\ns_lshl_b32 s{t+3}, s{t+3}, 7\ns_add_u32 s{t+3}, s{t+3}, s{t}")
        for hf in range(2):
            p(f"s_add_u32 m0, s{t+1}, {pc*2048+hf*1024}")
            p(f"buffer_load_dwordx4 v{vsrc+hf}, {sr(SWS,4)}, s{t+3} offen lds")

def WSP_read(p, chunk, vrd):
    slot, hf4 = chunk >> 1, chunk & 1
    for k in range(8):
        p(f"ds_read_b128 {ar((slot*16+8*hf4+k)*4,4)}, v{vrd+(k&1)} offset:{2048*(k>>1)}")

def WSP_addr(p, stg, vsrc, vrd, wstride=8192):
    t = 72
    swz_src(p, vsrc, 4096, 10, rowmul=2)
    swz_rd(p, vrd, 10)
    p(f"s_mul_i32 s{t+1}, s{sWAVE}, {wstride}\ns_add_u32 s{t+1}, s{t+1}, {stg}\nv_add_u32 v{vrd}, s{t+1}, v{vrd}\nv_add_u32 v{vrd+1}, s{t+1}, v{vrd+1}")

def WO_issue(p, wo0):
    t = 72
    p(f"s_mov_b32 s{t+4}, 52429\ns_mul_i32 s{t}, s{sJ4}, 160")
    for u in range(5):
        p(f"v_add_u32 v10, {64*u}, v{vLANE}\nv_mul_u32_u24 v11, s{t+4}, v10\nv_lshrrev_b32 v11, 19, v11")
        p(f"v_mul_u32_u24 v12, 10, v11\nv_sub_u32 v10, v10, v12\nv_mul_u32_u24 v11, 1280, v11\nv_lshl_add_u32 v10, v10, 4, v11\nv_add_u32 v{4+u}, s{t}, v10")
    p(f"s_mul_i32 s{t}, s{sWAVE}, {6*32*1280}\ns_mul_i32 s{t+1}, s{sWAVE}, {6*5120}\ns_add_u32 s{t+1}, s{t+1}, {wo0}")
    for b in range(6):
        for u in range(5):
            p(f"s_add_u32 m0, s{t+1}, {b*5120+u*1024}\nbuffer_load_dwordx4 v{4+u}, {sr(SWO,4)}, s{t} offen lds")
        if b < 5: p(f"s_add_u32 s{t}, s{t}, {32*1280}")

def P4_side_loads(p):
    t = 72
    p(f"v_lshlrev_b32 v10, 3, v{vLANE}\ns_mul_i32 s{t}, s{sTT}, {48*512}\ns_mul_i32 s{t+1}, s{sJ4}, 3072\ns_add_u32 s{t}, s{t}, s{t+1}\ns_add_u32 s{t}, s{t}, {WS_Z1}")
    for ft in range(6): p(f"buffer_load_dwordx2 {vr(P4_Z1+2*ft,2)}, v10, {sr(SW,4)}, s{t} offen offset:{512*ft} sc1")

def P4_bias(p):
    t = 72
    p(f"v_and_b32 v10, 15, v{vLANE}\nv_lshlrev_b32 v10, 2, v10\ns_lshr_b32 s{t}, s{sTT}, 1\ns_lshl_b32 s{t}, s{t}, 5\ns_and_b32 s{t+1}, s{sTT}, 1\ns_add_u32 s{t}, s{t}, s{t+1}\ns_lshl_b32 s{t}, s{t}, 1")
    p(f"v_mov_b32 v{P4_BIAS}, 0\nbuffer_load_short_d16_hi v{P4_BIAS}, v10, {sr(SBS,4)}, s{t} offen")
    p("s_waitcnt vmcnt(0)")
    for r in range(1, 4): p(f"v_mov_b32 v{P4_BIAS+r}, v{P4_BIAS}")

X = {}
def P4_main(p, mbx, st, extra_after=None):
    t = 72
    R = X.get('R', P4_NR)
    sK = 80
    p(f"s_lshl_b32 s{t}, s{sJ4}, 6\ns_lshl_b32 s{t+1}, s{sWAVE}, 4\ns_add_u32 s{t}, s{t}, s{t+1}\ns_mul_i32 s{t}, s{t}, 6144\ns_add_u32 s{t}, s{t}, {WS_Z2}\ns_lshl_b32 s{t+1}, s{sRG4}, 2")
    if X.get('norot'): p(f"s_mov_b32 s{t+1}, 0")
    if X.get('xrot'): p(f"s_mul_i32 s{t+2}, s{sC}, {X['xrot']}\ns_add_u32 s{t+1}, s{t+1}, s{t+2}")
    if X.get('priv'): p(f"s_mul_i32 s{t+2}, s{sC}, 0x400000\ns_add_u32 s{t}, s{t}, s{t+2}\ns_mov_b32 s{SW+2}, 0x4000000")
    for k in range(16):
        p(f"s_add_u32 s{t+2}, s{t+1}, {k}\ns_and_b32 s{t+2}, s{t+2}, 15\ns_mul_i32 s{t+2}, s{t+2}, 6144\ns_add_u32 s{sK+k}, s{t+2}, s{t}")
    p(f"v_add_u32 v3, 4096, v{vL16}")
    def ld(n):
        ft, k = n >> 4, n & 15
        if X.get('noload'): return
        p(f"buffer_load_dwordx4 {vr(P4_RING+(n%R)*4,4)}, v{vL16 if ft < 4 else 3}, {sr(SW,4)}, s{sK+k} offen offset:{(ft&3)*1024} {'' if X.get('plain') else 'sc1'}")
    for n in range(R): ld(n)
    vMB = 4
    for s_ in range(1, 4):
        p(f"s_add_u32 s{t}, s{sWAVE}, {s_}\ns_and_b32 s{t}, s{t}, 3\ns_mul_i32 s{t}, s{t}, 9216\ns_add_u32 s{t}, s{t}, {mbx+(s_-1)*3072}\nv_add_u32 v{vMB+s_-1}, s{t}, v{vL16}")
    p(f"s_mul_i32 s{t}, s{sWAVE}, 9216\ns_add_u32 s{t}, s{t}, {mbx}\nv_add_u32 v7, s{t}, v{vL16}")
    MT = 224
    def mb_read(f0):
        for f in range(3):
            for s_ in range(3):
                i = f*3+s_
                p(f"ds_read_b128 {vr(16+4*i,4)}, v7 offset:{s_*3072+f*1024}")
    def mb_add(f0):
        for f in range(3):
            for h in range(2):
                o = vr(P4_OWN+(f0+f)*4+2*h, 2)
                q = lambda s_: vr(16+4*(f*3+s_)+2*h, 2)
                p(f"v_pk_add_f32 {q(0)}, {q(0)}, {q(1)}\nv_pk_add_f32 {o}, {o}, {q(2)}\nv_pk_add_f32 {o}, {o}, {q(0)}")
    def wr(ft):
        for s_ in range(1, 4):
            p(f"ds_write_b128 v{vMB+s_-1}, {vr(P4_ACC+((ft&1)*3+s_-1)*4,4)} offset:{(ft%3)*1024}")
    for n in range(96):
        ft, k = n >> 4, n & 15
        p(f"s_waitcnt vmcnt({min(R-1, 95-n)})")
        z = vr(P4_RING+(n%R)*4, 4)
        for s_ in range(4):
            d = vr(P4_OWN+ft*4, 4) if s_ == 0 else vr(P4_ACC+((ft&1)*3+s_-1)*4, 4)
            c = d if k else (vr(P4_BIAS, 4) if s_ == 0 else "0")
            if X.get('nomfma') and k: continue
            p(f"v_mfma_f32_16x16x32_bf16 {d}, {z}, {ar((s_*16+k)*4,4)}, {c}")
        if n + R < 96: ld(n+R)
        if k == 2 and ft >= 1:
            if ft == 4: p("s_barrier")
            wr(ft-1)
        if ft == 3 and k == 6: p("s_waitcnt lgkmcnt(0)\ns_barrier"); mb_read(0)
        if ft == 3 and k == 12: p("s_waitcnt lgkmcnt(0)"); mb_add(0)
        if extra_after and n in extra_after: extra_after[n]()
    wr(5)
    p("s_waitcnt lgkmcnt(0)\ns_barrier")
    mb_read(3)
    p(f"s_mul_i32 s{t}, s{sTT}, 24576\ns_mul_i32 s{t+1}, s{sJ4}, 3072\ns_add_u32 s{t}, s{t}, s{t+1}\ns_add_u32 s{t}, s{t}, {WS_V}")
    def vout(u):
        o = P4_RING + 4*u
        for ff in range(2):
            ft = 2*u+ff; z = P4_RING+16+4*ff; g = P4_OWN+4*ft
            for h in range(2):
                p(f"v_lshlrev_b32 v{z+2*h}, 16, v{P4_Z1+2*ft+h}\nv_and_b32 v{z+2*h+1}, s{sMASKHI}, v{P4_Z1+2*ft+h}")
            for h in range(2):
                p(f"v_pk_mul_f32 {vr(z+2*h,2)}, {vr(z+2*h,2)}, {vr(g+2*h,2)}")
            for h in range(2):
                p(f"v_cvt_pk_bf16_f32 v{o+2*ff+h}, v{z+2*h}, v{z+2*h+1}")
        p(f"buffer_store_dwordx4 {vr(o,4)}, v{vL16}, {sr(SW,4)}, s{t} offen offset:{1024*u} {st}")
    vout(0)
    p("s_waitcnt lgkmcnt(0)")
    mb_add(3)
    vout(1); vout(2)

P5_H, P5_V, P5_BF = 228, 64, 160
def P5_hload(p):
    t = 72
    p(f"s_cmp_ge_u32 s{sJ4}, 4\ns_cselect_b32 s{t}, -1, 1\ns_cselect_b32 s{t+1}, 960, 0\ns_mul_i32 s{t+2}, s{sJ4}, 80")
    p(f"v_lshrrev_b32 v10, 4, v{vLANE}\nv_lshl_add_u32 v10, v10, 2, s{t+2}\nv_mul_lo_u32 v10, v10, s{t}\nv_add_u32 v10, s{t+1}, v10")
    p(f"v_and_b32 v11, 15, v{vLANE}\nv_lshlrev_b32 v11, 4, v11")
    p(f"s_mul_i32 s{t+3}, s{sTT}, 20480\ns_add_u32 s{t+3}, s{t+3}, {WS_H}")
    for et in range(5):
        for r in range(4):
            i = et*4+r
            p(f"s_mul_i32 s{t+4}, s{t}, {16*et+r}\nv_add_u32 v12, s{t+4}, v10")
            if i == 0: p(f"v_cmp_eq_u32 vcc, 640, v12\nv_mov_b32 v13, 320\nv_cndmask_b32 v12, v12, v13, vcc")
            p(f"v_lshrrev_b32 v13, 3, v12\nv_lshl_add_u32 v13, v13, 8, v11\nv_and_b32 v12, 7, v12\nv_lshl_add_u32 v12, v12, 1, v13")
            p(f"v_mov_b32 v{P5_H+i}, 0\nbuffer_load_short_d16_hi v{P5_H+i}, v12, {sr(SW,4)}, s{t+3} offen sc1")

def P5_main(p, wo0):
    t = 72
    p(f"s_mul_i32 s{t}, s{sTT}, 24576\ns_add_u32 s{t}, s{t}, {WS_V}")
    for ks in range(24):
        p(f"buffer_load_dwordx4 {vr(P5_V+4*ks,4)}, v{vL16}, {sr(SW,4)}, s{t} offen offset:{(ks&3)*1024} sc1")
        if (ks & 3) == 3 and ks < 23: p(f"s_add_u32 s{t}, s{t}, 4096")
    p(f"v_lshrrev_b32 v10, 2, v{vLANE}\nv_mul_u32_u24 v10, 160, v10\nv_and_b32 v11, 3, v{vLANE}\nv_lshl_add_u32 v4, v11, 3, v10")
    if wo0: p(f"v_add_u32 v4, {wo0}, v4")
    p(f"v_add_u32 v5, 61440, v4")
    def bl(ks):
        for et in range(5):
            d = P5_BF + ((ks & 1)*5+et)*4; b = 4 if ks < 12 else 5; o = (ks % 12)*5120 + et*32
            p(f"ds_read_b64_tr_b16 {vr(d,2)}, v{b} offset:{o}\nds_read_b64_tr_b16 {vr(d+2,2)}, v{b} offset:{o+2560}")
    bl(0)
    p(f"v_and_b32 v10, 15, v{vLANE}\nv_mul_u32_u24 v10, 2560, v10\nv_lshrrev_b32 v11, 4, v{vLANE}\nv_lshl_add_u32 v6, v11, 3, v10")
    p(f"s_lshr_b32 s{t}, s{sTT}, 1\ns_lshl_b32 s{t}, s{t}, 5\ns_and_b32 s{t+1}, s{sTT}, 1\ns_add_u32 s{t}, s{t}, s{t+1}\ns_mul_i32 s{t}, s{t}, 1280\ns_mul_i32 s{t+1}, s{sJ4}, 160\ns_add_u32 s{t}, s{t}, s{t+1}")
    for ks in range(24):
        if ks < 23: bl(ks+1)
        p(f"s_waitcnt vmcnt({23-ks}) lgkmcnt({10 if ks < 23 else 0})")
        for et in range(5):
            a = vr(P5_H+4*et, 4)
            p(f"v_mfma_f32_16x16x32_bf16 {a}, {vr(P5_BF+((ks&1)*5+et)*4,4)}, {vr(P5_V+4*ks,4)}, {a}")
    for et in range(5):
        a = P5_H+4*et; o = 16+2*et
        p(f"v_cvt_pk_bf16_f32 v{o}, v{a}, v{a+1}\nv_cvt_pk_bf16_f32 v{o+1}, v{a+2}, v{a+3}")
        p(f"buffer_store_dwordx2 {vr(o,2)}, v6, {sr(SOUT,4)}, s{t} offen offset:{32*et}")

def P4(p):
    P4_params(p); WSP_addr(p, 0, 6, 8)
    for ch in range(8):
        WSP_issue(p, ch, 0, 6); p("s_waitcnt vmcnt(0)"); WSP_read(p, ch, 8); p("s_waitcnt lgkmcnt(0)")
    P4_bias(p); P4_side_loads(p); p("s_waitcnt vmcnt(0)\ns_barrier")
    P4_main(p, 0, "")
def P5(p):
    P4_params(p); WO_issue(p, 0); P5_hload(p); p("s_waitcnt vmcnt(0)\ns_barrier"); P5_main(p, 0)

def kernel_desc(kname, vgpr=512, acc=256):
    return f""".section .rodata,"a"
.p2align 6
.amdhsa_kernel {kname}
  .amdhsa_next_free_vgpr {vgpr}
  .amdhsa_next_free_sgpr 102
  .amdhsa_accum_offset {acc}
  .amdhsa_group_segment_fixed_size 0
  .amdhsa_kernarg_size 104
  .amdhsa_user_sgpr_count 2
  .amdhsa_user_sgpr_kernarg_segment_ptr 1
  .amdhsa_system_sgpr_workgroup_id_x 1
.end_amdhsa_kernel
"""

def multi(phases):
    hdr = "".join(f"; @launch kernel={n}_kernel grid=(256,1,1) block=(256,1,1) lds=163840\n" for n, _ in phases)
    body = '.amdgcn_target "amdgcn-amd-amdhsa--gfx950"\n.text\n'
    desc = ""
    for n, fn in phases:
        p = Prog(); p.nlabel = 1000*(1+[x for x, _ in phases].index(n))
        end = f"END_{n}"
        prologue(p, f"{n}_kernel", end)
        fn(p)
        p(f"s_waitcnt vmcnt(0)\n{end}:\ns_endpgm")
        body += p.finish()
        desc += kernel_desc(f"{n}_kernel")
    return hdr + body + desc


sEP, sFAST, sSPIN = 96, 97, 98
SCR = 122944
TBL = SCR + 36864
STAMPS = True
def stamp(p, i):
    if not STAMPS: return
    p(f"s_memrealtime s[100:101]\ns_waitcnt lgkmcnt(0)\nv_writelane_b32 v255, s100, {i}")
    p(f"s_memtime s[100:101]\ns_waitcnt lgkmcnt(0)\nv_writelane_b32 v255, s100, {32+i}")

def flag_store(p, soff_expr_sgpr, base, local):
    t = 72
    p(f"s_lshl_b32 s{t}, s{soff_expr_sgpr}, 2\ns_add_u32 s{t}, s{t}, {base}\nv_mov_b32 v10, s{sEP}\nv_mov_b32 v11, 0\ns_mov_b64 exec, 1")
    if local:
        a, b = p.label("fs_slow"), p.label("fs_done")
        p(f"s_cmp_eq_u32 s{sFAST}, 0\ns_cbranch_scc1 {a}")
        p(f"buffer_store_dword v10, v11, {sr(SW,4)}, s{t} offen\ns_branch {b}")
        p(f"{a}:\nbuffer_wbl2 sc1\ns_waitcnt vmcnt(0)\nbuffer_store_dword v10, v11, {sr(SW,4)}, s{t} offen sc1\n{b}:")
    else:
        p(f"buffer_store_dword v10, v11, {sr(SW,4)}, s{t} offen sc1")
    p("s_mov_b64 exec, -1")

def poll(p, sidx, base, n):
    t = 72
    a, b = p.label("poll"), p.label("polled")
    p(f"s_lshl_b32 s{t}, s{sidx}, 2\ns_add_u32 s{t}, s{t}, {base}\nv_min_u32 v11, {n-1}, v{vLANE}\nv_lshlrev_b32 v11, 2, v11\ns_mov_b32 s{sSPIN}, 0x100000")
    p(f"{a}:\nbuffer_load_dword v10, v11, {sr(SW,4)}, s{t} offen sc1\ns_waitcnt vmcnt(0)\nv_cmp_ne_u32 vcc, s{sEP}, v10")
    p(f"s_cbranch_vccz {b}\ns_sub_u32 s{sSPIN}, s{sSPIN}, 1\ns_cbranch_scc0 {a}\n{b}:")

def only_wave(p, w):
    lab = p.label("notw")
    p(f"s_cmp_lg_u32 s{sWAVE}, {w}\ns_cbranch_scc1 {lab}")
    return lab

def fused_v1(p):
    t = 72; u = 99
    p(f"s_load_dword s{sEP}, {sr(SW,2)}, 0\ns_getreg_b32 s{u}, hwreg(HW_REG_XCC_ID, 0, 4)")
    p("v_mov_b32 v255, 0")
    stamp(p, 0)
    p(f"s_waitcnt lgkmcnt(0)\ns_mul_i32 s{sEP}, s{sEP}, 0x2C9277B5\ns_add_u32 s{sEP}, s{sEP}, 0xAC564B05")
    lab = only_wave(p, 3)
    p(f"s_lshl_b32 s{t}, s{sC}, 5\ns_add_u32 s{t}, s{t}, s{sL}\ns_lshl_b32 s{t}, s{t}, 2\ns_add_u32 s{t}, s{t}, {FL_X}\ns_add_u32 s{u}, s{u}, s{sEP}")
    p(f"v_mov_b32 v10, s{u}\nv_mov_b32 v11, 0\ns_mov_b64 exec, 1\nbuffer_store_dword v10, v11, {sr(SW,4)}, s{t} offen sc1\ns_mov_b64 exec, -1\ns_waitcnt vmcnt(0)\n{lab}:")
    P1(p, "sc1")
    stamp(p, 1)
    p("s_waitcnt vmcnt(0)\ns_barrier")
    stamp(p, 2)
    lab = only_wave(p, 0)
    p(f"s_lshl_b32 s{u}, s61, 6\ns_add_u32 s{u}, s{u}, s60")
    flag_store(p, u, FL_F1, False)
    p(f"{lab}:")
    P2_params(p); P3_params(p); P4_params(p)
    P2_pre_issue(p, SCR); p("s_waitcnt vmcnt(0)"); P2_pre_finish(p, SCR)
    stamp(p, 3)
    P3_win_issue(p, 0)
    p("s_waitcnt vmcnt(0)")
    stamp(p, 4)
    a, b = p.label("xp"), p.label("xpd")
    p(f"s_lshl_b32 s{t}, s{sC}, 7\ns_add_u32 s{t}, s{t}, {FL_X}\nv_and_b32 v11, 31, v{vLANE}\nv_lshlrev_b32 v11, 2, v11\ns_mov_b32 s{sSPIN}, 0x100000")
    p(f"{a}:\nbuffer_load_dword v10, v11, {sr(SW,4)}, s{t} offen sc1\ns_waitcnt vmcnt(0)\nv_subrev_u32 v10, s{sEP}, v10\nv_cmp_lt_u32 vcc, 15, v10")
    p(f"s_cbranch_vccz {b}\ns_sub_u32 s{sSPIN}, s{sSPIN}, 1\ns_cbranch_scc0 {a}\n{b}:")
    p(f"v_readfirstlane_b32 s{t}, v10\nv_cmp_ne_u32 vcc, s{t}, v10\ns_cmp_eq_u64 vcc, 0\ns_cselect_b32 s{sFAST}, 1, 0")
    lab = only_wave(p, 0)
    p(f"s_lshl_b32 s{u}, s{sQ2}, 6")
    poll(p, u, FL_F1, 64)
    p(f"{lab}:\ns_barrier")
    stamp(p, 5)
    P2_main(p, SCR, "")
    stamp(p, 6)
    p("s_waitcnt vmcnt(0)\ns_barrier")
    lab = only_wave(p, 0)
    p(f"s_lshl_b32 s{u}, s{sC}, 5\ns_add_u32 s{u}, s{u}, s{sL}")
    flag_store(p, u, FL_F2, True)
    p(f"{lab}:")
    P3_wbase(p, 0); P3_colsum(p, TBL)
    stamp(p, 7)
    lab = only_wave(p, 0)
    p(f"s_lshl_b32 s{u}, s{sC}, 5")
    poll(p, u, FL_F2, 32)
    p(f"{lab}:\ns_barrier")
    stamp(p, 8)
    P3_loads(p); p("s_waitcnt vmcnt(40)"); P3_ln1(p, TBL)
    P3_pass(p, False, waits=lambda ks: 38-2*ks)
    stamp(p, 9)
    P3_z2a(p, TBL, "")
    p("s_waitcnt vmcnt(0)")
    p(f"s_lshl_b32 s{u}, s{sRB3}, 4\ns_add_u32 s{u}, s{u}, s{sJ3}")
    flag_store(p, u, FL_FS, True)
    stamp(p, 10)
    P3_pass(p, True, 0, 10)
    p(f"s_lshl_b32 s{u}, s{sRB3}, 4")
    poll(p, u, FL_FS, 16)
    stamp(p, 11)
    P3_z2b_load(p); p("s_waitcnt vmcnt(0)"); P3_z2b(p, "sc1")
    p("s_waitcnt vmcnt(0)\ns_barrier")
    lab = only_wave(p, 0)
    p(f"s_lshr_b32 s{u}, s{sJ3}, 1\ns_lshl_b32 s{u}, s{u}, 5\ns_lshr_b32 s{t+8}, s{sRB3}, 2\ns_lshl_b32 s{t+8}, s{t+8}, 1\ns_add_u32 s{u}, s{u}, s{t+8}\ns_and_b32 s{t+8}, s{sJ3}, 1\ns_add_u32 s{u}, s{u}, s{t+8}")
    flag_store(p, u, FL_F3, False)
    p(f"{lab}:")
    stamp(p, 12)
    P3_pass(p, True, 10, 20)
    P3_z1e(p, TBL, "")
    p("s_waitcnt vmcnt(0)\ns_barrier")
    lab = only_wave(p, 0)
    p(f"s_lshr_b32 s{u}, s{sRB3}, 2\ns_lshl_b32 s{u}, s{u}, 4\ns_add_u32 s{u}, s{u}, s{sJ3}")
    flag_store(p, u, FL_F3B, True)
    p(f"{lab}:")
    stamp(p, 13)
    WO_issue(p, 0)
    WSP_addr(p, SCR, 6, 8, 9216)
    for ch in range(8):
        WSP_issue(p, ch, SCR, 6, 9216); p("s_waitcnt vmcnt(0)"); WSP_read(p, ch, 8); p("s_waitcnt lgkmcnt(0)")
    P4_bias(p); P5_hload(p)
    stamp(p, 14)
    lab = only_wave(p, 0)
    p(f"s_lshr_b32 s{u}, s{sRB4}, 2\ns_lshl_b32 s{u}, s{u}, 4\ns_lshl_b32 s{t+8}, s{sJ4}, 1\ns_add_u32 s{u}, s{u}, s{t+8}")
    poll(p, u, FL_F3B, 2)
    p(f"s_lshl_b32 s{u}, s{sJ4}, 5")
    poll(p, u, FL_F3, 32)
    p(f"{lab}:\ns_waitcnt vmcnt(0)\ns_barrier")
    stamp(p, 15)
    P4_side_loads(p); p("s_waitcnt vmcnt(0)")
    P4_main(p, SCR, "")
    stamp(p, 16)
    p("s_waitcnt vmcnt(0)\ns_barrier")
    lab = only_wave(p, 0)
    p(f"s_lshl_b32 s{u}, s{sRB4}, 2\ns_add_u32 s{u}, s{u}, s{sJ4}")
    flag_store(p, u, FL_F4, True)
    p(f"s_lshl_b32 s{u}, s{sRB4}, 2")
    poll(p, u, FL_F4, 8)
    p(f"{lab}:\ns_barrier")
    stamp(p, 17)
    P5_main(p, 0)
    stamp(p, 18)
    lab = p.label("noep")
    p(f"s_or_b32 s{t}, s2, s{sWAVE}\ns_cmp_lg_u32 s{t}, 0\ns_cbranch_scc1 {lab}")
    p(f"v_mov_b32 v10, s{sEP}\nv_mov_b32 v11, 0\ns_mov_b64 exec, 1\nbuffer_store_dword v10, v11, {sr(SW,4)}, 0 offen\ns_mov_b64 exec, -1\n{lab}:")
    if STAMPS:
        p("s_waitcnt vmcnt(0)")
        stamp(p, 19)
        p(f"s_lshl_b32 s{t}, s2, 2\ns_add_u32 s{t}, s{t}, s{sWAVE}\ns_lshl_b32 s{t}, s{t}, 8\ns_add_u32 s{t}, s{t}, {WS_STAMP}\nv_lshlrev_b32 v10, 2, v{vLANE}")
        p(f"buffer_store_dword v255, v10, {sr(SW,4)}, s{t} offen")

def stamp_out(p):
    t = 72
    p("s_waitcnt vmcnt(0)")
    p(f"s_lshl_b32 s{t}, s2, 2\ns_add_u32 s{t}, s{t}, s{sWAVE}\ns_lshl_b32 s{t}, s{t}, 8\ns_add_u32 s{t}, s{t}, {WS_STAMP}\nv_lshlrev_b32 v10, 2, v{vLANE}")
    p(f"buffer_store_dword v255, v10, {sr(SW,4)}, s{t} offen")
def P4x(p):
    p("v_mov_b32 v255, 0")
    P4_params(p); WSP_addr(p, 0, 6, 8)
    stamp(p, 0)
    for ch in range(8):
        WSP_issue(p, ch, 0, 6); p("s_waitcnt vmcnt(0)"); WSP_read(p, ch, 8); p("s_waitcnt lgkmcnt(0)")
    P4_bias(p); P4_side_loads(p); p("s_waitcnt vmcnt(0)\ns_barrier")
    stamp(p, 1)
    P4_main(p, 0, "")
    stamp(p, 2)
    stamp_out(p)

def single(fn):
    kn = NAME + "_kernel"
    hdr = "; @launch grid=(256,1,1) block=(256,1,1) lds=163840\n"
    p = Prog()
    prologue(p, kn, "END")
    fn(p)
    p("s_waitcnt vmcnt(0)\nEND:\ns_endpgm")
    return hdr + '.amdgcn_target "amdgcn-amd-amdhsa--gfx950"\n.text\n' + p.finish() + kernel_desc(kn)

if __name__ == "__main__":
    for a in sys.argv[3:]:
        if "=" in a: X[a.split("=")[0]] = int(a.split("=")[1])
    if len(sys.argv) > 2 and sys.argv[2] == "p4x":
        open(sys.argv[1], "w").write(multi([("p1", P1), ("p2", P2), ("p3a", P3a), ("p3b", P3b), ("p4", P4x)]))
    elif len(sys.argv) > 2:
        STAMPS = "nostamp" not in sys.argv
        open(sys.argv[1], "w").write(single(globals()[sys.argv[2]]))
    else: open(sys.argv[1], "w").write(multi([("p1", P1), ("p2", P2), ("p3a", P3a), ("p3b", P3b), ("p4", P4), ("p5", P5)]))
```

```python
import re

TRANS = ("v_exp_f32", "v_log_f32", "v_rcp_f32", "v_rsq_f32", "v_sqrt_f32", "v_sin_f32", "v_cos_f32", "v_rcp_iflag_f32")
_REG = re.compile(r"^(-|abs\()?([vas])(\d+)\)?$")
_RNG = re.compile(r"^(-|abs\()?([vas])\[(\d+):(\d+)\]\)?$")

def regs_of(tok):
    tok = tok.strip()
    m = _REG.match(tok)
    if m: return [(m.group(2), int(m.group(3)))]
    m = _RNG.match(tok)
    if m: return [(m.group(2), i) for i in range(int(m.group(3)), int(m.group(4)) + 1)]
    if tok in ("vcc",): return [("s", "vcc_lo"), ("s", "vcc_hi")]
    if tok in ("vcc_lo", "vcc_hi", "m0"): return [("s", tok)]
    if tok == "exec": return [("s", "exec_lo"), ("s", "exec_hi")]
    if tok in ("exec_lo", "exec_hi"): return [("s", tok)]
    return []

class Ins:
    def __init__(self, text):
        self.text = text
        t = text.split(";")[0].strip()
        self.label = t.endswith(":")
        self.directive = t.startswith(".")
        self.op = ""
        self.dst = []; self.src = []
        self.kind = "other"
        if self.label or self.directive or not t: return
        parts = t.split(None, 1)
        op = parts[0]; self.op = op
        rest = parts[1] if len(parts) > 1 else ""
        ops = []; cur = ""; depth = 0
        for ch in rest:
            if ch in "[(": depth += 1
            if ch in "])": depth -= 1
            if ch == "," and depth == 0: ops.append(cur.strip()); cur = ""
            else: cur += ch
        if cur.strip(): ops.append(cur.strip())
        mods = ""
        if ops:
            sp = ops[-1].split(None, 1)
            if len(sp) > 1 and not sp[0].endswith("("):
                ops[-1] = sp[0]; mods = sp[1]
        self.ops = ops; self.mods = mods
        R = [regs_of(o) for o in ops]
        flat = lambda l: [x for y in l for x in y]
        base = op.replace("_e32", "").replace("_e64", "").replace("_dpp", "").replace("_sdwa", "")
        self.base = base
        if op.startswith("v_mfma"):
            self.kind = "mfma"; self.dst = R[0]; self.A = R[1]; self.B = R[2]; self.C = R[3]; self.src = flat(R[1:])
            self.passes = 8 if "32x32x16" in op else 4
            assert "32x32x16" in op or "16x16x32" in op
        elif op.startswith("v_"):
            self.kind = "valu"
            self.trans = base in TRANS
            self.dpp = ("_dpp" in op) or any(k in mods for k in ("row_", "quad_perm", "wave_"))
            self.perm = base.startswith("v_permlane")
            self.rdlane = base in ("v_readfirstlane_b32", "v_readlane_b32")
            assert not base.startswith("v_cmpx"), "avoid v_cmpx"
            if self.perm: self.dst = flat(R[:2]); self.src = flat(R[:2])
            elif base in ("v_add_co_u32", "v_sub_co_u32", "v_addc_co_u32", "v_subb_co_u32", "v_subrev_co_u32"):
                self.dst = flat(R[:2]); self.src = flat(R[2:])
            else:
                self.dst = R[0]; self.src = flat(R[1:])
                if base in ("v_fmac_f32", "v_dot2c_f32_bf16", "v_pk_fmac_f16", "v_writelane_b32") or self.dpp or "d16" in base: self.src += R[0]
                if base == "v_cndmask_b32" and len(ops) == 3: self.src += regs_of("vcc")
        elif op.startswith("ds_"):
            self.kind = "ds"
            if op.startswith("ds_read") or op.startswith("ds_bpermute") or op.startswith("ds_swizzle") or "_rtn" in op:
                self.dst = R[0]; self.src = flat(R[1:])
            else: self.src = flat(R)
        elif op.startswith("buffer_") or op.startswith("global_"):
            self.kind = "vmem"
            self.lds = (" lds" in (" " + mods)) or "load_lds" in op
            self.store = "store" in op or "atomic" in op
            if op in ("buffer_wbl2", "buffer_inv"): pass
            elif self.lds: self.src = flat(R) + [("s", "m0")]
            elif self.store:
                self.src = flat(R)
                self.data = R[0] if op.startswith("buffer_") else R[1]
                self.wide = op.endswith("x3") or op.endswith("x4")
            else:
                self.dst = R[0]; self.src = flat(R[1:])
                if "d16" in op: self.src += R[0]
        elif op.startswith("s_"):
            self.kind = "salu"
            if op in ("s_nop", "s_waitcnt", "s_barrier", "s_endpgm", "s_sleep", "s_setprio", "s_branch") or op.startswith("s_cbranch") or op.startswith("s_cmp") or op.startswith("s_bitcmp"):
                self.src = flat(R)
            else:
                self.dst = R[0] if R else []; self.src = flat(R[1:])
                if "saveexec" in op: self.dst = self.dst + regs_of("exec")
    def states(self):
        if self.label or self.directive or not self.op: return 0
        if self.op == "s_nop": return int(self.ops[0], 0) + 1
        return 1

def need(prev, cur):
    n = 0
    P, C = prev, cur
    pd = set(P.dst); cs = set(C.src); cd = set(C.dst)
    if P.kind == "valu":
        vd = {r for r in pd if r[0] in "va"}; sd = {r for r in pd if r[0] == "s"}
        if vd:
            if C.kind == "mfma" and vd & cs: n = max(n, 2)
            if C.kind == "valu":
                if C.rdlane and vd & cs: n = max(n, 1)
                if (C.dpp or C.perm) and vd & cs: n = max(n, 2)
                if P.trans and vd & cs: n = max(n, 1)
                if ("sdwa" in P.op or "op_sel" in P.mods and not P.base.startswith("v_pk")) and vd & (cs | cd): n = max(n, 1)
        if sd:
            if C.kind == "valu" and sd & cs: n = max(n, 4 if C.rdlane else 2)
            if C.kind == "vmem" and sd & cs: n = max(n, 5)
            if C.kind == "salu" and sd & cs: n = max(n, 1)
    if P.kind == "mfma":
        big = 12 if P.passes == 8 else 8
        if C.kind == "mfma":
            if pd & (set(C.A) | set(C.B)): n = max(n, big)
            if pd & set(C.C):
                if not (C.C == P.dst and C.passes == P.passes): n = max(n, big - 2)
            elif pd & cd: n = max(n, big)
        elif C.kind in ("valu", "ds", "vmem"):
            if pd & (cs | cd): n = max(n, big)
            if C.kind == "valu" and set(P.C) & cd: n = max(n, 7 if P.passes == 8 else 3)
    if P.kind == "salu" and ("s", "m0") in pd and C.kind == "vmem" and getattr(C, "lds", False): n = max(n, 1)
    if P.kind == "vmem" and getattr(P, "store", False) and getattr(P, "wide", False):
        if set(P.data) & cd: n = max(n, 2 if C.kind == "valu" else 1)
    return n

class Prog:
    def __init__(self):
        self.lines = []
        self.nlabel = 0
    def __call__(self, s):
        for l in s.split("\n"):
            l = l.strip()
            if l: self.lines.append(l)
    def label(self, base="L"):
        self.nlabel += 1
        return f"{base}_{self.nlabel}"
    def capture(self, fn, *a, **k):
        keep = self.lines; self.lines = []
        fn(self, *a, **k)
        got = self.lines; self.lines = keep
        return got
    def weave(self, main, groups, start=0, every=12, end_flush=True):
        RD = ("s_cselect", "s_cbranch_scc", "s_addc", "s_subb", "s_cmov")
        def scc_live(i):
            for l in main[i:]:
                if l.startswith(RD): return True
                if l.startswith("s_") and not l.startswith(("s_mov", "s_waitcnt", "s_nop", "s_mul_i32", "s_barrier", "s_mem", "s_load", "s_getreg")): return False
            return False
        gi = 0; cnt = 0; depth = 0; nxt = start
        for i, l in enumerate(main):
            if depth == 0 and gi < len(groups) and cnt >= nxt and l.startswith(("v_", "ds_")) and not scc_live(i):
                self.lines.extend(groups[gi]); gi += 1; nxt = cnt + every
            if l.startswith("@cond_begin") or l.startswith("@atomic_begin"): depth += 1
            self.lines.append(l)
            if l.startswith("@cond_end") or l.startswith("@atomic_end"): depth -= 1
            if not (l.startswith("@") or l.endswith(":")): cnt += 1
        if end_flush:
            for g in groups[gi:]: self.lines.extend(g)
            return []
        return groups[gi:]
    def resolve(self):
        out = []; vm = 0; lg = 0; vtag = {}; ltag = {}; cond = 0; vdone = -1; ldone = -1
        for l in self.lines:
            if l.startswith("@cond_begin"): cond += 1; continue
            if l.startswith("@cond_end"): cond -= 1; continue
            if l.startswith("@atomic"): continue
            if l.startswith("@wait"):
                w = []
                for tok in l.split()[1:]:
                    k, v = tok.split("=")
                    if k == "vm":
                        idx = vtag[v]
                        if idx > vdone:
                            w.append(f"vmcnt({min(63, vm - int(idx))})")
                            if not cond and vm - idx <= 63: vdone = idx
                    else:
                        idx = ltag[v]
                        if idx > ldone:
                            w.append(f"lgkmcnt({min(15, lg - int(idx))})")
                            if not cond and lg - idx <= 15: ldone = idx
                if w: out.append("s_waitcnt " + " ".join(w))
                continue
            text = l; tag = None
            if "@@" in l: text, tag = l.split("@@"); text = text.strip(); tag = tag.strip()
            op = text.split()[0] if text.split() else ""
            if (op.startswith("buffer_") or op.startswith("global_")) :
                if cond:
                    if tag: vtag[tag] = vm + 0.5
                else:
                    vm += 1
                    if tag: vtag[tag] = vm
            elif op.startswith("ds_"):
                if cond:
                    if tag: ltag[tag] = lg + 0.5
                else:
                    lg += 1
                    if tag: ltag[tag] = lg
            elif op == "s_waitcnt" and not cond:
                if "vmcnt(0)" in text: vdone = vm
                if "lgkmcnt(0)" in text: ldone = lg
            out.append(text)
        self.lines = out
    def finish(self):
        self.resolve()
        out = []; hist = []
        for l in self.lines:
            I = Ins(l)
            if I.states() == 0:
                out.append(l); continue
            req = 0; dist = 0
            for P in reversed(hist):
                r = need(P, I) - dist
                if r > req: req = r
                dist += P.states()
                if dist >= 13: break
            while req > 0:
                k = min(req, 16)
                nop = Ins(f"s_nop {k-1}"); hist.append(nop); out.append(f"s_nop {k-1}")
                req -= k
            hist.append(I); out.append(l)
            if len(hist) > 40: hist = hist[-20:]
        return "\n".join(("" if (x.endswith(":") or x.startswith(".") or x.startswith(";")) else "    ") + x for x in out) + "\n"

def vr(a, n=1, p="v"):
    return f"{p}{a}" if n == 1 else f"{p}[{a}:{a+n-1}]"
def ar(a, n=1): return vr(a, n, "a")
def sr(a, n=1): return vr(a, n, "s")
```

```python
import sys, struct
from asmlib import Prog, vr, ar, sr
NAME = "sequential_preLN__spectral_fnet__mixer_gmlp__prompt"
X = {}
def fhex(x): return hex(struct.unpack("<I", struct.pack("<f", x))[0])
WS_FL   = 0x000000
FL_F1, FL_F2, FL_FS, FL_F3, FL_F3B, FL_F4, FL_X = 0x1000, 0x2000, 0x3000, 0x5000, 0x6000, 0x7000, 0x8000
WS_AB   = 0x010000
WS_XB   = 0x158000
WS_H    = 0x180000
WS_HS   = 0x400000
WS_Z2   = 0x480000
WS_Z1   = 0x800000
WS_ZS   = 0xB00000
WS_V    = WS_Z1
WS_STAMP = 0xF00000
WS_SIZE = 0x1000000
SX, SCS, SSS, SCD, SSD, SWI, SWS, SBS, SWO, SOUT, SW, ST = 4, 8, 12, 16, 20, 24, 28, 32, 36, 40, 44, 48
sWAVE, sC, sL, sMASKHI = 52, 53, 54, 55
sI2, sP2, sQ2 = 56, 57, 58
sRB3, sJ3 = 59, 60
sRB4, sJ4, sRG4, sTT = 61, 62, 63, 64
sB0, sB1, sB2, sB3 = 65, 66, 67, 68
t = 72
sEP, sFAST, sSPIN, sU = 96, 97, 98, 99
SRDS = [(SX, 0, 2621440), (SW, 96, WS_SIZE), (SCD, 24, 819200), (SSD, 32, 819200), (SCS, 8, 8388608), (SSS, 16, 8388608),
        (SWI, 48, 1966080), (SWS, 56, 8388608), (SBS, 64, 4096), (SWO, 72, 983040), (SOUT, 80, 2621440)]
vLANE, vL16 = 1, 2
vWSR, vWSS = 250, 252
P1_XR = 10272; P1_B = 41216; P1_XA = P1_B + 102400; P1_T = P1_XA + 640
P2S = 145408; P2S_W = 4608
WZ_RB = 30848; WZ_SIZE = 61568
SCR = 2*WZ_SIZE; SCR_W = 9216; TBL = SCR + 4*SCR_W
FULL = "row_mask:0xf bank_mask:0xf"
MF16 = "v_mfma_f32_16x16x32_bf16"

def stamp(p, i):
    if not X.get('stamp'): return
    if X['stamp'] > 1 and not (X['stamp'] >> i) & 1 and i not in (0, 24): return
    p(f"s_memrealtime s[100:101]\ns_waitcnt lgkmcnt(0)\nv_writelane_b32 v255, s100, {i}")
    if X['stamp'] == 1 or i in (0, 24): p(f"s_memtime s[100:101]\ns_waitcnt lgkmcnt(0)\nv_writelane_b32 v255, s100, {32+i}")

def sel_srd(p, a, b):
    p(f"s_cselect_b32 s{ST}, s{a}, s{b}\ns_cselect_b32 s{ST+1}, s{a+1}, s{b+1}\ns_cselect_b32 s{ST+2}, s{a+2}, s{b+2}")

def swz_src(p, vdst, row_bytes, tmp, both=True):
    p(f"v_lshrrev_b32 v{tmp}, 3, v{vLANE}\nv_mul_u32_u24 v{vdst}, {row_bytes}, v{tmp}")
    p(f"v_lshrrev_b32 v{tmp}, 4, v{vLANE}\nv_and_b32 v{tmp+1}, 7, v{vLANE}\nv_xor_b32 v{tmp}, v{tmp}, v{tmp+1}\nv_lshl_add_u32 v{vdst}, v{tmp}, 4, v{vdst}")
    if both: p(f"v_xor_b32 v{vdst+1}, 64, v{vdst}\nv_add_u32 v{vdst+1}, {8*row_bytes}, v{vdst+1}")

def swz_rd(p, vdst, tmp, halfstride=1024):
    p(f"v_and_b32 v{tmp}, 15, v{vLANE}")
    if halfstride == 1024: p(f"v_lshlrev_b32 v{vdst}, 7, v{tmp}")
    else: p(f"v_bfe_u32 v{tmp+1}, v{vLANE}, 3, 1\nv_mul_u32_u24 v{tmp+1}, {halfstride-1024}, v{tmp+1}\nv_lshl_add_u32 v{vdst}, v{tmp}, 7, v{tmp+1}")
    p(f"v_lshrrev_b32 v{tmp}, 1, v{tmp}\nv_lshrrev_b32 v{tmp+1}, 4, v{vLANE}\nv_xor_b32 v{tmp}, v{tmp}, v{tmp+1}")
    p(f"v_lshl_add_u32 v{vdst}, v{tmp}, 4, v{vdst}\nv_xor_b32 v{vdst+1}, 64, v{vdst}")

def G(*lines):
    out = []
    for l in lines: out += [x.strip() for x in l.split("\n") if x.strip()]
    return out

def flag_store(p, base, local):
    p(f"s_lshl_b32 s{t}, s{sU}, 2\ns_add_u32 s{t}, s{t}, {base}\nv_mov_b32 v10, s{sEP}\nv_mov_b32 v11, 0\ns_mov_b64 exec, 1")
    if local:
        a, b = p.label("fs_slow"), p.label("fs_done")
        p(f"s_cmp_eq_u32 s{sFAST}, 0\ns_cbranch_scc1 {a}\n@cond_begin")
        p(f"buffer_store_dword v10, v11, {sr(SW,4)}, s{t} offen\ns_branch {b}")
        p(f"{a}:\nbuffer_wbl2 sc1\ns_waitcnt vmcnt(0)\nbuffer_store_dword v10, v11, {sr(SW,4)}, s{t} offen sc1\n{b}:\n@cond_end")
    else:
        p(f"buffer_store_dword v10, v11, {sr(SW,4)}, s{t} offen sc1")
    p("s_mov_b64 exec, -1")

def poll(p, base, n):
    a, b = p.label("poll"), p.label("polled")
    p(f"s_lshl_b32 s{t}, s{sU}, 2\ns_add_u32 s{t}, s{t}, {base}\nv_min_u32 v11, {n-1}, v{vLANE}\nv_lshlrev_b32 v11, 2, v11\ns_mov_b32 s{sSPIN}, 0x100000")
    p(f"{a}:\nbuffer_load_dword v10, v11, {sr(SW,4)}, s{t} offen sc1\ns_waitcnt vmcnt(0)\nv_cmp_ne_u32 vcc, s{sEP}, v10")
    p(f"s_cbranch_vccz {b}\ns_sub_u32 s{sSPIN}, s{sSPIN}, 1\ns_cbranch_scc0 {a}\n{b}:")

class only_wave:
    def __init__(self, p, w): self.p = p; self.w = w
    def __enter__(self):
        self.lab = self.p.label("notw")
        self.p(f"s_cmp_lg_u32 s{sWAVE}, {self.w}\ns_cbranch_scc1 {self.lab}\n@cond_begin")
    def __exit__(self, *a): self.p(f"@cond_end\n{self.lab}:")

def prologue(p, kname):
    p(f".globl {kname}\n.p2align 8\n.type {kname},@function\n{kname}:")
    p(f"s_cmp_ge_u32 s2, 256\ns_cbranch_scc1 END")
    for (s, off, size) in SRDS: p(f"s_load_dwordx2 {sr(s,2)}, s[0:1], {off}")
    p(f"s_getpc_b64 {sr(ST,2)}\ns_mov_b32 s{ST+2}, CODE_BYTES\ns_mov_b32 s{ST+3}, 0x20000\ns_lshr_b32 s{sL}, s2, 3\ns_lshl_b32 s{t}, s{sL}, 7")
    p(f"v_lshlrev_b32 v3, 12, v0\ns_mov_b64 exec, 0xffff\nbuffer_load_dword v254, v3, {sr(ST,4)}, s{t} offen\ns_mov_b64 exec, -1")
    p(f"v_lshrrev_b32 v3, 6, v0\nv_and_b32 v{vLANE}, 63, v0\nv_readfirstlane_b32 s{sWAVE}, v3")
    for (s, off, size) in SRDS: p(f"s_mov_b32 s{s+2}, {size}\ns_mov_b32 s{s+3}, 0x20000")
    p(f"v_lshlrev_b32 v{vL16}, 4, v{vLANE}\ns_and_b32 s{sC}, s2, 7\ns_mov_b32 s{sMASKHI}, 0xffff0000")
    if X.get('stamp'): p("v_mov_b32 v255, 0")
    p(f"s_lshl_b32 s{sI2}, s{sC}, 2\ns_lshr_b32 s{sRG4}, s{sL}, 3\ns_add_u32 s{sI2}, s{sI2}, s{sRG4}")
    p(f"s_bfe_u32 s{sP2}, s{sL}, 0x10002\ns_and_b32 s{sQ2}, s{sL}, 3")
    p(f"s_lshl_b32 s{t}, s{sC}, 2\ns_sub_u32 s{t+1}, 60, s{t}\ns_cmp_ge_u32 s{sL}, 16\ns_cselect_b32 s{sRB4}, s{t+1}, s{t}")
    p(f"s_add_u32 s{sRB3}, s{sRB4}, s{sWAVE}\ns_and_b32 s{sJ3}, s{sL}, 15\ns_and_b32 s{sJ4}, s{sL}, 7")
    p(f"s_and_b32 s{t}, s{sRG4}, 1\ns_lshl_b32 s{t}, s{t}, 1\ns_add_u32 s{sRB4}, s{sRB4}, s{t}")
    p(f"s_lshl_b32 s{sTT}, s{sRB4}, 1\ns_add_u32 s{sTT}, s{sTT}, s{sWAVE}")

P2_XRAW = 36
A_MF, A_MX = 192, 224
def P2pre_setup(p):
    swz_src(p, 60, 8192, 10)
    p(f"s_and_b32 s{t+3}, s{sI2}, 3\ns_lshl_b32 s{t+4}, s{t+3}, 3\nv_add_u32 v62, s{t+4}, v{vLANE}\nv_and_b32 v62, 31, v62\nv_lshlrev_b32 v62, 4, v62")
    p(f"s_lshl_b32 s{t}, s{sI2}, 5\ns_add_u32 s92, s{t}, 32\ns_add_u32 s{t}, s{t}, s{sP2}\ns_lshl_b32 s{t}, s{t}, 12\ns_lshl_b32 s92, s92, 12")
    p(f"s_and_b32 s{t+2}, s{sWAVE}, 1\ns_lshl_b32 s{t+2}, s{t+2}, 9\ns_add_u32 s{t}, s{t}, s{t+2}\ns_add_u32 s92, s92, s{t+2}")
    for pc in range(4):
        p(f"s_add_u32 s{t+4}, s{t+3}, {pc}\ns_and_b32 s{t+4}, s{t+4}, 3\ns_lshl_b32 s{t+4}, s{t+4}, 7\ns_add_u32 s{88+pc}, s{t+4}, s{t}")
    p(f"s_mul_i32 s93, s{sWAVE}, {P2S_W}\ns_add_u32 s93, s93, {P2S}")
    p(f"v_and_b32 v10, 3, v{vLANE}\ns_lshl_b32 s{t+3}, s{sWAVE}, 2\nv_add_u32 v10, s{t+3}, v10\nv_mul_u32_u24 v10, 2560, v10")
    p(f"v_lshrrev_b32 v11, 2, v{vLANE}\nv_lshlrev_b32 v11, 4, v11\ns_mul_i32 s{t+3}, s{sQ2}, 160\nv_add_u32 v11, s{t+3}, v11")
    p(f"v_sub_u32 v12, 1264, v11\nv_add_u32 v13, 16, v12\nv_cmp_eq_u32 vcc, 0, v11\nv_mov_b32 v14, 640\nv_cndmask_b32 v13, v13, v14, vcc")
    p(f"s_lshl_b32 s{t}, s{sI2}, 5\ns_add_u32 s{t+1}, s{t}, s{sP2}\ns_mul_i32 s{t+1}, s{t+1}, 1280")
    p(f"s_sub_u32 s{t}, s{sP2}, s{t}\ns_add_u32 s{t}, s{t}, 2046\ns_mul_i32 s{t}, s{t}, 1280")
    p(f"v_add_u32 v14, s{t+1}, v10\nv_sub_u32 v15, s{t}, v10")
    for sd in range(2):
        for k in range(3): p(f"v_add_u32 v{30+3*sd+k}, v{14+sd}, v{11+k}")
    sel = G(f"s_cmp_ge_u32 s{sWAVE}, 2", f"s_cselect_b32 s{ST}, s{SSS}, s{SCS}", f"s_cselect_b32 s{ST+1}, s{SSS+1}, s{SCS+1}", f"s_mov_b32 s{ST+2}, 8388608")
    def rnd(r):
        g = []
        for pc in range(2):
            for hf in range(2):
                g.append(G(f"s_add_u32 m0, s93, {pc*2048+hf*1024}", f"buffer_load_dwordx4 v{60+hf}, {sr(ST,4)}, s{88+2*r+pc} offen lds @@p2r{r}"))
        return g
    r1 = rnd(0); r1[0] = sel + r1[0]
    r1.append(G("s_add_u32 m0, s93, 4096", "s_mov_b32 exec_hi, 0", f"buffer_load_dwordx4 v62, {sr(ST,4)}, s92 offen lds @@p2r0", "s_mov_b32 exec_hi, -1"))
    xl = []
    for sd in range(2):
        r = P2_XRAW + 12*sd
        xl.append(G(f"buffer_load_dwordx4 {vr(r,4)}, v{30+3*sd}, {sr(SX,4)}, 0 offen"))
        xl.append(G(f"buffer_load_dwordx4 {vr(r+4,4)}, v{31+3*sd}, {sr(SX,4)}, 0 offen"))
        xl.append(G(f"buffer_load_dword v{r+8}, v{32+3*sd}, {sr(SX,4)}, 0 offen @@p2x"))
    return r1, rnd(1), xl

def P2pre_read(p, r, vrd, vx):
    for k in range(4):
        p(f"ds_read_b128 {ar(A_MF+16*r+4*k,4)}, v{vrd+(k&1)} offset:{2048*(k>>1)} @@p2rd{r}")
    if r == 0:
        for k in range(8): p(f"ds_read_b128 {ar(A_MX+4*k,4)}, v{vx} offset:{4096+64*k} @@p2rd0")

def P1(p):
    st = "sc1"
    sRG, sQ, sG, sPI = 69, 70, 71, 94
    sG0M, sJ0M, sJ31M = 80, 82, 84
    sXR = 86
    p(f"s_lshr_b32 s{sRG}, s{sL}, 2\ns_lshl_b32 s{t}, s{sC}, 3\ns_add_u32 s{sRG}, s{sRG}, s{t}\ns_and_b32 s{sQ}, s{sL}, 3")
    p(f"s_lshl_b32 s{sG}, s{sRG}, 3\ns_lshl_b32 s{t}, s{sWAVE}, 1\ns_add_u32 s{sG}, s{sG}, s{t}")
    vL4 = 4
    p(f"v_lshlrev_b32 v{vL4}, 2, v{vLANE}\ns_mul_i32 s{sXR}, s{sWAVE}, {P1_XR}")
    p(f"s_mul_i32 s88, s{sG}, 1280\ns_add_u32 s92, s88, 1280")
    for gb in range(2):
        b = 88+4*gb
        p(f"s_sub_u32 s{b+1}, {2048*1280}, s{b}\ns_sub_u32 s{b+2}, {1024*1280}, s{b}\ns_add_u32 s{b+3}, {1024*1280}, s{b}")
    p(f"s_cmp_eq_u32 s{sG}, 0\ns_cselect_b32 s89, {512*1280}, s89\ns_cselect_b32 s91, {1536*1280}, s91\ns_cselect_b32 s{sG0M}, -1, 0\ns_mov_b32 s{sG0M+1}, 0")
    p("s_waitcnt lgkmcnt(0)")
    stamp(p, 0)
    for k in range(8):
        p(f"s_add_u32 m0, s{sXR}, {k*1280}")
        p(f"buffer_load_dwordx4 v{vL16}, {sr(SX,4)}, s{88+k} offen lds")
        p(f"buffer_load_dword v{vL4}, {sr(SX,4)}, s{88+k} offen offset:1024 lds @@x")
    p(f"s_load_dword s{sEP}, {sr(SW,2)}, 0\ns_getreg_b32 s{sU}, hwreg(HW_REG_XCC_ID, 0, 4)")
    swz_src(p, 6, 1280, 10, both=False)
    p(f"s_and_b32 s{t}, s{sWAVE}, 1\ns_lshl_b32 s{t+1}, s{t}, 6\nv_xor_b32 v6, s{t+1}, v6\nv_xor_b32 v7, 64, v6")
    p(f"s_or_b32 s{t+1}, s{sQ}, s{sWAVE}\ns_cmp_eq_u32 s{t+1}, 0\ns_cselect_b32 s{t+1}, {320*1280}, 0")
    p(f"v_cmp_gt_u32 vcc, 8, v{vLANE}\nv_mov_b32 v10, s{t+1}\nv_cndmask_b32 v10, 0, v10, vcc\nv_add_u32 v8, v6, v10")
    p(f"s_mul_i32 s{sB0}, s{sQ}, {80*1280}\ns_mul_i32 s{t}, s{t}, {40*1280}\ns_add_u32 s{sB0}, s{sB0}, s{t}")
    p(f"s_mul_i32 s{sB1}, s{sWAVE}, {5*5120}\ns_add_u32 s{sB1}, s{sB1}, {P1_B}")
    p(f"s_cmp_ge_u32 s{sWAVE}, 2"); sel_srd(p, SSD, SCD)
    bg = []
    for i in range(5):
        for pc in range(5):
            g = G(f"s_add_u32 m0, s{sB1}, {i*5120+pc*1024-pc*128}", f"buffer_load_dwordx4 v{8 if i == 0 else 6+(i&1)}, {sr(ST,4)}, s{sB0} offen offset:{pc*128} lds @@b")
            if pc == 4 and i < 4: g += G(f"s_add_u32 s{sB0}, s{sB0}, 10240")
            bg.append(g)
    for g in bg[:X.get('p1b0', 4)]: p("\n".join(g))
    bg = bg[X.get('p1b0', 4):]
    r1, r2, xl = P2pre_setup(p)
    bg += r1 + xl
    def body(p):
        vJ, vD, vM = 9, 12, 16
        p(f"v_and_b32 v{vJ}, 31, v{vLANE}")
        p(f"v_cmp_eq_u32 {sr(sJ0M,2)}, 0, v{vJ}\nv_cmp_eq_u32 {sr(sJ31M,2)}, 31, v{vJ}")
        p(f"v_lshrrev_b32 v11, 5, v{vLANE}\nv_mul_u32_u24 v11, 5120, v11\nv_add_u32 v11, s{sXR}, v11")
        p(f"v_mul_u32_u24 v{vJ}, 20, v{vJ}")
        p(f"v_add_u32 v{vD}, v11, v{vJ}\nv_sub_u32 v{vM}, v11, v{vJ}\nv_add_u32 v{vM}, 1260, v{vM}")
        for kk in range(1, 4): p(f"v_add_u32 v{vD+kk}, {1280*kk}, v{vD}\nv_add_u32 v{vM+kk}, {1280*kk}, v{vM}")
        vFJ0 = 20; vAW = 21
        p(f"v_cndmask_b32 v{vFJ0}, 0, 1.0, {sr(sJ0M,2)}")
        p(f"v_lshrrev_b32 v11, 5, v{vLANE}\nv_mul_u32_u24 v11, 640, v11\nv_add3_u32 v{vAW}, v11, v{vJ}, s{sXR}")
        for cmb in range(1, 4): p(f"v_add_u32 v{vAW+cmb}, {1280*cmb}, v{vAW}")
        p(f"s_waitcnt lgkmcnt(0)\ns_mul_i32 s{sEP}, s{sEP}, 0x2C9277B5\ns_add_u32 s{sEP}, s{sEP}, 0xAC564B05")
        with only_wave(p, 3):
            p(f"s_lshl_b32 s{t}, s{sC}, 5\ns_add_u32 s{t}, s{t}, s{sL}\ns_lshl_b32 s{t}, s{t}, 2\ns_add_u32 s{t}, s{t}, {FL_X}\ns_add_u32 s{sU}, s{sU}, s{sEP}")
            p(f"v_mov_b32 v10, s{sU}\nv_mov_b32 v11, 0\ns_mov_b64 exec, 1\nbuffer_store_dword v10, v11, {sr(SW,4)}, s{t} offen sc1\ns_mov_b64 exec, -1")
        p("@wait vm=x")
        stamp(p, 20)
        RAW = 64
        for kk in range(4):
            r = RAW + 12*kk
            p(f"ds_read2_b32 {vr(r,2)}, v{vD+kk} offset0:0 offset1:1")
            p(f"ds_read2_b32 {vr(r+10,2)}, v{vM+kk} offset0:4 offset1:5")
            p(f"ds_read2_b32 {vr(r+8,2)}, v{vM+kk} offset0:2 offset1:3")
            p(f"ds_read2_b32 {vr(r+2,2)}, v{vD+kk} offset0:2 offset1:3")
            p(f"ds_read2_b32 {vr(r+6,2)}, v{vM+kk} offset0:0 offset1:1")
            p(f"ds_read_b32 v{r+4}, v{vD+kk} offset:16 @@xr{kk}")
        T, CA = 112, 152; S2, Q2, Y = 192, 200, 208; tA = 212
        for kk in range(4):
            r = RAW + 12*kk
            p(f"@wait lg=xr{kk}")
            for k in range(5):
                a = tA + 4*(k & 1); b = a + 2
                p(f"v_lshlrev_b32 v{a}, 16, v{r+k}\nv_and_b32 v{a+1}, s{sMASKHI}, v{r+k}")
                p(f"v_lshlrev_b32 v{b}, 16, v{r+6+5-k}\nv_and_b32 v{b+1}, s{sMASKHI}, v{r+6+4-k}")
                if k == 0: p(f"v_cndmask_b32 v{b}, v{b}, 0, {sr(sJ0M,2)}")
                tt, cc = T+10*kk+2*k, CA+10*kk+2*k
                p(f"v_pk_add_f32 {vr(tt,2)}, {vr(a,2)}, {vr(b,2)}")
                p(f"v_pk_add_f32 {vr(cc,2)}, {vr(a,2)}, {vr(b,2)} neg_lo:[0,1] neg_hi:[0,1]")
                if k == 0: p(f"v_pk_mul_f32 {vr(Q2+2*kk,2)}, {vr(tt,2)}, {vr(tt,2)}")
                else:
                    p(f"v_pk_add_f32 {vr(S2+2*kk,2)}, {vr(tt,2)}, {vr(S2+2*kk if k > 1 else tt-2,2)}")
                    p(f"v_pk_fma_f32 {vr(Q2+2*kk,2)}, {vr(tt,2)}, {vr(tt,2)}, {vr(Q2+2*kk,2)}")
                p(f"v_pk_fma_f32 {vr(Q2+2*kk,2)}, {vr(cc,2)}, {vr(cc,2)}, {vr(Q2+2*kk,2)}")
            p(f"v_lshlrev_b32 v{Y+kk}, 16, v{r+6}\nv_cndmask_b32 v{Y+kk}, 0, v{Y+kk}, {sr(sJ31M,2)}")
            p(f"v_add_f32 v{S2+2*kk}, v{S2+2*kk}, v{S2+2*kk+1}\nv_add_f32 v{Q2+2*kk}, v{Q2+2*kk}, v{Q2+2*kk+1}")
            p(f"v_add_f32 v{S2+2*kk}, v{S2+2*kk}, v{Y+kk}\nv_add_f32 v{tA}, v{Y+kk}, v{Y+kk}\nv_fmac_f32 v{Q2+2*kk}, v{tA}, v{Y+kk}")
        red = [S2+2*k for k in range(4)] + [Q2+2*k for k in range(4)]
        for mod in ("quad_perm:[1,0,3,2]", "quad_perm:[2,3,0,1]", "row_half_mirror", "row_mirror"):
            for x in red: p(f"v_add_f32_dpp v{x}, v{x}, v{x} {mod} {FULL}")
        for x in red: p(f"v_mov_b32 v{x+1}, v{x}")
        for x in red: p(f"v_permlane16_swap_b32 v{x}, v{x+1}")
        for x in red: p(f"v_add_f32 v{x}, v{x}, v{x+1}")
        p(f"s_mov_b32 s{t}, {fhex(1/640)}\ns_mov_b32 s{t+1}, {fhex(1/1280)}\ns_mov_b32 s{t+3}, {fhex(1e-5)}")
        for k in range(4): p(f"v_mul_f32 v{S2+2*k}, s{t}, v{S2+2*k}")
        for k in range(4): p(f"v_mul_f32 v{S2+2*k+1}, v{S2+2*k}, v{S2+2*k}")
        for k in range(4): p(f"v_fma_f32 v{Q2+2*k}, v{Q2+2*k}, s{t+1}, -v{S2+2*k+1}")
        for k in range(4): p(f"v_add_f32 v{Q2+2*k}, s{t+3}, v{Q2+2*k}")
        for k in range(4): p(f"v_rsq_f32 v{Q2+2*k}, v{Q2+2*k}")
        M = lambda k: S2+2*k
        R = lambda k: Q2+2*k
        for k in range(4): p(f"v_fmac_f32 v{T+10*k}, v{vFJ0}, v{M(k)}")
        for k in range(4): p(f"v_sub_f32 v{Y+k}, v{Y+k}, v{M(k)}")
        A1, A3, B0, B2, B1, K1, K2 = 220, 222, 224, 226, 228, 230, 232
        g0 = sr(sG0M, 2)
        p(f"v_cndmask_b32 v{A1}, v{R(1)}, 0, {g0}\nv_cndmask_b32 v{A3}, v{R(3)}, 0, {g0}")
        p(f"v_cndmask_b32 v{B0}, v{R(0)}, 0, {g0}\nv_cndmask_b32 v{B2}, v{R(2)}, 0, {g0}")
        p(f"v_cndmask_b32 v{B1}, -v{R(1)}, v{R(1)}, {g0}")
        p(f"v_mul_f32 v{K1}, v{R(0)}, v{M(0)}\nv_mul_f32 v{K2}, v{R(2)}, v{M(2)}")
        p(f"v_fmac_f32 v{K1}, v{A1}, v{M(1)}\nv_fmac_f32 v{K2}, v{A3}, v{M(3)}")
        p(f"v_mul_f32 v{K1}, -2.0, v{K1}\nv_mul_f32 v{K2}, -2.0, v{K2}")
        bc = "op_sel_hi:[0,1,0]"; bc1 = "op_sel_hi:[0,1,1]"
        OUT = 64; U, W = 236, 240
        for k in range(5):
            tt = lambda r_: vr(T+10*r_+2*k, 2)
            cc = lambda r_: vr(CA+10*r_+2*k, 2)
            u, w = U, U+2; u2, w2 = W, W+2
            p(f"v_pk_fma_f32 {vr(u,2)}, {vr(R(0),2)}, {tt(0)}, {vr(K1,2)} {bc}")
            p(f"v_pk_fma_f32 {vr(w,2)}, {vr(R(2),2)}, {tt(2)}, {vr(K2,2)} {bc}")
            p(f"v_pk_mul_f32 {vr(u2,2)}, {vr(B0,2)}, {cc(0)} op_sel_hi:[0,1]")
            p(f"v_pk_mul_f32 {vr(w2,2)}, {vr(B2,2)}, {cc(2)} op_sel_hi:[0,1]")
            p(f"v_pk_fma_f32 {vr(u,2)}, {vr(A1,2)}, {tt(1)}, {vr(u,2)} {bc1}")
            p(f"v_pk_fma_f32 {vr(w,2)}, {vr(A3,2)}, {tt(3)}, {vr(w,2)} {bc1}")
            p(f"v_pk_fma_f32 {vr(u2,2)}, {vr(B1,2)}, {cc(1)}, {vr(u2,2)} {bc1}")
            p(f"v_pk_fma_f32 {vr(w2,2)}, {vr(R(3),2)}, {cc(3)}, {vr(w2,2)} {bc1} neg_lo:[1,0,0] neg_hi:[1,0,0]")
            e = 244
            p(f"v_pk_add_f32 {vr(e,2)}, {vr(u,2)}, {vr(w,2)}")
            p(f"v_pk_add_f32 {vr(e+2,2)}, {vr(u,2)}, {vr(w,2)} neg_lo:[0,1] neg_hi:[0,1]")
            p(f"v_pk_add_f32 {vr(e+4,2)}, {vr(u2,2)}, {vr(w2,2)} neg_lo:[0,1] neg_hi:[0,1]")
            p(f"v_pk_add_f32 {vr(e+6,2)}, {vr(u2,2)}, {vr(w2,2)}")
            for cmb in range(4): p(f"v_cvt_pk_bf16_f32 v{OUT+6*cmb+k}, v{e+2*cmb}, v{e+2*cmb+1}")
        for cmb in range(4):
            o = OUT+6*cmb
            p(f"ds_write2_b32 v{vAW+cmb}, v{o}, v{o+1} offset0:0 offset1:1")
            p(f"ds_write2_b32 v{vAW+cmb}, v{o+2}, v{o+3} offset0:2 offset1:3")
            p(f"ds_write_b32 v{vAW+cmb}, v{o+4} offset:16")
        p(f"v_mul_f32 v{U}, v{R(0)}, v{Y}\nv_mul_f32 v{U+1}, v{R(2)}, v{Y+2}")
        p(f"v_fmac_f32 v{U}, v{A1}, v{Y+1}\nv_fmac_f32 v{U+1}, v{A3}, v{Y+3}")
        p(f"v_add_f32 v{U+2}, v{U}, v{U+1}\nv_sub_f32 v{U+3}, v{U}, v{U+1}")
        p(f"v_lshrrev_b32 v11, 5, v{vLANE}\ns_lshl_b32 s{t}, s{sWAVE}, 3\ns_add_u32 s{t}, s{t}, {P1_T}\nv_lshl_add_u32 v11, v11, 2, s{t}")
        p(f"@atomic_begin\ns_mov_b64 exec, {sr(sJ31M,2)}\nds_write2_b32 v11, v{U+2}, v{U+3} offset0:0 offset1:8\ns_mov_b64 exec, -1\n@atomic_end")
        lab = p.label("P1_nox")
        p(f"s_cmp_lg_u32 s{sG}, 0\ns_cbranch_scc1 {lab}\n@cond_begin")
        p(f"v_mul_f32 v{K1}, v{R(1)}, v{M(1)}\nv_fmac_f32 v{K1}, v{R(3)}, v{M(3)}\nv_mul_f32 v{K1}, -2.0, v{K1}")
        for k in range(5):
            p(f"v_pk_fma_f32 {vr(U,2)}, {vr(R(1),2)}, {vr(T+10+2*k,2)}, {vr(K1,2)} {bc}")
            p(f"v_pk_fma_f32 {vr(U,2)}, {vr(R(3),2)}, {vr(T+30+2*k,2)}, {vr(U,2)} {bc1}")
            p(f"v_cvt_pk_bf16_f32 v{100+k}, v{U}, v{U+1}")
        p(f"v_mul_f32 v{U}, v{R(1)}, v{Y+1}\nv_fmac_f32 v{U}, v{R(3)}, v{Y+3}")
        p(f"v_add_u32 v11, {P1_XA}, v{vJ}\nv_mov_b32 v25, {P1_T+64}")
        p(f"s_mov_b64 exec, {g0}")
        p(f"ds_write2_b32 v11, v100, v101 offset0:0 offset1:1\nds_write2_b32 v11, v102, v103 offset0:2 offset1:3\nds_write_b32 v11, v104 offset:16")
        p(f"s_mov_b64 exec, 0x80000000\nds_write_b32 v25, v{U}\ns_mov_b64 exec, -1")
        p(f"@cond_end\n{lab}:")
    main = p.capture(body)
    p.weave(main, bg, start=X.get('p1ws', 30), every=X.get('p1we', 13))
    stamp(p, 21)
    vA0, vA1, vB0, vB1, vB2, vSG, vT, vST, vXA, vXS, vPR, vPX = 12, 13, 14, 16, 18, 20, 21, 22, 23, 24, 26, 28
    p(f"s_mul_i32 s{sPI}, s{sWAVE}, 3\ns_add_u32 s{sPI}, s{sPI}, 4\ns_lshl_b32 s{t}, s{sWAVE}, 1\ns_sub_u32 s{t}, s{t}, 4\ns_cmp_ge_u32 s{sWAVE}, 2\ns_cselect_b32 s{sPI}, s{t}, s{sPI}")
    p(f"v_and_b32 v10, 7, v{vLANE}\nv_lshrrev_b32 v11, 1, v10\nv_mul_u32_u24 v{vA0}, {P1_XR}, v11")
    p(f"v_and_b32 v10, 1, v{vLANE}\nv_mul_u32_u24 v11, 640, v10\nv_add_u32 v{vA0}, v{vA0}, v11")
    p(f"v_lshlrev_b32 v{vSG}, 31, v10\nv_or_b32 v{vSG}, 1.0, v{vSG}")
    p(f"v_bfe_u32 v10, v{vLANE}, 3, 1\nv_mul_u32_u24 v11, 1280, v10\nv_add_u32 v{vA0}, v{vA0}, v11")
    p(f"v_lshrrev_b32 v10, 4, v{vLANE}\nv_lshl_add_u32 v{vA0}, v10, 4, v{vA0}")
    p(f"v_lshlrev_b32 v{vT}, 4, v10\nv_add_u32 v{vXA}, {P1_XA}, v{vT}\nv_add_u32 v{vPX}, s93, v{vT}\nv_add_u32 v{vT}, {P1_T}, v{vT}")
    sC0, sC1 = 80, 81
    p(f"s_cmp_lt_u32 s{sWAVE}, 2\ns_cselect_b32 s{t}, 2560, 0\ns_cselect_b32 s{sC1}, 0, 1.0\nv_add_u32 v{vA1}, s{t}, v{vA0}")
    p(f"s_cmp_eq_u32 s{sWAVE}, 1\ns_cselect_b32 s{t}, 2560, 0\ns_cselect_b32 s{sC0}, 0, 1.0\nv_add_u32 v{vA0}, s{t}, v{vA0}")
    swz_rd(p, vB0, 10, halfstride=5120)
    p(f"s_mul_i32 s{t}, s{sPI}, 10240\ns_add_u32 s{t}, s{t}, {P1_B}\nv_add_u32 v{vB0}, s{t}, v{vB0}\nv_add_u32 v{vB0+1}, s{t}, v{vB0+1}")
    for i, v in ((1, vB1), (2, vB2)):
        p(f"v_add_u32 v{v}, {10240*i}, v{vB0}\nv_add_u32 v{v+1}, {10240*i}, v{vB0+1}")
    swz_rd(p, vPR, 10)
    p(f"v_add_u32 v{vPR}, s93, v{vPR}\nv_add_u32 v{vPR+1}, s93, v{vPR+1}")
    sBASE = 82; sO = 83
    p(f"s_mul_i32 s{sBASE}, s{sQ}, 81920\ns_lshr_b32 s{t}, s{sRG}, 2\ns_mul_i32 s{t}, s{t}, 5120\ns_add_u32 s{sBASE}, s{sBASE}, s{t}")
    p(f"s_and_b32 s{t}, s{sRG}, 3\ns_lshl_b32 s{t}, s{t}, 8\ns_add_u32 s{sBASE}, s{sBASE}, s{t}\ns_add_u32 s{sBASE}, s{sBASE}, {WS_AB}")
    for s_ in range(3):
        p(f"s_add_u32 s{t}, s{sPI}, {s_}\ns_cmp_ge_u32 s{t}, 5\ns_cselect_b32 s{t+1}, {655360-5120}, 0\ns_lshl_b32 s{t}, s{t}, 10\ns_add_u32 s{sO+s_}, s{t}, s{t+1}")
    p(f"v_lshrrev_b32 v10, 5, v{vLANE}\nv_mul_u32_u24 v{vST}, 327680, v10\nv_and_b32 v10, 15, v{vLANE}\nv_lshlrev_b32 v{vXS}, 2, v10\nv_lshl_add_u32 v{vST}, v10, 4, v{vST}")
    p(f"v_bfe_u32 v10, v{vLANE}, 4, 1\nv_lshl_add_u32 v{vST+3}, v10, 3, v{vST}")
    p(f"v_cmp_eq_u32 vcc, 1, v10\nv_mov_b32 v10, s{sO}\nv_mov_b32 v11, s{sO+1}\nv_cndmask_b32 v10, v10, v11, vcc\nv_add_u32 v{vST}, v{vST}, v10")
    p(f"s_add_u32 s{sO+2}, s{sO+2}, s{sBASE}")
    p("s_waitcnt vmcnt(0) lgkmcnt(0)\ns_barrier")
    stamp(p, 22)
    FA0, FA1, FB0, FB1, ACC, ACX, TI = 64, 104, 144, 184, 224, 236, 240
    p(f"ds_read_b128 {vr(TI,4)}, v{vT} @@ti\nv_mov_b32 v10, {P1_T+64}\nds_read_b32 v{TI+4}, v10")
    for ks in range(10):
        p(f"ds_read_b128 {vr(FA0+4*ks,4)}, v{vA0} offset:{64*ks}")
        p(f"ds_read_b128 {vr(FB0+4*ks,4)}, v{vB0+(ks&1)} offset:{1024*(ks>>1)} @@s0_{ks}")
    p(f"v_mul_f32 v10, s{sC0}, v{vSG}\nv_mul_f32 v11, s{sC1}, v{vSG}")
    p("@wait lg=ti")
    for r_ in range(4): p(f"v_mul_f32 v{ACC+r_}, v10, v{TI+r_}\nv_mul_f32 v{ACC+4+r_}, v11, v{TI+r_}\nv_mov_b32 v{ACC+8+r_}, 0")
    for ks in range(10):
        p(f"@wait lg=s0_{ks}")
        p(f"{MF16} {vr(ACC,4)}, {vr(FA0+4*ks,4)}, {vr(FB0+4*ks,4)}, {vr(ACC,4)}")
        p(f"ds_read_b128 {vr(FA1+4*ks,4)}, v{vA1} offset:{64*ks}")
        p(f"ds_read_b128 {vr(FB1+4*ks,4)}, v{vB1+(ks&1)} offset:{1024*(ks>>1)} @@s1_{ks}")
    def xchain(fb, s_, load):
        lab = p.label("P1_nx"); lab2 = p.label("P1_sinx")
        p(f"s_cmp_lg_u32 s{sRG}, 0\ns_cbranch_scc1 {lab}\n@cond_begin")
        p(f"s_add_u32 s{t}, s{sPI}, {s_}\ns_cmp_ge_u32 s{t}, 5\ns_cselect_b32 s{t+1}, {1280-320}, 0\ns_lshl_b32 s{t}, s{t}, 6\ns_add_u32 s{t}, s{t}, s{t+1}")
        p(f"s_mul_i32 s{t+2}, s{sQ}, 320\ns_add_u32 s{t}, s{t}, s{t+2}\ns_add_u32 s{t}, s{t}, {WS_XB}")
        if fb is not None:
            p(f"s_cmp_lg_u32 s{t+1}, 0\ns_cbranch_scc1 {lab2}")
            if load:
                p("s_nop 7")
                for ks in range(10): p(f"ds_read_b128 {vr(FA0+4*ks,4)}, v{vXA} offset:{64*ks}")
            for r_ in range(4): p(f"v_mul_f32 v{ACX+r_}, v{vSG}, v{TI+4}")
            p("s_waitcnt lgkmcnt(0)")
            for ks in range(10): p(f"{MF16} {vr(ACX,4)}, {vr(FA0+4*ks,4)}, {vr(fb+4*ks,4)}, {vr(ACX,4)}")
            p(f"s_mov_b64 exec, 0xffff\nbuffer_store_dword v{ACX}, v{vXS}, {sr(SW,4)}, s{t} offen {st}\ns_mov_b64 exec, -1\ns_branch {lab}")
            p(f"{lab2}:\ns_nop 7")
        p(f"s_mov_b32 exec_lo, 0\ns_mov_b32 exec_hi, 0xffff\nbuffer_store_dword v{ACC+4*s_}, v{vXS}, {sr(SW,4)}, s{t} offen {st}\ns_mov_b64 exec, -1")
        p(f"@cond_end\n{lab}:\ns_nop 1")
    xchain(FB0, 0, True)
    P2pre_read(p, 0, vPR, vPX)
    lab = p.label("P1_b2")
    p(f"s_cmp_ge_u32 s{sWAVE}, 2\ns_cbranch_scc1 {lab}\n@cond_begin")
    for ks in range(10): p(f"ds_read_b128 {vr(FB0+4*ks,4)}, v{vB2+(ks&1)} offset:{1024*(ks>>1)}")
    p(f"@cond_end\n{lab}:")
    for ks in range(10):
        p(f"@wait lg=s1_{ks}")
        p(f"{MF16} {vr(ACC+4,4)}, {vr(FA1+4*ks,4)}, {vr(FB1+4*ks,4)}, {vr(ACC+4,4)}")
    p("s_waitcnt lgkmcnt(0)")
    for g in r2: p("\n".join(g))
    lab = p.label("P1_s2")
    p(f"s_cmp_ge_u32 s{sWAVE}, 2\ns_cbranch_scc1 {lab}\n@cond_begin")
    for ks in range(10): p(f"{MF16} {vr(ACC+8,4)}, {vr(FA1+4*ks,4)}, {vr(FB0+4*ks,4)}, {vr(ACC+8,4)}")
    p(f"@cond_end\n{lab}:")
    p(f"v_cvt_pk_bf16_f32 v4, v{ACC}, v{ACC+1}\nv_cvt_pk_bf16_f32 v5, v{ACC+2}, v{ACC+3}\nv_cvt_pk_bf16_f32 v6, v{ACC+4}, v{ACC+5}\nv_cvt_pk_bf16_f32 v7, v{ACC+6}, v{ACC+7}")
    p("v_permlane16_swap_b32 v4, v6\nv_permlane16_swap_b32 v5, v7")
    p(f"buffer_store_dwordx4 v[4:7], v{vST}, {sr(SW,4)}, s{sBASE} offen {st}")
    xchain(FB1, 1, False)
    lab = p.label("P1_s2e")
    p(f"s_cmp_ge_u32 s{sWAVE}, 2\ns_cbranch_scc1 {lab}\n@cond_begin\ns_nop 3")
    p(f"v_cvt_pk_bf16_f32 v8, v{ACC+8}, v{ACC+9}\nv_cvt_pk_bf16_f32 v9, v{ACC+10}, v{ACC+11}")
    p(f"buffer_store_dwordx2 v[8:9], v{vST+3}, {sr(SW,4)}, s{sO+2} offen {st}")
    xchain(None, 2, False)
    p(f"@cond_end\n{lab}:")
    stamp(p, 1)
    p(f"s_lshl_b32 s{sU}, s{sQ}, 6\ns_add_u32 s{sU}, s{sU}, s{sRG}")
    n0 = len(p.lines)
    touch(p, 'wz0', 64); touch(p, 'wsA', 64); touch(p, 'h', 64)
    nt_ = sum(1 for l in p.lines[n0:] if l.startswith("buffer_load"))
    p(f"s_waitcnt vmcnt({nt_})")
    P2pre_read(p, 1, vPR, vPX)
    p("s_waitcnt lgkmcnt(0)\ns_barrier")

sB4, sB5 = 78, 79
def WZ_vsetup(p, which, regs):
    p(f"s_mul_i32 s{t}, s{sJ3}, 96" + (f"\ns_add_u32 s{t}, s{t}, 1536" if which == 0 else ""))
    p(f"s_cmp_ge_u32 s{sWAVE}, 2\ns_cselect_b32 s{t+2}, -1, 1\ns_cselect_b32 s{t+3}, 55, 0\ns_mov_b32 s{t+4}, 43691\ns_mov_b32 s{t+5}, 3072")
    for u in range(3):
        p(f"v_add_u32 v10, {64*u}, v{vLANE}\nv_mul_u32_u24 v11, s{t+4}, v10\nv_lshrrev_b32 v11, 18, v11")
        p(f"v_mul_u32_u24 v12, 6, v11\nv_sub_u32 v10, v10, v12")
        p(f"v_lshrrev_b32 v12, 3, v11\nv_lshl_add_u32 v11, v12, 3, v11")
        p(f"v_mul_lo_u32 v11, v11, s{t+2}\nv_add_u32 v11, s{t+3}, v11\nv_mul_u32_u24 v11, s{t+5}, v11")
        p(f"v_lshl_add_u32 v10, v10, 4, s{t}\nv_add_u32 v{regs[u]}, v10, v11")
    p("\n".join(WZ_row0(t, t+1)))
    p(f"s_cmp_eq_u32 s{sWAVE}, 2\ns_cselect_b32 s{t+5}, {320*3072}, 0\nv_cmp_gt_u32 vcc, 6, v{vLANE}\nv_mov_b32 v10, s{t+5}\nv_cndmask_b32 v10, 0, v10, vcc")
    p(f"v_add_u32 v{regs[3]}, s{t}, v{regs[0]}\nv_sub_u32 v{regs[3]}, v{regs[3]}, v10")
def WZ_row0(d, tmp):
    return G(f"s_and_b32 s{d}, s{sWAVE}, 1\ns_mul_i32 s{d}, s{d}, 136\ns_sub_u32 s{tmp}, 585, s{d}\ns_cmp_ge_u32 s{sWAVE}, 2\ns_cselect_b32 s{d}, s{tmp}, s{d}\ns_mul_i32 s{d}, s{d}, 3072")
def WZ_groups(which, regs):
    pre = WZ_row0(sB0, sB4)
    pre += G(f"s_cselect_b32 s{sB4}, -1, 1\ns_and_b32 s{sB5}, s{sWAVE}, 1")
    pre += G(f"s_lshr_b32 s{sB1}, s{sWAVE}, 1\ns_mul_i32 s{sB1}, s{sB1}, {5*3072}\ns_mul_i32 s{sB2}, s{sB5}, {2*3072+WZ_RB}\ns_add_u32 s{sB1}, s{sB1}, s{sB2}")
    if which: pre += G(f"s_add_u32 s{sB1}, s{sB1}, {WZ_SIZE}")
    pre += G(f"s_cmp_eq_u32 s{sB5}, 0\ns_cselect_b32 s{sB2}, 8, 56\ns_cselect_b32 s{sB3}, 56, 8\ns_mul_i32 s{sB4}, s{sB4}, 3072\ns_mul_i32 s{sB2}, s{sB2}, s{sB4}\ns_mul_i32 s{sB3}, s{sB3}, s{sB4}",
             f"s_mul_i32 s94, s{sB5}, {3072-2*WZ_RB}\ns_add_u32 s94, s94, {WZ_RB}\ns_sub_u32 s95, 3072, s94")
    gs = []
    for i in range(5):
        for u in range(3):
            g = G(f"s_add_u32 m0, s{sB1}, {u*1024}")
            if i == 0 and u == 0: g += G(f"buffer_load_dwordx4 v{regs[3]}, {sr(SWI,4)}, 0 offen lds @@wz{which}")
            else: g += G(f"buffer_load_dwordx4 v{regs[u]}, {sr(SWI,4)}, s{sB0} offen lds @@wz{which}")
            if u == 2 and i < 4: g += G(f"s_add_u32 s{sB0}, s{sB0}, s{sB2+(i&1)}", f"s_add_u32 s{sB1}, s{sB1}, s{94+(i&1)}")
            gs.append(g)
    gs[0] = pre + gs[0]
    return gs

def WSP_addr(p):
    swz_src(p, vWSS, 8192, 10); swz_rd(p, vWSR, 10)
    p(f"s_mul_i32 s{t+1}, s{sWAVE}, {SCR_W}\ns_add_u32 s{t+1}, s{t+1}, {SCR}\nv_add_u32 v{vWSR}, s{t+1}, v{vWSR}\nv_add_u32 v{vWSR+1}, s{t+1}, v{vWSR+1}")

ALT = WZ_SIZE - SCR
def WSP_groups(ch, alt=0):
    slot, hf4 = ch & 3, ch >> 2
    pre = G(f"s_add_u32 s{sB0}, s{sWAVE}, {slot}\ns_and_b32 s{sB0}, s{sB0}, 3\ns_lshr_b32 s{sB1}, s{sB0}, 1\ns_add_u32 s{sB1}, s{sB1}, s{sRB4}\ns_lshl_b32 s{sB1}, s{sB1}, 5",
            f"s_and_b32 s{sB0}, s{sB0}, 1\ns_add_u32 s{sB0}, s{sB0}, s{sB1}\ns_lshl_b32 s{sB0}, s{sB0}, 12\ns_lshl_b32 s{sB1}, s{sWAVE}, 10\ns_add_u32 s{sB0}, s{sB0}, s{sB1}",
            f"s_mul_i32 s{sB1}, s{sWAVE}, {SCR_W}\ns_add_u32 s{sB1}, s{sB1}, {SCR+alt*ALT}\ns_add_u32 s{sB2}, s{sRG4}, s{sJ4}" + (f"\ns_add_u32 s{sB0}, s{sB0}, 512" if hf4 else ""))
    gs = []
    for pc in range(4):
        for hf in range(2):
            g = []
            if hf == 0: g += G(f"s_add_u32 s{sB3}, s{sB2}, {pc}\ns_and_b32 s{sB3}, s{sB3}, 3\ns_lshl_b32 s{sB3}, s{sB3}, 7\ns_add_u32 s{sB3}, s{sB3}, s{sB0}")
            g += G(f"s_add_u32 m0, s{sB1}, {pc*2048+hf*1024}", f"buffer_load_dwordx4 v{vWSS+hf}, {sr(SWS,4)}, s{sB3} offen lds @@ws{ch}")
            gs.append(g)
    gs[0] = pre + gs[0]
    return gs

def WSP_read(ch, rd=None):
    rd = vWSR if rd is None else rd
    gs = [G(f"ds_read_b128 {ar(ch*32+4*k,4)}, v{rd+(k&1)} offset:{2048*(k>>1)} @@wr{ch}") for k in range(8)]
    gs[0] = [f"@wait vm=ws{ch}"] + gs[0]
    return gs

def WSP_chain(chs, first_issued=False, last_read=True):
    gs = []
    for i, ch in enumerate(chs):
        if not (i == 0 and first_issued):
            g = WSP_groups(ch)
            if i > 0: g[0] = [f"@wait lg=wr{chs[i-1]}"] + g[0]
            gs += g
        if i < len(chs)-1 or last_read: gs += WSP_read(ch)
    return gs

def WO_setup(p, vdst):
    p(f"s_mov_b32 s{t+4}, 52429\ns_mul_i32 s{t}, s{sJ4}, 160")
    for u in range(5):
        p(f"v_add_u32 v10, {64*u}, v{vLANE}\nv_mul_u32_u24 v11, s{t+4}, v10\nv_lshrrev_b32 v11, 19, v11")
        p(f"v_mul_u32_u24 v12, 10, v11\nv_sub_u32 v10, v10, v12\nv_mul_u32_u24 v11, 1280, v11\nv_lshl_add_u32 v10, v10, 4, v11\nv_add_u32 v{vdst+u}, s{t}, v10")
WOR = [224, 225, 226, 227, 228]
def WO_groups(half, vdst, regs=None):
    gs = []
    regs = regs or [vdst+u for u in range(5)]
    pre = G(f"s_mul_i32 s{sB0}, s{sWAVE}, {3*32*1280}\ns_mul_i32 s{sB1}, s{sWAVE}, {3*5120}")
    if half: pre += G(f"s_add_u32 s{sB0}, s{sB0}, {384*1280}\ns_add_u32 s{sB1}, s{sB1}, 61440")
    for b in range(3):
        for u in range(5):
            g = G(f"s_add_u32 m0, s{sB1}, {b*5120+u*1024}", f"buffer_load_dwordx4 v{regs[u]}, {sr(SWO,4)}, s{sB0} offen lds @@wo{half}")
            if u == 4 and b < 2: g += G(f"s_add_u32 s{sB0}, s{sB0}, {32*1280}")
            gs.append(g)
    gs[0] = pre + gs[0]
    return gs
def emit(p, gs):
    for g in gs: p("\n".join(g))
def touch(p, what, dst, tmp=10):
    if X.get('notouch', 0) & {'wz0': 1, 'wz1': 2, 'wsA': 4, 'wsB': 8, 'wo': 16, 'h': 32, 'z1': 64}[what]: return
    a, b = tmp, tmp+1
    if what in ('wz0', 'wz1'):
        p(f"s_lshl_b32 s{t}, s{sL}, 2\ns_add_u32 s{t}, s{t}, s{sWAVE}\ns_mul_i32 s{t}, s{t}, {5*3072}" + (f"\ns_add_u32 s{t}, s{t}, 1536" if what == 'wz0' else ""))
        p(f"v_mul_u32_u24 v{a}, 43, v{vLANE}\nv_lshrrev_b32 v{a}, 9, v{a}\nv_mul_u32_u24 v{a}, {3072-1536}, v{a}\nv_lshl_add_u32 v{a}, v{vLANE}, 7, v{a}")
        p(f"@atomic_begin\ns_mov_b32 exec_hi, 0x0fffffff\nbuffer_load_dword v{dst}, v{a}, {sr(SWI,4)}, s{t} offen\ns_mov_b32 exec_hi, -1\n@atomic_end")
    elif what in ('wsA', 'wsB'):
        p(f"s_sub_u32 s{t}, s{sRB3}, s{sWAVE}\ns_lshl_b32 s{t}, s{t}, 2\ns_and_b32 s{t+1}, s{sL}, 15\ns_add_u32 s{t}, s{t}, s{t+1}\ns_lshl_b32 s{t}, s{t}, 15\ns_lshl_b32 s{t+1}, s{sWAVE}, 10\ns_add_u32 s{t}, s{t}, s{t+1}")
        p(f"v_lshrrev_b32 v{a}, 2, v{vLANE}\nv_lshlrev_b32 v{a}, 12, v{a}\nv_and_b32 v{b}, 3, v{vLANE}\nv_lshl_add_u32 v{a}, v{b}, 7, v{a}")
        p(f"@atomic_begin\ns_mov_b32 exec_hi, 0\nbuffer_load_dword v{dst}, v{a}, {sr(SWS,4)}, s{t} offen offset:{512 if what == 'wsB' else 0}\ns_mov_b32 exec_hi, -1\n@atomic_end")
    elif what == 'wo':
        p(f"s_lshl_b32 s{t}, s{sL}, 2\ns_add_u32 s{t}, s{t}, s{sWAVE}\ns_mul_i32 s{t}, s{t}, 7680\nv_lshlrev_b32 v{a}, 7, v{vLANE}")
        p(f"@atomic_begin\ns_mov_b32 exec_hi, 0x0fffffff\nbuffer_load_dword v{dst}, v{a}, {sr(SWO,4)}, s{t} offen\ns_mov_b32 exec_hi, -1\n@atomic_end")
    elif what == 'h':
        p(f"s_and_b32 s{t}, s{sL}, 15\ns_lshl_b32 s{t}, s{t}, 2\ns_add_u32 s{t}, s{t}, s{sWAVE}\ns_mul_i32 s{t}, s{t}, 2560\ns_sub_u32 s{t+1}, s{sRB3}, s{sWAVE}\ns_mul_i32 s{t+1}, s{t+1}, 40960\ns_add_u32 s{t}, s{t}, s{t+1}\ns_add_u32 s{t}, s{t}, {WS_H}")
        p(f"s_lshl_b32 s{t+1}, s{sRB3}, 12\ns_lshl_b32 s{t+2}, s{sJ3}, 8\ns_add_u32 s{t+1}, s{t+1}, s{t+2}\ns_add_u32 s{t+1}, s{t+1}, {WS_ZS-20*128}")
        p(f"s_lshl_b32 s{t+2}, s{sRB3}, 10\ns_add_u32 s{t+2}, s{t+2}, {WS_HS-22*128}")
        p(f"v_mov_b32 v{a}, s{t}\nv_mov_b32 v{b}, s{t+1}\nv_cmp_lt_u32 vcc, 19, v{vLANE}\nv_cndmask_b32 v{a}, v{a}, v{b}, vcc\nv_mov_b32 v{b}, s{t+2}\nv_cmp_lt_u32 vcc, 21, v{vLANE}\nv_cndmask_b32 v{a}, v{a}, v{b}, vcc")
        p(f"v_lshl_add_u32 v{a}, v{vLANE}, 7, v{a}\n@atomic_begin\ns_mov_b64 exec, 0x3fffffff\nbuffer_load_dword v{dst}, v{a}, {sr(SW,4)}, 0 offen\ns_mov_b64 exec, -1\n@atomic_end")
    elif what == 'z1':
        p(f"s_mul_i32 s{t}, s{sTT}, 24576\ns_mul_i32 s{t+1}, s{sJ4}, 3072\ns_add_u32 s{t}, s{t}, s{t+1}\ns_add_u32 s{t}, s{t}, {WS_Z1}\nv_lshlrev_b32 v{a}, 7, v{vLANE}")
        p(f"@atomic_begin\ns_mov_b64 exec, 0xffffff\nbuffer_load_dword v{dst}, v{a}, {sr(SW,4)}, s{t} offen\ns_mov_b64 exec, -1\n@atomic_end")

def code_srd(p):
    lab = p.label("pc")
    p(f"s_getpc_b64 {sr(SCD,2)}\n{lab}:\ns_sub_u32 s{SCD}, s{SCD}, {lab}-{NAME}_kernel\ns_subb_u32 s{SCD+1}, s{SCD+1}, 0\ns_mov_b32 s{SCD+2}, CODE_BYTES+128")
def code_touch(p, dst, w=3):
    if not X.get('ct', 1): return
    with only_wave(p, w):
        p(f"s_lshl_b32 s{t}, s{sL}, 7\nv_lshlrev_b32 v10, 12, v{vLANE}\ns_mov_b64 exec, 0xffff\nbuffer_load_dword v{dst}, v10, {sr(SCD,4)}, s{t} offen\ns_mov_b64 exec, -1")

P2_XD, P2_RING, P2_ACC, P2_ACX, P2_XB = 80, 112, 192, 212, 232
vPW, vRA, vRB, vHA, vHB, vSA, vSB, vSG2, vSP2, vXBo = 16, 17, 18, 19, 20, 21, 22, 24, 26, 23
def P2_prep(p):
    for sd in range(2):
        r = P2_XRAW + 12*sd; x = P2_XD + 16*sd
        for k in range(4): p(f"v_lshlrev_b32 v{x+2*k}, 16, v{r+k}\nv_and_b32 v{x+2*k+1}, s{sMASKHI}, v{r+k}")
        p(f"v_lshlrev_b32 v{x+8}, 16, v{r+8}")
        for i in range(1, 8):
            wi = 8 - i
            if wi & 1: p(f"v_and_b32 v{x+8+i}, s{sMASKHI}, v{r+4+(wi>>1)}")
            else: p(f"v_lshlrev_b32 v{x+8+i}, 16, v{r+4+(wi>>1)}")
    p(f"s_lshr_b32 s{t}, s{sWAVE}, 1\ns_lshl_b32 s{t}, s{t}, 1\ns_add_u32 s{t}, s{t}, s{sP2}\ns_lshl_b32 s{t}, s{t}, 2\ns_add_u32 s{t}, s{t}, s{sQ2}")
    p(f"s_lshl_b32 s{t}, s{t}, 1\ns_and_b32 s{t+1}, s{sWAVE}, 1\ns_add_u32 s{t}, s{t}, s{t+1}\ns_mul_i32 s{t}, s{t}, 40960\ns_add_u32 s{t}, s{t}, {WS_AB}")
    p(f"s_and_b32 s{t+1}, s{sI2}, 3\ns_lshl_b32 s{t+1}, s{t+1}, 1")
    for k in range(8):
        p(f"s_add_u32 s{t+2}, s{t+1}, {k}\ns_and_b32 s{t+2}, s{t+2}, 7\ns_mul_i32 s{t+2}, s{t+2}, 5120\ns_add_u32 s{80+k}, s{t+2}, s{t}")
    p(f"v_add_u32 v3, 4096, v{vL16}")
    p(f"v_lshrrev_b32 v10, 2, v{vLANE}\nv_lshlrev_b32 v{vXBo}, 5, v10\ns_mul_i32 s69, s{sQ2}, 320\ns_mul_i32 s{t+1}, s{sP2}, 1280\ns_add_u32 s69, s69, s{t+1}\ns_add_u32 s69, s69, {WS_XB}")
    p(f"s_mul_i32 s{t+2}, s{sWAVE}, {SCR_W}\ns_add_u32 s{t+2}, s{t+2}, {SCR}")
    p(f"v_and_b32 v12, 15, v{vLANE}\nv_mul_u32_u24 v12, 336, v12\nv_lshrrev_b32 v13, 4, v{vLANE}\nv_lshl_add_u32 v12, v13, 4, v12\nv_add_u32 v{vPW}, s{t+2}, v12")
    p(f"v_and_b32 v12, 3, v{vLANE}\ns_lshl_b32 s{t+3}, s{sWAVE}, 2\nv_add_u32 v12, s{t+3}, v12")
    p(f"v_mul_u32_u24 v13, 336, v12\nv_add_u32 v13, {SCR}, v13\nv_add_u32 v{vRA}, v13, v{vXBo}")
    p(f"s_cmp_eq_u32 s{sP2}, 0\ns_cselect_b32 s{t+3}, 336, 0\ns_cselect_b32 s{t+4}, 0, 0x80000000\nv_add_u32 v{vRB}, s{t+3}, v{vRA}")
    p(f"v_lshlrev_b32 v13, 8, v10\nv_lshl_add_u32 v{vHA}, v12, 4, v13\nv_sub_u32 v14, 15, v12\nv_lshl_add_u32 v{vHB}, v14, 4, v13")
    p(f"v_lshlrev_b32 v{vSG2}, 31, v{vLANE}\nv_or_b32 v{vSG2}, 1.0, v{vSG2}\nv_xor_b32 v{vSP2}, s{t+4}, v{vSG2}")
    p(f"v_lshlrev_b32 v{vSA}, 3, v12\nv_lshlrev_b32 v{vSB}, 3, v14")
    p(f"s_cmp_eq_u32 s{sQ2}, 0\ns_cselect_b32 s70, 15, 0\ns_mov_b32 s71, 0")
    p(f"s_lshl_b32 s{t}, s{sI2}, 1\ns_add_u32 s{t}, s{t}, s{sP2}\ns_sub_u32 s{t+1}, 126, s{t}\ns_lshl_b32 s{t+3}, s{sP2}, 1\ns_add_u32 s{t+1}, s{t+1}, s{t+3}")
    p(f"s_mul_i32 s{t+3}, s{sQ2}, 2560\ns_add_u32 s{t+3}, s{t+3}, {WS_H}\ns_lshl_b32 s{t+4}, s{sQ2}, 7\ns_add_u32 s{t+4}, s{t+4}, {WS_HS}")
    for (sh, ss, src) in ((88, 92, t), (90, 93, t+1)):
        p(f"s_mul_i32 s{sh}, s{src}, 20480\ns_add_u32 s{sh}, s{sh}, s{t+3}\ns_add_u32 s{sh+1}, s{sh}, 10240")
        p(f"s_lshl_b32 s{ss}, s{src}, 9\ns_add_u32 s{ss}, s{ss}, s{t+4}")
    for r in range(8): p(f"v_mov_b32 v{40+r}, 0")

def P2_main(p):
    st = ""
    RING, ACC, ACX = P2_RING, P2_ACC, P2_ACX
    def ld(k):
        for nt in range(5):
            r = RING + ((k & 3)*5 + nt)*4
            p(f"buffer_load_dwordx4 {vr(r,4)}, v{vL16 if nt < 4 else 3}, {sr(SW,4)}, s{80+k} offen offset:{(nt&3)*1024} sc1 @@ab{k}_{nt}")
    for k in range(4): ld(k)
    p(f"buffer_load_dwordx4 {vr(P2_XB,4)}, v{vXBo}, {sr(SW,4)}, s69 offen sc1\nbuffer_load_dwordx4 {vr(P2_XB+4,4)}, v{vXBo}, {sr(SW,4)}, s69 offen offset:16 sc1")
    for k in range(8):
        for nt in range(5):
            r = RING + ((k & 3)*5 + nt)*4
            p(f"@wait vm=ab{k}_{nt}")
            p(f"{MF16} {vr(ACC+4*nt,4)}, {vr(r,4)}, {ar(A_MF+4*k,4)}, {vr(ACC+4*nt,4) if k else 0}")
            p(f"{MF16} {vr(ACX+4*nt,4)}, {vr(r,4)}, {ar(A_MX+4*k,4)}, {vr(ACX+4*nt,4) if k else 0}")
        if k < 4: ld(k+4)
        if k == 3: touch(p, 'wz1', 64, tmp=12); touch(p, 'z1', 64, tmp=12)
    stamp(p, 23)
    for nt in range(5): p(f"ds_write_b128 v{vPW}, {vr(ACC+4*nt,4)} offset:{64*nt}")
    p("s_mov_b32 exec_lo, 0x00010001\ns_mov_b32 exec_hi, 0x00010001")
    for nt in range(5): p(f"ds_write_b128 v{vPW}, {vr(ACX+4*nt,4)} offset:{16*336+64*nt}")
    p("s_mov_b64 exec, -1")
    STt = 40
    p("s_waitcnt lgkmcnt(0)\ns_barrier")
    p("s_mov_b32 exec_hi, 0xff")
    L = RING
    for sd in range(2):
        for hh in range(2):
            for wv in range(4):
                p(f"ds_read_b128 {vr(L+32*sd+8*wv+4*hh,4)}, v{vRA if sd == 0 else vRB} offset:{wv*SCR_W+16*hh} @@pq{sd}{hh}")
    for sd in range(2):
        b = L + 32*sd; x = P2_XD + 16*sd; o = 48 + 8*sd
        su = (vSG2, 0) if sd == 0 else (vSP2, 1)
        sw = (vSP2, 0) if sd == 0 else (vSG2, 1)
        for k in range(4):
            p(f"@wait lg=pq{sd}{k>>1}")
            P0, P1_, Q0, Q1 = b+2*k, b+8+2*k, b+16+2*k, b+24+2*k
            p(f"v_pk_add_f32 {vr(P0,2)}, {vr(P0,2)}, {vr(P1_,2)}\nv_pk_add_f32 {vr(Q0,2)}, {vr(Q0,2)}, {vr(Q1,2)}")
            p(f"v_pk_add_f32 {vr(P1_,2)}, {vr(P0,2)}, {vr(Q0,2)} neg_lo:[0,1] neg_hi:[0,1]")
            p(f"v_pk_add_f32 {vr(Q1,2)}, {vr(P0,2)}, {vr(Q0,2)}")
            for (dst, (sv, ng)) in ((P1_, su), (Q1, sw)):
                p(f"v_pk_fma_f32 {vr(dst,2)}, {vr(sv,2)}, {vr(P2_XB+2*k,2)}, {vr(dst,2)} op_sel_hi:[0,1,1]" + (" neg_lo:[1,0,0] neg_hi:[1,0,0]" if ng else ""))
            lo, hi = (P1_, Q1) if sd == 0 else (Q1, P1_)
            if k == 0: p(f"v_cndmask_b32 v{lo}, v{lo}, 0, s[70:71]")
            p(f"v_pk_add_f32 {vr(x+2*k,2)}, {vr(x+2*k,2)}, {vr(lo,2)}\nv_pk_add_f32 {vr(x+8+2*k,2)}, {vr(x+8+2*k,2)}, {vr(hi,2)}")
            p(f"v_cvt_pk_bf16_f32 v{o+k}, v{x+2*k}, v{x+2*k+1}\nv_cvt_pk_bf16_f32 v{o+4+k}, v{x+8+2*k}, v{x+8+2*k+1}")
        sh = 88 if sd == 0 else 90; vh = vHA if sd == 0 else vHB
        p(f"buffer_store_dwordx4 {vr(o,4)}, v{vh}, {sr(SW,4)}, s{sh} offen {st}")
        p(f"buffer_store_dwordx4 {vr(o+4,4)}, v{vh}, {sr(SW,4)}, s{sh+1} offen {st}")
    for k in range(8):
        for sd in range(2):
            x = P2_XD + 16*sd; s_, q_ = STt+4*sd, STt+4*sd+2
            p(f"v_pk_add_f32 {vr(s_,2)}, {vr(s_,2)}, {vr(x+2*k,2)}\nv_pk_fma_f32 {vr(q_,2)}, {vr(x+2*k,2)}, {vr(x+2*k,2)}, {vr(q_,2)}")
    p("s_mov_b64 exec, -1")
    red = [STt, STt+2, STt+4, STt+6]
    for x in red: p(f"v_add_f32 v{x}, v{x}, v{x+1}")
    for mod in ("row_ror:4", "row_ror:8"):
        for x in red: p(f"v_add_f32_dpp v{x}, v{x}, v{x} {mod} {FULL}")
    for sw in ("v_permlane16_swap_b32", "v_permlane32_swap_b32"):
        for x in red: p(f"v_mov_b32 v{x+1}, v{x}")
        for x in red: p(f"{sw} v{x}, v{x+1}")
        for x in red: p(f"v_add_f32 v{x}, v{x}, v{x+1}")
    p(f"v_mov_b32 v{STt+1}, v{STt+2}\nv_mov_b32 v{STt+5}, v{STt+6}")
    p("s_mov_b64 exec, 15")
    p(f"buffer_store_dwordx2 {vr(STt,2)}, v{vSA}, {sr(SW,4)}, s92 offen {st}")
    p(f"buffer_store_dwordx2 {vr(STt+4,2)}, v{vSB}, {sr(SW,4)}, s93 offen {st}")
    p("s_mov_b64 exec, -1")

P3_AZ2, P3_AZ1, P3_HF, P3_BF = 16, 40, 64, 224
vWB = 248
A_CS, A_ONE = 240, 252
LOG2E = 1.4426950408889634
GK0, GK1 = -LOG2E*1.5957691216057308, -LOG2E*0.07135481282
sGK1 = 90; vK0 = 14

def P3_prep(p):
    p(f"v_bfe_u32 v10, v{vLANE}, 4, 1\nv_mul_u32_u24 v{vWB}, {WZ_RB}, v10")
    p(f"v_lshrrev_b32 v10, 5, v{vLANE}\nv_bfe_u32 v11, v{vLANE}, 2, 2\nv_lshl_add_u32 v10, v10, 3, v11\nv_mul_u32_u24 v10, 96, v10")
    p(f"v_and_b32 v11, 3, v{vLANE}\nv_lshl_add_u32 v10, v11, 3, v10\nv_add_u32 v{vWB}, v{vWB}, v10\nv_add_u32 v{vWB+1}, {WZ_SIZE}, v{vWB}")
    p("v_mov_b32 v10, 0x3f803f80")
    for r in range(4): p(f"v_accvgpr_write_b32 a{A_ONE+r}, v10")
    p(f"s_lshl_b32 s80, s{sRB3}, 10\ns_add_u32 s80, s80, {WS_HS}")
    p(f"s_mul_i32 s81, s{sRB3}, 40960\ns_add_u32 s81, s81, {WS_H}\ns_add_u32 s82, s81, 20480")
    p(f"s_mov_b32 s{sGK1}, {fhex(GK1)}\ns_mov_b32 s{sGK1+1}, {fhex(GK1)}")

def wfrag(p, dst, ks, nt, z1, tag):
    p(f"ds_read_b64_tr_b16 {vr(dst,2)}, v{vWB+z1} offset:{ks*1536+nt*32}")
    p(f"ds_read_b64_tr_b16 {vr(dst+2,2)}, v{vWB+z1} offset:{ks*1536+384+nt*32} @@{tag}")

def gelu4(p, x, tmp):
    for step in range(6):
        for h in range(2):
            xx = x+2*h; a = tmp+4*h; b = a+2
            if step == 0: p(f"v_pk_mul_f32 {vr(a,2)}, {vr(xx,2)}, {vr(xx,2)}")
            if step == 1: p(f"v_pk_fma_f32 {vr(a,2)}, {vr(a,2)}, {sr(sGK1,2)}, {vr(vK0,2)} op_sel_hi:[1,1,0]")
            if step == 2: p(f"v_pk_mul_f32 {vr(a,2)}, {vr(a,2)}, {vr(xx,2)}")
            if step == 3: p(f"v_exp_f32 v{b}, v{a}\nv_exp_f32 v{b+1}, v{a+1}")
            if step == 4: p(f"v_pk_add_f32 {vr(b,2)}, {vr(b,2)}, 1.0 op_sel_hi:[1,0]")
            if step == 5: p(f"v_rcp_f32 v{a}, v{b}\nv_rcp_f32 v{a+1}, v{b+1}")
    for h in range(2): p(f"v_pk_mul_f32 {vr(x+2*h,2)}, {vr(x+2*h,2)}, {vr(tmp+4*h,2)}")

def hload(p, ks):
    if ks >= 20: return
    for par in range(2):
        p(f"buffer_load_dwordx4 {vr(P3_HF+(2*ks+par)*4,4)}, v{vL16}, {sr(SW,4)}, s{81+par} offen offset:{(ks&3)*1024} sc1 @@h{ks}")
    if (ks & 3) == 3 and ks < 19: p(f"s_add_u32 s81, s81, 4096\ns_add_u32 s82, s82, 4096")

def P3_pass(p, z1, k0=0, k1=20):
    acc = P3_AZ1 if z1 else P3_AZ2
    HA = X.get('ha', 5)
    tg = lambda ks, nt: f"wf{z1}_{ks}_{nt}"
    for nt in range(3): wfrag(p, P3_BF + ((k0 & 1)*3+nt)*4, k0, nt, z1, tg(k0, nt))
    for ks in range(k0, k1):
        for nt in range(3):
            p(f"@wait lg={tg(ks, nt)}" + (f" vm=h{ks}" if not z1 else ""))
            bf = vr(P3_BF + ((ks & 1)*3+nt)*4, 4)
            for par in range(2):
                hf = vr(P3_HF + (2*ks+par)*4, 4); a = vr(acc + (par*3+nt)*4, 4); c = a if ks else 0
                p(f"{MF16} {a}, {bf}, {hf}, {c}" if z1 else f"{MF16} {a}, {hf}, {bf}, {c}")
            a = ar(A_CS+4*nt, 4); c = a if ks else 0; one = ar(A_ONE, 4)
            p(f"{MF16} {a}, {bf}, {one}, {c}" if z1 else f"{MF16} {a}, {one}, {bf}, {c}")
            if ks+1 < k1: wfrag(p, P3_BF + (((ks+1) & 1)*3+nt)*4, ks+1, nt, z1, tg(ks+1, nt))
            if not z1 and nt == 0: hload(p, ks+HA)
        if not z1 and ks == X.get('ln1k', 3): P3_ln1(p)
        if not z1 and X.get('p3st') and ks in (0, 4, 10): stamp(p, {0: 25, 4: 26, 10: 27}[ks])

def P3_loads(p):
    for ks in range(X.get('ha', 5)):
        hload(p, ks)
        if ks == 1: p(f"buffer_load_dwordx4 v[4:7], v{vL16}, {sr(SW,4)}, s80 offen sc1 @@hs")

def P3_ln1(p):
    p("@wait vm=hs")
    for x in range(4, 8): p(f"v_add_f32_dpp v{x}, v{x}, v{x} row_ror:8 {FULL}")
    for x in range(4): p(f"v_mov_b32 v{8+x}, v{4+x}")
    for x in range(4): p(f"v_permlane16_swap_b32 v{4+x}, v{8+x}")
    for x in range(4): p(f"v_add_f32 v{4+x}, v{4+x}, v{8+x}")
    p(f"s_mov_b32 s{t}, {fhex(1/640)}\ns_mov_b32 s{t+1}, {fhex(1e-5)}")
    p(f"v_mul_f32 v8, s{t}, v4\nv_mul_f32 v9, s{t}, v6\nv_mul_f32 v4, v8, v8\nv_mul_f32 v6, v9, v9")
    p(f"v_fma_f32 v5, v5, s{t}, -v4\nv_fma_f32 v7, v7, s{t}, -v6\nv_add_f32 v5, s{t+1}, v5\nv_add_f32 v7, s{t+1}, v7")
    p(f"v_rsq_f32 v10, v5\nv_rsq_f32 v11, v7\nv_sub_f32 v8, 0, v8\nv_sub_f32 v9, 0, v9")
    p(f"s_lshl_b32 s{t}, s{sWAVE}, 8\ns_add_u32 s{t}, s{t}, {TBL}")
    p(f"v_lshrrev_b32 v4, 5, v{vLANE}\nv_lshlrev_b32 v4, 6, v4\nv_and_b32 v5, 7, v{vLANE}\nv_lshl_add_u32 v4, v5, 3, v4\nv_add_u32 v4, s{t}, v4")
    p(f"ds_write_b64 v4, v[8:9]\nds_write_b64 v4, v[10:11] offset:128 @@ln1")
    p(f"v_lshrrev_b32 v12, 4, v{vLANE}\nv_lshl_add_u32 v12, v12, 4, s{t}\nv_mov_b32 v{vK0}, {fhex(GK0)}")

def P3_z2a(p):
    B = P3_BF
    NM, RR, TMP = B, B+8, B+16
    p("@wait lg=ln1")
    for par in range(2):
        p(f"ds_read_b128 {vr(NM+4*par,4)}, v12 offset:{64*par}\nds_read_b128 {vr(RR+4*par,4)}, v12 offset:{128+64*par} @@nr{par}")
    CSr = [4, 6, 8]
    for nt in range(3): p(f"v_accvgpr_read_b32 v{CSr[nt]}, a{A_CS+4*nt}")
    for par in range(2):
        p(f"@wait lg=nr{par}")
        for nt in range(3):
            a = P3_AZ2 + (par*3+nt)*4
            for h in range(2): p(f"v_pk_fma_f32 {vr(a+2*h,2)}, {vr(NM+4*par+2*h,2)}, {vr(CSr[nt],2)}, {vr(a+2*h,2)} op_sel_hi:[1,0,1]")
            for h in range(2): p(f"v_pk_mul_f32 {vr(a+2*h,2)}, {vr(a+2*h,2)}, {vr(RR+4*par+2*h,2)}")
            gelu4(p, a, TMP)
    for par in range(2):
        for h in range(2):
            a = lambda nt: vr(P3_AZ2 + (par*3+nt)*4 + 2*h, 2)
            S_, Q_ = vr(NM+4*par+2*h, 2), vr(RR+4*par+2*h, 2)
            p(f"v_pk_add_f32 {S_}, {a(0)}, {a(1)}\nv_pk_mul_f32 {Q_}, {a(0)}, {a(0)}")
            p(f"v_pk_add_f32 {S_}, {S_}, {a(2)}\nv_pk_fma_f32 {Q_}, {a(1)}, {a(1)}, {Q_}\nv_pk_fma_f32 {Q_}, {a(2)}, {a(2)}, {Q_}")
    for base in (NM, RR):
        for r in range(4): p(f"v_add_f32_dpp v{base+r}, v{base+r}, v{base+r} row_ror:8 {FULL}")
    for base in (NM, RR):
        for r in range(4): p(f"v_add_f32_dpp v{base+r}, v{base+4+r}, v{base+4+r} row_ror:8 row_mask:0xf bank_mask:0xc")
    for i, (base, r) in enumerate(((NM, 0), (RR, 0), (NM, 1), (RR, 1))):
        p(f"v_add_f32_dpp v{TMP+i}, v{base+r}, v{base+r} row_half_mirror {FULL}")
    for i, (base, r) in enumerate(((NM, 2), (RR, 2), (NM, 3), (RR, 3))):
        p(f"v_add_f32_dpp v{TMP+i}, v{base+r}, v{base+r} row_half_mirror row_mask:0xf bank_mask:0xa")
    for mod in ("quad_perm:[1,0,3,2]", "quad_perm:[2,3,0,1]"):
        for i in range(4): p(f"v_add_f32_dpp v{TMP+i}, v{TMP+i}, v{TMP+i} {mod} {FULL}")
    p(f"v_lshrrev_b32 v13, 2, v{vLANE}\nv_lshlrev_b32 v13, 8, v13")
    p(f"s_lshl_b32 s83, s{sRB3}, 12\ns_add_u32 s83, s83, {WS_ZS}\ns_lshl_b32 s{t+1}, s{sJ3}, 4\ns_add_u32 s{t+1}, s{t+1}, s83")
    p("@atomic_begin\ns_mov_b32 exec_lo, 0x11111111\ns_mov_b32 exec_hi, 0x11111111")
    p(f"buffer_store_dwordx4 {vr(TMP,4)}, v13, {sr(SW,4)}, s{t+1} offen @@zs")
    p("s_mov_b64 exec, -1\n@atomic_end")
    p(f"v_and_b32 v4, 3, v{vLANE}\nv_lshl_add_u32 v13, v4, 4, v13")

def P3_z2b(p):
    B = P3_BF
    for i in range(4): p(f"buffer_load_dwordx4 {vr(B+4*i,4)}, v13, {sr(SW,4)}, s83 offen offset:{64*i} sc1 @@zl")
    p(f"s_lshr_b32 s{t+2}, s{sJ3}, 1\ns_lshl_b32 s{t+2}, s{t+2}, 6\ns_add_u32 s{t+2}, s{t+2}, s{sRB3}\ns_mul_i32 s{t+2}, s{t+2}, 6144")
    p(f"s_and_b32 s{t+1}, s{sJ3}, 1\ns_mul_i32 s{t+1}, s{t+1}, 3072\ns_add_u32 s{t+2}, s{t+2}, s{t+1}\ns_add_u32 s{t+2}, s{t+2}, {WS_Z2}")
    p(f"s_mov_b32 s{t}, {fhex(1/768)}\ns_mov_b32 s{t+1}, {fhex(1e-5)}")
    p("@wait vm=zl")
    for h in range(2):
        p(f"v_pk_add_f32 {vr(B+2*h,2)}, {vr(B+2*h,2)}, {vr(B+4+2*h,2)}\nv_pk_add_f32 {vr(B+8+2*h,2)}, {vr(B+8+2*h,2)}, {vr(B+12+2*h,2)}")
    for h in range(2): p(f"v_pk_add_f32 {vr(B+2*h,2)}, {vr(B+2*h,2)}, {vr(B+8+2*h,2)}")
    for mod in ("quad_perm:[1,0,3,2]", "quad_perm:[2,3,0,1]"):
        for i in range(4): p(f"v_add_f32_dpp v{B+i}, v{B+i}, v{B+i} {mod} {FULL}")
    p(f"v_mul_f32 v{B}, s{t}, v{B}\nv_mul_f32 v{B+2}, s{t}, v{B+2}\nv_mul_f32 v{B+4}, v{B}, v{B}\nv_mul_f32 v{B+5}, v{B+2}, v{B+2}")
    p(f"v_fma_f32 v{B+1}, v{B+1}, s{t}, -v{B+4}\nv_fma_f32 v{B+3}, v{B+3}, s{t}, -v{B+5}\nv_add_f32 v{B+1}, s{t+1}, v{B+1}\nv_add_f32 v{B+3}, s{t+1}, v{B+3}")
    p(f"v_rsq_f32 v{B+1}, v{B+1}\nv_rsq_f32 v{B+3}, v{B+3}")
    p(f"v_mul_f32 v{B}, -v{B}, v{B+1}\nv_mul_f32 v{B+2}, -v{B+2}, v{B+3}")
    NM, RR = B+8, B+16
    for bk in range(4):
        for i in range(2):
            p(f"v_mov_b32_dpp v{NM+2*bk+i}, v{B+2*i} row_newbcast:{4*bk} {FULL}")
            p(f"v_mov_b32_dpp v{RR+2*bk+i}, v{B+2*i+1} row_newbcast:{4*bk} {FULL}")
    for nt in range(3):
        for par in range(2):
            a = P3_AZ2 + (par*3+nt)*4
            for h in range(2): p(f"v_pk_fma_f32 {vr(a+2*h,2)}, {vr(a+2*h,2)}, {vr(RR+4*par+2*h,2)}, {vr(NM+4*par+2*h,2)}")
        o = [B, B+4, 4][nt]
        for r in range(4): p(f"v_cvt_pk_bf16_f32 v{o+r}, v{P3_AZ2+nt*4+r}, v{P3_AZ2+(3+nt)*4+r}")
        p(f"buffer_store_dwordx4 {vr(o,4)}, v{vL16}, {sr(SW,4)}, s{t+2} offen offset:{1024*nt} sc1 @@z2s")

Z_CS, Z_NR, Z_T, Z_K0 = 16, 28, 32, 14
def P3_z1e_prep(p):
    p(f"s_lshl_b32 s{t}, s{sWAVE}, 8\ns_add_u32 s{t}, s{t}, {TBL}\nv_and_b32 v12, 15, v{vLANE}\nv_lshl_add_u32 v12, v12, 2, s{t}")
    for par in range(2): p(f"ds_read_b32 v{Z_NR+2*par}, v12 offset:{64*par}\nds_read_b32 v{Z_NR+2*par+1}, v12 offset:{128+64*par} @@z1n")
    for r in range(12): p(f"v_accvgpr_read_b32 v{Z_CS+r}, a{A_CS+r}")
    p(f"s_mul_i32 s{SSD}, s{sRB3}, {2*48*512}\ns_mul_i32 s{t+1}, s{sJ3}, 1536\ns_add_u32 s{SSD}, s{SSD}, s{t+1}\ns_add_u32 s{SSD}, s{SSD}, {WS_Z1}\ns_add_u32 s{SSD+1}, s{SSD}, {48*512}")
    p(f"s_lshl_b32 s{SSD+2}, s{sRB3}, 4\ns_add_u32 s{SSD+2}, s{SSD+2}, s{sJ3}")
def z1e_lines():
    L = []
    for par in range(2):
        for nt in range(3):
            a = P3_AZ1 + (par*3+nt)*4; T = Z_T
            for r in range(4): L.append(f"v_fmac_f32 v{a+r}, v{Z_CS+4*nt+r}, v{Z_NR+2*par}")
            for r in range(4): L.append(f"v_mul_f32 v{a+r}, v{a+r}, v{Z_NR+2*par+1}")
            for r in range(4): L.append(f"v_mul_f32 v{T+r}, v{a+r}, v{a+r}")
            for r in range(4): L.append(f"v_fmamk_f32 v{T+r}, v{T+r}, {fhex(GK1)}, v{Z_K0}")
            for r in range(4): L.append(f"v_mul_f32 v{T+r}, v{T+r}, v{a+r}")
            for r in range(4): L.append(f"v_exp_f32 v{T+r}, v{T+r}")
            for r in range(4): L.append(f"v_add_f32 v{T+r}, 1.0, v{T+r}")
            for r in range(4): L.append(f"v_rcp_f32 v{T+r}, v{T+r}")
            for r in range(4): L.append(f"v_mul_f32 v{a+r}, v{a+r}, v{T+r}")
            L.append(f"v_cvt_pk_bf16_f32 v{a}, v{a}, v{a+1}"); L.append(f"v_cvt_pk_bf16_f32 v{a+1}, v{a+2}, v{a+3}")
    L.append("\n".join(f"buffer_store_dwordx2 {vr(P3_AZ1+(par*3+nt)*4,2)}, v8, {sr(SW,4)}, s{SSD+par} offen offset:{512*nt} @@z1s" for par in range(2) for nt in range(3)))
    return L

P4_RING, P4_OWN, P4_ACC, P4_Z1, P4_BIAS = 64, 128, 152, 224, 236
P4_MB = 16
P5_H, P5_V = 40, 64
P5_H = 240
def P4_prep(p):
    p(f"s_lshl_b32 s{t}, s{sJ4}, 6\ns_lshl_b32 s{t+1}, s{sWAVE}, 4\ns_add_u32 s{t}, s{t}, s{t+1}\ns_mul_i32 s{t}, s{t}, 6144\ns_add_u32 s{t}, s{t}, {WS_Z2}")
    p(f"s_add_u32 s{t+1}, s{sRG4}, s{sJ4}\ns_lshl_b32 s{t+1}, s{t+1}, 1")
    for k in range(8):
        p(f"s_add_u32 s{t+2}, s{t+1}, {k}\ns_and_b32 s{t+2}, s{t+2}, 7\ns_mul_i32 s{t+2}, s{t+2}, 6144\ns_add_u32 s{80+k}, s{t+2}, s{t}\ns_add_u32 s{88+k}, s{80+k}, {8*6144}")
    p(f"v_add_u32 v3, 4096, v{vL16}")
    for s_ in range(1, 4):
        p(f"s_add_u32 s{t}, s{sWAVE}, {s_}\ns_and_b32 s{t}, s{t}, 3\ns_mul_i32 s{t}, s{t}, {SCR_W}\ns_add_u32 s{t}, s{t}, {SCR+(s_-1)*3072}\nv_add_u32 v{3+s_}, s{t}, v{vL16}")
    p(f"s_mul_i32 s{t}, s{sWAVE}, {SCR_W}\ns_add_u32 s{t}, s{t}, {SCR}\nv_add_u32 v7, s{t}, v{vL16}")
    p(f"v_lshlrev_b32 v8, 3, v{vLANE}\ns_mul_i32 s71, s{sTT}, 24576\ns_mul_i32 s{t+1}, s{sJ4}, 3072\ns_add_u32 s71, s71, {WS_V}\ns_add_u32 s70, s71, s{t+1}")
    p(f"v_and_b32 v10, 15, v{vLANE}\nv_lshlrev_b32 v10, 2, v10\ns_lshr_b32 s{t}, s{sTT}, 1\ns_lshl_b32 s{t}, s{t}, 5\ns_and_b32 s{t+1}, s{sTT}, 1\ns_add_u32 s{t}, s{t}, s{t+1}\ns_lshl_b32 s{t}, s{t}, 1")
    p(f"s_lshr_b32 s{t+2}, s{sTT}, 1\ns_lshl_b32 s{t+2}, s{t+2}, 6\ns_lshl_b32 s{t+3}, s{sJ4}, 3\ns_add_u32 s{t+2}, s{t+2}, s{t+3}\ns_add_u32 s{t+2}, s{t+2}, {FL_F3B}")
    p(f"v_and_b32 v9, 1, v{vLANE}\nv_lshl_add_u32 v9, v9, 2, s{t+2}")
    p(f"v_mov_b32 v{P4_BIAS}, 0\nbuffer_load_short_d16_hi v{P4_BIAS}, v10, {sr(SBS,4)}, s{t} offen @@bias")
    p(f"s_cmp_ge_u32 s{sJ4}, 4\ns_cselect_b32 s{SCS}, -1, 1\ns_cselect_b32 s{t+1}, 960, 0\ns_mul_i32 s{t+2}, s{sJ4}, 80")
    p(f"v_lshrrev_b32 v0, 4, v{vLANE}\nv_lshl_add_u32 v0, v0, 2, s{t+2}\nv_mul_lo_u32 v0, v0, s{SCS}\nv_add_u32 v0, s{t+1}, v0")
    p(f"v_and_b32 v15, 15, v{vLANE}\nv_lshlrev_b32 v15, 4, v15")
    p(f"s_mul_i32 s{SCS+1}, s{sTT}, 20480\ns_add_u32 s{SCS+1}, s{SCS+1}, {WS_H}")

HRES = [52+i for i in range(12)] + [240+i for i in range(8)]
def hload_lines():
    L = []
    for i in range(20):
        L += G(f"s_mul_i32 s{SCS+2}, s{SCS}, {16*(i>>2)+(i&3)}\nv_add_u32 v12, s{SCS+2}, v0")
        if i == 0: L += G(f"v_cmp_eq_u32 vcc, 640, v12\nv_mov_b32 v13, 320\nv_cndmask_b32 v12, v12, v13, vcc")
        L += G(f"v_lshrrev_b32 v13, 3, v12\nv_lshl_add_u32 v13, v13, 8, v15\nv_and_b32 v12, 7, v12\nv_lshl_add_u32 v{HRES[i]}, v12, 1, v13")
    L.append("\n".join(f"buffer_load_ushort v{HRES[i]}, v{HRES[i]}, {sr(SW,4)}, s{SCS+1} offen sc1 @@hres" for i in range(20)))
    return L

def p4_order():
    LEAD = X.get('lead', 1)
    seq = []
    tiles = [(hf, ft) for hf in range(2) for ft in range(6)]
    for i in range(len(tiles) + LEAD):
        if i < len(tiles): seq += [(tiles[i][0], tiles[i][1], k) for k in range(2)]
        if i >= LEAD: seq += [(tiles[i-LEAD][0], tiles[i-LEAD][1], k) for k in range(2, 8)]
    return seq

def P4_main(p):
    R = X.get('R', 16)
    seq = p4_order()
    def ld(n):
        hf, ft, k = seq[n]
        p(f"buffer_load_dwordx4 {vr(P4_RING+(n%R)*4,4)}, v{vL16 if ft < 4 else 3}, {sr(SW,4)}, s{80+8*hf+k} offen offset:{(ft&3)*1024} sc1 @@z{n}")
    R0 = X.get('R0', 10)
    for n in range(R0): ld(n)
    p("@wait vm=bias lg=z1n")
    for r in range(1, 4): p(f"v_mov_b32 v{P4_BIAS+r}, v{P4_BIAS}")
    def mb_read():
        for f in range(3):
            for s_ in range(3): p(f"ds_read_b128 {vr(P4_MB+4*(f*3+s_),4)}, v7 offset:{s_*3072+f*1024} @@mb{f}")
    def mb_add(f0, pk):
        out = []
        for f in range(3):
            if pk:
                out.append(f"@wait lg=mb{f}")
                for h in range(2):
                    o = vr(P4_OWN+(f0+f)*4+2*h, 2); q = lambda s_: vr(P4_MB+4*(f*3+s_)+2*h, 2)
                    out += [f"v_pk_add_f32 {q(0)}, {q(0)}, {q(1)}", f"v_pk_add_f32 {o}, {o}, {q(2)}", f"v_pk_add_f32 {o}, {o}, {q(0)}"]
            else:
                for s_ in range(3):
                    for r in range(4): out.append(f"v_add_f32 v{P4_OWN+(f0+f)*4+r}, v{P4_OWN+(f0+f)*4+r}, v{P4_MB+4*(f*3+s_)+r}")
        return out
    def wr(ft):
        for s_ in range(1, 4): p(f"ds_write_b128 v{3+s_}, {vr(P4_ACC+(ft*3+s_-1)*4,4)} offset:{(ft%3)*1024}")
    fill = z1e_lines()
    fl = p.capture(lambda q: (q(f"@wait vm=z1s\ns_mov_b32 s{sU}, s{SSD+2}"), flag_store(q, FL_F3B, True)))
    hl = hload_lines()
    if X.get('nofill') == 3: fill = fill[-1:]; hl = hl[-1:]
    PER = X.get('p4v', 2)
    nl = R0
    done = {(hf, ft): max(i for i, x in enumerate(seq) if x[:2] == (hf, ft)) for hf in range(2) for ft in range(6)}
    firstB = min(i for i, x in enumerate(seq) if x[0] == 1)
    CH = firstB // 4
    for n in range(96):
        hf, ft, k = seq[n]
        if n == firstB: p("s_waitcnt lgkmcnt(0)")
        p(f"@wait vm=z{n}")
        z = vr(P4_RING+(n%R)*4, 4)
        for s_ in range(4):
            d = vr(P4_OWN+ft*4, 4) if s_ == 0 else vr(P4_ACC+(ft*3+s_-1)*4, 4)
            c = d if (k or hf) else (vr(P4_BIAS, 4) if s_ == 0 else "0")
            p(f"{MF16} {d}, {z}, {ar((hf*4+s_)*32+4*k,4)}, {c}")
            for _ in range(PER):
                if fill: p(fill.pop(0))
        while nl < min(96, n + 1 + R) and nl < n + 1 + R0 + 2*(n+1): ld(nl); nl += 1
        if n < 4*CH:
            c_, ph = 4 + n // CH, n % CH
            if ph < 4:
                g = WSP_groups(c_)
                if ph == 0 and c_ > 4: p(f"@wait lg=wr{c_-1}")
                emit(p, g[2*ph:2*ph+2])
            if ph in (CH-2, CH-1): emit(p, WSP_read(c_)[4*(ph-CH+2):4*(ph-CH+2)+4])
        if X.get('wo1p4', 1) and 47 <= n < 62: emit(p, WO_groups(1, 0, WOR)[n-47:n-46])
        if n == X.get('p4f', 38): assert not fill; p("\n".join(fl)); fill = hl
        for f in range(5):
            if n == done[(1, f)] + 3:
                if f in (0, 3): p("s_barrier")
                wr(f)
        if n == done[(1, 2)] + 5: assert not fill; p("s_waitcnt lgkmcnt(0)\ns_barrier"); mb_read()
        if n == done[(1, 2)] + 7: p("s_waitcnt lgkmcnt(0)"); fill = mb_add(0, False)
        if n == 54: p(f"buffer_load_dword v254, v9, {sr(SW,4)}, 0 offen sc1 @@f3b")
        if n == 64:
            a, b = p.label("f3b"), p.label("f3bok")
            p(f"@wait vm=f3b\ns_mov_b32 s{sSPIN}, 0x100000\n{a}:\nv_cmp_ne_u32 vcc, s{sEP}, v254\ns_cbranch_vccz {b}\n@cond_begin")
            p(f"buffer_load_dword v254, v9, {sr(SW,4)}, 0 offen sc1\ns_waitcnt vmcnt(0)\ns_sub_u32 s{sSPIN}, s{sSPIN}, 1\ns_cbranch_scc0 {a}\n@cond_end\n{b}:")
            for f in range(6): p(f"buffer_load_dwordx2 {vr(P4_Z1+2*f,2)}, v8, {sr(SW,4)}, s70 offen offset:{512*f} sc1 @@z1l")
        if n == 90:
            assert not fill
            fill = [f"v_lshlrev_b32 v{r}, 16, v{r}" for r in HRES]
    assert not fill
    wr(5)
    p("s_waitcnt lgkmcnt(0)\ns_barrier")
    mb_read()
    def vout(u):
        o = P4_RING + 4*u
        for ff in range(2):
            ft = 2*u+ff; z = P4_RING+16+4*ff; g = P4_OWN+4*ft
            for h in range(2): p(f"v_lshlrev_b32 v{z+2*h}, 16, v{P4_Z1+2*ft+h}\nv_and_b32 v{z+2*h+1}, s{sMASKHI}, v{P4_Z1+2*ft+h}")
            for h in range(2): p(f"v_pk_mul_f32 {vr(z+2*h,2)}, {vr(z+2*h,2)}, {vr(g+2*h,2)}")
            for h in range(2): p(f"v_cvt_pk_bf16_f32 v{o+2*ff+h}, v{z+2*h}, v{z+2*h+1}")
        p(f"buffer_store_dwordx4 {vr(o,4)}, v{vL16}, {sr(SW,4)}, s70 offen offset:{1024*u} @@vs")
    p("@wait vm=z1l")
    vout(0)
    p("\n".join(mb_add(3, True)))
    vout(1); vout(2)

def P5_pre(p):
    p(f"v_lshrrev_b32 v10, 2, v{vLANE}\nv_mul_u32_u24 v10, 160, v10\nv_and_b32 v11, 3, v{vLANE}\nv_lshl_add_u32 v4, v11, 3, v10\nv_add_u32 v5, 61440, v4")
    for ks in range(12):
        for et in range(5):
            d = (ks*5+et)*4; o = ks*5120 + et*32
            p(f"ds_read_b64_tr_b16 {ar(d,2)}, v4 offset:{o}\nds_read_b64_tr_b16 {ar(d+2,2)}, v4 offset:{o+2560} @@wpa")
    p(f"v_and_b32 v10, 15, v{vLANE}\nv_mul_u32_u24 v10, 2560, v10\nv_lshrrev_b32 v11, 4, v{vLANE}\nv_lshl_add_u32 v6, v11, 3, v10")
    p(f"s_lshr_b32 s86, s{sTT}, 1\ns_lshl_b32 s86, s86, 5\ns_and_b32 s{t+1}, s{sTT}, 1\ns_add_u32 s86, s86, s{t+1}\ns_mul_i32 s86, s86, 1280\ns_mul_i32 s{t+1}, s{sJ4}, 160\ns_add_u32 s86, s86, s{t+1}")

def P5_main(p):
    NB = 3
    order = []
    for i in range(12): order += [i, 12+i]
    p(f"s_add_u32 s81, s71, 4096\ns_add_u32 s82, s71, 8192\ns_add_u32 s83, s71, 12288\ns_add_u32 s84, s71, 16384\ns_add_u32 s85, s71, 20480")
    def vl(i):
        if i >= 24: return
        ks = order[i]
        p(f"buffer_load_dwordx4 {vr(P5_V+4*ks,4)}, v{vL16}, {sr(SW,4)}, s{71 if ks < 4 else 80+(ks>>2)} offen offset:{(ks&3)*1024} sc1 @@v{ks}")
    def bl(ks, et):
        d = 160 + ((ks % NB)*5+et)*4; o = (ks-12)*5120 + et*32
        p(f"ds_read_b64_tr_b16 {vr(d,2)}, v5 offset:{o}\nds_read_b64_tr_b16 {vr(d+2,2)}, v5 offset:{o+2560} @@wb{ks}_{et}")
    VA = X.get('va', 8)
    for i in range(VA): vl(i)
    for i, ks in enumerate(order):
        for et in range(5):
            a = vr(HRES[4*et], 4)
            p(f"@wait vm=v{ks}" + (f" lg=wb{ks}_{et}" if ks >= 12 else ""))
            b = ar((ks*5+et)*4, 4) if ks < 12 else vr(160+((ks % NB)*5+et)*4, 4)
            p(f"{MF16} {a}, {b}, {vr(P5_V+4*ks,4)}, {a}")
            if ks >= 12 and ks+NB < 24: bl(ks+NB, et)
            if et == 0: vl(i+VA)
        if X.get('p3st') and i in (0, 11, 23): stamp(p, {0: 28, 11: 29, 23: 30}[i])
    for et in range(5):
        a = HRES[4*et]; o = 16+2*et
        p(f"v_cvt_pk_bf16_f32 v{o}, v{a}, v{a+1}\nv_cvt_pk_bf16_f32 v{o+1}, v{a+2}, v{a+3}")
        p(f"buffer_store_dwordx2 {vr(o,2)}, v6, {sr(SOUT,4)}, s86 offen offset:{32*et}")

def P5_pre2(p):
    for ks in range(12, 15):
        for et in range(5):
            d = 160 + ((ks % 3)*5+et)*4; o = (ks-12)*5120 + et*32
            p(f"ds_read_b64_tr_b16 {vr(d,2)}, v5 offset:{o}\nds_read_b64_tr_b16 {vr(d+2,2)}, v5 offset:{o+2560} @@wb{ks}_{et}")

def kernel(p):
    P1(p)
    stamp(p, 2)
    with only_wave(p, 0): flag_store(p, FL_F1, False)
    code_srd(p); code_touch(p, 64)
    nW2, nW3 = X.get('nw2', 2), X.get('nw3', 1)
    WZ_vsetup(p, 0, [4, 5, 6, 7]); emit(p, WZ_groups(0, [4, 5, 6, 7]))
    WSP_addr(p)
    assert nW2 in (0, 1, 2)
    if nW2 >= 1: emit(p, WSP_groups(0))
    if nW2 >= 2: emit(p, WSP_groups(1, alt=1))
    P2_prep(p)
    if nW2 >= 1: emit(p, WSP_read(0))
    if nW2 >= 2:
        p(f"v_add_u32 v8, {ALT}, v{vWSR}\nv_add_u32 v9, {ALT}, v{vWSR+1}"); emit(p, WSP_read(1, rd=8))
    stamp(p, 3)
    a, b = p.label("xp"), p.label("xpd")
    p(f"s_lshl_b32 s{t}, s{sC}, 7\ns_add_u32 s{t}, s{t}, {FL_X}\nv_and_b32 v11, 31, v{vLANE}\nv_lshlrev_b32 v11, 2, v11\ns_mov_b32 s{sSPIN}, 0x100000")
    p(f"{a}:\nbuffer_load_dword v10, v11, {sr(SW,4)}, s{t} offen sc1\ns_waitcnt vmcnt(0)\nv_subrev_u32 v10, s{sEP}, v10\nv_cmp_lt_u32 vcc, 15, v10")
    p(f"s_cbranch_vccz {b}\ns_sub_u32 s{sSPIN}, s{sSPIN}, 1\ns_cbranch_scc0 {a}\n{b}:")
    p(f"v_readfirstlane_b32 s{t}, v10\nv_cmp_ne_u32 vcc, s{t}, v10\ns_cmp_eq_u64 vcc, 0\ns_cselect_b32 s{sFAST}, 1, 0")
    if X.get('slow'): p(f"s_mov_b32 s{sFAST}, 0")
    stamp(p, 4)
    with only_wave(p, 0):
        p(f"s_lshl_b32 s{sU}, s{sQ2}, 6"); poll(p, FL_F1, 64)
    p("s_waitcnt lgkmcnt(0)\ns_barrier")
    stamp(p, 5)
    P2_main(p)
    stamp(p, 6)
    p("s_waitcnt vmcnt(0)\ns_barrier")
    with only_wave(p, 0):
        p(f"s_lshl_b32 s{sU}, s{sC}, 5\ns_add_u32 s{sU}, s{sU}, s{sL}"); flag_store(p, FL_F2, True)
    code_touch(p, 13)
    w3 = list(range(nW2, nW2+nW3))
    if w3: emit(p, WSP_groups(w3[0]))
    P3_prep(p)
    ZR = [0, 3, 254, 15]
    WZ_vsetup(p, 1, ZR)
    if w3: emit(p, WSP_chain(w3, first_issued=True))
    stamp(p, 7)
    p(f"s_sub_u32 s{t}, 63, s{sRB3}\ns_min_u32 s{sU}, s{t}, s{sRB3}\ns_lshl_b32 s{sU}, s{sU}, 3"); poll(p, FL_F2, 8)
    stamp(p, 8)
    P3_loads(p)
    P3_pass(p, 0)
    stamp(p, 9)
    rest = list(range(nW2+nW3, 4))
    st = {'issued': None, 'lastread': nW2+nW3-1}
    def step():
        gs = []
        if st['issued'] is not None:
            gs += WSP_read(st['issued']); st['lastread'] = st['issued']; st['issued'] = None
        if rest:
            ch = rest.pop(0); g = WSP_groups(ch)
            if st['lastread'] >= 0: g[0] = [f"@wait lg=wr{st['lastread']}"] + g[0]
            gs += g; st['issued'] = ch
        return gs
    touch(p, 'wo', 5); touch(p, 'wsB', 5)
    p.weave(p.capture(P3_z2a), WZ_groups(1, ZR) + step(), start=X.get('zas', 6), every=X.get('zae', 9))
    p("@wait vm=zs\n@wait vm=wz1")
    p(f"s_lshl_b32 s{sU}, s{sRB3}, 4\ns_add_u32 s{sU}, s{sU}, s{sJ3}"); flag_store(p, FL_FS, True)
    p("s_barrier")
    stamp(p, 10)
    K1 = X.get('k1', 5)
    p.weave(p.capture(P3_pass, 1, 0, K1), step(), start=4, every=X.get('z1e1', 4))
    p(f"s_lshl_b32 s{sU}, s{sRB3}, 4"); poll(p, FL_FS, 16)
    stamp(p, 11)
    P3_z2b(p)
    p("@wait vm=z2s\ns_barrier")
    with only_wave(p, 0):
        p(f"s_lshr_b32 s{sU}, s{sJ3}, 1\ns_lshl_b32 s{sU}, s{sU}, 5\ns_lshr_b32 s{t}, s{sRB3}, 2\ns_lshl_b32 s{t}, s{t}, 1\ns_add_u32 s{sU}, s{sU}, s{t}\ns_and_b32 s{t}, s{sJ3}, 1\ns_add_u32 s{sU}, s{sU}, s{t}")
        flag_store(p, FL_F3, False)
    stamp(p, 12)
    WO_setup(p, 16)
    p.weave(p.capture(P3_pass, 1, K1, 20), step() + step() + WO_groups(0, 16), start=4, every=X.get('z1e2', 6))
    p("s_barrier")
    stamp(p, 13)
    if not X.get('wo1p4', 1): emit(p, WO_groups(1, 16))
    else:
        for u in range(5): p(f"v_mov_b32 v{WOR[u]}, v{16+u}")
    assert not rest and st['issued'] is None
    P3_z1e_prep(p); P4_prep(p)
    code_touch(p, 254)
    p("s_waitcnt vmcnt(0)")
    stamp(p, 15)
    with only_wave(p, 0):
        p(f"s_lshl_b32 s{sU}, s{sJ4}, 5"); poll(p, FL_F3, 32)
    p("s_barrier")
    stamp(p, 16)
    P4_main(p)
    stamp(p, 17)
    p("@wait vm=vs")
    p(f"s_lshl_b32 s{sU}, s{sTT}, 3\ns_add_u32 s{sU}, s{sU}, s{sJ4}"); flag_store(p, FL_F4, True)
    P5_pre(p); P5_pre2(p)
    p(f"s_lshl_b32 s{sU}, s{sTT}, 3"); poll(p, FL_F4, 8)
    p("@wait lg=wpa")
    stamp(p, 18)
    P5_main(p)
    stamp(p, 19)
    lab = p.label("noep")
    p(f"s_or_b32 s{t}, s2, s{sWAVE}\ns_cmp_lg_u32 s{t}, 0\ns_cbranch_scc1 {lab}")
    p(f"v_mov_b32 v10, s{sEP}\nv_mov_b32 v11, 0\ns_mov_b64 exec, 1\nbuffer_store_dword v10, v11, {sr(SW,4)}, 0 offen\ns_mov_b64 exec, -1\n{lab}:")
    if X.get('stamp'):
        p("s_waitcnt vmcnt(0)")
        stamp(p, 24)
        p(f"s_lshl_b32 s{t}, s2, 2\ns_add_u32 s{t}, s{t}, s{sWAVE}\ns_lshl_b32 s{t}, s{t}, 8\ns_add_u32 s{t}, s{t}, {WS_STAMP}\nv_lshlrev_b32 v10, 2, v{vLANE}")
        p(f"buffer_store_dword v255, v10, {sr(SW,4)}, s{t} offen")

def build():
    kn = NAME + "_kernel"
    p = Prog()
    prologue(p, kn)
    kernel(p)
    if X.get('nobg'):
        keep = []
        for l in p.lines:
            if "@@" in l and l.split("@@")[1].strip()[:2] in ("wz", "ws", "wo") and l.startswith("buffer_load"):
                tag = l.split("@@")[1].strip()
                if (X['nobg'] & {"wz": 1, "ws": 2, "wo": 4}[tag[:2]]): l = f"buffer_store_dword v10, v11, {sr(SW,4)}, 0 offen offset:4092 @@{tag}"; l = None
            if l is None:
                continue
            if l.startswith("@wait"):
                toks = [x for x in l.split()[1:] if not (x[3:5] in ("wz", "ws", "wo") and x.startswith("vm=") and (X['nobg'] & {"wz": 1, "ws": 2, "wo": 4}[x[3:5]]))]
                if not toks: continue
                l = "@wait " + " ".join(toks)
            keep.append(l)
        p.lines = keep
    p("END:\ns_endpgm\nCODE_END:\n.set CODE_BYTES, CODE_END - " + kn + " - 128")
    return ("; @launch grid=(256,1,1) block=(256,1,1) lds=163840\n" + '.amdgcn_target "amdgcn-amd-amdhsa--gfx950"\n.text\n' + p.finish() +
f""".section .rodata,"a"
.p2align 6
.amdhsa_kernel {kn}
  .amdhsa_next_free_vgpr 512
  .amdhsa_next_free_sgpr 102
  .amdhsa_accum_offset 256
  .amdhsa_group_segment_fixed_size 0
  .amdhsa_kernarg_size 104
  .amdhsa_user_sgpr_count 2
  .amdhsa_user_sgpr_kernarg_segment_ptr 1
  .amdhsa_system_sgpr_workgroup_id_x 1
.end_amdhsa_kernel
""")

if __name__ == "__main__":
    for a in sys.argv[2:]:
        k, v = a.split("="); X[k] = int(v)
    open(sys.argv[1], "w").write(build())
```

```python
import sys, struct
from asmlib import Prog, vr, ar, sr
NAME = "sequential_preLN__spectral_fnet__mixer_gmlp__prompt"
X = {}
def fhex(x): return hex(struct.unpack("<I", struct.pack("<f", x))[0])
WS_FL   = 0x000000
FL_F1, FL_F2, FL_FS, FL_F3, FL_F3B, FL_F4, FL_X = 0x1000, 0x2000, 0x3000, 0x5000, 0x6000, 0x7000, 0x8000
WS_AB   = 0x010000
WS_XB   = 0x158000
WS_H    = 0x180000
WS_HS   = 0x400000
WS_Z2   = 0x480000
WS_Z1   = 0x800000
WS_ZS   = 0xB00000
WS_V    = WS_Z1
WS_WI   = 0xC00000
WS_WO   = 0xE00000
WS_STAMP = 0xF00000
WS_SIZE = 0x1000000
SX, SCS, SSS, SCD, SSD, SWI, SWS, SBS, SWO, SOUT, SW, ST = 4, 8, 12, 16, 20, 24, 28, 32, 36, 40, 44, 48
sWAVE, sC, sL, sMASKHI = 52, 53, 54, 55
sI2, sP2, sQ2 = 56, 57, 58
sRB3, sJ3 = 59, 60
sRB4, sJ4, sRG4, sTT = 61, 62, 63, 64
sB0, sB1, sB2, sB3 = 65, 66, 67, 68
t = 72
sEP, sFAST, sSPIN, sU = 96, 97, 98, 99
sRLa, sRLb = 0, 1
SRDS = [(SX, 0, 2621440), (SW, 96, WS_SIZE), (SCD, 24, 819200), (SSD, 32, 819200), (SCS, 8, 8388608), (SSS, 16, 8388608),
        (SWI, 48, 1966080), (SWS, 56, 8388608), (SBS, 64, 4096), (SWO, 72, 983040), (SOUT, 80, 2621440)]
vLANE, vL16 = 1, 2
vWSR, vWSS = 250, 252
P1_XR = 10272; P1_B = 41216; P1_XA = P1_B + 102400; P1_T = P1_XA + 640
P2S = 145408; P2S_W = 4608
WZ_SIZE = 61440
SCR = 2*WZ_SIZE; SCR_W = 9216; TBL = SCR + 4*SCR_W
FULL = "row_mask:0xf bank_mask:0xf"
MF16 = "v_mfma_f32_16x16x32_bf16"

def stamp(p, i):
    if not X.get('stamp'): return
    if X['stamp'] > 1 and not (X['stamp'] >> i) & 1 and i not in (0, 24): return
    p(f"s_memrealtime s[100:101]\ns_waitcnt lgkmcnt(0)\nv_writelane_b32 v255, s100, {i}")
    if X['stamp'] == 1 or i in (0, 24): p(f"s_memtime s[100:101]\ns_waitcnt lgkmcnt(0)\nv_writelane_b32 v255, s100, {32+i}")

def sel_srd(p, a, b):
    p(f"s_cselect_b32 s{ST}, s{a}, s{b}\ns_cselect_b32 s{ST+1}, s{a+1}, s{b+1}\ns_cselect_b32 s{ST+2}, s{a+2}, s{b+2}")

def swz_src(p, vdst, row_bytes, tmp, both=True):
    p(f"v_lshrrev_b32 v{tmp}, 3, v{vLANE}\nv_mul_u32_u24 v{vdst}, {row_bytes}, v{tmp}")
    p(f"v_lshrrev_b32 v{tmp}, 4, v{vLANE}\nv_and_b32 v{tmp+1}, 7, v{vLANE}\nv_xor_b32 v{tmp}, v{tmp}, v{tmp+1}\nv_lshl_add_u32 v{vdst}, v{tmp}, 4, v{vdst}")
    if both: p(f"v_xor_b32 v{vdst+1}, 64, v{vdst}\nv_add_u32 v{vdst+1}, {8*row_bytes}, v{vdst+1}")

def swz_rd(p, vdst, tmp, halfstride=1024):
    p(f"v_and_b32 v{tmp}, 15, v{vLANE}")
    if halfstride == 1024: p(f"v_lshlrev_b32 v{vdst}, 7, v{tmp}")
    else: p(f"v_bfe_u32 v{tmp+1}, v{vLANE}, 3, 1\nv_mul_u32_u24 v{tmp+1}, {halfstride-1024}, v{tmp+1}\nv_lshl_add_u32 v{vdst}, v{tmp}, 7, v{tmp+1}")
    p(f"v_lshrrev_b32 v{tmp}, 1, v{tmp}\nv_lshrrev_b32 v{tmp+1}, 4, v{vLANE}\nv_xor_b32 v{tmp}, v{tmp}, v{tmp+1}")
    p(f"v_lshl_add_u32 v{vdst}, v{tmp}, 4, v{vdst}\nv_xor_b32 v{vdst+1}, 64, v{vdst}")

def G(*lines):
    out = []
    for l in lines: out += [x.strip() for x in l.split("\n") if x.strip()]
    return out

def flag_store(p, base, local):
    p(f"s_lshl_b32 s{t}, s{sU}, 2\ns_add_u32 s{t}, s{t}, {base}\nv_mov_b32 v10, s{sEP}\nv_mov_b32 v11, 0\ns_mov_b64 exec, 1")
    if local:
        a, b = p.label("fs_slow"), p.label("fs_done")
        p(f"s_cmp_eq_u32 s{sFAST}, 0\ns_cbranch_scc1 {a}\n@cond_begin")
        p(f"buffer_store_dword v10, v11, {sr(SW,4)}, s{t} offen\ns_branch {b}")
        p(f"{a}:\nbuffer_wbl2 sc1\ns_waitcnt vmcnt(0)\nbuffer_store_dword v10, v11, {sr(SW,4)}, s{t} offen sc1\n{b}:\n@cond_end")
    else:
        p(f"buffer_store_dword v10, v11, {sr(SW,4)}, s{t} offen sc1")
    p("s_mov_b64 exec, -1")

def poll(p, base, n):
    a, b = p.label("poll"), p.label("polled")
    p(f"s_lshl_b32 s{t}, s{sU}, 2\ns_add_u32 s{t}, s{t}, {base}\nv_min_u32 v11, {n-1}, v{vLANE}\nv_lshlrev_b32 v11, 2, v11\ns_mov_b32 s{sSPIN}, 0x100000")
    p(f"{a}:\nbuffer_load_dword v10, v11, {sr(SW,4)}, s{t} offen sc1\ns_waitcnt vmcnt(0)\nv_cmp_ne_u32 vcc, s{sEP}, v10")
    p(f"s_cbranch_vccz {b}\ns_sub_u32 s{sSPIN}, s{sSPIN}, 1\ns_cbranch_scc0 {a}\n{b}:")

class only_wave:
    def __init__(self, p, w): self.p = p; self.w = w
    def __enter__(self):
        self.lab = self.p.label("notw")
        self.p(f"s_cmp_lg_u32 s{sWAVE}, {self.w}\ns_cbranch_scc1 {self.lab}\n@cond_begin")
    def __exit__(self, *a): self.p(f"@cond_end\n{self.lab}:")

def prologue(p, kname):
    p(f".globl {kname}\n.p2align 8\n.type {kname},@function\n{kname}:")
    p(f"s_cmp_ge_u32 s2, 256\ns_cbranch_scc1 END")
    for (s, off, size) in SRDS: p(f"s_load_dwordx2 {sr(s,2)}, s[0:1], {off}")
    p(f"s_getpc_b64 {sr(ST,2)}\ns_mov_b32 s{ST+2}, CODE_BYTES\ns_mov_b32 s{ST+3}, 0x20000\ns_lshr_b32 s{sL}, s2, 3\ns_lshl_b32 s{t}, s{sL}, 7")
    p(f"v_lshlrev_b32 v3, 12, v0\ns_mov_b64 exec, 0xffff\nbuffer_load_dword v254, v3, {sr(ST,4)}, s{t} offen\ns_mov_b64 exec, -1")
    p(f"v_lshrrev_b32 v3, 6, v0\nv_and_b32 v{vLANE}, 63, v0\nv_readfirstlane_b32 s{sWAVE}, v3")
    for (s, off, size) in SRDS: p(f"s_mov_b32 s{s+2}, {size}\ns_mov_b32 s{s+3}, 0x20000")
    p(f"v_lshlrev_b32 v{vL16}, 4, v{vLANE}\ns_and_b32 s{sC}, s2, 7\ns_mov_b32 s{sMASKHI}, 0xffff0000")
    if X.get('stamp'): p("v_mov_b32 v255, 0")
    p(f"s_lshl_b32 s{sI2}, s{sC}, 2\ns_lshr_b32 s{sRG4}, s{sL}, 3\ns_add_u32 s{sI2}, s{sI2}, s{sRG4}")
    p(f"s_bfe_u32 s{sP2}, s{sL}, 0x10002\ns_and_b32 s{sQ2}, s{sL}, 3")
    p(f"s_lshl_b32 s{t}, s{sC}, 2\ns_sub_u32 s{t+1}, 60, s{t}\ns_cmp_ge_u32 s{sL}, 16\ns_cselect_b32 s{sRB4}, s{t+1}, s{t}")
    p(f"s_add_u32 s{sRB3}, s{sRB4}, s{sWAVE}\ns_and_b32 s{sJ3}, s{sL}, 15\ns_and_b32 s{sJ4}, s{sL}, 7")
    p(f"s_and_b32 s{t}, s{sRG4}, 1\ns_lshl_b32 s{t}, s{t}, 1\ns_add_u32 s{sRB4}, s{sRB4}, s{t}")
    p(f"s_lshl_b32 s{sTT}, s{sRB4}, 1\ns_add_u32 s{sTT}, s{sTT}, s{sWAVE}")

P2_XRAW = 36
A_MF, A_MX = 192, 224
def P2pre_setup(p):
    swz_src(p, 60, 8192, 10)
    p(f"s_add_u32 s{t+3}, s{sI2}, s{sQ2}\ns_and_b32 s{t+3}, s{t+3}, 3\ns_lshl_b32 s{t+4}, s{t+3}, 3\nv_add_u32 v62, s{t+4}, v{vLANE}\nv_and_b32 v62, 31, v62\nv_lshlrev_b32 v62, 4, v62")
    p(f"s_lshl_b32 s{t}, s{sI2}, 5\ns_add_u32 s92, s{t}, 32\ns_add_u32 s{t}, s{t}, s{sP2}\ns_lshl_b32 s{t}, s{t}, 12\ns_lshl_b32 s92, s92, 12")
    p(f"s_and_b32 s{t+2}, s{sWAVE}, 1\ns_lshl_b32 s{t+2}, s{t+2}, 9\ns_add_u32 s{t}, s{t}, s{t+2}\ns_add_u32 s92, s92, s{t+2}")
    for pc in range(4):
        p(f"s_add_u32 s{t+4}, s{t+3}, {pc}\ns_and_b32 s{t+4}, s{t+4}, 3\ns_lshl_b32 s{t+4}, s{t+4}, 7\ns_add_u32 s{88+pc}, s{t+4}, s{t}")
    p(f"s_mul_i32 s93, s{sWAVE}, {P2S_W}\ns_add_u32 s93, s93, {P2S}")
    p(f"v_and_b32 v10, 3, v{vLANE}\ns_lshl_b32 s{t+3}, s{sWAVE}, 2\nv_add_u32 v10, s{t+3}, v10\nv_mul_u32_u24 v10, 2560, v10")
    p(f"v_lshrrev_b32 v11, 2, v{vLANE}\nv_lshlrev_b32 v11, 4, v11\ns_mul_i32 s{t+3}, s{sQ2}, 160\nv_add_u32 v11, s{t+3}, v11")
    p(f"v_sub_u32 v12, 1264, v11\nv_add_u32 v13, 16, v12\nv_cmp_eq_u32 vcc, 0, v11\nv_mov_b32 v14, 640\nv_cndmask_b32 v13, v13, v14, vcc")
    p(f"s_lshl_b32 s{t}, s{sI2}, 5\ns_add_u32 s{t+1}, s{t}, s{sP2}\ns_mul_i32 s{t+1}, s{t+1}, 1280")
    p(f"s_sub_u32 s{t}, s{sP2}, s{t}\ns_add_u32 s{t}, s{t}, 2046\ns_mul_i32 s{t}, s{t}, 1280")
    p(f"v_add_u32 v14, s{t+1}, v10\nv_sub_u32 v15, s{t}, v10")
    for sd in range(2):
        for k in range(3): p(f"v_add_u32 v{30+3*sd+k}, v{14+sd}, v{11+k}")
    sel = G(f"s_cmp_ge_u32 s{sWAVE}, 2", f"s_cselect_b32 s{ST}, s{SSS}, s{SCS}", f"s_cselect_b32 s{ST+1}, s{SSS+1}, s{SCS+1}", f"s_mov_b32 s{ST+2}, 8388608")
    def rnd(r):
        g = []
        for pc in range(2):
            for hf in range(2):
                g.append(G(f"s_add_u32 m0, s93, {pc*2048+hf*1024}", f"buffer_load_dwordx4 v{60+hf}, {sr(ST,4)}, s{88+2*r+pc} offen lds @@p2r{r}"))
        return g
    r1 = rnd(0); r1[0] = sel + r1[0]
    r1.append(G("s_add_u32 m0, s93, 4096", "s_mov_b32 exec_hi, 0", f"buffer_load_dwordx4 v62, {sr(ST,4)}, s92 offen lds @@p2r0", "s_mov_b32 exec_hi, -1"))
    xl = []
    for sd in range(2):
        r = P2_XRAW + 12*sd
        xl.append(G(f"buffer_load_dwordx4 {vr(r,4)}, v{30+3*sd}, {sr(SX,4)}, 0 offen"))
        xl.append(G(f"buffer_load_dwordx4 {vr(r+4,4)}, v{31+3*sd}, {sr(SX,4)}, 0 offen"))
        xl.append(G(f"buffer_load_dword v{r+8}, v{32+3*sd}, {sr(SX,4)}, 0 offen @@p2x"))
    return r1, rnd(1), xl

def P2pre_read(p, r, vrd, vx):
    for k in range(4):
        p(f"ds_read_b128 {ar(A_MF+16*r+4*k,4)}, v{vrd+(k&1)} offset:{2048*(k>>1)} @@p2rd{r}")
    if r == 0:
        for k in range(8): p(f"ds_read_b128 {ar(A_MX+4*k,4)}, v{vx} offset:{4096+64*k} @@p2rd0")

def P1(p):
    st = "sc1"
    sRG, sQ, sG, sPI = 69, 70, 71, 94
    sG0M, sJ0M, sJ31M = 80, 82, 84
    sXR = 86
    p(f"s_lshr_b32 s{sRG}, s{sL}, 2\ns_lshl_b32 s{t}, s{sC}, 3\ns_add_u32 s{sRG}, s{sRG}, s{t}\ns_and_b32 s{sQ}, s{sL}, 3")
    p(f"s_lshl_b32 s{sG}, s{sRG}, 3\ns_lshl_b32 s{t}, s{sWAVE}, 1\ns_add_u32 s{sG}, s{sG}, s{t}")
    vL4 = 4
    p(f"v_lshlrev_b32 v{vL4}, 2, v{vLANE}\ns_mul_i32 s{sXR}, s{sWAVE}, {P1_XR}")
    p(f"s_mul_i32 s88, s{sG}, 1280\ns_add_u32 s92, s88, 1280")
    for gb in range(2):
        b = 88+4*gb
        p(f"s_sub_u32 s{b+1}, {2048*1280}, s{b}\ns_sub_u32 s{b+2}, {1024*1280}, s{b}\ns_add_u32 s{b+3}, {1024*1280}, s{b}")
    p(f"s_cmp_eq_u32 s{sG}, 0\ns_cselect_b32 s89, {512*1280}, s89\ns_cselect_b32 s91, {1536*1280}, s91\ns_cselect_b32 s{sG0M}, -1, 0\ns_mov_b32 s{sG0M+1}, 0")
    p("s_waitcnt lgkmcnt(0)")
    stamp(p, 0)
    for k in range(8):
        p(f"s_add_u32 m0, s{sXR}, {k*1280}")
        p(f"buffer_load_dwordx4 v{vL16}, {sr(SX,4)}, s{88+k} offen lds")
        p(f"buffer_load_dword v{vL4}, {sr(SX,4)}, s{88+k} offen offset:1024 lds @@x")
    p(f"s_load_dword s{sEP}, {sr(SW,2)}, 0\ns_getreg_b32 s{sU}, hwreg(HW_REG_XCC_ID, 0, 4)")
    swz_src(p, 6, 1280, 10, both=False)
    p(f"s_or_b32 s{t+1}, s{sQ}, s{sWAVE}\ns_cmp_eq_u32 s{t+1}, 0\ns_cselect_b32 s{t+1}, {320*1280}, 0")
    p(f"v_cmp_gt_u32 vcc, 8, v{vLANE}\nv_mov_b32 v10, s{t+1}\nv_cndmask_b32 v7, 0, v10, vcc")
    p(f"s_and_b32 s{t}, s{sWAVE}, 1\ns_mul_i32 s{sB0}, s{sQ}, {80*1280}\ns_mul_i32 s{t+1}, s{t}, {40*1280}\ns_add_u32 s{sB0}, s{sB0}, s{t+1}")
    p(f"s_mul_i32 s{sB1}, s{sWAVE}, {5*5120}\ns_add_u32 s{sB1}, s{sB1}, {P1_B}")
    p(f"s_and_b32 s{sB2}, s{sRG}, 7\ns_cmp_ge_u32 s{sB2}, 5\ns_cselect_b32 s{t+1}, 5, 0\ns_sub_u32 s{sB2}, s{sB2}, s{t+1}")
    if X.get('nobrot'): p(f"s_mov_b32 s{sB2}, 0")
    p(f"s_cmp_ge_u32 s{sWAVE}, 2"); sel_srd(p, SSD, SCD)
    bg = []
    for i in range(5):
        for pc in range(5):
            g = []
            if pc == 0:
                g += G(f"s_add_u32 s{sB3}, s{sB2}, s{sWAVE}\ns_and_b32 s{sB3}, s{sB3}, 1\ns_lshl_b32 s{sB3}, s{sB3}, 6\nv_xor_b32 v8, s{sB3}, v6",
                       f"s_cmp_eq_u32 s{sB2}, 0\ns_cselect_b32 s{sB3}, -1, 0\nv_and_b32 v5, s{sB3}, v7\nv_add_u32 v8, v8, v5",
                       f"s_mul_i32 s{sB4}, s{sB2}, 5120\ns_lshl_b32 s{sB5}, s{sB4}, 1\ns_add_u32 s{sB4}, s{sB4}, s{sB1}\ns_add_u32 s{sB5}, s{sB5}, s{sB0}")
            g += G(f"s_add_u32 m0, s{sB4}, {pc*1024-pc*128}", f"buffer_load_dwordx4 v8, {sr(ST,4)}, s{sB5} offen offset:{pc*128} lds @@b")
            if pc == 4 and i < 4: g += G(f"s_add_u32 s{sB2}, s{sB2}, 1\ns_cmp_eq_u32 s{sB2}, 5\ns_cselect_b32 s{sB2}, 0, s{sB2}")
            bg.append(g)
    for g in bg[:X.get('p1b0', 4)]: p("\n".join(g))
    bg = bg[X.get('p1b0', 4):]
    r1, r2, xl = P2pre_setup(p)
    bg += r1 + xl
    sPHI, sRL0, sRL1 = 87, SOUT+0, SOUT+0
    p(f"s_lshl_b32 s{sPHI}, s{sQ}, 6\ns_add_u32 s{sPHI}, s{sPHI}, s{sRG}")
    p(f"s_lshl_b32 s{t}, s{sPHI}, 2\ns_add_u32 s{t}, s{t}, s{sWAVE}\ns_mul_i32 s{t+1}, s{t}, 3277\ns_lshr_b32 s{t+1}, s{t+1}, 16\ns_mul_i32 s{t+2}, s{t+1}, 20\ns_sub_u32 s{t+2}, s{t}, s{t+2}")
    p(f"s_mul_i32 s100, s{t+1}, 40\ns_add_u32 s100, s100, s{t+2}\ns_lshl_b32 s100, s100, 10\ns_add_u32 s100, s100, {WS_WI}".replace("s100", f"s{SBS+0}") if False else "")
    p(f"s_mul_i32 s{sRLa}, s{t+1}, 40\ns_add_u32 s{sRLa}, s{sRLa}, s{t+2}\ns_lshl_b32 s{sRLa}, s{sRLa}, 10\ns_add_u32 s{sRLa}, s{sRLa}, {WS_WI}")
    p(f"s_lshl_b32 s{t+3}, s{t+2}, 5\ns_sub_u32 s{t+4}, 960, s{t+3}\ns_cmp_ge_u32 s{t+2}, 10\ns_cselect_b32 s{t+3}, s{t+4}, s{t+3}\ns_cselect_b32 s{t+4}, -1, 1")
    p(f"v_lshrrev_b32 v10, 2, v{vLANE}\nv_mul_lo_u32 v11, v10, s{t+4}\nv_add_u32 v11, s{t+3}, v11\ns_lshl_b32 s{t+4}, s{t+4}, 4\nv_add_u32 v12, s{t+4}, v11")
    p(f"v_cmp_eq_u32 vcc, 640, v11\nv_mov_b32 v13, 320\nv_cndmask_b32 v11, v11, v13, vcc")
    p(f"v_and_b32 v13, 3, v{vLANE}\nv_lshlrev_b32 v13, 4, v13\ns_lshl_b32 s{t+1}, s{t+1}, 6\ns_movk_i32 s{t+5}, 3072")
    p(f"v_mad_u32_u24 v26, v11, s{t+5}, v13\nv_mad_u32_u24 v27, v12, s{t+5}, v13\nv_add_u32 v26, s{t+1}, v26\nv_add_u32 v27, s{t+1}, v27")
    p(f"s_lshl_b32 s{t}, s{sPHI}, 1\ns_and_b32 s{t+1}, s{sWAVE}, 1\ns_add_u32 s{t}, s{t}, s{t+1}\ns_mul_i32 s{t+1}, s{t}, 2731\ns_lshr_b32 s{t+1}, s{t+1}, 16\ns_mul_i32 s{t+2}, s{t+1}, 24\ns_sub_u32 s{t+2}, s{t}, s{t+2}")
    p(f"s_mul_i32 s{sRLb}, s{t+1}, 48\ns_add_u32 s{sRLb}, s{sRLb}, s{t+2}\ns_lshl_b32 s{sRLb}, s{sRLb}, 10\ns_add_u32 s{sRLb}, s{sRLb}, {WS_WO}")
    p(f"s_mul_i32 s{t+2}, s{t+2}, {32*1280}\ns_lshl_b32 s{t+1}, s{t+1}, 6\ns_add_u32 s{t+2}, s{t+2}, s{t+1}\nv_mul_u32_u24 v28, 1280, v10\nv_add3_u32 v28, v28, v13, s{t+2}\nv_add_u32 v29, {16*1280}, v28")
    def rl_dma(p):
        lab = p.label("rl")
        p(f"s_cmp_ge_u32 s{sPHI}, 240\ns_cbranch_scc1 {lab}\n@cond_begin")
        for i in range(2): p(f"s_add_u32 m0, s{sXR}, {5120+1024*i}\nbuffer_load_dwordx4 v{26+i}, {sr(SWI,4)}, 0 offen lds")
        p(f"s_cmp_lt_u32 s{sWAVE}, 2\ns_cbranch_scc1 {lab}")
        for i in range(2): p(f"s_add_u32 m0, s{sXR}, {7168+1024*i}\nbuffer_load_dwordx4 v{28+i}, {sr(SWO,4)}, 0 offen lds")
        p(f"@cond_end\n{lab}:")
    def body(p):
        vJ, vD, vM = 9, 12, 16
        p(f"v_and_b32 v{vJ}, 31, v{vLANE}")
        p(f"v_cmp_eq_u32 {sr(sJ0M,2)}, 0, v{vJ}\nv_cmp_eq_u32 {sr(sJ31M,2)}, 31, v{vJ}")
        p(f"v_lshrrev_b32 v11, 5, v{vLANE}\nv_mul_u32_u24 v11, 5120, v11\nv_add_u32 v11, s{sXR}, v11")
        p(f"v_mul_u32_u24 v{vJ}, 20, v{vJ}")
        p(f"v_add_u32 v{vD}, v11, v{vJ}\nv_sub_u32 v{vM}, v11, v{vJ}\nv_add_u32 v{vM}, 1260, v{vM}")
        for kk in range(1, 4): p(f"v_add_u32 v{vD+kk}, {1280*kk}, v{vD}\nv_add_u32 v{vM+kk}, {1280*kk}, v{vM}")
        vFJ0 = 20; vAW = 21
        p(f"v_cndmask_b32 v{vFJ0}, 0, 1.0, {sr(sJ0M,2)}")
        p(f"v_lshrrev_b32 v11, 5, v{vLANE}\nv_mul_u32_u24 v11, 640, v11\nv_add3_u32 v{vAW}, v11, v{vJ}, s{sXR}")
        for cmb in range(1, 4): p(f"v_add_u32 v{vAW+cmb}, {1280*cmb}, v{vAW}")
        p(f"s_waitcnt lgkmcnt(0)\ns_mul_i32 s{sEP}, s{sEP}, 0x2C9277B5\ns_add_u32 s{sEP}, s{sEP}, 0xAC564B05")
        with only_wave(p, 3):
            p(f"s_lshl_b32 s{t}, s{sC}, 5\ns_add_u32 s{t}, s{t}, s{sL}\ns_lshl_b32 s{t}, s{t}, 2\ns_add_u32 s{t}, s{t}, {FL_X}\ns_add_u32 s{sU}, s{sU}, s{sEP}")
            p(f"v_mov_b32 v10, s{sU}\nv_mov_b32 v11, 0\ns_mov_b64 exec, 1\nbuffer_store_dword v10, v11, {sr(SW,4)}, s{t} offen sc1\ns_mov_b64 exec, -1")
        p("@wait vm=x")
        stamp(p, 20)
        RAW = 64
        for kk in range(4):
            r = RAW + 12*kk
            p(f"ds_read2_b32 {vr(r,2)}, v{vD+kk} offset0:0 offset1:1")
            p(f"ds_read2_b32 {vr(r+10,2)}, v{vM+kk} offset0:4 offset1:5")
            p(f"ds_read2_b32 {vr(r+8,2)}, v{vM+kk} offset0:2 offset1:3")
            p(f"ds_read2_b32 {vr(r+2,2)}, v{vD+kk} offset0:2 offset1:3")
            p(f"ds_read2_b32 {vr(r+6,2)}, v{vM+kk} offset0:0 offset1:1")
            p(f"ds_read_b32 v{r+4}, v{vD+kk} offset:16 @@xr{kk}")
        T, CA = 112, 152; S2, Q2, Y = 192, 200, 208; tA = 212
        for kk in range(4):
            r = RAW + 12*kk
            p(f"@wait lg=xr{kk}")
            if kk == 3: rl_dma(p)
            for k in range(5):
                a = tA + 4*(k & 1); b = a + 2
                p(f"v_lshlrev_b32 v{a}, 16, v{r+k}\nv_and_b32 v{a+1}, s{sMASKHI}, v{r+k}")
                p(f"v_lshlrev_b32 v{b}, 16, v{r+6+5-k}\nv_and_b32 v{b+1}, s{sMASKHI}, v{r+6+4-k}")
                if k == 0: p(f"v_cndmask_b32 v{b}, v{b}, 0, {sr(sJ0M,2)}")
                tt, cc = T+10*kk+2*k, CA+10*kk+2*k
                p(f"v_pk_add_f32 {vr(tt,2)}, {vr(a,2)}, {vr(b,2)}")
                p(f"v_pk_add_f32 {vr(cc,2)}, {vr(a,2)}, {vr(b,2)} neg_lo:[0,1] neg_hi:[0,1]")
                if k == 0: p(f"v_pk_mul_f32 {vr(Q2+2*kk,2)}, {vr(tt,2)}, {vr(tt,2)}")
                else:
                    p(f"v_pk_add_f32 {vr(S2+2*kk,2)}, {vr(tt,2)}, {vr(S2+2*kk if k > 1 else tt-2,2)}")
                    p(f"v_pk_fma_f32 {vr(Q2+2*kk,2)}, {vr(tt,2)}, {vr(tt,2)}, {vr(Q2+2*kk,2)}")
                p(f"v_pk_fma_f32 {vr(Q2+2*kk,2)}, {vr(cc,2)}, {vr(cc,2)}, {vr(Q2+2*kk,2)}")
            p(f"v_lshlrev_b32 v{Y+kk}, 16, v{r+6}\nv_cndmask_b32 v{Y+kk}, 0, v{Y+kk}, {sr(sJ31M,2)}")
            p(f"v_add_f32 v{S2+2*kk}, v{S2+2*kk}, v{S2+2*kk+1}\nv_add_f32 v{Q2+2*kk}, v{Q2+2*kk}, v{Q2+2*kk+1}")
            p(f"v_add_f32 v{S2+2*kk}, v{S2+2*kk}, v{Y+kk}\nv_add_f32 v{tA}, v{Y+kk}, v{Y+kk}\nv_fmac_f32 v{Q2+2*kk}, v{tA}, v{Y+kk}")
        red = [S2+2*k for k in range(4)] + [Q2+2*k for k in range(4)]
        for mod in ("quad_perm:[1,0,3,2]", "quad_perm:[2,3,0,1]", "row_half_mirror", "row_mirror"):
            for x in red: p(f"v_add_f32_dpp v{x}, v{x}, v{x} {mod} {FULL}")
        for x in red: p(f"v_mov_b32 v{x+1}, v{x}")
        for x in red: p(f"v_permlane16_swap_b32 v{x}, v{x+1}")
        for x in red: p(f"v_add_f32 v{x}, v{x}, v{x+1}")
        p(f"s_mov_b32 s{t}, {fhex(1/640)}\ns_mov_b32 s{t+1}, {fhex(1/1280)}\ns_mov_b32 s{t+3}, {fhex(1e-5)}")
        for k in range(4): p(f"v_mul_f32 v{S2+2*k}, s{t}, v{S2+2*k}")
        for k in range(4): p(f"v_mul_f32 v{S2+2*k+1}, v{S2+2*k}, v{S2+2*k}")
        for k in range(4): p(f"v_fma_f32 v{Q2+2*k}, v{Q2+2*k}, s{t+1}, -v{S2+2*k+1}")
        for k in range(4): p(f"v_add_f32 v{Q2+2*k}, s{t+3}, v{Q2+2*k}")
        for k in range(4): p(f"v_rsq_f32 v{Q2+2*k}, v{Q2+2*k}")
        M = lambda k: S2+2*k
        R = lambda k: Q2+2*k
        for k in range(4): p(f"v_fmac_f32 v{T+10*k}, v{vFJ0}, v{M(k)}")
        for k in range(4): p(f"v_sub_f32 v{Y+k}, v{Y+k}, v{M(k)}")
        A1, A3, B0, B2, B1, K1, K2 = 220, 222, 224, 226, 228, 230, 232
        g0 = sr(sG0M, 2)
        p(f"v_cndmask_b32 v{A1}, v{R(1)}, 0, {g0}\nv_cndmask_b32 v{A3}, v{R(3)}, 0, {g0}")
        p(f"v_cndmask_b32 v{B0}, v{R(0)}, 0, {g0}\nv_cndmask_b32 v{B2}, v{R(2)}, 0, {g0}")
        p(f"v_cndmask_b32 v{B1}, -v{R(1)}, v{R(1)}, {g0}")
        p(f"v_mul_f32 v{K1}, v{R(0)}, v{M(0)}\nv_mul_f32 v{K2}, v{R(2)}, v{M(2)}")
        p(f"v_fmac_f32 v{K1}, v{A1}, v{M(1)}\nv_fmac_f32 v{K2}, v{A3}, v{M(3)}")
        p(f"v_mul_f32 v{K1}, -2.0, v{K1}\nv_mul_f32 v{K2}, -2.0, v{K2}")
        bc = "op_sel_hi:[0,1,0]"; bc1 = "op_sel_hi:[0,1,1]"
        OUT = 64; U, W = 236, 240
        for k in range(5):
            tt = lambda r_: vr(T+10*r_+2*k, 2)
            cc = lambda r_: vr(CA+10*r_+2*k, 2)
            u, w = U, U+2; u2, w2 = W, W+2
            p(f"v_pk_fma_f32 {vr(u,2)}, {vr(R(0),2)}, {tt(0)}, {vr(K1,2)} {bc}")
            p(f"v_pk_fma_f32 {vr(w,2)}, {vr(R(2),2)}, {tt(2)}, {vr(K2,2)} {bc}")
            p(f"v_pk_mul_f32 {vr(u2,2)}, {vr(B0,2)}, {cc(0)} op_sel_hi:[0,1]")
            p(f"v_pk_mul_f32 {vr(w2,2)}, {vr(B2,2)}, {cc(2)} op_sel_hi:[0,1]")
            p(f"v_pk_fma_f32 {vr(u,2)}, {vr(A1,2)}, {tt(1)}, {vr(u,2)} {bc1}")
            p(f"v_pk_fma_f32 {vr(w,2)}, {vr(A3,2)}, {tt(3)}, {vr(w,2)} {bc1}")
            p(f"v_pk_fma_f32 {vr(u2,2)}, {vr(B1,2)}, {cc(1)}, {vr(u2,2)} {bc1}")
            p(f"v_pk_fma_f32 {vr(w2,2)}, {vr(R(3),2)}, {cc(3)}, {vr(w2,2)} {bc1} neg_lo:[1,0,0] neg_hi:[1,0,0]")
            e = 244
            p(f"v_pk_add_f32 {vr(e,2)}, {vr(u,2)}, {vr(w,2)}")
            p(f"v_pk_add_f32 {vr(e+2,2)}, {vr(u,2)}, {vr(w,2)} neg_lo:[0,1] neg_hi:[0,1]")
            p(f"v_pk_add_f32 {vr(e+4,2)}, {vr(u2,2)}, {vr(w2,2)} neg_lo:[0,1] neg_hi:[0,1]")
            p(f"v_pk_add_f32 {vr(e+6,2)}, {vr(u2,2)}, {vr(w2,2)}")
            for cmb in range(4): p(f"v_cvt_pk_bf16_f32 v{OUT+6*cmb+k}, v{e+2*cmb}, v{e+2*cmb+1}")
        for cmb in range(4):
            o = OUT+6*cmb
            p(f"ds_write2_b32 v{vAW+cmb}, v{o}, v{o+1} offset0:0 offset1:1")
            p(f"ds_write2_b32 v{vAW+cmb}, v{o+2}, v{o+3} offset0:2 offset1:3")
            p(f"ds_write_b32 v{vAW+cmb}, v{o+4} offset:16")
        p(f"v_mul_f32 v{U}, v{R(0)}, v{Y}\nv_mul_f32 v{U+1}, v{R(2)}, v{Y+2}")
        p(f"v_fmac_f32 v{U}, v{A1}, v{Y+1}\nv_fmac_f32 v{U+1}, v{A3}, v{Y+3}")
        p(f"v_add_f32 v{U+2}, v{U}, v{U+1}\nv_sub_f32 v{U+3}, v{U}, v{U+1}")
        p(f"v_lshrrev_b32 v11, 5, v{vLANE}\ns_lshl_b32 s{t}, s{sWAVE}, 3\ns_add_u32 s{t}, s{t}, {P1_T}\nv_lshl_add_u32 v11, v11, 2, s{t}")
        p(f"@atomic_begin\ns_mov_b64 exec, {sr(sJ31M,2)}\nds_write2_b32 v11, v{U+2}, v{U+3} offset0:0 offset1:8\ns_mov_b64 exec, -1\n@atomic_end")
        lab = p.label("P1_nox")
        p(f"s_cmp_lg_u32 s{sG}, 0\ns_cbranch_scc1 {lab}\n@cond_begin")
        p(f"v_mul_f32 v{K1}, v{R(1)}, v{M(1)}\nv_fmac_f32 v{K1}, v{R(3)}, v{M(3)}\nv_mul_f32 v{K1}, -2.0, v{K1}")
        for k in range(5):
            p(f"v_pk_fma_f32 {vr(U,2)}, {vr(R(1),2)}, {vr(T+10+2*k,2)}, {vr(K1,2)} {bc}")
            p(f"v_pk_fma_f32 {vr(U,2)}, {vr(R(3),2)}, {vr(T+30+2*k,2)}, {vr(U,2)} {bc1}")
            p(f"v_cvt_pk_bf16_f32 v{100+k}, v{U}, v{U+1}")
        p(f"v_mul_f32 v{U}, v{R(1)}, v{Y+1}\nv_fmac_f32 v{U}, v{R(3)}, v{Y+3}")
        p(f"v_add_u32 v11, {P1_XA}, v{vJ}\nv_mov_b32 v25, {P1_T+64}")
        p(f"s_mov_b64 exec, {g0}")
        p(f"ds_write2_b32 v11, v100, v101 offset0:0 offset1:1\nds_write2_b32 v11, v102, v103 offset0:2 offset1:3\nds_write_b32 v11, v104 offset:16")
        p(f"s_mov_b64 exec, 0x80000000\nds_write_b32 v25, v{U}\ns_mov_b64 exec, -1")
        p(f"@cond_end\n{lab}:")
    main = p.capture(body)
    p.weave(main, bg, start=X.get('p1ws', 30), every=X.get('p1we', 13))
    stamp(p, 21)
    vA0, vA1, vB0, vB1, vB2, vSG, vT, vST, vXA, vXS, vPR, vPX = 12, 13, 14, 16, 18, 20, 21, 22, 23, 24, 26, 28
    p(f"s_mul_i32 s{sPI}, s{sWAVE}, 3\ns_add_u32 s{sPI}, s{sPI}, 4\ns_lshl_b32 s{t}, s{sWAVE}, 1\ns_sub_u32 s{t}, s{t}, 4\ns_cmp_ge_u32 s{sWAVE}, 2\ns_cselect_b32 s{sPI}, s{t}, s{sPI}")
    p(f"v_and_b32 v10, 7, v{vLANE}\nv_lshrrev_b32 v11, 1, v10\nv_mul_u32_u24 v{vA0}, {P1_XR}, v11")
    p(f"v_and_b32 v10, 1, v{vLANE}\nv_mul_u32_u24 v11, 640, v10\nv_add_u32 v{vA0}, v{vA0}, v11")
    p(f"v_lshlrev_b32 v{vSG}, 31, v10\nv_or_b32 v{vSG}, 1.0, v{vSG}")
    p(f"v_bfe_u32 v10, v{vLANE}, 3, 1\nv_mul_u32_u24 v11, 1280, v10\nv_add_u32 v{vA0}, v{vA0}, v11")
    p(f"v_lshrrev_b32 v10, 4, v{vLANE}\nv_lshl_add_u32 v{vA0}, v10, 4, v{vA0}")
    p(f"v_lshlrev_b32 v{vT}, 4, v10\nv_add_u32 v{vXA}, {P1_XA}, v{vT}\nv_add_u32 v{vPX}, s93, v{vT}\nv_add_u32 v{vT}, {P1_T}, v{vT}")
    sC0, sC1 = 80, 81
    p(f"s_cmp_lt_u32 s{sWAVE}, 2\ns_cselect_b32 s{t}, 2560, 0\ns_cselect_b32 s{sC1}, 0, 1.0\nv_add_u32 v{vA1}, s{t}, v{vA0}")
    p(f"s_cmp_eq_u32 s{sWAVE}, 1\ns_cselect_b32 s{t}, 2560, 0\ns_cselect_b32 s{sC0}, 0, 1.0\nv_add_u32 v{vA0}, s{t}, v{vA0}")
    swz_rd(p, vB0, 10, halfstride=5120)
    p(f"s_mul_i32 s{t}, s{sPI}, 10240\ns_add_u32 s{t}, s{t}, {P1_B}\nv_add_u32 v{vB0}, s{t}, v{vB0}\nv_add_u32 v{vB0+1}, s{t}, v{vB0+1}")
    for i, v in ((1, vB1), (2, vB2)):
        p(f"v_add_u32 v{v}, {10240*i}, v{vB0}\nv_add_u32 v{v+1}, {10240*i}, v{vB0+1}")
    swz_rd(p, vPR, 10)
    p(f"v_add_u32 v{vPR}, s93, v{vPR}\nv_add_u32 v{vPR+1}, s93, v{vPR+1}")
    sBASE = 82; sO = 83
    p(f"s_mul_i32 s{sBASE}, s{sQ}, 81920\ns_lshr_b32 s{t}, s{sRG}, 2\ns_mul_i32 s{t}, s{t}, 5120\ns_add_u32 s{sBASE}, s{sBASE}, s{t}")
    p(f"s_and_b32 s{t}, s{sRG}, 3\ns_lshl_b32 s{t}, s{t}, 8\ns_add_u32 s{sBASE}, s{sBASE}, s{t}\ns_add_u32 s{sBASE}, s{sBASE}, {WS_AB}")
    for s_ in range(3):
        p(f"s_add_u32 s{t}, s{sPI}, {s_}\ns_cmp_ge_u32 s{t}, 5\ns_cselect_b32 s{t+1}, {655360-5120}, 0\ns_lshl_b32 s{t}, s{t}, 10\ns_add_u32 s{sO+s_}, s{t}, s{t+1}")
    p(f"v_lshrrev_b32 v10, 5, v{vLANE}\nv_mul_u32_u24 v{vST}, 327680, v10\nv_and_b32 v10, 15, v{vLANE}\nv_lshlrev_b32 v{vXS}, 2, v10\nv_lshl_add_u32 v{vST}, v10, 4, v{vST}")
    p(f"v_bfe_u32 v10, v{vLANE}, 4, 1\nv_lshl_add_u32 v{vST+3}, v10, 3, v{vST}")
    p(f"v_cmp_eq_u32 vcc, 1, v10\nv_mov_b32 v10, s{sO}\nv_mov_b32 v11, s{sO+1}\nv_cndmask_b32 v10, v10, v11, vcc\nv_add_u32 v{vST}, v{vST}, v10")
    p(f"s_add_u32 s{sO+2}, s{sO+2}, s{sBASE}")
    p(f"v_lshrrev_b32 v10, 4, v{vLANE}\nv_bfe_u32 v11, v{vLANE}, 2, 2\nv_lshl_add_u32 v30, v10, 3, v11\nv_lshl_add_u32 v31, v10, 2, v11\nv_and_b32 v10, 3, v{vLANE}\nv_lshlrev_b32 v10, 3, v10\nv_add_u32 v10, s{sXR}, v10")
    p(f"v_lshl_add_u32 v30, v30, 6, v10\nv_lshl_add_u32 v31, v31, 6, v10")
    n0 = len(p.lines)
    if X.get('tpos', 0) == 0: touch(p, 'ws', 252); touch(p, 'h', 252); touch(p, 'z1', 252)
    nt_ = sum(1 for l in p.lines[n0:] if l.startswith("buffer_load"))
    p(f"s_waitcnt vmcnt({nt_}) lgkmcnt(0)\ns_barrier")
    stamp(p, 22)
    FA0, FA1, FB0, FB1, ACC, ACX, TI = 64, 104, 144, 184, 224, 236, 240
    p(f"ds_read_b128 {vr(TI,4)}, v{vT} @@ti\nv_mov_b32 v10, {P1_T+64}\nds_read_b32 v{TI+4}, v10")
    for ks in range(10):
        p(f"ds_read_b128 {vr(FA0+4*ks,4)}, v{vA0} offset:{64*ks}")
        p(f"ds_read_b128 {vr(FB0+4*ks,4)}, v{vB0+(ks&1)} offset:{1024*(ks>>1)} @@s0_{ks}")
    p(f"v_mul_f32 v10, s{sC0}, v{vSG}\nv_mul_f32 v11, s{sC1}, v{vSG}")
    p("@wait lg=ti")
    for r_ in range(4): p(f"v_mul_f32 v{ACC+r_}, v10, v{TI+r_}\nv_mul_f32 v{ACC+4+r_}, v11, v{TI+r_}\nv_mov_b32 v{ACC+8+r_}, 0")
    for ks in range(10):
        p(f"@wait lg=s0_{ks}")
        p(f"{MF16} {vr(ACC,4)}, {vr(FA0+4*ks,4)}, {vr(FB0+4*ks,4)}, {vr(ACC,4)}")
        p(f"ds_read_b128 {vr(FA1+4*ks,4)}, v{vA1} offset:{64*ks}")
        p(f"ds_read_b128 {vr(FB1+4*ks,4)}, v{vB1+(ks&1)} offset:{1024*(ks>>1)} @@s1_{ks}")
    def xchain(fb, s_, load):
        lab = p.label("P1_nx"); lab2 = p.label("P1_sinx")
        p(f"s_cmp_lg_u32 s{sRG}, 0\ns_cbranch_scc1 {lab}\n@cond_begin")
        p(f"s_add_u32 s{t}, s{sPI}, {s_}\ns_cmp_ge_u32 s{t}, 5\ns_cselect_b32 s{t+1}, {1280-320}, 0\ns_lshl_b32 s{t}, s{t}, 6\ns_add_u32 s{t}, s{t}, s{t+1}")
        p(f"s_mul_i32 s{t+2}, s{sQ}, 320\ns_add_u32 s{t}, s{t}, s{t+2}\ns_add_u32 s{t}, s{t}, {WS_XB}")
        if fb is not None:
            p(f"s_cmp_lg_u32 s{t+1}, 0\ns_cbranch_scc1 {lab2}")
            if load:
                p("s_nop 7")
                for ks in range(10): p(f"ds_read_b128 {vr(FA0+4*ks,4)}, v{vXA} offset:{64*ks}")
            for r_ in range(4): p(f"v_mul_f32 v{ACX+r_}, v{vSG}, v{TI+4}")
            p("s_waitcnt lgkmcnt(0)")
            for ks in range(10): p(f"{MF16} {vr(ACX,4)}, {vr(FA0+4*ks,4)}, {vr(fb+4*ks,4)}, {vr(ACX,4)}")
            p(f"s_mov_b64 exec, 0xffff\nbuffer_store_dword v{ACX}, v{vXS}, {sr(SW,4)}, s{t} offen {st}\ns_mov_b64 exec, -1\ns_branch {lab}")
            p(f"{lab2}:\ns_nop 7")
        p(f"s_mov_b32 exec_lo, 0\ns_mov_b32 exec_hi, 0xffff\nbuffer_store_dword v{ACC+4*s_}, v{vXS}, {sr(SW,4)}, s{t} offen {st}\ns_mov_b64 exec, -1")
        p(f"@cond_end\n{lab}:\ns_nop 1")
    xchain(FB0, 0, True)
    P2pre_read(p, 0, vPR, vPX)
    lab = p.label("P1_b2")
    p(f"s_cmp_ge_u32 s{sWAVE}, 2\ns_cbranch_scc1 {lab}\n@cond_begin")
    for ks in range(10): p(f"ds_read_b128 {vr(FB0+4*ks,4)}, v{vB2+(ks&1)} offset:{1024*(ks>>1)}")
    p(f"@cond_end\n{lab}:")
    for ks in range(10):
        p(f"@wait lg=s1_{ks}")
        p(f"{MF16} {vr(ACC+4,4)}, {vr(FA1+4*ks,4)}, {vr(FB1+4*ks,4)}, {vr(ACC+4,4)}")
    p("s_waitcnt lgkmcnt(0)")
    for g in r2: p("\n".join(g))
    lab = p.label("P1_s2")
    p(f"s_cmp_ge_u32 s{sWAVE}, 2\ns_cbranch_scc1 {lab}\n@cond_begin")
    for ks in range(10): p(f"{MF16} {vr(ACC+8,4)}, {vr(FA1+4*ks,4)}, {vr(FB0+4*ks,4)}, {vr(ACC+8,4)}")
    p(f"@cond_end\n{lab}:")
    p(f"v_cvt_pk_bf16_f32 v4, v{ACC}, v{ACC+1}\nv_cvt_pk_bf16_f32 v5, v{ACC+2}, v{ACC+3}\nv_cvt_pk_bf16_f32 v6, v{ACC+4}, v{ACC+5}\nv_cvt_pk_bf16_f32 v7, v{ACC+6}, v{ACC+7}")
    p("v_permlane16_swap_b32 v4, v6\nv_permlane16_swap_b32 v5, v7")
    p(f"buffer_store_dwordx4 v[4:7], v{vST}, {sr(SW,4)}, s{sBASE} offen {st}")
    xchain(FB1, 1, False)
    lab = p.label("rl2")
    p(f"s_cmp_ge_u32 s{sPHI}, 240\ns_cbranch_scc1 {lab}\n@cond_begin")
    for c_ in range(2):
        for h in range(2):
            p(f"ds_read_b64_tr_b16 {vr(FB1+4*c_+2*h,2)}, v30 offset:{5120+256*h+32*c_}")
            p(f"ds_read_b64_tr_b16 {vr(FB1+8+4*c_+2*h,2)}, v31 offset:{7168+1024*h+32*c_}")
    p(f"s_add_u32 s{t}, s{sRLa}, 20480\ns_add_u32 s{t+1}, s{sRLb}, 24576\ns_waitcnt lgkmcnt(0)")
    p(f"buffer_store_dwordx4 {vr(FB1,4)}, v{vL16}, {sr(SW,4)}, s{sRLa} offen sc1\nbuffer_store_dwordx4 {vr(FB1+4,4)}, v{vL16}, {sr(SW,4)}, s{t} offen sc1")
    p(f"s_cmp_lt_u32 s{sWAVE}, 2\ns_cbranch_scc1 {lab}")
    p(f"buffer_store_dwordx4 {vr(FB1+8,4)}, v{vL16}, {sr(SW,4)}, s{sRLb} offen sc1\nbuffer_store_dwordx4 {vr(FB1+12,4)}, v{vL16}, {sr(SW,4)}, s{t+1} offen sc1")
    p(f"@cond_end\n{lab}:")
    lab = p.label("P1_s2e")
    p(f"s_cmp_ge_u32 s{sWAVE}, 2\ns_cbranch_scc1 {lab}\n@cond_begin\ns_nop 3")
    p(f"v_cvt_pk_bf16_f32 v8, v{ACC+8}, v{ACC+9}\nv_cvt_pk_bf16_f32 v9, v{ACC+10}, v{ACC+11}")
    p(f"buffer_store_dwordx2 v[8:9], v{vST+3}, {sr(SW,4)}, s{sO+2} offen {st}")
    xchain(None, 2, False)
    p(f"@cond_end\n{lab}:")
    stamp(p, 1)
    p(f"s_lshl_b32 s{sU}, s{sQ}, 6\ns_add_u32 s{sU}, s{sU}, s{sRG}")
    p("s_waitcnt vmcnt(0)")
    P2pre_read(p, 1, vPR, vPX)
    p("s_waitcnt lgkmcnt(0)\ns_barrier")

sB4, sB5 = 78, 79
def LIN_groups(tag, which):
    if tag == 'wz':
        pre = G(f"s_mul_i32 s{sB0}, s{sJ3}, 61440\ns_add_u32 s{sB0}, s{sB0}, {WS_WI + (48*20480 if which == 0 else 0)}\ns_lshr_b32 s{sB2}, s{sL}, 4\ns_lshl_b32 s{sB2}, s{sB2}, 13")
    else:
        pre = G(f"s_mul_i32 s{sB0}, s{sJ4}, 122880\ns_add_u32 s{sB0}, s{sB0}, {WS_WO + which*61440}\ns_lshl_b32 s{sB2}, s{sRG4}, 12")
    pre += G(f"s_mul_i32 s{sB1}, s{sWAVE}, 15360\ns_add_u32 s{sB0}, s{sB0}, s{sB1}")
    if which: pre += G(f"s_add_u32 s{sB1}, s{sB1}, 61440")
    gs = []
    for i in range(15):
        g = G(f"s_add_u32 m0, s{sB1}, s{sB2}\ns_add_u32 s{sB3}, s{sB0}, s{sB2}", f"buffer_load_dwordx4 v{vL16}, {sr(SW,4)}, s{sB3} offen sc1 lds @@{tag}{which}")
        if i < 14: g += G(f"s_add_u32 s{sB2}, s{sB2}, 1024\ns_cmp_eq_u32 s{sB2}, 15360\ns_cselect_b32 s{sB2}, 0, s{sB2}")
        gs.append(g)
    gs[0] = pre + gs[0]
    return gs

def WSP_addr(p):
    swz_src(p, vWSS, 8192, 10); swz_rd(p, vWSR, 10)
    p(f"s_mul_i32 s{t+1}, s{sWAVE}, {SCR_W}\ns_add_u32 s{t+1}, s{t+1}, {SCR}\nv_add_u32 v{vWSR}, s{t+1}, v{vWSR}\nv_add_u32 v{vWSR+1}, s{t+1}, v{vWSR+1}")

def WSP_groups(ch, delta=0):
    slot, hf4 = ch >> 1, ch & 1
    pre = G(f"s_add_u32 s{sB0}, s{sWAVE}, {slot}\ns_and_b32 s{sB0}, s{sB0}, 3\ns_lshr_b32 s{sB1}, s{sB0}, 1\ns_add_u32 s{sB1}, s{sB1}, s{sRB4}\ns_lshl_b32 s{sB1}, s{sB1}, 5",
            f"s_and_b32 s{sB0}, s{sB0}, 1\ns_add_u32 s{sB0}, s{sB0}, s{sB1}\ns_lshl_b32 s{sB0}, s{sB0}, 12\ns_lshl_b32 s{sB1}, s{sWAVE}, 10\ns_add_u32 s{sB0}, s{sB0}, s{sB1}",
            f"s_mul_i32 s{sB1}, s{sWAVE}, {SCR_W}\ns_add_u32 s{sB1}, s{sB1}, {SCR+delta}\ns_lshl_b32 s{sB2}, s{sRG4}, 1\ns_add_u32 s{sB2}, s{sB2}, s{sJ4}")
    gs = []
    for pc in range(4):
        for hf in range(2):
            g = []
            if hf == 0: g += G(f"s_add_u32 s{sB3}, s{sB2}, {4*hf4+pc}\ns_and_b32 s{sB3}, s{sB3}, 7\ns_lshl_b32 s{sB3}, s{sB3}, 7\ns_add_u32 s{sB3}, s{sB3}, s{sB0}")
            g += G(f"s_add_u32 m0, s{sB1}, {pc*2048+hf*1024}", f"buffer_load_dwordx4 v{vWSS+hf}, {sr(SWS,4)}, s{sB3} offen lds @@ws{ch}")
            gs.append(g)
    gs[0] = pre + gs[0]
    return gs

def WSP_read(ch, rd=None):
    rd = vWSR if rd is None else rd
    gs = [G(f"ds_read_b128 {ar(ch*32+4*k,4)}, v{rd+(k&1)} offset:{2048*(k>>1)} @@wr{ch}") for k in range(8)]
    gs[0] = [f"@wait vm=ws{ch}"] + gs[0]
    return gs

def emit(p, gs):
    for g in gs: p("\n".join(g))
def touch(p, what, dst, tmp=10):
    if X.get('notouch', 0) & {'wz0': 1, 'wz1': 2, 'ws': 4, 'wo': 16, 'h': 32, 'z1': 64}[what]: return
    a, b = tmp, tmp+1
    if what in ('wz0', 'wz1'):
        p(f"s_lshl_b32 s{t}, s{sL}, 2\ns_add_u32 s{t}, s{t}, s{sWAVE}\ns_mul_i32 s{t}, s{t}, {5*3072}" + (f"\ns_add_u32 s{t}, s{t}, 1536" if what == 'wz0' else ""))
        p(f"v_mul_u32_u24 v{a}, 43, v{vLANE}\nv_lshrrev_b32 v{a}, 9, v{a}\nv_mul_u32_u24 v{a}, {3072-1536}, v{a}\nv_lshl_add_u32 v{a}, v{vLANE}, 7, v{a}")
        p(f"@atomic_begin\ns_mov_b32 exec_hi, 0x0fffffff\nbuffer_load_dword v{dst}, v{a}, {sr(SWI,4)}, s{t} offen\ns_mov_b32 exec_hi, -1\n@atomic_end")
    elif what == 'ws':
        p(f"s_sub_u32 s{t}, s{sRB3}, s{sWAVE}\ns_lshl_b32 s{t}, s{t}, 2\ns_and_b32 s{t+1}, s{sL}, 15\ns_add_u32 s{t}, s{t}, s{t+1}\ns_lshl_b32 s{t}, s{t}, 15\ns_lshl_b32 s{t+1}, s{sWAVE}, 10\ns_add_u32 s{t}, s{t}, s{t+1}")
        p(f"v_lshrrev_b32 v{a}, 3, v{vLANE}\nv_lshlrev_b32 v{a}, 12, v{a}\nv_and_b32 v{b}, 7, v{vLANE}\nv_lshl_add_u32 v{a}, v{b}, 7, v{a}")
        p(f"buffer_load_dword v{dst}, v{a}, {sr(SWS,4)}, s{t} offen")
    elif what == 'wo':
        p(f"s_lshl_b32 s{t}, s{sL}, 2\ns_add_u32 s{t}, s{t}, s{sWAVE}\ns_mul_i32 s{t}, s{t}, 7680\nv_lshlrev_b32 v{a}, 7, v{vLANE}")
        p(f"@atomic_begin\ns_mov_b32 exec_hi, 0x0fffffff\nbuffer_load_dword v{dst}, v{a}, {sr(SWO,4)}, s{t} offen\ns_mov_b32 exec_hi, -1\n@atomic_end")
    elif what == 'h':
        p(f"s_and_b32 s{t}, s{sL}, 15\ns_lshl_b32 s{t}, s{t}, 2\ns_add_u32 s{t}, s{t}, s{sWAVE}\ns_mul_i32 s{t}, s{t}, 2560\ns_sub_u32 s{t+1}, s{sRB3}, s{sWAVE}\ns_mul_i32 s{t+1}, s{t+1}, 40960\ns_add_u32 s{t}, s{t}, s{t+1}\ns_add_u32 s{t}, s{t}, {WS_H}")
        p(f"s_lshl_b32 s{t+1}, s{sRB3}, 12\ns_lshl_b32 s{t+2}, s{sJ3}, 8\ns_add_u32 s{t+1}, s{t+1}, s{t+2}\ns_add_u32 s{t+1}, s{t+1}, {WS_ZS-20*128}")
        p(f"s_lshl_b32 s{t+2}, s{sRB3}, 10\ns_add_u32 s{t+2}, s{t+2}, {WS_HS-22*128}")
        p(f"v_mov_b32 v{a}, s{t}\nv_mov_b32 v{b}, s{t+1}\nv_cmp_lt_u32 vcc, 19, v{vLANE}\nv_cndmask_b32 v{a}, v{a}, v{b}, vcc\nv_mov_b32 v{b}, s{t+2}\nv_cmp_lt_u32 vcc, 21, v{vLANE}\nv_cndmask_b32 v{a}, v{a}, v{b}, vcc")
        p(f"v_lshl_add_u32 v{a}, v{vLANE}, 7, v{a}\n@atomic_begin\ns_mov_b64 exec, 0x3fffffff\nbuffer_load_dword v{dst}, v{a}, {sr(SW,4)}, 0 offen\ns_mov_b64 exec, -1\n@atomic_end")
    elif what == 'z1':
        p(f"s_mul_i32 s{t}, s{sTT}, 24576\ns_mul_i32 s{t+1}, s{sJ4}, 3072\ns_add_u32 s{t}, s{t}, s{t+1}\ns_add_u32 s{t}, s{t}, {WS_Z1}\nv_lshlrev_b32 v{a}, 7, v{vLANE}")
        p(f"@atomic_begin\ns_mov_b64 exec, 0xffffff\nbuffer_load_dword v{dst}, v{a}, {sr(SW,4)}, s{t} offen\ns_mov_b64 exec, -1\n@atomic_end")

def code_srd(p):
    lab = p.label("pc")
    p(f"s_getpc_b64 {sr(SCD,2)}\n{lab}:\ns_sub_u32 s{SCD}, s{SCD}, {lab}-{NAME}_kernel\ns_subb_u32 s{SCD+1}, s{SCD+1}, 0\ns_mov_b32 s{SCD+2}, CODE_BYTES+128")
def code_touch(p, dst, w=3):
    if not X.get('ct', 1): return
    with only_wave(p, w):
        p(f"s_lshl_b32 s{t}, s{sL}, 7\nv_lshlrev_b32 v10, 12, v{vLANE}\ns_mov_b64 exec, 0xffff\nbuffer_load_dword v{dst}, v10, {sr(SCD,4)}, s{t} offen\ns_mov_b64 exec, -1")

P2_XD, P2_RING, P2_ACC, P2_ACX, P2_XB = 80, 112, 192, 212, 232
vPW, vRA, vRB, vHA, vHB, vSA, vSB, vSG2, vSP2, vXBo = 16, 17, 18, 19, 20, 21, 22, 24, 26, 23
def P2_prep(p):
    for sd in range(2):
        r = P2_XRAW + 12*sd; x = P2_XD + 16*sd
        for k in range(4): p(f"v_lshlrev_b32 v{x+2*k}, 16, v{r+k}\nv_and_b32 v{x+2*k+1}, s{sMASKHI}, v{r+k}")
        p(f"v_lshlrev_b32 v{x+8}, 16, v{r+8}")
        for i in range(1, 8):
            wi = 8 - i
            if wi & 1: p(f"v_and_b32 v{x+8+i}, s{sMASKHI}, v{r+4+(wi>>1)}")
            else: p(f"v_lshlrev_b32 v{x+8+i}, 16, v{r+4+(wi>>1)}")
    p(f"s_lshr_b32 s{t}, s{sWAVE}, 1\ns_lshl_b32 s{t}, s{t}, 1\ns_add_u32 s{t}, s{t}, s{sP2}\ns_lshl_b32 s{t}, s{t}, 2\ns_add_u32 s{t}, s{t}, s{sQ2}")
    p(f"s_lshl_b32 s{t}, s{t}, 1\ns_and_b32 s{t+1}, s{sWAVE}, 1\ns_add_u32 s{t}, s{t}, s{t+1}\ns_mul_i32 s{t}, s{t}, 40960\ns_add_u32 s{t}, s{t}, {WS_AB}")
    p(f"s_add_u32 s{t+1}, s{sI2}, s{sQ2}\ns_and_b32 s{t+1}, s{t+1}, 3\ns_lshl_b32 s{t+1}, s{t+1}, 1")
    for k in range(8):
        p(f"s_add_u32 s{t+2}, s{t+1}, {k}\ns_and_b32 s{t+2}, s{t+2}, 7\ns_mul_i32 s{t+2}, s{t+2}, 5120\ns_add_u32 s{80+k}, s{t+2}, s{t}")
    p(f"v_add_u32 v3, 4096, v{vL16}")
    p(f"v_lshrrev_b32 v10, 2, v{vLANE}\nv_lshlrev_b32 v{vXBo}, 5, v10\ns_mul_i32 s69, s{sQ2}, 320\ns_mul_i32 s{t+1}, s{sP2}, 1280\ns_add_u32 s69, s69, s{t+1}\ns_add_u32 s69, s69, {WS_XB}")
    p(f"s_mul_i32 s{t+2}, s{sWAVE}, {SCR_W}\ns_add_u32 s{t+2}, s{t+2}, {SCR}")
    p(f"v_and_b32 v12, 15, v{vLANE}\nv_mul_u32_u24 v12, 336, v12\nv_lshrrev_b32 v13, 4, v{vLANE}\nv_lshl_add_u32 v12, v13, 4, v12\nv_add_u32 v{vPW}, s{t+2}, v12")
    p(f"v_and_b32 v12, 3, v{vLANE}\ns_lshl_b32 s{t+3}, s{sWAVE}, 2\nv_add_u32 v12, s{t+3}, v12")
    p(f"v_mul_u32_u24 v13, 336, v12\nv_add_u32 v13, {SCR}, v13\nv_add_u32 v{vRA}, v13, v{vXBo}")
    p(f"s_cmp_eq_u32 s{sP2}, 0\ns_cselect_b32 s{t+3}, 336, 0\ns_cselect_b32 s{t+4}, 0, 0x80000000\nv_add_u32 v{vRB}, s{t+3}, v{vRA}")
    p(f"v_lshlrev_b32 v13, 8, v10\nv_lshl_add_u32 v{vHA}, v12, 4, v13\nv_sub_u32 v14, 15, v12\nv_lshl_add_u32 v{vHB}, v14, 4, v13")
    p(f"v_lshlrev_b32 v{vSG2}, 31, v{vLANE}\nv_or_b32 v{vSG2}, 1.0, v{vSG2}\nv_xor_b32 v{vSP2}, s{t+4}, v{vSG2}")
    p(f"v_lshlrev_b32 v{vSA}, 3, v12\nv_lshlrev_b32 v{vSB}, 3, v14")
    p(f"s_cmp_eq_u32 s{sQ2}, 0\ns_cselect_b32 s70, 15, 0\ns_mov_b32 s71, 0")
    p(f"s_lshl_b32 s{t}, s{sI2}, 1\ns_add_u32 s{t}, s{t}, s{sP2}\ns_sub_u32 s{t+1}, 126, s{t}\ns_lshl_b32 s{t+3}, s{sP2}, 1\ns_add_u32 s{t+1}, s{t+1}, s{t+3}")
    p(f"s_mul_i32 s{t+3}, s{sQ2}, 2560\ns_add_u32 s{t+3}, s{t+3}, {WS_H}\ns_lshl_b32 s{t+4}, s{sQ2}, 7\ns_add_u32 s{t+4}, s{t+4}, {WS_HS}")
    for (sh, ss, src) in ((88, 92, t), (90, 93, t+1)):
        p(f"s_mul_i32 s{sh}, s{src}, 20480\ns_add_u32 s{sh}, s{sh}, s{t+3}\ns_add_u32 s{sh+1}, s{sh}, 10240")
        p(f"s_lshl_b32 s{ss}, s{src}, 9\ns_add_u32 s{ss}, s{ss}, s{t+4}")
    p(f"v_cmp_gt_u32 vcc, 40, v{vLANE}\nv_mov_b32 v10, 0x40000000\nv_cndmask_b32 v{vHA}, v10, v{vHA}, vcc\nv_cndmask_b32 v{vHB}, v10, v{vHB}, vcc")

def P2_main(p, bg):
    st = ""
    RING, ACC, ACX = P2_RING, P2_ACC, P2_ACX
    def ld(k):
        for nt in range(5):
            r = RING + ((k & 3)*5 + nt)*4
            p(f"buffer_load_dwordx4 {vr(r,4)}, v{vL16 if nt < 4 else 3}, {sr(SW,4)}, s{80+k} offen offset:{(nt&3)*1024} sc1 @@ab{k}_{nt}")
    for k in range(4): ld(k)
    p(f"buffer_load_dwordx4 {vr(P2_XB,4)}, v{vXBo}, {sr(SW,4)}, s69 offen sc1\nbuffer_load_dwordx4 {vr(P2_XB+4,4)}, v{vXBo}, {sr(SW,4)}, s69 offen offset:16 sc1")
    for k in range(8):
        for nt in range(5):
            r = RING + ((k & 3)*5 + nt)*4
            p(f"@wait vm=ab{k}_{nt}")
            p(f"{MF16} {vr(ACC+4*nt,4)}, {vr(r,4)}, {ar(A_MF+4*k,4)}, {vr(ACC+4*nt,4) if k else 0}")
            p(f"{MF16} {vr(ACX+4*nt,4)}, {vr(r,4)}, {ar(A_MX+4*k,4)}, {vr(ACX+4*nt,4) if k else 0}")
        if k < 4: ld(k+4)
        if k >= 4:
            for _ in range(X.get('p2g', 1)):
                if bg: emit(p, [bg.pop(0)])
    stamp(p, 23)
    for nt in range(5): p(f"ds_write_b128 v{vPW}, {vr(ACC+4*nt,4)} offset:{64*nt}")
    p("s_mov_b32 exec_lo, 0x00010001\ns_mov_b32 exec_hi, 0x00010001")
    for nt in range(5): p(f"ds_write_b128 v{vPW}, {vr(ACX+4*nt,4)} offset:{16*336+64*nt}")
    p("s_mov_b64 exec, -1")
    STt = 40
    p("s_waitcnt lgkmcnt(0)\ns_barrier")
    p.weave(p.capture(P2_epi), bg, start=X.get('p2s', 0), every=X.get('p2e', 9))

def P2_epi(p):
    st = ""; STt = 40
    L = P2_RING
    for sd in range(2):
        for hh in range(2):
            for wv in range(4):
                p(f"ds_read_b128 {vr(L+32*sd+8*wv+4*hh,4)}, v{vRA if sd == 0 else vRB} offset:{wv*SCR_W+16*hh} @@pq{sd}{hh}")
    for sd in range(2):
        b = L + 32*sd; x = P2_XD + 16*sd; o = 48 + 8*sd
        su = (vSG2, 0) if sd == 0 else (vSP2, 1)
        sw = (vSP2, 0) if sd == 0 else (vSG2, 1)
        for k in range(4):
            p(f"@wait lg=pq{sd}{k>>1}")
            P0, P1_, Q0, Q1 = b+2*k, b+8+2*k, b+16+2*k, b+24+2*k
            p(f"v_pk_add_f32 {vr(P0,2)}, {vr(P0,2)}, {vr(P1_,2)}\nv_pk_add_f32 {vr(Q0,2)}, {vr(Q0,2)}, {vr(Q1,2)}")
            p(f"v_pk_add_f32 {vr(P1_,2)}, {vr(P0,2)}, {vr(Q0,2)} neg_lo:[0,1] neg_hi:[0,1]")
            p(f"v_pk_add_f32 {vr(Q1,2)}, {vr(P0,2)}, {vr(Q0,2)}")
            for (dst, (sv, ng)) in ((P1_, su), (Q1, sw)):
                p(f"v_pk_fma_f32 {vr(dst,2)}, {vr(sv,2)}, {vr(P2_XB+2*k,2)}, {vr(dst,2)} op_sel_hi:[0,1,1]" + (" neg_lo:[1,0,0] neg_hi:[1,0,0]" if ng else ""))
            lo, hi = (P1_, Q1) if sd == 0 else (Q1, P1_)
            if k == 0: p(f"v_cndmask_b32 v{lo}, v{lo}, 0, s[70:71]")
            p(f"v_pk_add_f32 {vr(x+2*k,2)}, {vr(x+2*k,2)}, {vr(lo,2)}\nv_pk_add_f32 {vr(x+8+2*k,2)}, {vr(x+8+2*k,2)}, {vr(hi,2)}")
            p(f"v_cvt_pk_bf16_f32 v{o+k}, v{x+2*k}, v{x+2*k+1}\nv_cvt_pk_bf16_f32 v{o+4+k}, v{x+8+2*k}, v{x+8+2*k+1}")
        sh = 88 if sd == 0 else 90
        vh = vHA if sd == 0 else vHB
        p(f"buffer_store_dwordx4 {vr(o,4)}, v{vh}, {sr(SW,4)}, s{sh} offen {st}")
        p(f"buffer_store_dwordx4 {vr(o+4,4)}, v{vh}, {sr(SW,4)}, s{sh+1} offen {st}")
    p("@atomic_begin")
    for k in range(8):
        for sd in range(2):
            x = P2_XD + 16*sd; s_, q_ = STt+4*sd, STt+4*sd+2
            if k == 0: p(f"v_pk_mul_f32 {vr(q_,2)}, {vr(x,2)}, {vr(x,2)}")
            else:
                p(f"v_pk_add_f32 {vr(s_,2)}, {vr(s_ if k > 1 else x,2)}, {vr(x+2*k,2)}\nv_pk_fma_f32 {vr(q_,2)}, {vr(x+2*k,2)}, {vr(x+2*k,2)}, {vr(q_,2)}")
    red = [STt, STt+2, STt+4, STt+6]
    p(f"v_cmp_gt_u32 vcc, 40, v{vLANE}")
    for x in red: p(f"v_add_f32 v{x}, v{x}, v{x+1}")
    for x in red: p(f"v_cndmask_b32 v{x}, 0, v{x}, vcc")
    for mod in ("row_ror:4", "row_ror:8"):
        for x in red: p(f"v_add_f32_dpp v{x}, v{x}, v{x} {mod} {FULL}")
    for sw in ("v_permlane16_swap_b32", "v_permlane32_swap_b32"):
        for x in red: p(f"v_mov_b32 v{x+1}, v{x}")
        for x in red: p(f"{sw} v{x}, v{x+1}")
        for x in red: p(f"v_add_f32 v{x}, v{x}, v{x+1}")
    p(f"v_mov_b32 v{STt+1}, v{STt+2}\nv_mov_b32 v{STt+5}, v{STt+6}")
    p("s_mov_b64 exec, 15")
    p(f"buffer_store_dwordx2 {vr(STt,2)}, v{vSA}, {sr(SW,4)}, s92 offen {st}")
    p(f"buffer_store_dwordx2 {vr(STt+4,2)}, v{vSB}, {sr(SW,4)}, s93 offen {st}")
    p("s_mov_b64 exec, -1\n@atomic_end")

P3_AZ2, P3_AZ1, P3_HF, P3_BF = 16, 40, 64, 224
vWB = 248
A_CS, A_ONE = 240, 252
LOG2E = 1.4426950408889634
GK0, GK1 = -LOG2E*1.5957691216057308, -LOG2E*0.07135481282
sGK1 = 90; vK0 = 14

def P3_prep(p):
    p(f"v_mov_b32 v{vWB}, v{vL16}\nv_add_u32 v{vWB+1}, {WZ_SIZE}, v{vL16}")
    p("v_mov_b32 v10, 0x3f803f80")
    for r in range(4): p(f"v_accvgpr_write_b32 a{A_ONE+r}, v10")
    p(f"s_lshl_b32 s80, s{sRB3}, 10\ns_add_u32 s80, s80, {WS_HS}")
    p(f"s_mul_i32 s81, s{sRB3}, 40960\ns_add_u32 s81, s81, {WS_H}\ns_add_u32 s82, s81, 20480")
    p(f"s_mov_b32 s{sGK1}, {fhex(GK1)}\ns_mov_b32 s{sGK1+1}, {fhex(GK1)}")

def wfrag(p, dst, ks, nt, z1, tag):
    p(f"ds_read_b128 {vr(dst,4)}, v{vWB+z1} offset:{nt*20480+ks*1024} @@{tag}")

def gelu4(p, x, tmp):
    for step in range(6):
        for h in range(2):
            xx = x+2*h; a = tmp+4*h; b = a+2
            if step == 0: p(f"v_pk_mul_f32 {vr(a,2)}, {vr(xx,2)}, {vr(xx,2)}")
            if step == 1: p(f"v_pk_fma_f32 {vr(a,2)}, {vr(a,2)}, {sr(sGK1,2)}, {vr(vK0,2)} op_sel_hi:[1,1,0]")
            if step == 2: p(f"v_pk_mul_f32 {vr(a,2)}, {vr(a,2)}, {vr(xx,2)}")
            if step == 3: p(f"v_exp_f32 v{b}, v{a}\nv_exp_f32 v{b+1}, v{a+1}")
            if step == 4: p(f"v_pk_add_f32 {vr(b,2)}, {vr(b,2)}, 1.0 op_sel_hi:[1,0]")
            if step == 5: p(f"v_rcp_f32 v{a}, v{b}\nv_rcp_f32 v{a+1}, v{b+1}")
    for h in range(2): p(f"v_pk_mul_f32 {vr(x+2*h,2)}, {vr(x+2*h,2)}, {vr(tmp+4*h,2)}")

def hfrag(p, ks):
    if ks >= 20: return
    for par in range(2):
        p(f"buffer_load_dwordx4 {vr(P3_HF+(2*ks+par)*4,4)}, v{vL16}, {sr(SW,4)}, s{81+par} offen offset:{(ks&3)*1024} sc1 @@h{ks}")
    if (ks & 3) == 3 and ks < 19: p(f"s_add_u32 s81, s81, 4096\ns_add_u32 s82, s82, 4096")

def P3_pass(p, z1, k0=0, k1=20):
    acc = P3_AZ1 if z1 else P3_AZ2
    HA = X.get('ha', 5)
    tg = lambda ks, nt: f"wf{z1}_{ks}_{nt}"
    for nt in range(3): wfrag(p, P3_BF + ((k0 & 1)*3+nt)*4, k0, nt, z1, tg(k0, nt))
    for ks in range(k0, k1):
        for nt in range(3):
            p(f"@wait lg={tg(ks, nt)}" + (f" vm=h{ks}" if not z1 else ""))
            bf = vr(P3_BF + ((ks & 1)*3+nt)*4, 4)
            for par in range(2):
                hf = vr(P3_HF + (2*ks+par)*4, 4); a = vr(acc + (par*3+nt)*4, 4); c = a if ks else 0
                p(f"{MF16} {a}, {bf}, {hf}, {c}" if z1 else f"{MF16} {a}, {hf}, {bf}, {c}")
            a = ar(A_CS+4*nt, 4); c = a if ks else 0; one = ar(A_ONE, 4)
            p(f"{MF16} {a}, {bf}, {one}, {c}" if z1 else f"{MF16} {a}, {one}, {bf}, {c}")
            if ks+1 < k1: wfrag(p, P3_BF + (((ks+1) & 1)*3+nt)*4, ks+1, nt, z1, tg(ks+1, nt))
            if not z1 and nt == 0: hfrag(p, ks+HA)
        if not z1 and ks == X.get('ln1k', 3): P3_ln1(p)
        if not z1 and X.get('p3st') and ks in (0, 4, 10): stamp(p, {0: 25, 4: 26, 10: 27}[ks])

def P3_loads(p):
    for ks in range(X.get('ha', 5)):
        hfrag(p, ks)
        if ks == 1: p(f"buffer_load_dwordx4 v[4:7], v{vL16}, {sr(SW,4)}, s80 offen sc1 @@hs")

def P3_ln1(p):
    p("@wait vm=hs")
    for x in range(4, 8): p(f"v_add_f32_dpp v{x}, v{x}, v{x} row_ror:8 {FULL}")
    for x in range(4): p(f"v_mov_b32 v{8+x}, v{4+x}")
    for x in range(4): p(f"v_permlane16_swap_b32 v{4+x}, v{8+x}")
    for x in range(4): p(f"v_add_f32 v{4+x}, v{4+x}, v{8+x}")
    p(f"s_mov_b32 s{t}, {fhex(1/640)}\ns_mov_b32 s{t+1}, {fhex(1e-5)}")
    p(f"v_mul_f32 v8, s{t}, v4\nv_mul_f32 v9, s{t}, v6\nv_mul_f32 v4, v8, v8\nv_mul_f32 v6, v9, v9")
    p(f"v_fma_f32 v5, v5, s{t}, -v4\nv_fma_f32 v7, v7, s{t}, -v6\nv_add_f32 v5, s{t+1}, v5\nv_add_f32 v7, s{t+1}, v7")
    p(f"v_rsq_f32 v10, v5\nv_rsq_f32 v11, v7\nv_sub_f32 v8, 0, v8\nv_sub_f32 v9, 0, v9")
    p(f"s_lshl_b32 s{t}, s{sWAVE}, 8\ns_add_u32 s{t}, s{t}, {TBL}")
    p(f"v_lshrrev_b32 v4, 5, v{vLANE}\nv_lshlrev_b32 v4, 6, v4\nv_and_b32 v5, 7, v{vLANE}\nv_lshl_add_u32 v4, v5, 3, v4\nv_add_u32 v4, s{t}, v4")
    p(f"ds_write_b64 v4, v[8:9]\nds_write_b64 v4, v[10:11] offset:128 @@ln1")
    p(f"v_lshrrev_b32 v12, 4, v{vLANE}\nv_lshl_add_u32 v12, v12, 4, s{t}\nv_mov_b32 v{vK0}, {fhex(GK0)}")

def P3_z2a(p):
    B = P3_BF
    NM, RR, TMP = B, B+8, B+16
    p("@wait lg=ln1")
    for par in range(2):
        p(f"ds_read_b128 {vr(NM+4*par,4)}, v12 offset:{64*par}\nds_read_b128 {vr(RR+4*par,4)}, v12 offset:{128+64*par} @@nr{par}")
    CSr = [4, 6, 8]
    for nt in range(3): p(f"v_accvgpr_read_b32 v{CSr[nt]}, a{A_CS+4*nt}")
    for par in range(2):
        p(f"@wait lg=nr{par}")
        for nt in range(3):
            a = P3_AZ2 + (par*3+nt)*4
            for h in range(2): p(f"v_pk_fma_f32 {vr(a+2*h,2)}, {vr(NM+4*par+2*h,2)}, {vr(CSr[nt],2)}, {vr(a+2*h,2)} op_sel_hi:[1,0,1]")
            for h in range(2): p(f"v_pk_mul_f32 {vr(a+2*h,2)}, {vr(a+2*h,2)}, {vr(RR+4*par+2*h,2)}")
            gelu4(p, a, TMP)
    for par in range(2):
        for h in range(2):
            a = lambda nt: vr(P3_AZ2 + (par*3+nt)*4 + 2*h, 2)
            S_, Q_ = vr(NM+4*par+2*h, 2), vr(RR+4*par+2*h, 2)
            p(f"v_pk_add_f32 {S_}, {a(0)}, {a(1)}\nv_pk_mul_f32 {Q_}, {a(0)}, {a(0)}")
            p(f"v_pk_add_f32 {S_}, {S_}, {a(2)}\nv_pk_fma_f32 {Q_}, {a(1)}, {a(1)}, {Q_}\nv_pk_fma_f32 {Q_}, {a(2)}, {a(2)}, {Q_}")
    for base in (NM, RR):
        for r in range(4): p(f"v_add_f32_dpp v{base+r}, v{base+r}, v{base+r} row_ror:8 {FULL}")
    for base in (NM, RR):
        for r in range(4): p(f"v_add_f32_dpp v{base+r}, v{base+4+r}, v{base+4+r} row_ror:8 row_mask:0xf bank_mask:0xc")
    for i, (base, r) in enumerate(((NM, 0), (RR, 0), (NM, 1), (RR, 1))):
        p(f"v_add_f32_dpp v{TMP+i}, v{base+r}, v{base+r} row_half_mirror {FULL}")
    for i, (base, r) in enumerate(((NM, 2), (RR, 2), (NM, 3), (RR, 3))):
        p(f"v_add_f32_dpp v{TMP+i}, v{base+r}, v{base+r} row_half_mirror row_mask:0xf bank_mask:0xa")
    for mod in ("quad_perm:[1,0,3,2]", "quad_perm:[2,3,0,1]"):
        for i in range(4): p(f"v_add_f32_dpp v{TMP+i}, v{TMP+i}, v{TMP+i} {mod} {FULL}")
    p(f"v_lshrrev_b32 v13, 2, v{vLANE}\nv_lshlrev_b32 v13, 8, v13")
    p(f"s_lshl_b32 s83, s{sRB3}, 12\ns_add_u32 s83, s83, {WS_ZS}\ns_lshl_b32 s{t+1}, s{sJ3}, 4\ns_add_u32 s{t+1}, s{t+1}, s83")
    p("@atomic_begin\ns_mov_b32 exec_lo, 0x11111111\ns_mov_b32 exec_hi, 0x11111111")
    p(f"buffer_store_dwordx4 {vr(TMP,4)}, v13, {sr(SW,4)}, s{t+1} offen @@zs")
    p("s_mov_b64 exec, -1\n@atomic_end")
    p(f"v_and_b32 v4, 3, v{vLANE}\nv_lshl_add_u32 v13, v4, 4, v13")

def P3_z2b(p):
    B = P3_BF
    for i in range(4): p(f"buffer_load_dwordx4 {vr(B+4*i,4)}, v13, {sr(SW,4)}, s83 offen offset:{64*i} sc1 @@zl")
    p(f"s_lshr_b32 s{t+2}, s{sJ3}, 1\ns_lshl_b32 s{t+2}, s{t+2}, 6\ns_add_u32 s{t+2}, s{t+2}, s{sRB3}\ns_mul_i32 s{t+2}, s{t+2}, 6144")
    p(f"s_and_b32 s{t+1}, s{sJ3}, 1\ns_mul_i32 s{t+1}, s{t+1}, 3072\ns_add_u32 s{t+2}, s{t+2}, s{t+1}\ns_add_u32 s{t+2}, s{t+2}, {WS_Z2}")
    p(f"s_mov_b32 s{t}, {fhex(1/768)}\ns_mov_b32 s{t+1}, {fhex(1e-5)}")
    p("@wait vm=zl")
    for h in range(2):
        p(f"v_pk_add_f32 {vr(B+2*h,2)}, {vr(B+2*h,2)}, {vr(B+4+2*h,2)}\nv_pk_add_f32 {vr(B+8+2*h,2)}, {vr(B+8+2*h,2)}, {vr(B+12+2*h,2)}")
    for h in range(2): p(f"v_pk_add_f32 {vr(B+2*h,2)}, {vr(B+2*h,2)}, {vr(B+8+2*h,2)}")
    for mod in ("quad_perm:[1,0,3,2]", "quad_perm:[2,3,0,1]"):
        for i in range(4): p(f"v_add_f32_dpp v{B+i}, v{B+i}, v{B+i} {mod} {FULL}")
    p(f"v_mul_f32 v{B}, s{t}, v{B}\nv_mul_f32 v{B+2}, s{t}, v{B+2}\nv_mul_f32 v{B+4}, v{B}, v{B}\nv_mul_f32 v{B+5}, v{B+2}, v{B+2}")
    p(f"v_fma_f32 v{B+1}, v{B+1}, s{t}, -v{B+4}\nv_fma_f32 v{B+3}, v{B+3}, s{t}, -v{B+5}\nv_add_f32 v{B+1}, s{t+1}, v{B+1}\nv_add_f32 v{B+3}, s{t+1}, v{B+3}")
    p(f"v_rsq_f32 v{B+1}, v{B+1}\nv_rsq_f32 v{B+3}, v{B+3}")
    p(f"v_mul_f32 v{B}, -v{B}, v{B+1}\nv_mul_f32 v{B+2}, -v{B+2}, v{B+3}")
    NM, RR = B+8, B+16
    for bk in range(4):
        for i in range(2):
            p(f"v_mov_b32_dpp v{NM+2*bk+i}, v{B+2*i} row_newbcast:{4*bk} {FULL}")
            p(f"v_mov_b32_dpp v{RR+2*bk+i}, v{B+2*i+1} row_newbcast:{4*bk} {FULL}")
    for nt in range(3):
        for par in range(2):
            a = P3_AZ2 + (par*3+nt)*4
            for h in range(2): p(f"v_pk_fma_f32 {vr(a+2*h,2)}, {vr(a+2*h,2)}, {vr(RR+4*par+2*h,2)}, {vr(NM+4*par+2*h,2)}")
        o = [B, B+4, 4][nt]
        for r in range(4): p(f"v_cvt_pk_bf16_f32 v{o+r}, v{P3_AZ2+nt*4+r}, v{P3_AZ2+(3+nt)*4+r}")
        p(f"buffer_store_dwordx4 {vr(o,4)}, v{vL16}, {sr(SW,4)}, s{t+2} offen offset:{1024*nt} sc1 @@z2s")

Z_CS, Z_NR, Z_T, Z_K0 = 16, 28, 32, 14
def P3_z1e_prep(p):
    p(f"s_lshl_b32 s{t}, s{sWAVE}, 8\ns_add_u32 s{t}, s{t}, {TBL}\nv_and_b32 v12, 15, v{vLANE}\nv_lshl_add_u32 v12, v12, 2, s{t}")
    for par in range(2): p(f"ds_read_b32 v{Z_NR+2*par}, v12 offset:{64*par}\nds_read_b32 v{Z_NR+2*par+1}, v12 offset:{128+64*par} @@z1n")
    for r in range(12): p(f"v_accvgpr_read_b32 v{Z_CS+r}, a{A_CS+r}")
    p(f"s_mul_i32 s{SSD}, s{sRB3}, {2*48*512}\ns_mul_i32 s{t+1}, s{sJ3}, 1536\ns_add_u32 s{SSD}, s{SSD}, s{t+1}\ns_add_u32 s{SSD}, s{SSD}, {WS_Z1}\ns_add_u32 s{SSD+1}, s{SSD}, {48*512}")
    p(f"s_lshl_b32 s{SSD+2}, s{sRB3}, 4\ns_add_u32 s{SSD+2}, s{SSD+2}, s{sJ3}")
def z1e_lines():
    L = []
    for par in range(2):
        for nt in range(3):
            a = P3_AZ1 + (par*3+nt)*4; T = Z_T
            for r in range(4): L.append(f"v_fmac_f32 v{a+r}, v{Z_CS+4*nt+r}, v{Z_NR+2*par}")
            for r in range(4): L.append(f"v_mul_f32 v{a+r}, v{a+r}, v{Z_NR+2*par+1}")
            for r in range(4): L.append(f"v_mul_f32 v{T+r}, v{a+r}, v{a+r}")
            for r in range(4): L.append(f"v_fmamk_f32 v{T+r}, v{T+r}, {fhex(GK1)}, v{Z_K0}")
            for r in range(4): L.append(f"v_mul_f32 v{T+r}, v{T+r}, v{a+r}")
            for r in range(4): L.append(f"v_exp_f32 v{T+r}, v{T+r}")
            for r in range(4): L.append(f"v_add_f32 v{T+r}, 1.0, v{T+r}")
            for r in range(4): L.append(f"v_rcp_f32 v{T+r}, v{T+r}")
            for r in range(4): L.append(f"v_mul_f32 v{a+r}, v{a+r}, v{T+r}")
            L.append(f"v_cvt_pk_bf16_f32 v{a}, v{a}, v{a+1}"); L.append(f"v_cvt_pk_bf16_f32 v{a+1}, v{a+2}, v{a+3}")
    L.append("\n".join(f"buffer_store_dwordx2 {vr(P3_AZ1+(par*3+nt)*4,2)}, v8, {sr(SW,4)}, s{SSD+par} offen offset:{512*nt} @@z1s" for par in range(2) for nt in range(3)))
    return L

P4_RING, P4_OWN, P4_ACC, P4_Z1, P4_BIAS = 64, 160, 184, 208, 220
P4_MB = 16
P5_H, P5_V = 40, 64
P5_H = 240
def P4_prep(p):
    p(f"s_lshl_b32 s{t}, s{sJ4}, 6\ns_lshl_b32 s{t+1}, s{sWAVE}, 4\ns_add_u32 s{t}, s{t}, s{t+1}\ns_mul_i32 s{t}, s{t}, 6144\ns_add_u32 s{t}, s{t}, {WS_Z2}")
    p(f"s_lshl_b32 s{t+1}, s{sRG4}, 1\ns_add_u32 s{t+1}, s{t+1}, s{sJ4}\ns_lshl_b32 s{t+1}, s{t+1}, 1")
    for k in range(16):
        p(f"s_add_u32 s{t+2}, s{t+1}, {k}\ns_and_b32 s{t+2}, s{t+2}, 15\ns_mul_i32 s{t+2}, s{t+2}, 6144\ns_add_u32 s{80+k}, s{t+2}, s{t}")
    p(f"v_add_u32 v3, 4096, v{vL16}")
    for s_ in range(1, 4):
        p(f"s_add_u32 s{t}, s{sWAVE}, {s_}\ns_and_b32 s{t}, s{t}, 3\ns_mul_i32 s{t}, s{t}, {SCR_W}\ns_add_u32 s{t}, s{t}, {SCR+(s_-1)*3072}\nv_add_u32 v{3+s_}, s{t}, v{vL16}")
    p(f"s_mul_i32 s{t}, s{sWAVE}, {SCR_W}\ns_add_u32 s{t}, s{t}, {SCR}\nv_add_u32 v7, s{t}, v{vL16}")
    p(f"v_lshlrev_b32 v8, 3, v{vLANE}\ns_mul_i32 s71, s{sTT}, 24576\ns_mul_i32 s{t+1}, s{sJ4}, 3072\ns_add_u32 s71, s71, {WS_V}\ns_add_u32 s70, s71, s{t+1}")
    p(f"v_and_b32 v10, 15, v{vLANE}\nv_lshlrev_b32 v10, 2, v10\ns_lshr_b32 s{t}, s{sTT}, 1\ns_lshl_b32 s{t}, s{t}, 5\ns_and_b32 s{t+1}, s{sTT}, 1\ns_add_u32 s{t}, s{t}, s{t+1}\ns_lshl_b32 s{t}, s{t}, 1")
    p(f"s_lshr_b32 s{t+2}, s{sTT}, 1\ns_lshl_b32 s{t+2}, s{t+2}, 6\ns_lshl_b32 s{t+3}, s{sJ4}, 3\ns_add_u32 s{t+2}, s{t+2}, s{t+3}\ns_add_u32 s{t+2}, s{t+2}, {FL_F3B}")
    p(f"v_and_b32 v9, 1, v{vLANE}\nv_lshl_add_u32 v9, v9, 2, s{t+2}")
    p(f"v_mov_b32 v{P4_BIAS}, 0\nbuffer_load_short_d16_hi v{P4_BIAS}, v10, {sr(SBS,4)}, s{t} offen @@bias")

HRES = [228+i for i in range(20)]
def hload(p):
    A, B = 64, 74
    p(f"s_cmp_ge_u32 s{sJ4}, 4\ns_cselect_b32 s{t}, -1, 1\ns_cselect_b32 s{t+1}, 956, 0\ns_cselect_b32 s{SCS}, 0x05040c0c, 0x01000c0c".replace("0x05040c0c, 0x01000c0c", "4, 0"))
    p(f"s_mul_i32 s{t+2}, s{sJ4}, 80\nv_lshrrev_b32 v10, 4, v{vLANE}\nv_lshl_add_u32 v10, v10, 2, s{t+2}\nv_mul_lo_u32 v10, v10, s{t}\nv_add_u32 v10, s{t+1}, v10")
    p(f"v_and_b32 v11, 15, v{vLANE}\nv_lshlrev_b32 v11, 4, v11\ns_lshl_b32 s{t}, s{t}, 4")
    p(f"s_mul_i32 s{t+3}, s{sTT}, 20480\ns_add_u32 s{t+3}, s{t+3}, {WS_H}")
    for et in range(5):
        for (dst, add) in ((A+2*et, 0), (B+2*et, 4)):
            p(f"v_add_u32 v12, {add}, v10")
            if et == 0 and add: p(f"v_cmp_eq_u32 vcc, 640, v12\nv_mov_b32 v13, 320\nv_cndmask_b32 v12, v12, v13, vcc")
            p(f"v_lshrrev_b32 v13, 3, v12\nv_lshl_add_u32 v13, v13, 8, v11\nv_and_b32 v12, 7, v12\nv_lshl_add_u32 v12, v12, 1, v13")
            p(f"buffer_load_dword{'x2' if not add else ''} {vr(dst, 1 if add else 2)}, v12, {sr(SW,4)}, s{t+3} offen sc1 @@hres")
        if et < 4: p(f"v_add_u32 v10, s{t}, v10")
    p(f"s_mul_i32 s{SCS}, s{SCS}, 0x01010000\ns_add_u32 s{SCS+1}, s{SCS}, 0x03020c0c\ns_sub_u32 s{SCS+2}, 0x07060c0c, s{SCS}\ns_add_u32 s{SCS}, s{SCS}, 0x01000c0c")
def hfix(p):
    A, B = 64, 74
    p("@wait vm=hres")
    for et in range(5):
        a, b, h = A+2*et, B+2*et, HRES[4*et]
        p(f"v_perm_b32 v{h}, v{b}, v{a}, s{SCS}\nv_perm_b32 v{h+1}, v{a+1}, v{a}, s{SCS+1}\nv_lshlrev_b32 v{h+2}, 16, v{a+1}\nv_perm_b32 v{h+3}, v{a+1}, v{a}, s{SCS+2}")

def P4_main(p):
    R = X.get('R', 24)
    def ld(n):
        ft, k = n >> 4, n & 15
        p(f"buffer_load_dwordx4 {vr(P4_RING+(n%R)*4,4)}, v{vL16 if ft < 4 else 3}, {sr(SW,4)}, s{80+k} offen offset:{(ft&3)*1024} sc1 @@z{n}")
    R0 = X.get('R0', 12)
    for n in range(R0): ld(n)
    p("@wait vm=bias lg=z1n")
    for r in range(1, 4): p(f"v_mov_b32 v{P4_BIAS+r}, v{P4_BIAS}")
    def mb_read():
        for f in range(3):
            for s_ in range(3): p(f"ds_read_b128 {vr(P4_MB+4*(f*3+s_),4)}, v7 offset:{s_*3072+f*1024} @@mb{f}")
    def mb_add(f0, pk):
        out = []
        for f in range(3):
            if pk:
                out.append(f"@wait lg=mb{f}")
                for h in range(2):
                    o = vr(P4_OWN+(f0+f)*4+2*h, 2); q = lambda s_: vr(P4_MB+4*(f*3+s_)+2*h, 2)
                    out += [f"v_pk_add_f32 {q(0)}, {q(0)}, {q(1)}", f"v_pk_add_f32 {o}, {o}, {q(2)}", f"v_pk_add_f32 {o}, {o}, {q(0)}"]
            else:
                for s_ in range(3):
                    for r in range(4): out.append(f"v_add_f32 v{P4_OWN+(f0+f)*4+r}, v{P4_OWN+(f0+f)*4+r}, v{P4_MB+4*(f*3+s_)+r}")
        return out
    def wr(ft):
        for s_ in range(1, 4): p(f"ds_write_b128 v{3+s_}, {vr(P4_ACC+((ft&1)*3+s_-1)*4,4)} offset:{(ft%3)*1024}")
    fill = z1e_lines() if X.get('z1p4', 1) else []
    fl = p.capture(lambda q: (q(f"@wait vm=z1s\ns_mov_b32 s{sU}, s{SSD+2}"), flag_store(q, FL_F3B, True)))
    PER = X.get('p4v', 2)
    nl = R0
    for n in range(96):
        ft, k = n >> 4, n & 15
        p(f"@wait vm=z{n}")
        z = vr(P4_RING+(n%R)*4, 4)
        for s_ in range(4):
            d = vr(P4_OWN+ft*4, 4) if s_ == 0 else vr(P4_ACC+((ft&1)*3+s_-1)*4, 4)
            c = d if k else (vr(P4_BIAS, 4) if s_ == 0 else "0")
            p(f"{MF16} {d}, {z}, {ar((s_*16+k)*4,4)}, {c}")
            for _ in range(PER):
                if fill: p(fill.pop(0))
        while nl < min(96, n + 1 + R) and nl < n + 1 + R0 + 2*(n+1): ld(nl); nl += 1
        if n == X.get('p4f', 44) and X.get('z1p4', 1): assert not fill; p("\n".join(fl))
        if k == 2 and ft >= 1:
            if ft == 4: p("s_barrier")
            wr(ft-1)
        if ft == 3 and k == 5: assert not fill; p("s_waitcnt lgkmcnt(0)\ns_barrier"); mb_read()
        if ft == 3 and k == 8: p("s_waitcnt lgkmcnt(0)"); fill = mb_add(0, False)
        if n == 62: p(f"buffer_load_dword v254, v9, {sr(SW,4)}, 0 offen sc1 @@f3b")
        if n == 74:
            a, b = p.label("f3b"), p.label("f3bok")
            p(f"@wait vm=f3b\ns_mov_b32 s{sSPIN}, 0x100000\n{a}:\nv_cmp_ne_u32 vcc, s{sEP}, v254\ns_cbranch_vccz {b}\n@cond_begin")
            p(f"buffer_load_dword v254, v9, {sr(SW,4)}, 0 offen sc1\ns_waitcnt vmcnt(0)\ns_sub_u32 s{sSPIN}, s{sSPIN}, 1\ns_cbranch_scc0 {a}\n@cond_end\n{b}:")
            for f in range(6): p(f"buffer_load_dwordx2 {vr(P4_Z1+2*f,2)}, v8, {sr(SW,4)}, s70 offen offset:{512*f} sc1 @@z1l")
    assert not fill
    wr(5)
    p("s_waitcnt lgkmcnt(0)\ns_barrier")
    mb_read()
    def vout(u):
        o = P4_RING + 4*u
        for ff in range(2):
            ft = 2*u+ff; z = P4_RING+16+4*ff; g = P4_OWN+4*ft
            for h in range(2): p(f"v_lshlrev_b32 v{z+2*h}, 16, v{P4_Z1+2*ft+h}\nv_and_b32 v{z+2*h+1}, s{sMASKHI}, v{P4_Z1+2*ft+h}")
            for h in range(2): p(f"v_pk_mul_f32 {vr(z+2*h,2)}, {vr(z+2*h,2)}, {vr(g+2*h,2)}")
            for h in range(2): p(f"v_cvt_pk_bf16_f32 v{o+2*ff+h}, v{z+2*h}, v{z+2*h+1}")
        p(f"buffer_store_dwordx4 {vr(o,4)}, v{vL16}, {sr(SW,4)}, s70 offen offset:{1024*u} @@vs")
    p("@wait vm=z1l")
    vout(0)
    p("\n".join(mb_add(3, True)))
    vout(1); vout(2)

def wo_rd(dst, ks, et, tag):
    o = et*24576 + ks*1024
    return f"ds_read_b128 {dst}, v{vL16 if o < 61440 else 5} offset:{o % 61440} @@{tag}"
def P5_pre(p):
    p(f"v_add_u32 v5, 61440, v{vL16}")
    for ks in range(12):
        for et in range(5): p(wo_rd(ar((ks*5+et)*4, 4), ks, et, "wpa"))
    p(f"v_and_b32 v10, 15, v{vLANE}\nv_mul_u32_u24 v10, 2560, v10\nv_lshrrev_b32 v11, 4, v{vLANE}\nv_lshl_add_u32 v6, v11, 3, v10")
    p(f"s_lshr_b32 s86, s{sTT}, 1\ns_lshl_b32 s86, s86, 5\ns_and_b32 s{t+1}, s{sTT}, 1\ns_add_u32 s86, s86, s{t+1}\ns_mul_i32 s86, s86, 1280\ns_mul_i32 s{t+1}, s{sJ4}, 160\ns_add_u32 s86, s86, s{t+1}")

def P5_main(p):
    NB = 3
    order = []
    for i in range(12): order += [i, 12+i]
    p(f"s_add_u32 s81, s71, 4096\ns_add_u32 s82, s71, 8192\ns_add_u32 s83, s71, 12288\ns_add_u32 s84, s71, 16384\ns_add_u32 s85, s71, 20480")
    def vl(i):
        if i >= 24: return
        ks = order[i]
        p(f"buffer_load_dwordx4 {vr(P5_V+4*ks,4)}, v{vL16}, {sr(SW,4)}, s{71 if ks < 4 else 80+(ks>>2)} offen offset:{(ks&3)*1024} sc1 @@v{ks}")
    def bl(ks, et):
        p(wo_rd(vr(160 + ((ks % NB)*5+et)*4, 4), ks, et, f"wb{ks}_{et}"))
    VA = X.get('va', 8)
    for i in range(VA): vl(i)
    for i, ks in enumerate(order):
        for et in range(5):
            a = vr(HRES[4*et], 4)
            p(f"@wait vm=v{ks}" + (f" lg=wb{ks}_{et}" if ks >= 12 else ""))
            b = ar((ks*5+et)*4, 4) if ks < 12 else vr(160+((ks % NB)*5+et)*4, 4)
            p(f"{MF16} {a}, {b}, {vr(P5_V+4*ks,4)}, {a}")
            if ks >= 12 and ks+NB < 24: bl(ks+NB, et)
            if et == 0: vl(i+VA)
        if X.get('p3st') and i in (0, 11, 23): stamp(p, {0: 28, 11: 29, 23: 30}[i])
    for et in range(5):
        a = HRES[4*et]; o = 16+2*et
        p(f"v_cvt_pk_bf16_f32 v{o}, v{a}, v{a+1}\nv_cvt_pk_bf16_f32 v{o+1}, v{a+2}, v{a+3}")
        p(f"buffer_store_dwordx2 {vr(o,2)}, v6, {sr(SOUT,4)}, s86 offen offset:{32*et}")

def P5_pre2(p):
    for ks in range(12, 15):
        for et in range(5):
            p(wo_rd(vr(160 + ((ks % 3)*5+et)*4, 4), ks, et, f"wb{ks}_{et}"))

def kernel(p):
    P1(p)
    stamp(p, 2)
    with only_wave(p, 0): flag_store(p, FL_F1, False)
    code_srd(p); code_touch(p, 64)
    nW2, nW3 = X.get('nw2', 4), X.get('nw3', 1)
    if X.get('tpos', 0) == 1: touch(p, 'ws', 64); touch(p, 'h', 64); touch(p, 'z1', 64)
    WSP_addr(p)
    DL = [-SCR + 36864*b for b in range(3)] + [0]
    for c_ in range(nW2): emit(p, WSP_groups(c_, DL[c_]))
    if X.get('tpos', 0) == 2: touch(p, 'h', 64); touch(p, 'z1', 64)
    P2_prep(p)
    for c_ in range(nW2):
        if DL[c_]: p(f"v_add_u32 v8, {DL[c_]}, v{vWSR}\nv_add_u32 v9, {DL[c_]}, v{vWSR+1}")
        emit(p, WSP_read(c_, rd=8 if DL[c_] else None))
    stamp(p, 3)
    a, b = p.label("xp"), p.label("xpd")
    p(f"s_lshl_b32 s{t}, s{sC}, 7\ns_add_u32 s{t}, s{t}, {FL_X}\nv_and_b32 v11, 31, v{vLANE}\nv_lshlrev_b32 v11, 2, v11\ns_mov_b32 s{sSPIN}, 0x100000")
    p(f"{a}:\nbuffer_load_dword v10, v11, {sr(SW,4)}, s{t} offen sc1\ns_waitcnt vmcnt(0)\nv_subrev_u32 v10, s{sEP}, v10\nv_cmp_lt_u32 vcc, 15, v10")
    p(f"s_cbranch_vccz {b}\ns_sub_u32 s{sSPIN}, s{sSPIN}, 1\ns_cbranch_scc0 {a}\n{b}:")
    p(f"v_readfirstlane_b32 s{t}, v10\nv_cmp_ne_u32 vcc, s{t}, v10\ns_cmp_eq_u64 vcc, 0\ns_cselect_b32 s{sFAST}, 1, 0")
    if X.get('slow'): p(f"s_mov_b32 s{sFAST}, 0")
    stamp(p, 4)
    with only_wave(p, 0):
        p(f"s_lshl_b32 s{sU}, s{sQ2}, 6"); poll(p, FL_F1, 64)
    with only_wave(p, 1):
        p(f"s_mul_i32 s{sU}, s{sJ3}, 3\ns_add_u32 s{sU}, s{sU}, 48\ns_lshr_b32 s{sU}, s{sU}, 1\ns_mul_i32 s{sU}, s{sU}, 5"); poll(p, FL_F1, 10)
    p("s_waitcnt lgkmcnt(0)\ns_barrier")
    stamp(p, 5)
    P2_main(p, LIN_groups('wz', 0))
    stamp(p, 6)
    p("s_waitcnt vmcnt(0)\ns_barrier")
    with only_wave(p, 0):
        p(f"s_lshl_b32 s{sU}, s{sC}, 5\ns_add_u32 s{sU}, s{sU}, s{sL}"); flag_store(p, FL_F2, True)
    code_touch(p, 13)
    assert nW3 in (0, 1)
    if nW3: emit(p, WSP_groups(nW2))
    P3_prep(p)
    if nW3: emit(p, WSP_read(nW2))
    stamp(p, 7)
    p(f"s_sub_u32 s{t}, 63, s{sRB3}\ns_min_u32 s{sU}, s{t}, s{sRB3}\ns_lshl_b32 s{sU}, s{sU}, 3"); poll(p, FL_F2, 8)
    stamp(p, 8)
    P3_loads(p)
    P3_pass(p, 0)
    stamp(p, 9)
    rest = list(range(nW2+nW3, 8))
    st = {'issued': None, 'lastread': nW2+nW3-1}
    def step():
        gs = []
        if st['issued'] is not None:
            if st['issued'] == 7 and not st.get('ok7'): return gs
            gs += WSP_read(st['issued']); st['lastread'] = st['issued']; st['issued'] = None
        if rest:
            ch = rest.pop(0); g = WSP_groups(ch)
            if st['lastread'] >= 0: g[0] = [f"@wait lg=wr{st['lastread']}"] + g[0]
            gs += g; st['issued'] = ch
        return gs
    p.weave(p.capture(P3_z2a), LIN_groups('wz', 1) + step(), start=X.get('zas', 6), every=X.get('zae', 9))
    p("@wait vm=zs\n@wait vm=wz1")
    p(f"s_lshl_b32 s{sU}, s{sRB3}, 4\ns_add_u32 s{sU}, s{sU}, s{sJ3}"); flag_store(p, FL_FS, True)
    p("s_barrier")
    stamp(p, 10)
    K1 = X.get('k1', 5)
    p.weave(p.capture(P3_pass, 1, 0, K1), step(), start=4, every=X.get('z1e1', 4))
    p(f"s_lshl_b32 s{sU}, s{sRB3}, 4"); poll(p, FL_FS, 16)
    stamp(p, 11)
    P3_z2b(p)
    p("@wait vm=z2s\ns_barrier")
    with only_wave(p, 0):
        p(f"s_lshr_b32 s{sU}, s{sJ3}, 1\ns_lshl_b32 s{sU}, s{sU}, 5\ns_lshr_b32 s{t}, s{sRB3}, 2\ns_lshl_b32 s{t}, s{t}, 1\ns_add_u32 s{sU}, s{sU}, s{t}\ns_and_b32 s{t}, s{sJ3}, 1\ns_add_u32 s{sU}, s{sU}, s{t}")
        flag_store(p, FL_F3, False)
    stamp(p, 12)
    p.weave(p.capture(P3_pass, 1, K1, 20), step() + step() + LIN_groups('wo', 0), start=4, every=X.get('z1e2', 6))
    p("s_barrier")
    stamp(p, 13)
    emit(p, LIN_groups('wo', 1))
    P3_z1e_prep(p); st['ok7'] = 1
    hload(p)
    while rest or st['issued'] is not None: emit(p, step())
    hfix(p)
    P4_prep(p)
    code_touch(p, 254)
    p("s_waitcnt vmcnt(0)")
    stamp(p, 15)
    with only_wave(p, 0):
        p(f"s_lshl_b32 s{sU}, s{sJ4}, 5"); poll(p, FL_F3, 32)
    p("s_barrier")
    stamp(p, 16)
    P4_main(p)
    stamp(p, 17)
    p("@wait vm=vs")
    p(f"s_lshl_b32 s{sU}, s{sTT}, 3\ns_add_u32 s{sU}, s{sU}, s{sJ4}"); flag_store(p, FL_F4, True)
    P5_pre(p); P5_pre2(p)
    p(f"s_lshl_b32 s{sU}, s{sTT}, 3"); poll(p, FL_F4, 8)
    p("@wait lg=wpa")
    stamp(p, 18)
    P5_main(p)
    stamp(p, 19)
    lab = p.label("noep")
    p(f"s_or_b32 s{t}, s2, s{sWAVE}\ns_cmp_lg_u32 s{t}, 0\ns_cbranch_scc1 {lab}")
    p(f"v_mov_b32 v10, s{sEP}\nv_mov_b32 v11, 0\ns_mov_b64 exec, 1\nbuffer_store_dword v10, v11, {sr(SW,4)}, 0 offen\ns_mov_b64 exec, -1\n{lab}:")
    if X.get('stamp'):
        p("s_waitcnt vmcnt(0)")
        stamp(p, 24)
        p(f"s_lshl_b32 s{t}, s2, 2\ns_add_u32 s{t}, s{t}, s{sWAVE}\ns_lshl_b32 s{t}, s{t}, 8\ns_add_u32 s{t}, s{t}, {WS_STAMP}\nv_lshlrev_b32 v10, 2, v{vLANE}")
        p(f"buffer_store_dword v255, v10, {sr(SW,4)}, s{t} offen")

def build():
    kn = NAME + "_kernel"
    p = Prog()
    prologue(p, kn)
    kernel(p)
    if X.get('nobg'):
        keep = []
        for l in p.lines:
            if "@@" in l and l.split("@@")[1].strip()[:2] in ("wz", "ws", "wo") and l.startswith("buffer_load"):
                tag = l.split("@@")[1].strip()
                if (X['nobg'] & {"wz": 1, "ws": 2, "wo": 4}[tag[:2]]): l = f"buffer_store_dword v10, v11, {sr(SW,4)}, 0 offen offset:4092 @@{tag}"; l = None
            if l is None:
                continue
            if l.startswith("@wait"):
                toks = [x for x in l.split()[1:] if not (x[3:5] in ("wz", "ws", "wo") and x.startswith("vm=") and (X['nobg'] & {"wz": 1, "ws": 2, "wo": 4}[x[3:5]]))]
                if not toks: continue
                l = "@wait " + " ".join(toks)
            keep.append(l)
        p.lines = keep
    p("END:\ns_endpgm\nCODE_END:\n.set CODE_BYTES, CODE_END - " + kn + " - 128")
    return ("; @launch grid=(256,1,1) block=(256,1,1) lds=163840\n" + '.amdgcn_target "amdgcn-amd-amdhsa--gfx950"\n.text\n' + p.finish() +
f""".section .rodata,"a"
.p2align 6
.amdhsa_kernel {kn}
  .amdhsa_next_free_vgpr 512
  .amdhsa_next_free_sgpr 102
  .amdhsa_accum_offset 256
  .amdhsa_group_segment_fixed_size 0
  .amdhsa_kernarg_size 104
  .amdhsa_user_sgpr_count 2
  .amdhsa_user_sgpr_kernarg_segment_ptr 1
  .amdhsa_system_sgpr_workgroup_id_x 1
.end_amdhsa_kernel
""")

if __name__ == "__main__":
    for a in sys.argv[2:]:
        k, v = a.split("="); X[k] = int(v)
    open(sys.argv[1], "w").write(build())
```

```python
import sys, struct
from asmlib import Prog, vr, ar, sr
NAME = "sequential_preLN__spectral_fnet__mixer_gmlp__prompt"
X = {}
def fhex(x): return hex(struct.unpack("<I", struct.pack("<f", x))[0])
FL_F1, FL_F2, FL_FS, FL_F3, FL_F3B, FL_F4, FL_X = 0x1000, 0x2000, 0x3000, 0x5000, 0x6000, 0x7000, 0x8000
WS_AB, WS_XB, WS_H, WS_HS, WS_Z2, WS_Z1, WS_ZS = 0x010000, 0x158000, 0x180000, 0x400000, 0x480000, 0x800000, 0xB00000
WS_V = WS_Z1
WS_WI, WS_WO, WS_STAMP, WS_SIZE = 0xC00000, 0xE00000, 0xF00000, 0x1000000
SX, SCS, SSS, SCD, SSD, SWI, SWS, SBS, SWO, SOUT, SW, ST = 4, 8, 12, 16, 20, 24, 28, 32, 36, 40, 44, 48
sWAVE, sC, sL, sMASKHI = 52, 53, 54, 55
sI2, sP2, sQ2 = 56, 57, 58
sRB3, sJ3 = 59, 60
sRB4, sJ4, sRG4, sTT = 61, 62, 63, 64
sB0, sB1, sB2, sB3 = 65, 66, 67, 68
sRG, sQ, sG = 69, 70, 71
t = 72
sEP, sFAST, sSPIN, sU = 96, 97, 98, 99
SRDS = [(SX, 0, 2621440), (SW, 96, WS_SIZE), (SCD, 24, 819200), (SSD, 32, 819200), (SCS, 8, 8388608), (SSS, 16, 8388608),
        (SWI, 48, 1966080), (SWS, 56, 8388608), (SBS, 64, 4096), (SWO, 72, 983040), (SOUT, 80, 2621440)]
vLANE, vL16, vSTMP = 1, 2, 0
P1_XR = 10272; P1_B = 41216; P1_XA = P1_B + 102400; P1_T = P1_XA + 640
P2S = 145408; P2S_W = 4608
WZ = 61440; SCR = 122880; SCR_W = 9216; TBL = SCR + 4*SCR_W; CST = TBL + 1024
FULL = "row_mask:0xf bank_mask:0xf"
MF16 = "v_mfma_f32_16x16x32_bf16"
LOG2E = 1.4426950408889634
GK0, GK1 = -LOG2E*1.5957691216057308, -LOG2E*0.07135481282

def stamp(p, i):
    if not X.get('stamp'): return
    if X['stamp'] > 1 and not (X['stamp'] >> i) & 1 and i not in (0, 24): return
    p(f"s_memrealtime s[100:101]\ns_waitcnt lgkmcnt(0)\nv_writelane_b32 v{vSTMP}, s100, {i}")
    if i in (0, 24): p(f"s_memtime s[100:101]\ns_waitcnt lgkmcnt(0)\nv_writelane_b32 v{vSTMP}, s100, {32+i}")
def xstamp(p, i):
    if not X.get('xst'): return
    p(f"s_memrealtime s[100:101]\ns_waitcnt lgkmcnt(0)\nv_writelane_b32 v{vSTMP}, s100, {i}")
def G(*lines):
    out = []
    for l in lines: out += [x.strip() for x in l.split("\n") if x.strip()]
    return out
def emit(p, gs):
    for g in gs: p("\n".join(g))
def swz_src(p, vdst, row_bytes, tmp, both=True):
    p(f"v_lshrrev_b32 v{tmp}, 3, v{vLANE}\nv_mul_u32_u24 v{vdst}, {row_bytes}, v{tmp}")
    p(f"v_lshrrev_b32 v{tmp}, 4, v{vLANE}\nv_and_b32 v{tmp+1}, 7, v{vLANE}\nv_xor_b32 v{tmp}, v{tmp}, v{tmp+1}\nv_lshl_add_u32 v{vdst}, v{tmp}, 4, v{vdst}")
    if both: p(f"v_xor_b32 v{vdst+1}, 64, v{vdst}\nv_add_u32 v{vdst+1}, {8*row_bytes}, v{vdst+1}")
def swz_rd(p, vdst, tmp, halfstride=1024):
    p(f"v_and_b32 v{tmp}, 15, v{vLANE}")
    if halfstride == 1024: p(f"v_lshlrev_b32 v{vdst}, 7, v{tmp}")
    else: p(f"v_bfe_u32 v{tmp+1}, v{vLANE}, 3, 1\nv_mul_u32_u24 v{tmp+1}, {halfstride-1024}, v{tmp+1}\nv_lshl_add_u32 v{vdst}, v{tmp}, 7, v{tmp+1}")
    p(f"v_lshrrev_b32 v{tmp}, 1, v{tmp}\nv_lshrrev_b32 v{tmp+1}, 4, v{vLANE}\nv_xor_b32 v{tmp}, v{tmp}, v{tmp+1}")
    p(f"v_lshl_add_u32 v{vdst}, v{tmp}, 4, v{vdst}\nv_xor_b32 v{vdst+1}, 64, v{vdst}")
NBAR = {}
def bar(p, name):
    L = NBAR.setdefault(id(p), []); L.append(name)
    if getattr(p, 'isx', False): xstamp(p, len(L))
    p("s_barrier")
def flag_store(p, base, local):
    p(f"s_lshl_b32 s{t}, s{sU}, 2\ns_add_u32 s{t}, s{t}, {base}\nv_mov_b32 v10, s{sEP}\nv_mov_b32 v11, 0\ns_mov_b64 exec, 1")
    if local:
        a, b = p.label("fs_slow"), p.label("fs_done")
        p(f"s_cmp_eq_u32 s{sFAST}, 0\ns_cbranch_scc1 {a}\n@cond_begin")
        p(f"buffer_store_dword v10, v11, {sr(SW,4)}, s{t} offen\ns_branch {b}")
        p(f"{a}:\nbuffer_wbl2 sc1\ns_waitcnt vmcnt(0)\nbuffer_store_dword v10, v11, {sr(SW,4)}, s{t} offen sc1\n{b}:\n@cond_end")
    else:
        p(f"buffer_store_dword v10, v11, {sr(SW,4)}, s{t} offen sc1")
    p("s_mov_b64 exec, -1")
def poll(p, base, n):
    a, b = p.label("poll"), p.label("polled")
    p(f"s_lshl_b32 s{t}, s{sU}, 2\ns_add_u32 s{t}, s{t}, {base}\nv_min_u32 v11, {n-1}, v{vLANE}\nv_lshlrev_b32 v11, 2, v11\ns_mov_b32 s{sSPIN}, 0x100000")
    p(f"{a}:\nbuffer_load_dword v10, v11, {sr(SW,4)}, s{t} offen sc1\ns_waitcnt vmcnt(0)\nv_cmp_ne_u32 vcc, s{sEP}, v10")
    p(f"s_cbranch_vccz {b}\ns_sub_u32 s{sSPIN}, s{sSPIN}, 1\ns_cbranch_scc0 {a}\n{b}:")
class cond:
    def __init__(self, p, test): self.p = p; self.test = test
    def __enter__(self):
        self.lab = self.p.label("skip"); self.p(f"{self.test}\ns_cbranch_scc1 {self.lab}\n@cond_begin")
    def __exit__(self, *a): self.p(f"@cond_end\n{self.lab}:")
def only_wave(p, w): return cond(p, f"s_cmp_lg_u32 s{sWAVE}, {w}")
def epoch_fix(p): p(f"s_mul_i32 s{sEP}, s{sEP}, 0x2C9277B5\ns_add_u32 s{sEP}, s{sEP}, 0xAC564B05")

def map4(p):
    if not X.get('m84', 1):
        map5(p, sTT, sJ4, sRG4)
        p(f"s_sub_u32 s{sRB4}, s{sTT}, s{sWAVE}\ns_lshr_b32 s{sRB4}, s{sRB4}, 1\ns_lshl_b32 s{sRG4}, s{sRG4}, 1\ns_add_u32 s{sRG4}, s{sRG4}, s{sJ4}")
        return
    p(f"s_and_b32 s{t}, s{sC}, 6\ns_lshr_b32 s{t+1}, s{sL}, 4\ns_add_u32 s{t}, s{t}, s{t+1}\ns_lshl_b32 s{t}, s{t}, 2\ns_sub_u32 s{t+1}, 60, s{t}")
    p(f"s_bitcmp1_b32 s{sL}, 3\ns_cselect_b32 s{sRB4}, s{t+1}, s{t}\ns_bfe_u32 s{t}, s{sL}, 0x10002\ns_lshl_b32 s{t}, s{t}, 1\ns_add_u32 s{sRB4}, s{sRB4}, s{t}")
    p(f"s_and_b32 s{t}, s{sL}, 3\ns_and_b32 s{sJ4}, s{sC}, 1\ns_lshl_b32 s{sJ4}, s{sJ4}, 2\ns_add_u32 s{sJ4}, s{sJ4}, s{t}")
    p(f"s_lshl_b32 s{t}, s{t}, 1\ns_lshr_b32 s{sRG4}, s{sL}, 2\ns_add_u32 s{sRG4}, s{sRG4}, s{t}")
    p(f"s_lshl_b32 s{sTT}, s{sRB4}, 1\ns_add_u32 s{sTT}, s{sTT}, s{sWAVE}")
def map5(p, tt, j, rg):
    p(f"s_sub_u32 s{tt}, s{sRB3}, s{sWAVE}\ns_lshr_b32 s{rg}, s{sL}, 3\ns_and_b32 s{j}, s{rg}, 1\ns_lshl_b32 s{j}, s{j}, 1\ns_add_u32 s{tt}, s{tt}, s{j}")
    p(f"s_lshl_b32 s{tt}, s{tt}, 1\ns_add_u32 s{tt}, s{tt}, s{sWAVE}\ns_and_b32 s{j}, s{sL}, 7")
def prologue(p, kname):
    p(f".globl {kname}\n.p2align 8\n.type {kname},@function\n{kname}:")
    p(f"s_cmp_ge_u32 s2, 256\ns_cbranch_scc1 END")
    for (s, off, size) in SRDS: p(f"s_load_dwordx2 {sr(s,2)}, s[0:1], {off}")
    p(f"s_getpc_b64 {sr(ST,2)}\ns_mov_b32 s{ST+2}, CODE_BYTES\ns_mov_b32 s{ST+3}, 0x20000\ns_lshr_b32 s{sL}, s2, 3\ns_lshl_b32 s{t}, s{sL}, 7")
    p(f"v_xor_b32 v3, 0x100, v0\nv_lshlrev_b32 v3, 12, v3\ns_mov_b64 exec, 0xffff\nbuffer_load_dword v190, v3, {sr(ST,4)}, s{t} offen\ns_mov_b64 exec, -1")
    p(f"v_lshrrev_b32 v3, 6, v0\nv_and_b32 v{vLANE}, 63, v0\nv_readfirstlane_b32 s3, v3")
    for (s, off, size) in SRDS: p(f"s_mov_b32 s{s+2}, {size}\ns_mov_b32 s{s+3}, 0x20000")
    p(f"v_lshlrev_b32 v{vL16}, 4, v{vLANE}\ns_and_b32 s{sC}, s2, 7\ns_mov_b32 s{sMASKHI}, 0xffff0000\ns_and_b32 s{sWAVE}, s3, 3")
    p(f"s_lshl_b32 s{sI2}, s{sC}, 2\ns_lshr_b32 s{t}, s{sL}, 3\ns_add_u32 s{sI2}, s{sI2}, s{t}")
    p(f"s_bfe_u32 s{sP2}, s{sL}, 0x10002\ns_and_b32 s{sQ2}, s{sL}, 3")
    p(f"s_lshl_b32 s{t}, s{sC}, 2\ns_sub_u32 s{t+1}, 60, s{t}\ns_cmp_ge_u32 s{sL}, 16\ns_cselect_b32 s{sRB3}, s{t+1}, s{t}")
    p(f"s_add_u32 s{sRB3}, s{sRB3}, s{sWAVE}\ns_and_b32 s{sJ3}, s{sL}, 15")
    p(f"s_lshr_b32 s{sRG}, s{sL}, 2\ns_lshl_b32 s{t}, s{sC}, 3\ns_add_u32 s{sRG}, s{sRG}, s{t}\ns_and_b32 s{sQ}, s{sL}, 3")
    p(f"s_cmp_ge_u32 s3, 4\ns_cbranch_scc1 XPROG")

A_MF, A_MX = 0, 32
def P1(p):
    st = "sc1"
    sG0M, sJ0M, sJ31M, sXR = 80, 82, 84, 86
    if X.get('stamp'): p(f"v_mov_b32 v{vSTMP}, 0")
    if X.get('dbg'): p(f"s_load_dwordx2 s[2:3], s[0:1], 88\ns_memrealtime s[100:101]\ns_waitcnt lgkmcnt(0)\nv_writelane_b32 v{vSTMP}, s100, 31")
    p(f"s_lshl_b32 s{sG}, s{sRG}, 3\ns_lshl_b32 s{t}, s{sWAVE}, 1\ns_add_u32 s{sG}, s{sG}, s{t}")
    p(f"v_lshlrev_b32 v4, 2, v{vLANE}\ns_mul_i32 s{sXR}, s{sWAVE}, {P1_XR}")
    p(f"s_mul_i32 s88, s{sG}, 1280\ns_add_u32 s92, s88, 1280")
    for gb in range(2):
        b = 88+4*gb
        p(f"s_sub_u32 s{b+1}, {2048*1280}, s{b}\ns_sub_u32 s{b+2}, {1024*1280}, s{b}\ns_add_u32 s{b+3}, {1024*1280}, s{b}")
    p(f"s_cmp_eq_u32 s{sG}, 0\ns_cselect_b32 s89, {512*1280}, s89\ns_cselect_b32 s91, {1536*1280}, s91\ns_cselect_b32 s{sG0M}, -1, 0\ns_mov_b32 s{sG0M+1}, 0")
    p("s_waitcnt lgkmcnt(0)")
    stamp(p, 0)
    for k in range(8):
        p(f"s_add_u32 m0, s{sXR}, {k*1280}")
        p(f"buffer_load_dwordx4 v{vL16}, {sr(SX,4)}, s{88+k} offen lds")
        p(f"buffer_load_dword v4, {sr(SX,4)}, s{88+k} offen offset:1024 lds @@x")
    p(f"s_load_dword s{sEP}, {sr(SW,2)}, 0")
    vA0, vA1, vB0, vB1, vB2, vSG, vT, vST, vST2, vXA, vXS, vC0, vC1 = 32, 33, 34, 36, 38, 40, 41, 42, 43, 44, 45, 46, 47
    sPI = t+5
    def pi_calc(d):
        p(f"s_mul_i32 s{d}, s{sWAVE}, 3\ns_add_u32 s{d}, s{d}, 4\ns_lshl_b32 s{t}, s{sWAVE}, 1\ns_sub_u32 s{t}, s{t}, 4\ns_cmp_ge_u32 s{sWAVE}, 2\ns_cselect_b32 s{d}, s{t}, s{d}")
    vJ, vD, vM, vFJ0, vAW, vTW = 9, 12, 16, 20, 21, 25
    p(f"v_and_b32 v{vJ}, 31, v{vLANE}")
    p(f"v_cmp_eq_u32 {sr(sJ0M,2)}, 0, v{vJ}\nv_cmp_eq_u32 {sr(sJ31M,2)}, 31, v{vJ}")
    p(f"v_lshrrev_b32 v10, 5, v{vLANE}\nv_mul_u32_u24 v11, 5120, v10\nv_add_u32 v11, s{sXR}, v11\nv_mul_u32_u24 v{vJ}, 20, v{vJ}")
    p(f"v_add_u32 v{vD}, v11, v{vJ}\nv_sub_u32 v{vM}, v11, v{vJ}\nv_add_u32 v{vM}, 1260, v{vM}")
    for kk in range(1, 4): p(f"v_add_u32 v{vD+kk}, {1280*kk}, v{vD}\nv_add_u32 v{vM+kk}, {1280*kk}, v{vM}")
    p(f"v_cndmask_b32 v{vFJ0}, 0, 1.0, {sr(sJ0M,2)}")
    p(f"v_mul_u32_u24 v11, 640, v10\nv_add3_u32 v{vAW}, v11, v{vJ}, s{sXR}")
    for cmb in range(1, 4): p(f"v_add_u32 v{vAW+cmb}, {1280*cmb}, v{vAW}")
    p(f"s_lshl_b32 s{t}, s{sWAVE}, 3\ns_add_u32 s{t}, s{t}, {P1_T}\nv_lshl_add_u32 v{vTW}, v10, 2, s{t}")
    pi_calc(sPI)
    p(f"v_and_b32 v10, 7, v{vLANE}\nv_lshrrev_b32 v11, 1, v10\nv_mul_u32_u24 v{vA0}, {P1_XR}, v11")
    p(f"v_and_b32 v10, 1, v{vLANE}\nv_mul_u32_u24 v11, 640, v10\nv_add_u32 v{vA0}, v{vA0}, v11")
    p(f"v_lshlrev_b32 v{vSG}, 31, v10\nv_or_b32 v{vSG}, 1.0, v{vSG}")
    p(f"v_bfe_u32 v10, v{vLANE}, 3, 1\nv_mul_u32_u24 v11, 1280, v10\nv_add_u32 v{vA0}, v{vA0}, v11")
    p(f"v_lshrrev_b32 v10, 4, v{vLANE}\nv_lshl_add_u32 v{vA0}, v10, 4, v{vA0}")
    p(f"v_lshlrev_b32 v{vT}, 4, v10\nv_add_u32 v{vXA}, {P1_XA}, v{vT}\nv_add_u32 v{vT}, {P1_T}, v{vT}")
    p(f"s_cmp_lt_u32 s{sWAVE}, 2\ns_cselect_b32 s{t}, 2560, 0\ns_cselect_b32 s{t+1}, 0, 1.0\nv_add_u32 v{vA1}, s{t}, v{vA0}\nv_mul_f32 v{vC1}, s{t+1}, v{vSG}")
    p(f"s_cmp_eq_u32 s{sWAVE}, 1\ns_cselect_b32 s{t}, 2560, 0\ns_cselect_b32 s{t+1}, 0, 1.0\nv_add_u32 v{vA0}, s{t}, v{vA0}\nv_mul_f32 v{vC0}, s{t+1}, v{vSG}")
    swz_rd(p, vB0, 10, halfstride=5120)
    p(f"s_mul_i32 s{t}, s{sPI}, 10240\ns_add_u32 s{t}, s{t}, {P1_B}\nv_add_u32 v{vB0}, s{t}, v{vB0}\nv_add_u32 v{vB0+1}, s{t}, v{vB0+1}")
    for i, v in ((1, vB1), (2, vB2)): p(f"v_add_u32 v{v}, {10240*i}, v{vB0}\nv_add_u32 v{v+1}, {10240*i}, v{vB0+1}")
    p(f"s_mul_i32 s{t+4}, s{sQ}, 81920\ns_lshr_b32 s{t}, s{sRG}, 2\ns_mul_i32 s{t}, s{t}, 5120\ns_add_u32 s{t+4}, s{t+4}, s{t}")
    p(f"s_and_b32 s{t}, s{sRG}, 3\ns_lshl_b32 s{t}, s{t}, 8\ns_add_u32 s{t+4}, s{t+4}, s{t}\ns_add_u32 s{t+4}, s{t+4}, {WS_AB}")
    for s_ in range(3):
        p(f"s_add_u32 s{t}, s{sPI}, {s_}\ns_cmp_ge_u32 s{t}, 5\ns_cselect_b32 s{t+1}, {655360-5120}, 0\ns_lshl_b32 s{t}, s{t}, 10\ns_add_u32 s{t}, s{t}, s{t+1}\ns_add_u32 s{t}, s{t}, s{t+4}\nv_mov_b32 v{5+s_}, s{t}")
    p(f"v_lshrrev_b32 v10, 5, v{vLANE}\nv_mul_u32_u24 v{vST}, 327680, v10\nv_and_b32 v10, 15, v{vLANE}\nv_lshlrev_b32 v{vXS}, 2, v10\nv_lshl_add_u32 v{vST}, v10, 4, v{vST}")
    p(f"v_bfe_u32 v10, v{vLANE}, 4, 1\nv_lshl_add_u32 v{vST2}, v10, 3, v{vST}\nv_add_u32 v{vST2}, v{vST2}, v7")
    p(f"v_cmp_eq_u32 vcc, 1, v10\nv_cndmask_b32 v5, v5, v6, vcc\nv_add_u32 v{vST}, v{vST}, v5")
    p(f"s_mov_b32 s93, {fhex(1/640)}\ns_mov_b32 s94, {fhex(1/1280)}\ns_mov_b32 s95, {fhex(1e-5)}\ns_waitcnt lgkmcnt(0)")
    epoch_fix(p)
    p("@wait vm=x")
    stamp(p, 20)
    RAW = 64
    for kk in range(4):
        r = RAW + 12*kk
        p(f"ds_read2_b32 {vr(r,2)}, v{vD+kk} offset0:0 offset1:1")
        p(f"ds_read2_b32 {vr(r+10,2)}, v{vM+kk} offset0:4 offset1:5")
        p(f"ds_read2_b32 {vr(r+8,2)}, v{vM+kk} offset0:2 offset1:3")
        p(f"ds_read2_b32 {vr(r+2,2)}, v{vD+kk} offset0:2 offset1:3")
        p(f"ds_read2_b32 {vr(r+6,2)}, v{vM+kk} offset0:0 offset1:1")
        p(f"ds_read_b32 v{r+4}, v{vD+kk} offset:16 @@xr{kk}")
    T, CA = 112, 152
    S2 = [48, 50, 52, 54]; Q2 = [56, 58, 60, 62]; Y = [26, 27, 28, 29]
    for kk in range(4):
        r = RAW + 12*kk
        p(f"@wait lg=xr{kk}")
        for k in range(5):
            a, b = 4, 6
            p(f"v_lshlrev_b32 v{a}, 16, v{r+k}\nv_and_b32 v{a+1}, s{sMASKHI}, v{r+k}")
            p(f"v_lshlrev_b32 v{b}, 16, v{r+6+5-k}\nv_and_b32 v{b+1}, s{sMASKHI}, v{r+6+4-k}")
            if k == 0: p(f"v_cndmask_b32 v{b}, v{b}, 0, {sr(sJ0M,2)}")
            tt, cc = T+10*kk+2*k, CA+10*kk+2*k
            p(f"v_pk_add_f32 {vr(tt,2)}, {vr(a,2)}, {vr(b,2)}")
            p(f"v_pk_add_f32 {vr(cc,2)}, {vr(a,2)}, {vr(b,2)} neg_lo:[0,1] neg_hi:[0,1]")
            if k == 0: p(f"v_pk_mul_f32 {vr(Q2[kk],2)}, {vr(tt,2)}, {vr(tt,2)}")
            else:
                p(f"v_pk_add_f32 {vr(S2[kk],2)}, {vr(tt,2)}, {vr(S2[kk] if k > 1 else tt-2,2)}")
                p(f"v_pk_fma_f32 {vr(Q2[kk],2)}, {vr(tt,2)}, {vr(tt,2)}, {vr(Q2[kk],2)}")
            p(f"v_pk_fma_f32 {vr(Q2[kk],2)}, {vr(cc,2)}, {vr(cc,2)}, {vr(Q2[kk],2)}")
        p(f"v_lshlrev_b32 v{Y[kk]}, 16, v{r+6}\nv_cndmask_b32 v{Y[kk]}, 0, v{Y[kk]}, {sr(sJ31M,2)}")
        p(f"v_add_f32 v{S2[kk]}, v{S2[kk]}, v{S2[kk]+1}\nv_add_f32 v{Q2[kk]}, v{Q2[kk]}, v{Q2[kk]+1}")
        p(f"v_add_f32 v{S2[kk]}, v{S2[kk]}, v{Y[kk]}\nv_add_f32 v4, v{Y[kk]}, v{Y[kk]}\nv_fmac_f32 v{Q2[kk]}, v4, v{Y[kk]}")
    red = S2 + Q2
    for mod in ("quad_perm:[1,0,3,2]", "quad_perm:[2,3,0,1]", "row_half_mirror", "row_mirror"):
        for x in red: p(f"v_add_f32_dpp v{x}, v{x}, v{x} {mod} {FULL}")
    for x in red: p(f"v_mov_b32 v{x+1}, v{x}")
    for x in red: p(f"v_permlane16_swap_b32 v{x}, v{x+1}")
    for x in red: p(f"v_add_f32 v{x}, v{x}, v{x+1}")
    M = lambda k: S2[k]
    R = lambda k: Q2[k]
    for k in range(4): p(f"v_mul_f32 v{M(k)}, s93, v{M(k)}")
    for k in range(4): p(f"v_mul_f32 v{M(k)+1}, v{M(k)}, v{M(k)}")
    for k in range(4): p(f"v_fma_f32 v{R(k)}, v{R(k)}, s94, -v{M(k)+1}")
    for k in range(4): p(f"v_add_f32 v{R(k)}, s95, v{R(k)}")
    for k in range(4): p(f"v_rsq_f32 v{R(k)}, v{R(k)}")
    for k in range(4): p(f"v_fmac_f32 v{T+10*k}, v{vFJ0}, v{M(k)}")
    for k in range(4): p(f"v_sub_f32 v{Y[k]}, v{Y[k]}, v{M(k)}")
    OUT = 64; A1, A3, B0, B2, B1, K1, K2 = 72, 74, 76, 78, 80, 82, 84; U, W, e = 86, 90, 94
    g0 = sr(sG0M, 2)
    p(f"v_cndmask_b32 v{A1}, v{R(1)}, 0, {g0}\nv_cndmask_b32 v{A3}, v{R(3)}, 0, {g0}")
    p(f"v_cndmask_b32 v{B0}, v{R(0)}, 0, {g0}\nv_cndmask_b32 v{B2}, v{R(2)}, 0, {g0}")
    p(f"v_cndmask_b32 v{B1}, -v{R(1)}, v{R(1)}, {g0}")
    p(f"v_mul_f32 v{K1}, v{R(0)}, v{M(0)}\nv_mul_f32 v{K2}, v{R(2)}, v{M(2)}")
    p(f"v_fmac_f32 v{K1}, v{A1}, v{M(1)}\nv_fmac_f32 v{K2}, v{A3}, v{M(3)}")
    p(f"v_mul_f32 v{K1}, -2.0, v{K1}\nv_mul_f32 v{K2}, -2.0, v{K2}")
    bc = "op_sel_hi:[0,1,0]"; bc1 = "op_sel_hi:[0,1,1]"
    for k in range(5):
        tt = lambda r_: vr(T+10*r_+2*k, 2)
        cc = lambda r_: vr(CA+10*r_+2*k, 2)
        u, w = U, U+2; u2, w2 = W, W+2
        p(f"v_pk_fma_f32 {vr(u,2)}, {vr(R(0),2)}, {tt(0)}, {vr(K1,2)} {bc}")
        p(f"v_pk_fma_f32 {vr(w,2)}, {vr(R(2),2)}, {tt(2)}, {vr(K2,2)} {bc}")
        p(f"v_pk_mul_f32 {vr(u2,2)}, {vr(B0,2)}, {cc(0)} op_sel_hi:[0,1]")
        p(f"v_pk_mul_f32 {vr(w2,2)}, {vr(B2,2)}, {cc(2)} op_sel_hi:[0,1]")
        p(f"v_pk_fma_f32 {vr(u,2)}, {vr(A1,2)}, {tt(1)}, {vr(u,2)} {bc1}")
        p(f"v_pk_fma_f32 {vr(w,2)}, {vr(A3,2)}, {tt(3)}, {vr(w,2)} {bc1}")
        p(f"v_pk_fma_f32 {vr(u2,2)}, {vr(B1,2)}, {cc(1)}, {vr(u2,2)} {bc1}")
        p(f"v_pk_fma_f32 {vr(w2,2)}, {vr(R(3),2)}, {cc(3)}, {vr(w2,2)} {bc1} neg_lo:[1,0,0] neg_hi:[1,0,0]")
        p(f"v_pk_add_f32 {vr(e,2)}, {vr(u,2)}, {vr(w,2)}")
        p(f"v_pk_add_f32 {vr(e+2,2)}, {vr(u,2)}, {vr(w,2)} neg_lo:[0,1] neg_hi:[0,1]")
        p(f"v_pk_add_f32 {vr(e+4,2)}, {vr(u2,2)}, {vr(w2,2)} neg_lo:[0,1] neg_hi:[0,1]")
        p(f"v_pk_add_f32 {vr(e+6,2)}, {vr(u2,2)}, {vr(w2,2)}")
        o = lambda cmb, kk_: (OUT+2*cmb+(kk_ & 1)) if kk_ < 4 else 102+cmb
        for cmb in range(4): p(f"v_cvt_pk_bf16_f32 v{o(cmb,k)}, v{e+2*cmb}, v{e+2*cmb+1}")
        if k in (1, 3):
            for cmb in range(4): p(f"ds_write2_b32 v{vAW+cmb}, v{OUT+2*cmb}, v{OUT+2*cmb+1} offset0:{k-1} offset1:{k}")
    for cmb in range(4): p(f"ds_write_b32 v{vAW+cmb}, v{102+cmb} offset:16")
    p(f"v_mul_f32 v{U}, v{R(0)}, v{Y[0]}\nv_mul_f32 v{U+1}, v{R(2)}, v{Y[2]}")
    p(f"v_fmac_f32 v{U}, v{A1}, v{Y[1]}\nv_fmac_f32 v{U+1}, v{A3}, v{Y[3]}")
    p(f"v_add_f32 v{U+2}, v{U}, v{U+1}\nv_sub_f32 v{U+3}, v{U}, v{U+1}")
    p(f"s_mov_b64 exec, {sr(sJ31M,2)}\nds_write2_b32 v{vTW}, v{U+2}, v{U+3} offset0:0 offset1:8\ns_mov_b64 exec, -1")
    with cond(p, f"s_cmp_lg_u32 s{sG}, 0"):
        p(f"v_mul_f32 v{K1}, v{R(1)}, v{M(1)}\nv_fmac_f32 v{K1}, v{R(3)}, v{M(3)}\nv_mul_f32 v{K1}, -2.0, v{K1}")
        for k in range(5):
            p(f"v_pk_fma_f32 {vr(W,2)}, {vr(R(1),2)}, {vr(T+10+2*k,2)}, {vr(K1,2)} {bc}")
            p(f"v_pk_fma_f32 {vr(W,2)}, {vr(R(3),2)}, {vr(T+30+2*k,2)}, {vr(W,2)} {bc1}")
            p(f"v_cvt_pk_bf16_f32 v{106+k}, v{W}, v{W+1}")
        p(f"v_mul_f32 v{W}, v{R(1)}, v{Y[1]}\nv_fmac_f32 v{W}, v{R(3)}, v{Y[3]}")
        p(f"v_add_u32 v11, {P1_XA}, v{vJ}\nv_mov_b32 v10, {P1_T+64}\ns_mov_b64 exec, {g0}")
        p(f"ds_write2_b32 v11, v106, v107 offset0:0 offset1:1\nds_write2_b32 v11, v108, v109 offset0:2 offset1:3\nds_write_b32 v11, v110 offset:16")
        p(f"s_mov_b64 exec, 0x80000000\nds_write_b32 v10, v{W}\ns_mov_b64 exec, -1")
    stamp(p, 21)
    p("s_waitcnt lgkmcnt(0)"); bar(p, "B1")
    stamp(p, 22)
    FA0, FB0, FB1, ACC, ACX, TI = 64, 104, 144, 12, 24, 48
    FA1 = lambda ks: ar(4*ks, 4)
    p(f"ds_read_b128 {vr(TI,4)}, v{vT} @@ti")
    for ks in range(10):
        p(f"ds_read_b128 {vr(FA0+4*ks,4)}, v{vA0} offset:{64*ks}")
        p(f"ds_read_b128 {vr(FB0+4*ks,4)}, v{vB0+(ks&1)} offset:{1024*(ks>>1)} @@s0_{ks}")
    p("@wait lg=ti")
    for r_ in range(4): p(f"v_mul_f32 v{ACC+r_}, v{vC0}, v{TI+r_}\nv_mul_f32 v{ACC+4+r_}, v{vC1}, v{TI+r_}")
    for ks in range(10):
        p(f"@wait lg=s0_{ks}")
        p(f"{MF16} {vr(ACC,4)}, {vr(FA0+4*ks,4)}, {vr(FB0+4*ks,4)}, {vr(ACC,4)}")
        p(f"ds_read_b128 {FA1(ks)}, v{vA1} offset:{64*ks}")
        p(f"ds_read_b128 {vr(FB1+4*ks,4)}, v{vB1+(ks&1)} offset:{1024*(ks>>1)} @@s1_{ks}")
    def xchain(fb, s_, load):
        lab = p.label("P1_nx"); lab2 = p.label("P1_sinx")
        p(f"s_cmp_lg_u32 s{sRG}, 0\ns_cbranch_scc1 {lab}\n@cond_begin")
        pi_calc(t+3)
        p(f"s_add_u32 s{t}, s{t+3}, {s_}\ns_cmp_ge_u32 s{t}, 5\ns_cselect_b32 s{t+1}, {1280-320}, 0\ns_lshl_b32 s{t}, s{t}, 6\ns_add_u32 s{t}, s{t}, s{t+1}")
        p(f"s_mul_i32 s{t+2}, s{sQ}, 320\ns_add_u32 s{t}, s{t}, s{t+2}\ns_add_u32 s{t}, s{t}, {WS_XB}")
        if fb is not None:
            p(f"s_cmp_lg_u32 s{t+1}, 0\ns_cbranch_scc1 {lab2}")
            if load:
                p(f"v_mov_b32 v4, {P1_T+64}\nds_read_b32 v{TI+4}, v4")
                for ks in range(10): p(f"ds_read_b128 {vr(FA0+4*ks,4)}, v{vXA} offset:{64*ks}")
            p("s_waitcnt lgkmcnt(0)")
            for r_ in range(4): p(f"v_mul_f32 v{ACX+r_}, v{vSG}, v{TI+4}")
            for ks in range(10): p(f"{MF16} {vr(ACX,4)}, {vr(FA0+4*ks,4)}, {vr(fb+4*ks,4)}, {vr(ACX,4)}")
            p(f"s_mov_b64 exec, 0xffff\nbuffer_store_dword v{ACX}, v{vXS}, {sr(SW,4)}, s{t} offen {st}\ns_mov_b64 exec, -1\ns_branch {lab}")
            p(f"{lab2}:\ns_nop 7")
        p(f"s_mov_b32 exec_lo, 0\ns_mov_b32 exec_hi, 0xffff\nbuffer_store_dword v{ACC+4*s_}, v{vXS}, {sr(SW,4)}, s{t} offen {st}\ns_mov_b64 exec, -1")
        p(f"@cond_end\n{lab}:\ns_nop 1")
    xchain(FB0, 0, True)
    with cond(p, f"s_cmp_ge_u32 s{sWAVE}, 2"):
        for ks in range(10): p(f"ds_read_b128 {vr(FB0+4*ks,4)}, v{vB2+(ks&1)} offset:{1024*(ks>>1)}")
    for ks in range(10):
        p(f"@wait lg=s1_{ks}")
        p(f"{MF16} {vr(ACC+4,4)}, {FA1(ks)}, {vr(FB1+4*ks,4)}, {vr(ACC+4,4)}")
    with cond(p, f"s_cmp_ge_u32 s{sWAVE}, 2"):
        p("s_waitcnt lgkmcnt(0)")
        for ks in range(10): p(f"{MF16} {vr(ACC+8,4)}, {FA1(ks)}, {vr(FB0+4*ks,4)}, {vr(ACC+8,4) if ks else 0}")
    p(f"v_cvt_pk_bf16_f32 v4, v{ACC}, v{ACC+1}\nv_cvt_pk_bf16_f32 v5, v{ACC+2}, v{ACC+3}\nv_cvt_pk_bf16_f32 v6, v{ACC+4}, v{ACC+5}\nv_cvt_pk_bf16_f32 v7, v{ACC+6}, v{ACC+7}")
    p("v_permlane16_swap_b32 v4, v6\nv_permlane16_swap_b32 v5, v7")
    p(f"buffer_store_dwordx4 v[4:7], v{vST}, {sr(SW,4)}, 0 offen {st}")
    xchain(FB1, 1, False)
    with cond(p, f"s_cmp_ge_u32 s{sWAVE}, 2"):
        p(f"s_nop 3\nv_cvt_pk_bf16_f32 v8, v{ACC+8}, v{ACC+9}\nv_cvt_pk_bf16_f32 v9, v{ACC+10}, v{ACC+11}")
        p(f"buffer_store_dwordx2 v[8:9], v{vST2}, {sr(SW,4)}, 0 offen {st}")
        xchain(None, 2, False)
    stamp(p, 1)

P2_XD, P2_RING, P2_ACC, P2_ACX, P2_XB = 32, 64, 144, 164, 184
vPW, vRA, vRB, vHA, vHB, vSA, vSB, vXBo, vSG2, vSP2 = 16, 17, 18, 19, 20, 21, 22, 23, 24, 26
def P2_xload(p):
    p(f"v_and_b32 v10, 3, v{vLANE}\ns_lshl_b32 s{t+3}, s{sWAVE}, 2\nv_add_u32 v10, s{t+3}, v10\nv_mul_u32_u24 v10, 2560, v10")
    p(f"v_lshrrev_b32 v11, 2, v{vLANE}\nv_lshlrev_b32 v11, 4, v11\ns_mul_i32 s{t+3}, s{sQ2}, 160\nv_add_u32 v11, s{t+3}, v11")
    p(f"v_sub_u32 v28, 1264, v11\nv_add_u32 v29, 16, v28\nv_cmp_eq_u32 vcc, 0, v11\nv_mov_b32 v30, 640\nv_cndmask_b32 v29, v29, v30, vcc")
    p(f"s_lshl_b32 s{t}, s{sI2}, 5\ns_add_u32 s{t+1}, s{t}, s{sP2}\ns_mul_i32 s{t+1}, s{t+1}, 1280")
    p(f"s_sub_u32 s{t}, s{sP2}, s{t}\ns_add_u32 s{t}, s{t}, 2046\ns_mul_i32 s{t}, s{t}, 1280")
    p(f"v_add_u32 v30, s{t+1}, v10\nv_sub_u32 v31, s{t}, v10")
    for sd in range(2):
        r = P2_RING + 12*sd
        p(f"v_add_u32 v10, v{30+sd}, v11\nbuffer_load_dwordx4 {vr(r,4)}, v10, {sr(SX,4)}, 0 offen")
        p(f"v_add_u32 v10, v{30+sd}, v28\nbuffer_load_dwordx4 {vr(r+4,4)}, v10, {sr(SX,4)}, 0 offen")
        p(f"v_add_u32 v10, v{30+sd}, v29\nbuffer_load_dword v{r+8}, v10, {sr(SX,4)}, 0 offen @@xp")
def P2_prep(p):
    swz_rd(p, 4, 10)
    p(f"s_mul_i32 s{t}, s{sWAVE}, {P2S_W}\ns_add_u32 s{t}, s{t}, {P2S}\ns_mul_i32 s{t+1}, s{sWAVE}, {P1_XR}")
    p(f"v_add_u32 v6, s{t+1}, v4\nv_add_u32 v7, s{t+1}, v5\nv_add_u32 v4, s{t}, v4\nv_add_u32 v5, s{t}, v5\nv_lshrrev_b32 v8, 4, v{vLANE}\nv_lshl_add_u32 v8, v8, 4, s{t}")
    for k in range(8): p(f"ds_read_b128 {ar(A_MF+4*k,4)}, v{4+(k&1)+2*(k>>2)} offset:{2048*((k>>1)&1) + (5120 if k >= 4 else 0)}")
    for k in range(8): p(f"ds_read_b128 {ar(A_MX+4*k,4)}, v8 offset:{4096+64*k}")
    p(f"s_lshr_b32 s{t}, s{sWAVE}, 1\ns_lshl_b32 s{t}, s{t}, 1\ns_add_u32 s{t}, s{t}, s{sP2}\ns_lshl_b32 s{t}, s{t}, 2\ns_add_u32 s{t}, s{t}, s{sQ2}")
    p(f"s_lshl_b32 s{t}, s{t}, 1\ns_and_b32 s{t+1}, s{sWAVE}, 1\ns_add_u32 s{t}, s{t}, s{t+1}\ns_mul_i32 s{t}, s{t}, 40960\ns_add_u32 s{t}, s{t}, {WS_AB}")
    p(f"s_add_u32 s{t+1}, s{sI2}, s{sQ2}\ns_and_b32 s{t+1}, s{t+1}, 3\ns_lshl_b32 s{t+1}, s{t+1}, 1")
    for k in range(8):
        p(f"s_add_u32 s{t+2}, s{t+1}, {k}\ns_and_b32 s{t+2}, s{t+2}, 7\ns_mul_i32 s{t+2}, s{t+2}, 5120\ns_add_u32 s{80+k}, s{t+2}, s{t}")
    p(f"v_add_u32 v3, 4096, v{vL16}")
    p(f"v_lshrrev_b32 v10, 2, v{vLANE}\nv_lshlrev_b32 v{vXBo}, 5, v10\ns_mul_i32 s69, s{sQ2}, 320\ns_mul_i32 s{t+1}, s{sP2}, 1280\ns_add_u32 s69, s69, s{t+1}\ns_add_u32 s69, s69, {WS_XB}")
    p(f"s_mul_i32 s{t+2}, s{sWAVE}, {SCR_W}\ns_add_u32 s{t+2}, s{t+2}, {SCR}")
    p(f"v_and_b32 v12, 15, v{vLANE}\nv_mul_u32_u24 v12, 336, v12\nv_lshrrev_b32 v13, 4, v{vLANE}\nv_lshl_add_u32 v12, v13, 4, v12\nv_add_u32 v{vPW}, s{t+2}, v12")
    p(f"v_and_b32 v12, 3, v{vLANE}\ns_lshl_b32 s{t+3}, s{sWAVE}, 2\nv_add_u32 v12, s{t+3}, v12")
    p(f"v_mul_u32_u24 v13, 336, v12\nv_add_u32 v13, {SCR}, v13\nv_add_u32 v{vRA}, v13, v{vXBo}")
    p(f"s_cmp_eq_u32 s{sP2}, 0\ns_cselect_b32 s{t+3}, 336, 0\ns_cselect_b32 s{t+4}, 0, 0x80000000\nv_add_u32 v{vRB}, s{t+3}, v{vRA}")
    p(f"v_lshlrev_b32 v13, 8, v10\nv_lshl_add_u32 v{vHA}, v12, 4, v13\nv_sub_u32 v14, 15, v12\nv_lshl_add_u32 v{vHB}, v14, 4, v13")
    p(f"v_lshlrev_b32 v{vSG2}, 31, v{vLANE}\nv_or_b32 v{vSG2}, 1.0, v{vSG2}\nv_xor_b32 v{vSP2}, s{t+4}, v{vSG2}")
    p(f"v_lshlrev_b32 v{vSA}, 3, v12\nv_lshlrev_b32 v{vSB}, 3, v14")
    p(f"s_cmp_eq_u32 s{sQ2}, 0\ns_cselect_b32 s70, 15, 0\ns_mov_b32 s71, 0")
    p(f"s_lshl_b32 s{t}, s{sI2}, 1\ns_add_u32 s{t}, s{t}, s{sP2}\ns_sub_u32 s{t+1}, 126, s{t}\ns_lshl_b32 s{t+3}, s{sP2}, 1\ns_add_u32 s{t+1}, s{t+1}, s{t+3}")
    p(f"s_mul_i32 s{t+3}, s{sQ2}, 2560\ns_add_u32 s{t+3}, s{t+3}, {WS_H}\ns_lshl_b32 s{t+4}, s{sQ2}, 7\ns_add_u32 s{t+4}, s{t+4}, {WS_HS}")
    for (sh, ss, src) in ((88, 92, t), (90, 93, t+1)):
        p(f"s_mul_i32 s{sh}, s{src}, 20480\ns_add_u32 s{sh}, s{sh}, s{t+3}\ns_add_u32 s{sh+1}, s{sh}, 10240")
        p(f"s_lshl_b32 s{ss}, s{src}, 9\ns_add_u32 s{ss}, s{ss}, s{t+4}")
    p(f"v_cmp_gt_u32 vcc, 40, v{vLANE}\nv_mov_b32 v10, 0x40000000\nv_cndmask_b32 v{vHA}, v10, v{vHA}, vcc\nv_cndmask_b32 v{vHB}, v10, v{vHB}, vcc")
    p("@wait vm=xp")
    for sd in range(2):
        r = P2_RING + 12*sd; x = P2_XD + 16*sd
        for k in range(4): p(f"v_lshlrev_b32 v{x+2*k}, 16, v{r+k}\nv_and_b32 v{x+2*k+1}, s{sMASKHI}, v{r+k}")
        p(f"v_lshlrev_b32 v{x+8}, 16, v{r+8}")
        for i in range(1, 8):
            wi = 8 - i
            if wi & 1: p(f"v_and_b32 v{x+8+i}, s{sMASKHI}, v{r+4+(wi>>1)}")
            else: p(f"v_lshlrev_b32 v{x+8+i}, 16, v{r+4+(wi>>1)}")
def P2_main(p):
    RING, ACC, ACX = P2_RING, P2_ACC, P2_ACX
    def ld(k):
        for nt in range(5):
            r = RING + ((k & 3)*5 + nt)*4
            p(f"buffer_load_dwordx4 {vr(r,4)}, v{vL16 if nt < 4 else 3}, {sr(SW,4)}, s{80+k} offen offset:{(nt&3)*1024} sc1 @@ab{k}_{nt}")
    for k in range(4): ld(k)
    p(f"buffer_load_dwordx4 {vr(P2_XB,4)}, v{vXBo}, {sr(SW,4)}, s69 offen sc1\nbuffer_load_dwordx4 {vr(P2_XB+4,4)}, v{vXBo}, {sr(SW,4)}, s69 offen offset:16 sc1")
    for k in range(8):
        for nt in range(5):
            r = RING + ((k & 3)*5 + nt)*4
            p(f"@wait vm=ab{k}_{nt}")
            p(f"{MF16} {vr(ACC+4*nt,4)}, {vr(r,4)}, {ar(A_MF+4*k,4)}, {vr(ACC+4*nt,4) if k else 0}")
            p(f"{MF16} {vr(ACX+4*nt,4)}, {vr(r,4)}, {ar(A_MX+4*k,4)}, {vr(ACX+4*nt,4) if k else 0}")
        if k < 4: ld(k+4)
    stamp(p, 23)
    for nt in range(5): p(f"ds_write_b128 v{vPW}, {vr(ACC+4*nt,4)} offset:{64*nt}")
    p("s_mov_b32 exec_lo, 0x00010001\ns_mov_b32 exec_hi, 0x00010001")
    for nt in range(5): p(f"ds_write_b128 v{vPW}, {vr(ACX+4*nt,4)} offset:{16*336+64*nt}")
    p("s_mov_b64 exec, -1\ns_waitcnt lgkmcnt(0)"); bar(p, "B4")
    STt = 160; L = P2_RING
    for sd in range(2):
        for hh in range(2):
            for wv in range(4):
                p(f"ds_read_b128 {vr(L+32*sd+8*wv+4*hh,4)}, v{vRA if sd == 0 else vRB} offset:{wv*SCR_W+16*hh} @@pq{sd}{hh}")
    for sd in range(2):
        b = L + 32*sd; x = P2_XD + 16*sd; o = 144 + 8*sd
        su = (vSG2, 0) if sd == 0 else (vSP2, 1)
        sw = (vSP2, 0) if sd == 0 else (vSG2, 1)
        for k in range(4):
            p(f"@wait lg=pq{sd}{k>>1}")
            P0, P1_, Q0, Q1 = b+2*k, b+8+2*k, b+16+2*k, b+24+2*k
            p(f"v_pk_add_f32 {vr(P0,2)}, {vr(P0,2)}, {vr(P1_,2)}\nv_pk_add_f32 {vr(Q0,2)}, {vr(Q0,2)}, {vr(Q1,2)}")
            p(f"v_pk_add_f32 {vr(P1_,2)}, {vr(P0,2)}, {vr(Q0,2)} neg_lo:[0,1] neg_hi:[0,1]")
            p(f"v_pk_add_f32 {vr(Q1,2)}, {vr(P0,2)}, {vr(Q0,2)}")
            for (dst, (sv, ng)) in ((P1_, su), (Q1, sw)):
                p(f"v_pk_fma_f32 {vr(dst,2)}, {vr(sv,2)}, {vr(P2_XB+2*k,2)}, {vr(dst,2)} op_sel_hi:[0,1,1]" + (" neg_lo:[1,0,0] neg_hi:[1,0,0]" if ng else ""))
            lo, hi = (P1_, Q1) if sd == 0 else (Q1, P1_)
            if k == 0: p(f"v_cndmask_b32 v{lo}, v{lo}, 0, s[70:71]")
            p(f"v_pk_add_f32 {vr(x+2*k,2)}, {vr(x+2*k,2)}, {vr(lo,2)}\nv_pk_add_f32 {vr(x+8+2*k,2)}, {vr(x+8+2*k,2)}, {vr(hi,2)}")
            p(f"v_cvt_pk_bf16_f32 v{o+k}, v{x+2*k}, v{x+2*k+1}\nv_cvt_pk_bf16_f32 v{o+4+k}, v{x+8+2*k}, v{x+8+2*k+1}")
        sh = 88 if sd == 0 else 90; vh = vHA if sd == 0 else vHB
        p(f"buffer_store_dwordx4 {vr(o,4)}, v{vh}, {sr(SW,4)}, s{sh} offen")
        p(f"buffer_store_dwordx4 {vr(o+4,4)}, v{vh}, {sr(SW,4)}, s{sh+1} offen")
    for k in range(8):
        for sd in range(2):
            x = P2_XD + 16*sd; s_, q_ = STt+4*sd, STt+4*sd+2
            if k == 0: p(f"v_pk_mul_f32 {vr(q_,2)}, {vr(x,2)}, {vr(x,2)}")
            else: p(f"v_pk_add_f32 {vr(s_,2)}, {vr(s_ if k > 1 else x,2)}, {vr(x+2*k,2)}\nv_pk_fma_f32 {vr(q_,2)}, {vr(x+2*k,2)}, {vr(x+2*k,2)}, {vr(q_,2)}")
    red = [STt, STt+2, STt+4, STt+6]
    p(f"v_cmp_gt_u32 vcc, 40, v{vLANE}")
    for x in red: p(f"v_add_f32 v{x}, v{x}, v{x+1}")
    for x in red: p(f"v_cndmask_b32 v{x}, 0, v{x}, vcc")
    for mod in ("row_ror:4", "row_ror:8"):
        for x in red: p(f"v_add_f32_dpp v{x}, v{x}, v{x} {mod} {FULL}")
    for sw in ("v_permlane16_swap_b32", "v_permlane32_swap_b32"):
        for x in red: p(f"v_mov_b32 v{x+1}, v{x}")
        for x in red: p(f"{sw} v{x}, v{x+1}")
        for x in red: p(f"v_add_f32 v{x}, v{x}, v{x+1}")
    p(f"v_mov_b32 v{STt+1}, v{STt+2}\nv_mov_b32 v{STt+5}, v{STt+6}\ns_mov_b64 exec, 15")
    p(f"buffer_store_dwordx2 {vr(STt,2)}, v{vSA}, {sr(SW,4)}, s92 offen\nbuffer_store_dwordx2 {vr(STt+4,2)}, v{vSB}, {sr(SW,4)}, s93 offen")
    p("s_mov_b64 exec, -1")

P3_AZ2, P3_AZ1, P3_BF = 16, 40, 160
vWB1 = 184; sGK1 = 90; vK0 = 14
def HF(ks, par):
    i = 2*ks + par
    return vr(64+4*i, 4) if i < 24 else ar(4*(i-24), 4)
def P3_prep(p):
    p(f"v_add_u32 v{vWB1}, {WZ}, v{vL16}")
    p(f"s_lshl_b32 s80, s{sRB3}, 10\ns_add_u32 s80, s80, {WS_HS}")
    p(f"s_mul_i32 s81, s{sRB3}, 40960\ns_add_u32 s81, s81, {WS_H}\ns_add_u32 s82, s81, 20480")
    p(f"s_mov_b32 s{sGK1}, {fhex(GK1)}\ns_mov_b32 s{sGK1+1}, {fhex(GK1)}\nv_mov_b32 v{vK0}, {fhex(GK0)}")
    p(f"s_lshl_b32 s83, s{sRB3}, 12\ns_add_u32 s83, s83, {WS_ZS}\ns_lshl_b32 s84, s{sJ3}, 4\ns_add_u32 s84, s84, s83")
    p(f"s_mul_i32 s85, s{sJ3}, 192\ns_add_u32 s85, s85, s{sRB3}\ns_lshl_b32 s85, s85, 10\ns_add_u32 s85, s85, {WS_Z2}\ns_add_u32 s92, s85, 65536\ns_add_u32 s93, s85, 131072")
    p(f"s_lshl_b32 s86, s{sWAVE}, 8\ns_add_u32 s86, s86, {TBL}\ns_mov_b32 s87, {fhex(1e-5)}\ns_mov_b32 s88, {fhex(1/640)}\ns_mov_b32 s89, {fhex(1/768)}")
    p(f"v_lshrrev_b32 v185, 5, v{vLANE}\nv_lshlrev_b32 v185, 6, v185\nv_and_b32 v10, 7, v{vLANE}\nv_lshl_add_u32 v185, v10, 3, v185\nv_add_u32 v185, s86, v185")
    p(f"v_lshrrev_b32 v12, 4, v{vLANE}\nv_lshl_add_u32 v12, v12, 4, s86")
    p(f"v_and_b32 v10, 15, v{vLANE}\nv_lshlrev_b32 v186, 2, v10\nv_add_u32 v186, {CST}, v186")
    p(f"v_lshrrev_b32 v187, 2, v{vLANE}\nv_lshlrev_b32 v187, 8, v187\nv_and_b32 v10, 3, v{vLANE}\nv_lshl_add_u32 v13, v10, 4, v187")
def gelu4(p, x, tmp):
    for step in range(6):
        for h in range(2):
            xx = x+2*h; a = tmp+4*h; b = a+2
            if step == 0: p(f"v_pk_mul_f32 {vr(a,2)}, {vr(xx,2)}, {vr(xx,2)}")
            if step == 1: p(f"v_pk_fma_f32 {vr(a,2)}, {vr(a,2)}, {sr(sGK1,2)}, {vr(vK0,2)} op_sel_hi:[1,1,0]")
            if step == 2: p(f"v_pk_mul_f32 {vr(a,2)}, {vr(a,2)}, {vr(xx,2)}")
            if step == 3: p(f"v_exp_f32 v{b}, v{a}\nv_exp_f32 v{b+1}, v{a+1}")
            if step == 4: p(f"v_pk_add_f32 {vr(b,2)}, {vr(b,2)}, 1.0 op_sel_hi:[1,0]")
            if step == 5: p(f"v_rcp_f32 v{a}, v{b}\nv_rcp_f32 v{a+1}, v{b+1}")
    for h in range(2): p(f"v_pk_mul_f32 {vr(x+2*h,2)}, {vr(x+2*h,2)}, {vr(tmp+4*h,2)}")
def hfrag(p, ks):
    if ks >= 20: return
    for par in range(2):
        p(f"buffer_load_dwordx4 {HF(ks,par)}, v{vL16}, {sr(SW,4)}, s{81+par} offen offset:{(ks&3)*1024} sc1 @@h{ks}")
    if (ks & 3) == 3 and ks < 19: p(f"s_add_u32 s81, s81, 4096\ns_add_u32 s82, s82, 4096")
def P3_pass(p, z1, k0=0, k1=20):
    acc = P3_AZ1 if z1 else P3_AZ2
    HA = X.get('ha', 6)
    seq = [(ks, nt) for ks in range(k0, k1) for nt in range(3)]
    def rd(i):
        if i < len(seq):
            ks, nt = seq[i]
            p(f"ds_read_b128 {vr(P3_BF+4*(i%6),4)}, v{vWB1 if z1 else vL16} offset:{nt*20480+ks*1024} @@wf{z1}_{ks}_{nt}")
    for i in range(5): rd(i)
    for i, (ks, nt) in enumerate(seq):
        p(f"@wait lg=wf{z1}_{ks}_{nt}" + (f" vm=h{ks}" if not z1 else ""))
        bf = vr(P3_BF+4*(i%6), 4)
        for par in range(2):
            a = vr(acc + (par*3+nt)*4, 4); c = a if ks else 0
            p(f"{MF16} {a}, {bf}, {HF(ks,par)}, {c}" if z1 else f"{MF16} {a}, {HF(ks,par)}, {bf}, {c}")
        rd(i+5)
        if not z1 and nt == 0: hfrag(p, ks+HA)
        if not z1 and (ks, nt) == (X.get('ln1k', 3), 2): P3_ln1(p)
def P3_loads(p):
    for ks in range(X.get('ha', 6)):
        hfrag(p, ks)
        if ks == 1: p(f"buffer_load_dwordx4 v[4:7], v{vL16}, {sr(SW,4)}, s80 offen sc1 @@hs")
def P3_ln1(p):
    p("@wait vm=hs")
    for x in range(4, 8): p(f"v_add_f32_dpp v{x}, v{x}, v{x} row_ror:8 {FULL}")
    for x in range(4): p(f"v_mov_b32 v{8+x}, v{4+x}")
    for x in range(4): p(f"v_permlane16_swap_b32 v{4+x}, v{8+x}")
    for x in range(4): p(f"v_add_f32 v{4+x}, v{4+x}, v{8+x}")
    p(f"v_mul_f32 v8, s88, v4\nv_mul_f32 v9, s88, v6\nv_mul_f32 v4, v8, v8\nv_mul_f32 v6, v9, v9")
    p(f"v_fma_f32 v5, v5, s88, -v4\nv_fma_f32 v7, v7, s88, -v6\nv_add_f32 v5, s87, v5\nv_add_f32 v7, s87, v7")
    p(f"v_rsq_f32 v10, v5\nv_rsq_f32 v11, v7\nv_sub_f32 v8, 0, v8\nv_sub_f32 v9, 0, v9")
    p(f"ds_write_b64 v185, v[8:9]\nds_write_b64 v185, v[10:11] offset:128")
def P3_z2a(p):
    B = P3_BF; NM, RR, TMP = B, B+8, B+16
    CSr = [4, 6, 8]
    for nt in range(3): p(f"ds_read_b32 v{CSr[nt]}, v186 offset:{64*nt}")
    for par in range(2):
        p(f"ds_read_b128 {vr(NM+4*par,4)}, v12 offset:{64*par}\nds_read_b128 {vr(RR+4*par,4)}, v12 offset:{128+64*par} @@nr{par}")
    for par in range(2):
        p(f"@wait lg=nr{par}")
        for nt in range(3):
            a = P3_AZ2 + (par*3+nt)*4
            for h in range(2): p(f"v_pk_fma_f32 {vr(a+2*h,2)}, {vr(NM+4*par+2*h,2)}, {vr(CSr[nt],2)}, {vr(a+2*h,2)} op_sel_hi:[1,0,1]")
            for h in range(2): p(f"v_pk_mul_f32 {vr(a+2*h,2)}, {vr(a+2*h,2)}, {vr(RR+4*par+2*h,2)}")
            gelu4(p, a, TMP)
    for par in range(2):
        for h in range(2):
            a = lambda nt: vr(P3_AZ2 + (par*3+nt)*4 + 2*h, 2)
            S_, Q_ = vr(NM+4*par+2*h, 2), vr(RR+4*par+2*h, 2)
            p(f"v_pk_add_f32 {S_}, {a(0)}, {a(1)}\nv_pk_mul_f32 {Q_}, {a(0)}, {a(0)}")
            p(f"v_pk_add_f32 {S_}, {S_}, {a(2)}\nv_pk_fma_f32 {Q_}, {a(1)}, {a(1)}, {Q_}\nv_pk_fma_f32 {Q_}, {a(2)}, {a(2)}, {Q_}")
    for base in (NM, RR):
        for r in range(4): p(f"v_add_f32_dpp v{base+r}, v{base+r}, v{base+r} row_ror:8 {FULL}")
    for base in (NM, RR):
        for r in range(4): p(f"v_add_f32_dpp v{base+r}, v{base+4+r}, v{base+4+r} row_ror:8 row_mask:0xf bank_mask:0xc")
    for i, (base, r) in enumerate(((NM, 0), (RR, 0), (NM, 1), (RR, 1))):
        p(f"v_add_f32_dpp v{TMP+i}, v{base+r}, v{base+r} row_half_mirror {FULL}")
    for i, (base, r) in enumerate(((NM, 2), (RR, 2), (NM, 3), (RR, 3))):
        p(f"v_add_f32_dpp v{TMP+i}, v{base+r}, v{base+r} row_half_mirror row_mask:0xf bank_mask:0xa")
    for mod in ("quad_perm:[1,0,3,2]", "quad_perm:[2,3,0,1]"):
        for i in range(4): p(f"v_add_f32_dpp v{TMP+i}, v{TMP+i}, v{TMP+i} {mod} {FULL}")
    p("s_mov_b32 exec_lo, 0x11111111\ns_mov_b32 exec_hi, 0x11111111")
    p(f"buffer_store_dwordx4 {vr(TMP,4)}, v187, {sr(SW,4)}, s84 offen @@zs\ns_mov_b64 exec, -1")
def P3_z2b(p):
    B = P3_BF
    for i in range(4): p(f"buffer_load_dwordx4 {vr(B+4*i,4)}, v13, {sr(SW,4)}, s83 offen offset:{64*i} sc1 @@zl")
    p("@wait vm=zl")
    for h in range(2):
        p(f"v_pk_add_f32 {vr(B+2*h,2)}, {vr(B+2*h,2)}, {vr(B+4+2*h,2)}\nv_pk_add_f32 {vr(B+8+2*h,2)}, {vr(B+8+2*h,2)}, {vr(B+12+2*h,2)}")
    for h in range(2): p(f"v_pk_add_f32 {vr(B+2*h,2)}, {vr(B+2*h,2)}, {vr(B+8+2*h,2)}")
    for mod in ("quad_perm:[1,0,3,2]", "quad_perm:[2,3,0,1]"):
        for i in range(4): p(f"v_add_f32_dpp v{B+i}, v{B+i}, v{B+i} {mod} {FULL}")
    p(f"v_mul_f32 v{B}, s89, v{B}\nv_mul_f32 v{B+2}, s89, v{B+2}\nv_mul_f32 v{B+4}, v{B}, v{B}\nv_mul_f32 v{B+5}, v{B+2}, v{B+2}")
    p(f"v_fma_f32 v{B+1}, v{B+1}, s89, -v{B+4}\nv_fma_f32 v{B+3}, v{B+3}, s89, -v{B+5}\nv_add_f32 v{B+1}, s87, v{B+1}\nv_add_f32 v{B+3}, s87, v{B+3}")
    p(f"v_rsq_f32 v{B+1}, v{B+1}\nv_rsq_f32 v{B+3}, v{B+3}")
    p(f"v_mul_f32 v{B}, -v{B}, v{B+1}\nv_mul_f32 v{B+2}, -v{B+2}, v{B+3}")
    NM, RR = B+8, B+16
    for bk in range(4):
        for i in range(2):
            p(f"v_mov_b32_dpp v{NM+2*bk+i}, v{B+2*i} row_newbcast:{4*bk} {FULL}")
            p(f"v_mov_b32_dpp v{RR+2*bk+i}, v{B+2*i+1} row_newbcast:{4*bk} {FULL}")
    for nt in range(3):
        for par in range(2):
            a = P3_AZ2 + (par*3+nt)*4
            for h in range(2): p(f"v_pk_fma_f32 {vr(a+2*h,2)}, {vr(a+2*h,2)}, {vr(RR+4*par+2*h,2)}, {vr(NM+4*par+2*h,2)}")
        o = [B, B+4, 4][nt]
        for r in range(4): p(f"v_cvt_pk_bf16_f32 v{o+r}, v{P3_AZ2+nt*4+r}, v{P3_AZ2+(3+nt)*4+r}")
        p(f"buffer_store_dwordx4 {vr(o,4)}, v{vL16}, {sr(SW,4)}, s{[85,92,93][nt]} offen {['sc1', 'sc0 sc1', 'sc1 nt', 'nt', ''][X.get('z2m', 0)]} @@z2s")
def P3_z1e(p):
    CS, NR, TMP = P3_BF, 16, 24
    p(f"v_and_b32 v12, 15, v{vLANE}\nv_lshl_add_u32 v12, v12, 2, s86\nv_lshrrev_b32 v13, 4, v{vLANE}\nv_lshlrev_b32 v13, 4, v13\nv_add_u32 v13, {CST+192}, v13")
    for par in range(2): p(f"ds_read_b32 v{NR+4*par}, v12 offset:{64*par}\nds_read_b32 v{NR+4*par+2}, v12 offset:{128+64*par}")
    for nt in range(3): p(f"ds_read_b128 {vr(CS+4*nt,4)}, v13 offset:{64*nt} @@z1c{nt}")
    p(f"s_mul_i32 s{SSD}, s{sRB3}, {2*48*512}\ns_mul_i32 s{t+1}, s{sJ3}, 1536\ns_add_u32 s{SSD}, s{SSD}, s{t+1}\ns_add_u32 s{SSD}, s{SSD}, {WS_Z1}\ns_add_u32 s{SSD+1}, s{SSD}, {48*512}")
    p(f"v_lshlrev_b32 v8, 3, v{vLANE}")
    for par in range(2):
        for nt in range(3):
            a = P3_AZ1 + (par*3+nt)*4
            p(f"@wait lg=z1c{nt}")
            for h in range(2): p(f"v_pk_fma_f32 {vr(a+2*h,2)}, {vr(CS+4*nt+2*h,2)}, {vr(NR+4*par,2)}, {vr(a+2*h,2)} op_sel_hi:[1,0,1]")
            for h in range(2): p(f"v_pk_mul_f32 {vr(a+2*h,2)}, {vr(a+2*h,2)}, {vr(NR+4*par+2,2)} op_sel_hi:[1,0]")
            gelu4(p, a, TMP)
            p(f"v_cvt_pk_bf16_f32 v{a}, v{a}, v{a+1}\nv_cvt_pk_bf16_f32 v{a+1}, v{a+2}, v{a+3}")
            p(f"buffer_store_dwordx2 {vr(a,2)}, v8, {sr(SW,4)}, s{SSD+par} offen offset:{512*nt} {'sc1' if X.get('m84', 1) else ''} @@z1s")

KC = 6
MB_FT = 28672
MB_BASE = [0, MB_FT, 2*MB_FT, 3*MB_FT, 0, SCR]
def unit_bases(p, d):
    p(f"s_mul_i32 s{d}, s{sWAVE}, 14336\ns_lshl_b32 s{d+1}, s{sWAVE}, 13\ns_add_u32 s{d+1}, s{d+1}, {SCR}")
    p(f"s_lshl_b32 s{d+2}, s{sWAVE}, 11\ns_cmp_lt_u32 s{sWAVE}, 2\ns_cselect_b32 s{t+5}, 0, {155648-4096-57344}\ns_add_u32 s{d+2}, s{d+2}, s{t+5}\ns_add_u32 s{d+2}, s{d+2}, 57344")
def unit_loc(u): return (0, u*2048) if u < 7 else ((1, (u-7)*2048) if u < 11 else (2, 0))
def WA(s_, k):
    i = s_*KC + k
    return ar(4*i, 4) if i < 16 else vr(160+4*(i-16), 4)
def WXr(s_, k):
    i = s_*(16-KC) + k
    return ar(4*i, 4) if i < 16 else vr(96+4*(i-16), 4)
def z2_offsets(p, k0, n):
    p(f"s_mul_i32 s{t}, s{sJ4}, 384\ns_lshl_b32 s{t+1}, s{sWAVE}, 4\ns_add_u32 s{t}, s{t}, s{t+1}\ns_lshl_b32 s{t}, s{t}, 10\ns_add_u32 s{t}, s{t}, {WS_Z2}")
    p(f"s_lshl_b32 s{t+1}, s{sRG4}, 1")
    for k in range(n):
        p(f"s_add_u32 s{t+2}, s{t+1}, {k0+k}\ns_and_b32 s{t+2}, s{t+2}, 15\ns_lshl_b32 s{t+2}, s{t+2}, 10\ns_add_u32 s{80+k}, s{t+2}, s{t}")
    p(f"v_mov_b32 v3, v{vL16}")
def mb_waddr(p, role):
    for s_ in range(0 if role else 1, 4):
        e = 3+s_ if role else s_-1
        p(f"s_add_u32 s{t}, s{sWAVE}, {s_}\ns_and_b32 s{t}, s{t}, 3\ns_mul_i32 s{t}, s{t}, 7168\ns_add_u32 s{t}, s{t}, {e*1024}\nv_add_u32 v{4+s_}, s{t}, v{vL16}")
C_RING, C_ACC, C_OWN, C_Z1 = 64, 112, 136, 52
C_MBR = [16, 20, 24, 28, 32, 40, 44]
def P4_prepC(p):
    unit_bases(p, sB0); swz_rd(p, 4, 10)
    for b in range(3): p(f"v_add_u32 v{64+2*b}, s{sB0+b}, v4\nv_add_u32 v{65+2*b}, s{sB0+b}, v5")
    for s_ in range(4):
        for k in range(KC):
            b, off = unit_loc(s_*3 + (k >> 1))
            p(f"ds_read_b128 {WA(s_,k)}, v{64+2*b+(k&1)} offset:{off}")
    z2_offsets(p, 0, KC); mb_waddr(p, 0); hpack(p)
    p(f"s_mul_i32 s{t}, s{sWAVE}, 7168\nv_add_u32 v4, s{t}, v{vL16}")
    p(f"v_lshlrev_b32 v8, 3, v{vLANE}\ns_mul_i32 s70, s{sTT}, 24576\ns_mul_i32 s{t+1}, s{sJ4}, 3072\ns_add_u32 s70, s70, {WS_V}\ns_add_u32 s70, s70, s{t+1}")
    p(f"v_and_b32 v10, 15, v{vLANE}\nv_lshlrev_b32 v10, 2, v10\ns_lshr_b32 s{t}, s{sTT}, 1\ns_lshl_b32 s{t}, s{t}, 5\ns_and_b32 s{t+1}, s{sTT}, 1\ns_add_u32 s{t}, s{t}, s{t+1}\ns_lshl_b32 s{t}, s{t}, 1")
    p(f"s_lshr_b32 s{t+2}, s{sTT}, 1\ns_lshl_b32 s{t+2}, s{t+2}, 6\ns_lshl_b32 s{t+3}, s{sJ4}, 3\ns_add_u32 s{t+2}, s{t+2}, s{t+3}\ns_add_u32 s{t+2}, s{t+2}, {FL_F3B}")
    p(f"v_and_b32 v9, 1, v{vLANE}\nv_lshl_add_u32 v9, v9, 2, s{t+2}")
    p(f"v_mov_b32 v{C_OWN}, 0\nbuffer_load_short_d16_hi v{C_OWN}, v10, {sr(SBS,4)}, s{t} offen @@bias\n@wait vm=bias")
    for r in range(1, 24): p(f"v_mov_b32 v{C_OWN+r}, v{C_OWN}")
def P4(p, role):
    NK = (16-KC) if role else KC
    N = 6*NK; R = 12 if role else 10
    RING = 16 if role else C_RING
    W = WXr if role else WA
    def accreg(ft, s_):
        if role: return vr(64 + ((ft&1)*4+s_)*4, 4)
        return vr(C_OWN+ft*4, 4) if s_ == 0 else vr(C_ACC+((ft&1)*3+s_-1)*4, 4)
    def ld(n):
        ft, k = n // NK, n % NK
        if X.get('p4nold') and n > 0: return
        if k == 0 and ft: p(f"v_add_u32 v3, 65536, v3")
        p(f"buffer_load_dwordx4 {vr(RING+(n%R)*4,4)}, v3, {sr(SW,4)}, s{80+k} offen sc1 @@z{n}")
    R0 = X.get('R0', 6)
    if X.get('p4sleep'): p(f"s_sleep {X['p4sleep']}")
    if role: xstamp(p, 25)
    for n in range(R0): ld(n)
    if role and X.get('xst'): p("@wait vm=z0"); xstamp(p, 26); p(f"@wait vm=z{R0-1}"); xstamp(p, 27)
    def wr(ft):
        if ft:
            for s_ in range(0 if role else 1, 4): p(f"v_add_u32 v{4+s_}, {MB_BASE[ft]-MB_BASE[ft-1]}, v{4+s_}")
        for s_ in range(0 if role else 1, 4): p(f"ds_write_b128 v{4+s_}, {accreg(ft,s_)}")
    def mb(ft, pk=False):
        L = []
        if ft: L.append(f"v_add_u32 v4, {MB_BASE[ft]-MB_BASE[ft-1]}, v4")
        L.append("\n".join(f"ds_read_b128 {vr(C_MBR[e],4)}, v4 offset:{e*1024} @@mb{ft}_{e}" for e in range(7)))
        o = C_OWN+4*ft
        if pk:
            for e in range(7):
                L.append(f"@wait lg=mb{ft}_{e}")
                for h in range(2): L.append(f"v_pk_add_f32 {vr(o+2*h,2)}, {vr(o+2*h,2)}, {vr(C_MBR[e]+2*h,2)}")
        else:
            L += ["s_nop 0"]*X.get('mbgap', 10)
            for e in range(7):
                for r in range(4): L.append((f"@wait lg=mb{ft}_{e}\n" if r == 0 else "") + f"v_add_f32 v{o+r}, v{o+r}, v{C_MBR[e]+r}")
        return L
    fill = []
    PER = X.get('p4v', 3)
    LEAD = X.get('lead', 1)
    nl = R0; mbq = []; nq = [0]
    def T(j):
        if (X.get('p4nobar', 10) >> j) & 1: return
        p("s_waitcnt lgkmcnt(0)"); bar(p, f"T{j}")
        while nq[0] < j:
            if not role: mbq.append(nq[0])
            nq[0] += 1
    def pump(cnt):
        for _ in range(cnt):
            if not fill and mbq: fill.extend(mb(mbq.pop(0)))
            if fill:
                l = fill.pop(0)
                if l != "s_nop 0": p(l)
    consumed = lambda j: nq[0] > j and j not in mbq and not any(f"mb{j}_" in l for l in fill)
    safe0 = [False]
    for n in range(N):
        ft, k = n // NK, n % NK
        if not (X.get('p4nold') and n > 0): p(f"@wait vm=z{n}")
        z = vr(RING+(n%R)*4, 4)
        for s_ in range(4):
            d = accreg(ft, s_)
            c = d if (k or (s_ == 0 and not role)) else "0"
            if not (X.get('p4nomf') and k): p(f"{MF16} {d}, {z}, {W(s_,k)}, {c}")
            pump(PER)
        while nl < min(N, n + 1 + R) and nl < n + 1 + R0 + 2*(n+1): ld(nl); nl += 1
        if k == 1 and ft >= 1:
            if ft == 5 and not role: assert safe0[0], "slot 0 reuse unsafe"
            wr(ft-1)
            j = ft if role else ft - LEAD
            if j >= 1:
                if not role and consumed(0) and not (X.get('p4nobar', 10) >> j) & 1: safe0[0] = True
                T(j)
        if not role and ft == 3 and k == 3: p(f"buffer_load_dword v15, v9, {sr(SW,4)}, 0 offen sc1 @@f3b")
        if not role and ft == 4 and k == 3:
            a, b = p.label("f3b"), p.label("f3bok")
            p(f"@wait vm=f3b\ns_mov_b32 s{sSPIN}, 0x100000\n{a}:\nv_cmp_ne_u32 vcc, s{sEP}, v15\ns_cbranch_vccz {b}\n@cond_begin")
            p(f"buffer_load_dword v15, v9, {sr(SW,4)}, 0 offen sc1\ns_waitcnt vmcnt(0)\ns_sub_u32 s{sSPIN}, s{sSPIN}, 1\ns_cbranch_scc0 {a}\n@cond_end\n{b}:")
            for f in range(6): p(f"buffer_load_dwordx2 {vr(C_Z1+2*f,2)}, v8, {sr(SW,4)}, s70 offen offset:{512*f} sc1 @@z1l")
    wr(5)
    if not role:
        pump(1000)
        for j in range(6-LEAD, 6): T(j); pump(1000)
    p("s_waitcnt lgkmcnt(0)"); bar(p, "Bf")
    if role: return
    m5 = mb(5, True)
    p(m5[0]); p(m5[1])
    def vout(u):
        o = RING + 4*u
        for ff in range(2):
            ft = 2*u+ff; z = RING+16+4*ff; g = C_OWN+4*ft
            for h in range(2): p(f"v_lshlrev_b32 v{z+2*h}, 16, v{C_Z1+2*ft+h}\nv_and_b32 v{z+2*h+1}, s{sMASKHI}, v{C_Z1+2*ft+h}")
            for h in range(2): p(f"v_pk_mul_f32 {vr(z+2*h,2)}, {vr(z+2*h,2)}, {vr(g+2*h,2)}")
            for h in range(2): p(f"v_cvt_pk_bf16_f32 v{o+2*ff+h}, v{z+2*h}, v{z+2*h+1}")
        p(f"buffer_store_dwordx4 {vr(o,4)}, v{vL16}, {sr(SW,4)}, s70 offen offset:{1024*u} {'sc1' if X.get('m84', 1) else ''} @@vs")
    p("@wait vm=z1l")
    vout(0); vout(1)
    p("\n".join(m5[2:]))
    vout(2)

HRES = 16
HP = [36, 37, 38, 39, 104, 105, 106, 107, 108, 109]
sT5, sJ5, sR5 = SCS, SCS+1, SCS+2
def hload(p):
    A, B = 72, 84
    map5(p, sT5, sJ5, sR5)
    p(f"s_cmp_ge_u32 s{sJ5}, 4\ns_cselect_b32 s{t}, -1, 1\ns_cselect_b32 s{t+1}, 956, 0\ns_cselect_b64 vcc, -1, 0")
    p(f"s_mov_b64 s[94:95], vcc")
    p(f"s_mul_i32 s{t+2}, s{sJ5}, 80\nv_lshrrev_b32 v70, 4, v{vLANE}\nv_lshl_add_u32 v70, v70, 2, s{t+2}\nv_mul_lo_u32 v70, v70, s{t}\nv_add_u32 v70, s{t+1}, v70")
    p(f"v_and_b32 v71, 15, v{vLANE}\nv_lshlrev_b32 v71, 4, v71\ns_lshl_b32 s{t}, s{t}, 4")
    p(f"s_mul_i32 s{t+3}, s{sT5}, 20480\ns_add_u32 s{t+3}, s{t+3}, {WS_H}")
    for et in range(5):
        for (dst, add) in ((A+2*et, 0), (B+2*et, 4)):
            p(f"v_add_u32 v10, {add}, v70")
            if et == 0 and add: p(f"v_cmp_eq_u32 vcc, 640, v10\nv_mov_b32 v11, 320\nv_cndmask_b32 v10, v10, v11, vcc")
            p(f"v_lshrrev_b32 v11, 3, v10\nv_lshl_add_u32 v11, v11, 8, v71\nv_and_b32 v10, 7, v10\nv_lshl_add_u32 v10, v10, 1, v11")
            p(f"buffer_load_dword{'x2' if not add else ''} {vr(dst, 1 if add else 2)}, v10, {sr(SW,4)}, s{t+3} offen sc1 @@hres")
        if et < 4: p(f"v_add_u32 v70, s{t}, v70")
def hpack(p):
    A, B = 72, 84
    p(f"s_mov_b32 s{t}, 0x07060100\n@wait vm=hres")
    for et in range(5):
        a, b = A+2*et, B+2*et
        p(f"v_perm_b32 v10, v{a+1}, v{b}, s{t}\nv_perm_b32 v11, v{a}, v{a+1}, s{t}")
        p(f"v_cndmask_b32 v{HP[2*et]}, v{a}, v10, s[94:95]\nv_cndmask_b32 v{HP[2*et+1]}, v{a+1}, v11, s[94:95]")
def P5_prep(p):
    for i in range(10): p(f"v_lshlrev_b32 v{HRES+2*i}, 16, v{HP[i]}\nv_and_b32 v{HRES+2*i+1}, s{sMASKHI}, v{HP[i]}")
    p(f"v_add_u32 v5, {WZ}, v{vL16}")
    p(f"v_and_b32 v10, 15, v{vLANE}\nv_mul_u32_u24 v10, 2560, v10\nv_lshrrev_b32 v11, 4, v{vLANE}\nv_lshl_add_u32 v6, v11, 3, v10")
    p(f"s_lshr_b32 s86, s{sT5}, 1\ns_lshl_b32 s86, s86, 5\ns_and_b32 s{t+1}, s{sT5}, 1\ns_add_u32 s86, s86, s{t+1}\ns_mul_i32 s86, s86, 1280\ns_mul_i32 s{t+1}, s{sJ5}, 160\ns_add_u32 s86, s86, s{t+1}")
    p(f"s_mul_i32 s80, s{sT5}, 24576\ns_add_u32 s80, s80, {WS_V}")
    for i in range(1, 6): p(f"s_add_u32 s{80+i}, s80, {4096*i}")
def P5_main(p):
    NB = 24
    breg = lambda i: ar(4*(i % NB), 4) if (i % NB) < 16 else vr(160+4*((i % NB)-16), 4)
    def vl(ks):
        if ks < 24: p(f"buffer_load_dwordx4 {vr(64+4*ks,4)}, v{vL16}, {sr(SW,4)}, s{80+(ks>>2)} offen offset:{(ks&3)*1024} sc1 @@v{ks}")
    def bl(i):
        if i < 120:
            o = i*1024
            p(f"ds_read_b128 {breg(i)}, v{vL16 if o < WZ else 5} offset:{o % WZ} @@wb{i}")
    VA = X.get('va', 8); BA = X.get('ba', 12)
    for ks in range(VA): vl(ks)
    bar(p, "B10")
    for i in range(BA): bl(i)
    for i in range(120):
        ks, et = i // 5, i % 5
        a = vr(HRES+4*et, 4)
        p(f"@wait vm=v{ks} lg=wb{i}")
        p(f"{MF16} {a}, {breg(i)}, {vr(64+4*ks,4)}, {a}")
        if i + BA == 60: bar(p, "B11")
        bl(i+BA)
        if et == 0: vl(ks+VA)
    for et in range(5):
        a = HRES+4*et; o = 36+2*et
        p(f"v_cvt_pk_bf16_f32 v{o}, v{a}, v{a+1}\nv_cvt_pk_bf16_f32 v{o+1}, v{a+2}, v{a+3}")
        p(f"buffer_store_dwordx2 {vr(o,2)}, v6, {sr(SOUT,4)}, s86 offen offset:{32*et}")

def thr(p, n=None):
    n = X.get('xthr', 4) if n is None else n
    if n: p(f"s_waitcnt vmcnt({n})")
def LIN(p, tag, which, part=(0, 15), th=None):
    if part[0] == 0:
        if tag == 'wz': p(f"s_mul_i32 s{sB0}, s{sJ3}, 61440\ns_add_u32 s{sB0}, s{sB0}, {WS_WI + (48*20480 if which == 0 else 0)}\ns_lshr_b32 s{sB2}, s{sL}, 4\ns_lshl_b32 s{sB2}, s{sB2}, 13")
        else: p(f"s_mul_i32 s{sB0}, s{sJ4}, 122880\ns_add_u32 s{sB0}, s{sB0}, {WS_WO + which*61440}\ns_lshl_b32 s{sB2}, s{sRG4}, 12")
        p(f"s_mul_i32 s{sB1}, s{sWAVE}, 15360\ns_add_u32 s{sB0}, s{sB0}, s{sB1}")
        if which: p(f"s_add_u32 s{sB1}, s{sB1}, {WZ}")
    for i in range(*part):
        p(f"s_add_u32 m0, s{sB1}, s{sB2}\ns_add_u32 s{sB3}, s{sB0}, s{sB2}\nbuffer_load_dwordx4 v{vL16}, {sr(SW,4)}, s{sB3} offen sc1 lds @@{tag}{which}")
        thr(p, th)
        if i < 14: p(f"s_add_u32 s{sB2}, s{sB2}, 1024\ns_cmp_eq_u32 s{sB2}, 15360\ns_cselect_b32 s{sB2}, 0, s{sB2}")
vWSS, vWSR = 12, 14
def ws_tile(p, slot):
    p(f"s_add_u32 s{sB0}, s{sWAVE}, {slot}\ns_and_b32 s{sB0}, s{sB0}, 3\ns_lshr_b32 s{sB1}, s{sB0}, 1\ns_add_u32 s{sB1}, s{sB1}, s{sRB4}\ns_lshl_b32 s{sB1}, s{sB1}, 5")
    p(f"s_and_b32 s{sB0}, s{sB0}, 1\ns_add_u32 s{sB0}, s{sB0}, s{sB1}\ns_lshl_b32 s{sB0}, s{sB0}, 12\ns_lshl_b32 s{sB1}, s{sWAVE}, 10\ns_add_u32 s{sB0}, s{sB0}, s{sB1}")
    p(f"s_mov_b32 s{sB2}, s{sRG4}")
def ws_piece(p, pc, sbase, off, tag):
    p(f"s_add_u32 s{sB3}, s{sB2}, {pc}\ns_and_b32 s{sB3}, s{sB3}, 7\ns_lshl_b32 s{sB3}, s{sB3}, 7\ns_add_u32 s{sB3}, s{sB3}, s{sB0}")
    for hf in range(2): p(f"s_add_u32 m0, s{sbase}, {off+hf*1024}\nbuffer_load_dwordx4 v{vWSS+hf}, {sr(SWS,4)}, s{sB3} offen lds @@{tag}"); thr(p)
def xchunk_dma(p, slot, base, wst):
    p(f"s_mul_i32 s{t}, s{sWAVE}, {wst}\ns_add_u32 s{t}, s{t}, {base}")
    ws_tile(p, slot)
    for i in range(5): ws_piece(p, KC//2 + i, t, i*2048, f"xc{slot}")
def xchunk_read(p, slot, base, wst):
    p(f"s_mul_i32 s{t}, s{sWAVE}, {wst}\ns_add_u32 s{t}, s{t}, {base}\nv_add_u32 v8, s{t}, v{vWSR}\nv_add_u32 v9, s{t}, v{vWSR+1}\n@wait vm=xc{slot}")
    for k in range(10): p(f"ds_read_b128 {WXr(slot,k)}, v{8+(k&1)} offset:{2048*(k>>1)} @@xr{slot}")
def colsum(p, z1):
    with cond(p, f"s_cmp_eq_u32 s{sWAVE}, 3"):
        p(f"s_mul_i32 s{t}, s{sWAVE}, 20480\ns_add_u32 s{t}, s{t}, {WZ if z1 else 0}\nv_add_u32 v8, s{t}, v{vL16}")
        for r in range(4): p(f"v_mov_b32 v{88+r}, 0x3f803f80")
        for hb in range(2):
            for k in range(10): p(f"ds_read_b128 {vr(16+4*k,4)}, v8 offset:{(hb*10+k)*1024}")
            for k in range(10):
                p(f"s_waitcnt lgkmcnt({9-k})")
                p(f"{MF16} v[92:95], {vr(16+4*k,4)}, v[88:91], {'v[92:95]' if (k or hb) else 0}")
        p(f"s_lshl_b32 s{t}, s{sWAVE}, 6\ns_add_u32 s{t}, s{t}, {CST + (192 if z1 else 0)}\nv_add_u32 v8, s{t}, v{vLANE}")
        p("s_mov_b32 exec_lo, 0x00010001\ns_mov_b32 exec_hi, 0x00010001\nds_write_b128 v8, v[92:95]\ns_mov_b64 exec, -1\ns_waitcnt lgkmcnt(0)")
def touch_h(p, dst):
    a, b = 10, 11
    p(f"s_and_b32 s{t}, s{sL}, 15\ns_lshl_b32 s{t}, s{t}, 2\ns_add_u32 s{t}, s{t}, s{sWAVE}\ns_mul_i32 s{t}, s{t}, 2560\ns_sub_u32 s{t+1}, s{sRB3}, s{sWAVE}\ns_mul_i32 s{t+1}, s{t+1}, 40960\ns_add_u32 s{t}, s{t}, s{t+1}\ns_add_u32 s{t}, s{t}, {WS_H}")
    p(f"s_lshl_b32 s{t+1}, s{sRB3}, 12\ns_lshl_b32 s{t+2}, s{sJ3}, 8\ns_add_u32 s{t+1}, s{t+1}, s{t+2}\ns_add_u32 s{t+1}, s{t+1}, {WS_ZS-20*128}")
    p(f"s_lshl_b32 s{t+2}, s{sRB3}, 10\ns_add_u32 s{t+2}, s{t+2}, {WS_HS-22*128}")
    p(f"v_mov_b32 v{a}, s{t}\nv_mov_b32 v{b}, s{t+1}\nv_cmp_lt_u32 vcc, 19, v{vLANE}\nv_cndmask_b32 v{a}, v{a}, v{b}, vcc\nv_mov_b32 v{b}, s{t+2}\nv_cmp_lt_u32 vcc, 21, v{vLANE}\nv_cndmask_b32 v{a}, v{a}, v{b}, vcc")
    p(f"v_lshl_add_u32 v{a}, v{vLANE}, 7, v{a}\ns_mov_b64 exec, 0x3fffffff\nbuffer_load_dword v{dst}, v{a}, {sr(SW,4)}, 0 offen\ns_mov_b64 exec, -1")
def code_touch(p, dst):
    if not X.get('ct', 1): return
    with only_wave(p, 0):
        p(f"s_lshl_b32 s{t}, s{sL}, 7\nv_lshlrev_b32 v10, 12, v{vLANE}\ns_mov_b64 exec, 0xffff\nbuffer_load_dword v{dst}, v10, {sr(SX,4)}, s{t} offen\ns_mov_b64 exec, -1")

def xprog(p):
    sPHI, sPL, sRLa, sRLb = 87, 86, 84, 85
    p(f"s_mov_b32 s{SX}, s{ST}\ns_mov_b32 s{SX+1}, s{ST+1}".replace("s_mov_b32", "s_mov_b32") if False else "")
    if X.get('xst'): p(f"v_mov_b32 v{vSTMP}, 0")
    p(f"s_mov_b64 s[94:95], {sr(ST,2)}")
    p(f"s_mul_i32 s{sPL}, s{sWAVE}, {P2S_W}\ns_add_u32 s{sPL}, s{sPL}, {P2S}")
    swz_src(p, 6, 1280, 10, both=False)
    p(f"s_or_b32 s{t+1}, s{sQ}, s{sWAVE}\ns_cmp_eq_u32 s{t+1}, 0\ns_cselect_b32 s{t+1}, {320*1280}, 0")
    p(f"v_cmp_gt_u32 vcc, 8, v{vLANE}\nv_mov_b32 v10, s{t+1}\nv_cndmask_b32 v7, 0, v10, vcc")
    p(f"s_and_b32 s{t}, s{sWAVE}, 1\ns_mul_i32 s{sB0}, s{sQ}, {80*1280}\ns_mul_i32 s{t+1}, s{t}, {40*1280}\ns_add_u32 s{sB0}, s{sB0}, s{t+1}")
    p(f"s_mul_i32 s{sB1}, s{sWAVE}, {5*5120}\ns_add_u32 s{sB1}, s{sB1}, {P1_B}")
    p(f"s_and_b32 s{sB2}, s{sRG}, 7\ns_cmp_ge_u32 s{sB2}, 5\ns_cselect_b32 s{t+1}, 5, 0\ns_sub_u32 s{sB2}, s{sB2}, s{t+1}")
    p("s_waitcnt lgkmcnt(0)")
    xstamp(p, 0)
    p(f"s_load_dword s{sEP}, {sr(SW,2)}, 0\ns_getreg_b32 s{sU}, hwreg(HW_REG_XCC_ID, 0, 4)")
    p(f"s_mov_b64 {sr(SX,2)}, s[94:95]\ns_mov_b32 s{SX+2}, CODE_BYTES")
    p(f"s_cmp_ge_u32 s{sWAVE}, 2\ns_cselect_b32 s{ST}, s{SSD}, s{SCD}\ns_cselect_b32 s{ST+1}, s{SSD+1}, s{SCD+1}\ns_mov_b32 s{ST+2}, 819200")
    if X.get('xdelay'): p(f"s_sleep {X['xdelay']}")
    for i in range(5):
        p(f"s_add_u32 s{t}, s{sB2}, s{sWAVE}\ns_and_b32 s{t}, s{t}, 1\ns_lshl_b32 s{t}, s{t}, 6\nv_xor_b32 v8, s{t}, v6")
        p(f"s_cmp_eq_u32 s{sB2}, 0\ns_cselect_b32 s{t}, -1, 0\nv_and_b32 v5, s{t}, v7\nv_add_u32 v8, v8, v5")
        p(f"s_mul_i32 s{t+1}, s{sB2}, 5120\ns_lshl_b32 s{t+2}, s{t+1}, 1\ns_add_u32 s{t+1}, s{t+1}, s{sB1}\ns_add_u32 s{t+2}, s{t+2}, s{sB0}")
        for pc in range(5): p(f"s_add_u32 m0, s{t+1}, {pc*1024-pc*128}\nbuffer_load_dwordx4 v8, {sr(ST,4)}, s{t+2} offen offset:{pc*128} lds @@b{i}")
        if i < 4: p(f"s_add_u32 s{sB2}, s{sB2}, 1\ns_cmp_eq_u32 s{sB2}, 5\ns_cselect_b32 s{sB2}, 0, s{sB2}")
        if i == 0:
            p(f"s_lshl_b32 s{sPHI}, s{sQ}, 6\ns_add_u32 s{sPHI}, s{sPHI}, s{sRG}")
            p(f"s_lshl_b32 s{t}, s{sPHI}, 2\ns_add_u32 s{t}, s{t}, s{sWAVE}\ns_mul_i32 s{t+1}, s{t}, 3277\ns_lshr_b32 s{t+1}, s{t+1}, 16\ns_mul_i32 s{t+2}, s{t+1}, 20\ns_sub_u32 s{t+2}, s{t}, s{t+2}")
            p(f"s_mul_i32 s{sRLa}, s{t+1}, 40\ns_add_u32 s{sRLa}, s{sRLa}, s{t+2}\ns_lshl_b32 s{sRLa}, s{sRLa}, 10\ns_add_u32 s{sRLa}, s{sRLa}, {WS_WI}")
            p(f"s_lshl_b32 s{t+3}, s{t+2}, 5\ns_sub_u32 s{t+4}, 960, s{t+3}\ns_cmp_ge_u32 s{t+2}, 10\ns_cselect_b32 s{t+3}, s{t+4}, s{t+3}\ns_cselect_b32 s{t+4}, -1, 1")
            p(f"v_lshrrev_b32 v10, 2, v{vLANE}\nv_mul_lo_u32 v11, v10, s{t+4}\nv_add_u32 v11, s{t+3}, v11\ns_lshl_b32 s{t+4}, s{t+4}, 4\nv_add_u32 v12, s{t+4}, v11")
            p(f"v_cmp_eq_u32 vcc, 640, v11\nv_mov_b32 v13, 320\nv_cndmask_b32 v11, v11, v13, vcc")
            p(f"v_and_b32 v13, 3, v{vLANE}\nv_lshlrev_b32 v13, 4, v13\ns_lshl_b32 s{t+1}, s{t+1}, 6\ns_movk_i32 s{t+5}, 3072")
            p(f"v_mad_u32_u24 v20, v11, s{t+5}, v13\nv_mad_u32_u24 v21, v12, s{t+5}, v13\nv_add_u32 v20, s{t+1}, v20\nv_add_u32 v21, s{t+1}, v21")
            p(f"s_lshl_b32 s{t}, s{sPHI}, 1\ns_and_b32 s{t+1}, s{sWAVE}, 1\ns_add_u32 s{t}, s{t}, s{t+1}\ns_mul_i32 s{t+1}, s{t}, 2731\ns_lshr_b32 s{t+1}, s{t+1}, 16\ns_mul_i32 s{t+2}, s{t+1}, 24\ns_sub_u32 s{t+2}, s{t}, s{t+2}")
            for c_, d in ((0, sRLb), (1, 83)):
                p(f"s_lshl_b32 s{t+3}, s{t+1}, 1\ns_add_u32 s{t+3}, s{t+3}, {c_}\ns_mul_i32 s{t+4}, s{t+3}, 52\ns_lshr_b32 s{t+4}, s{t+4}, 8\ns_mul_i32 s{t+4}, s{t+4}, 115\ns_add_u32 s{t+3}, s{t+3}, s{t+4}")
                p(f"s_mul_i32 s{t+4}, s{t+2}, 5\ns_add_u32 s{t+3}, s{t+3}, s{t+4}\ns_lshl_b32 s{d}, s{t+3}, 10\ns_add_u32 s{d}, s{d}, {WS_WO}")
            p(f"s_mul_i32 s{t+2}, s{t+2}, {32*1280}\ns_lshl_b32 s{t+1}, s{t+1}, 6\ns_add_u32 s{t+2}, s{t+2}, s{t+1}\nv_mul_u32_u24 v22, 1280, v10\nv_add3_u32 v22, v22, v13, s{t+2}\nv_add_u32 v23, {16*1280}, v22")
            p(f"s_cmp_ge_u32 s{sPHI}, 240\ns_cselect_b32 s{t}, 0x40000000, 0\ns_cmp_lt_u32 s{sWAVE}, 2\ns_cselect_b32 s{t+1}, 0x40000000, s{t}")
            p(f"s_add_u32 s{sRLa}, s{sRLa}, s{t}\ns_add_u32 s{sRLb}, s{sRLb}, s{t+1}\ns_add_u32 s83, s83, s{t+1}")
            for k in range(2): p(f"s_add_u32 m0, s{sPL}, {1024*k}\nbuffer_load_dwordx4 v{20+k}, {sr(SWI,4)}, s{t} offen lds @@rl")
            for k in range(2): p(f"s_add_u32 m0, s{sPL}, {2048+1024*k}\nbuffer_load_dwordx4 v{22+k}, {sr(SWO,4)}, s{t+1} offen lds @@rl")
    xstamp(p, 20)
    p("s_waitcnt lgkmcnt(0)"); epoch_fix(p)
    with only_wave(p, 3):
        p(f"s_lshl_b32 s{t}, s{sC}, 5\ns_add_u32 s{t}, s{t}, s{sL}\ns_lshl_b32 s{t}, s{t}, 2\ns_add_u32 s{t}, s{t}, {FL_X}\ns_add_u32 s{sU}, s{sU}, s{sEP}")
        p(f"v_mov_b32 v10, s{sU}\nv_mov_b32 v11, 0\ns_mov_b64 exec, 1\nbuffer_store_dword v10, v11, {sr(SW,4)}, s{t} offen sc1\ns_mov_b64 exec, -1")
    p(f"v_lshrrev_b32 v10, 4, v{vLANE}\nv_bfe_u32 v11, v{vLANE}, 2, 2\nv_lshl_add_u32 v24, v10, 3, v11\nv_lshl_add_u32 v25, v10, 2, v11\nv_and_b32 v10, 3, v{vLANE}\nv_lshlrev_b32 v10, 3, v10\nv_add_u32 v10, s{sPL}, v10")
    p(f"v_lshl_add_u32 v24, v24, 6, v10\nv_lshl_add_u32 v25, v25, 6, v10\n@wait vm=rl")
    for c_ in range(2):
        for h in range(2):
            p(f"ds_read_b64_tr_b16 {vr(32+4*c_+2*h,2)}, v24 offset:{256*h+32*c_}\nds_read_b64_tr_b16 {vr(40+4*c_+2*h,2)}, v25 offset:{2048+1024*h+32*c_}")
    p("s_waitcnt lgkmcnt(0)")
    p(f"s_add_u32 s{t}, s{sRLa}, 20480\ns_mov_b32 s{t+1}, s83")
    p(f"buffer_store_dwordx4 v[32:35], v{vL16}, {sr(SW,4)}, s{sRLa} offen sc1\nbuffer_store_dwordx4 v[36:39], v{vL16}, {sr(SW,4)}, s{t} offen sc1")
    p(f"buffer_store_dwordx4 v[40:43], v{vL16}, {sr(SW,4)}, s{sRLb} offen sc1\nbuffer_store_dwordx4 v[44:47], v{vL16}, {sr(SW,4)}, s{t+1} offen sc1 @@rls")
    p("@wait vm=b4"); bar(p, "B1")
    swz_src(p, 26, 8192, 10)
    p(f"s_add_u32 s{t+3}, s{sI2}, s{sQ2}\ns_and_b32 s{t+3}, s{t+3}, 3\ns_lshl_b32 s{t+4}, s{t+3}, 3\nv_add_u32 v28, s{t+4}, v{vLANE}\nv_and_b32 v28, 31, v28\nv_lshlrev_b32 v28, 4, v28")
    p(f"s_lshl_b32 s{t}, s{sI2}, 5\ns_add_u32 s92, s{t}, 32\ns_add_u32 s{t}, s{t}, s{sP2}\ns_lshl_b32 s{t}, s{t}, 12\ns_lshl_b32 s92, s92, 12")
    p(f"s_and_b32 s{t+2}, s{sWAVE}, 1\ns_lshl_b32 s{t+2}, s{t+2}, 9\ns_add_u32 s{t}, s{t}, s{t+2}\ns_add_u32 s92, s92, s{t+2}")
    for pc in range(4): p(f"s_add_u32 s{t+4}, s{t+3}, {pc}\ns_and_b32 s{t+4}, s{t+4}, 3\ns_lshl_b32 s{t+4}, s{t+4}, 7\ns_add_u32 s{88+pc}, s{t+4}, s{t}")
    p(f"s_mul_i32 s93, s{sWAVE}, {P1_XR}")
    p(f"s_cmp_ge_u32 s{sWAVE}, 2\ns_cselect_b32 s{ST}, s{SSS}, s{SCS}\ns_cselect_b32 s{ST+1}, s{SSS+1}, s{SCS+1}\ns_mov_b32 s{ST+2}, 8388608")
    for pc in range(4):
        for hf in range(2):
            dst = f"s{sPL}, {pc*2048+hf*1024}" if pc < 2 else f"s93, {5120+(pc-2)*2048+hf*1024}"
            p(f"s_add_u32 m0, {dst}\nbuffer_load_dwordx4 v{26+hf}, {sr(ST,4)}, s{88+pc} offen lds")
    p(f"s_add_u32 m0, s{sPL}, 4096\ns_mov_b32 exec_hi, 0\nbuffer_load_dwordx4 v28, {sr(ST,4)}, s92 offen lds @@p2p\ns_mov_b32 exec_hi, -1")
    touch_h(p, 4); code_touch(p, 4)
    swz_src(p, vWSS, 8192, 10); swz_rd(p, vWSR, 10); map4(p)
    p("@wait vm=rls"); bar(p, "B2")
    p("@wait vm=p2p"); bar(p, "B2b")
    nX = X.get('nx', 2)
    XB_ = [(WZ, 10240), (WZ+40960, 10240)]
    for s_ in range(nX): xchunk_dma(p, s_, *XB_[s_])
    for s_ in range(nX): xchunk_read(p, s_, *XB_[s_])
    p("s_waitcnt lgkmcnt(0)"); bar(p, "B3")
    bar(p, "B4")
    LIN(p, 'wz', 0, th=X.get('thz0', 0))
    p("@wait vm=wz0"); bar(p, "B5")
    colsum(p, 0)
    def adma(us):
        last = -1
        for u in us:
            if u // 3 != last: ws_tile(p, u // 3); last = u // 3
            b, off = unit_loc(u)
            ws_piece(p, u % 3, 88+b, off, "wa")
    unit_bases(p, 88)
    if X.get('xs5'): p(f"s_sleep {X['xs5']}")
    n1 = X.get('wz1a', 15)
    LIN(p, 'wz', 1, (0, n1), th=X.get('thz1', 2)); code_touch(p, 4)
    bar(p, "B5b")
    LIN(p, 'wz', 1, (n1, 15), th=0)
    early = [7, 8, 9, 10]
    adma(early)
    p("@wait vm=wz1"); bar(p, "B6")
    for s_ in range(nX, 4):
        xchunk_dma(p, s_, 0, 14336)
        if s_ == nX: adma([11]); colsum(p, 1)
        xchunk_read(p, s_, 0, 14336); p(f"@wait lg=xr{s_}")
        if s_ == nX: bar(p, "B7")
    if nX == 4: adma([11]); colsum(p, 1); bar(p, "B7")
    adma(range(7))
    z2_offsets(p, KC, 16-KC); mb_waddr(p, 1); code_touch(p, 8)
    if X.get('ztouch'):
        p(f"v_lshlrev_b32 v9, 16, v{vLANE}\ns_mov_b64 exec, 0x3f\nbuffer_load_dword v8, v9, {sr(SW,4)}, s80 offen sc1\ns_mov_b64 exec, -1")
    p("s_waitcnt vmcnt(0)"); bar(p, "B8")
    with only_wave(p, 0):
        p(f"s_lshl_b32 s{sU}, s{sJ4}, 5"); poll(p, FL_F3, 32)
    bar(p, "B9")
    P4(p, 1)
    map5(p, t+4, sJ4, sRG4)
    LIN(p, 'wo', 0, th=X.get('wothr', 0)); LIN(p, 'wo', 1, (0, 6), th=X.get('wothr', 0))
    p("@wait vm=wo0"); bar(p, "B10")
    LIN(p, 'wo', 1, (6, 15), th=X.get('wothr', 0))
    p("s_waitcnt vmcnt(0)"); bar(p, "B11")
    if X.get('xst'):
        p(f"s_lshl_b32 s{t}, s{sL}, 3\ns_add_u32 s{t}, s{t}, s{sC}\ns_lshl_b32 s{t}, s{t}, 2\ns_add_u32 s{t}, s{t}, s{sWAVE}\ns_lshl_b32 s{t+1}, s{t}, 8\ns_add_u32 s{t+1}, s{t+1}, {WS_STAMP+0x40000}\nv_lshlrev_b32 v10, 2, v{vLANE}")
        p(f"buffer_store_dword v{vSTMP}, v10, {sr(SW,4)}, s{t+1} offen")

def cprog(p):
    P1(p)
    n0 = len(p.lines); P2_xload(p)
    p(f"s_lshl_b32 s{sU}, s{sQ}, 6\ns_add_u32 s{sU}, s{sU}, s{sRG}\ns_waitcnt vmcnt(6)"); bar(p, "B2")
    stamp(p, 2)
    with only_wave(p, 0): flag_store(p, FL_F1, False)
    bar(p, "B2b")
    P2_prep(p)
    stamp(p, 3)
    a, b = p.label("xp"), p.label("xpd")
    p(f"s_lshl_b32 s{t}, s{sC}, 7\ns_add_u32 s{t}, s{t}, {FL_X}\nv_and_b32 v11, 31, v{vLANE}\nv_lshlrev_b32 v11, 2, v11\ns_mov_b32 s{sSPIN}, 0x100000")
    p(f"{a}:\nbuffer_load_dword v10, v11, {sr(SW,4)}, s{t} offen sc1\ns_waitcnt vmcnt(0)\nv_subrev_u32 v10, s{sEP}, v10\nv_cmp_lt_u32 vcc, 15, v10")
    p(f"s_cbranch_vccz {b}\ns_sub_u32 s{sSPIN}, s{sSPIN}, 1\ns_cbranch_scc0 {a}\n{b}:")
    p(f"v_readfirstlane_b32 s{t}, v10\nv_cmp_ne_u32 vcc, s{t}, v10\ns_cmp_eq_u64 vcc, 0\ns_cselect_b32 s{sFAST}, 1, 0")
    if X.get('slow'): p(f"s_mov_b32 s{sFAST}, 0")
    with only_wave(p, 1):
        p(f"s_lshl_b32 s{sU}, s{sQ2}, 6"); poll(p, FL_F1, 64)
    with only_wave(p, 2):
        p(f"s_mul_i32 s{sU}, s{sJ3}, 3\ns_add_u32 s{sU}, s{sU}, 48\ns_lshr_b32 s{sU}, s{sU}, 1\ns_mul_i32 s{sU}, s{sU}, 5"); poll(p, FL_F1, 10)
    stamp(p, 4)
    p("s_waitcnt lgkmcnt(0)"); bar(p, "B3")
    stamp(p, 5)
    P2_main(p)
    stamp(p, 6)
    p("s_waitcnt vmcnt(0)"); bar(p, "B5")
    with only_wave(p, 0):
        p(f"s_lshl_b32 s{sU}, s{sC}, 5\ns_add_u32 s{sU}, s{sU}, s{sL}"); flag_store(p, FL_F2, True)
    P3_prep(p)
    stamp(p, 7)
    p(f"s_sub_u32 s{t}, 63, s{sRB3}\ns_min_u32 s{sU}, s{t}, s{sRB3}\ns_lshl_b32 s{sU}, s{sU}, 3"); poll(p, FL_F2, 8)
    stamp(p, 8)
    P3_loads(p); P3_pass(p, 0)
    bar(p, "B5b")
    stamp(p, 9)
    P3_z2a(p)
    p(f"s_lshl_b32 s{sU}, s{sRB3}, 4\ns_add_u32 s{sU}, s{sU}, s{sJ3}\n@wait vm=zs"); flag_store(p, FL_FS, True)
    bar(p, "B6")
    stamp(p, 10)
    K1 = X.get('k1', 6)
    P3_pass(p, 1, 0, K1)
    p(f"s_lshl_b32 s{sU}, s{sRB3}, 4"); poll(p, FL_FS, 16)
    stamp(p, 11)
    P3_z2b(p)
    p("@wait vm=z2s")
    if X.get('rer'):
        for nt in range(3): p(f"buffer_load_dwordx4 v[4:7], v{vL16}, {sr(SW,4)}, s{[85,92,93][nt]} offen sc1")
    bar(p, "B7")
    with only_wave(p, 0):
        p(f"s_lshr_b32 s{sU}, s{sJ3}, 1\ns_lshl_b32 s{sU}, s{sU}, 5\ns_lshr_b32 s{t}, s{sRB3}, 2\ns_lshl_b32 s{t}, s{t}, 1\ns_add_u32 s{sU}, s{sU}, s{t}\ns_and_b32 s{t}, s{sJ3}, 1\ns_add_u32 s{sU}, s{sU}, s{t}")
        if X.get('z2m', 0) >= 3: p("buffer_wbl2 sc1\ns_waitcnt vmcnt(0)")
        flag_store(p, FL_F3, False)
    stamp(p, 12)
    P3_pass(p, 1, K1, 20)
    hload(p); map4(p); P3_z1e(p)
    stamp(p, 13)
    bar(p, "B8")
    stamp(p, 14)
    P4_prepC(p)
    stamp(p, 15)
    p(f"s_lshl_b32 s{sU}, s{sRB3}, 4\ns_add_u32 s{sU}, s{sU}, s{sJ3}\n@wait vm=z1s"); flag_store(p, FL_F3B, not X.get('m84', 1))
    p("s_waitcnt lgkmcnt(0)"); bar(p, "B9")
    stamp(p, 16)
    P4(p, 0)
    stamp(p, 17)
    p(f"s_lshl_b32 s{sU}, s{sTT}, 3\ns_add_u32 s{sU}, s{sU}, s{sJ4}\n@wait vm=vs"); flag_store(p, FL_F4, not X.get('m84', 1))
    P5_prep(p)
    p(f"s_lshl_b32 s{sU}, s{sT5}, 3"); poll(p, FL_F4, 8)
    stamp(p, 18)
    P5_main(p)
    stamp(p, 19)
    with cond(p, f"s_or_b32 s{t}, s{sC}, s{sWAVE}\ns_or_b32 s{t}, s{t}, s{sL}\ns_cmp_lg_u32 s{t}, 0"):
        p(f"v_mov_b32 v10, s{sEP}\nv_mov_b32 v11, 0\ns_mov_b64 exec, 1\nbuffer_store_dword v10, v11, {sr(SW,4)}, 0 offen\ns_mov_b64 exec, -1")
    if X.get('stamp'):
        p("s_waitcnt vmcnt(0)")
        stamp(p, 24)
        p(f"s_lshl_b32 s{t}, s{sL}, 3\ns_add_u32 s{t}, s{t}, s{sC}\ns_lshl_b32 s{t}, s{t}, 2\ns_add_u32 s{t}, s{t}, s{sWAVE}\ns_lshl_b32 s{t+1}, s{t}, 8\ns_add_u32 s{t+1}, s{t+1}, {WS_STAMP}\nv_lshlrev_b32 v10, 2, v{vLANE}")
        p(f"buffer_store_dword v{vSTMP}, v10, {sr(SW,4)}, s{t+1} offen")
        if X.get('dbg'):
            lab = p.label("dbg")
            order = [0, 20, 21, 22, 1, 2, 3, 4, 5, 23, 6, 7, 8, 9, 10, 11, 12, 13, 14, 15, 16, 17, 18, 19, 24]
            idx = [i for i in order if (X['stamp'] >> i) & 1 or i in (0, 24)][:16]
            p(f"s_cmp_lg_u32 s{t}, {X['dbg']-1}\ns_cbranch_scc1 {lab}\ns_mov_b32 s{ST}, s2\ns_mov_b32 s{ST+1}, s3\ns_mov_b32 s{ST+2}, 256\nv_readlane_b32 s{t+2}, v{vSTMP}, 31\nv_mov_b32 v11, 0")
            for n_, i in enumerate(idx):
                p(f"v_readlane_b32 s{t+3}, v{vSTMP}, {i}\ns_nop 1\ns_sub_u32 s{t+3}, s{t+3}, s{t+2}\nv_writelane_b32 v11, s{t+3}, {n_}")
            p(f"buffer_store_dword v11, v10, {sr(ST,4)}, 0 offen\n{lab}:")

def build():
    kn = NAME + "_kernel"
    p = Prog(); prologue(p, kn); cprog(p); p("END:\ns_endpgm")
    q = Prog(); q.nlabel = 5000; q.isx = True; q("XPROG:\ns_nop 4"); xprog(q); q("s_endpgm\nCODE_END:\n.set CODE_BYTES, CODE_END - " + kn + " - 128")
    assert NBAR[id(p)] == NBAR[id(q)], (NBAR[id(p)], NBAR[id(q)])
    return ("; @launch grid=(256,1,1) block=(512,1,1) lds=163840\n" + '.amdgcn_target "amdgcn-amd-amdhsa--gfx950"\n.text\n' + p.finish() + q.finish() +
f""".section .rodata,"a"
.p2align 6
.amdhsa_kernel {kn}
  .amdhsa_next_free_vgpr 256
  .amdhsa_next_free_sgpr 102
  .amdhsa_accum_offset 192
  .amdhsa_group_segment_fixed_size 0
  .amdhsa_kernarg_size 104
  .amdhsa_user_sgpr_count 2
  .amdhsa_user_sgpr_kernarg_segment_ptr 1
  .amdhsa_system_sgpr_workgroup_id_x 1
.end_amdhsa_kernel
""")
if __name__ == "__main__":
    for a in sys.argv[2:]:
        k, v = a.split("="); X[k] = int(v)
    open(sys.argv[1], "w").write(build())
```

```python
import sys, struct
from asmlib import Prog, vr, ar, sr
NAME = "sequential_preLN__spectral_fnet__mixer_gmlp__prompt"
X = {}
def fhex(x): return hex(struct.unpack("<I", struct.pack("<f", x))[0])
FL_F1, FL_F2, FL_FS, FL_F3, FL_F3B, FL_F4, FL_X = 0x1000, 0x2000, 0x3000, 0x5000, 0x6000, 0x7000, 0x8000
WS_AB, WS_XB, WS_H, WS_HS, WS_Z2, WS_Z1, WS_ZS = 0x010000, 0x158000, 0x180000, 0x400000, 0x480000, 0x800000, 0xB00000
WS_V = WS_Z1
WS_WI, WS_WO, WS_STAMP, WS_SIZE = 0xC00000, 0xE00000, 0xF00000, 0x1000000
SX, SCS, SSS, SCD, SSD, SWI, SWS, SBS, SWO, SOUT, SW, ST = 4, 8, 12, 16, 20, 24, 28, 32, 36, 40, 44, 48
sWAVE, sC, sL, sMASKHI = 52, 53, 54, 55
sI2, sP2, sQ2 = 56, 57, 58
sRB3, sJ3 = 59, 60
sRB4, sJ4, sRG4, sTT = 61, 62, 63, 64
sB0, sB1, sB2, sB3 = 65, 66, 67, 68
sRG, sQ, sG = 69, 70, 71
t = 72
sEP, sFAST, sSPIN, sU = 96, 97, 98, 99
SRDS = [(SX, 0, 2621440), (SW, 96, WS_SIZE), (SCD, 24, 819200), (SSD, 32, 819200), (SCS, 8, 8388608), (SSS, 16, 8388608),
        (SWI, 48, 1966080), (SWS, 56, 8388608), (SBS, 64, 4096), (SWO, 72, 983040), (SOUT, 80, 2621440)]
vLANE, vL16, vSTMP = 1, 2, 0
P1_XR = 10272; P1_B = 41216; P1_XA = P1_B + 102400; P1_T = P1_XA + 640
P2S = 145408; P2S_W = 4608
WZ = 61440; SCR = 122880; SCR_W = 9216; TBL = SCR + 4*SCR_W; CST = TBL + 1024
FULL = "row_mask:0xf bank_mask:0xf"
MF16 = "v_mfma_f32_16x16x32_bf16"
LOG2E = 1.4426950408889634
GK0, GK1 = -LOG2E*1.5957691216057308, -LOG2E*0.07135481282

def stamp(p, i):
    if not X.get('stamp'): return
    if X['stamp'] > 1 and not (X['stamp'] >> i) & 1 and i not in (0, 24): return
    p(f"s_memrealtime s[100:101]\ns_waitcnt lgkmcnt(0)\nv_writelane_b32 v{vSTMP}, s100, {i}")
    if i in (0, 24): p(f"s_memtime s[100:101]\ns_waitcnt lgkmcnt(0)\nv_writelane_b32 v{vSTMP}, s100, {32+i}")
def xstamp(p, i):
    if not X.get('xst'): return
    p(f"s_memrealtime s[100:101]\ns_waitcnt lgkmcnt(0)\nv_writelane_b32 v{vSTMP}, s100, {i}")
def G(*lines):
    out = []
    for l in lines: out += [x.strip() for x in l.split("\n") if x.strip()]
    return out
def emit(p, gs):
    for g in gs: p("\n".join(g))
def swz_src(p, vdst, row_bytes, tmp, both=True):
    p(f"v_lshrrev_b32 v{tmp}, 3, v{vLANE}\nv_mul_u32_u24 v{vdst}, {row_bytes}, v{tmp}")
    p(f"v_lshrrev_b32 v{tmp}, 4, v{vLANE}\nv_and_b32 v{tmp+1}, 7, v{vLANE}\nv_xor_b32 v{tmp}, v{tmp}, v{tmp+1}\nv_lshl_add_u32 v{vdst}, v{tmp}, 4, v{vdst}")
    if both: p(f"v_xor_b32 v{vdst+1}, 64, v{vdst}\nv_add_u32 v{vdst+1}, {8*row_bytes}, v{vdst+1}")
def swz_rd(p, vdst, tmp, halfstride=1024):
    p(f"v_and_b32 v{tmp}, 15, v{vLANE}")
    if halfstride == 1024: p(f"v_lshlrev_b32 v{vdst}, 7, v{tmp}")
    else: p(f"v_bfe_u32 v{tmp+1}, v{vLANE}, 3, 1\nv_mul_u32_u24 v{tmp+1}, {halfstride-1024}, v{tmp+1}\nv_lshl_add_u32 v{vdst}, v{tmp}, 7, v{tmp+1}")
    p(f"v_lshrrev_b32 v{tmp}, 1, v{tmp}\nv_lshrrev_b32 v{tmp+1}, 4, v{vLANE}\nv_xor_b32 v{tmp}, v{tmp}, v{tmp+1}")
    p(f"v_lshl_add_u32 v{vdst}, v{tmp}, 4, v{vdst}\nv_xor_b32 v{vdst+1}, 64, v{vdst}")
NBAR = {}
def bar(p, name):
    L = NBAR.setdefault(id(p), []); L.append(name)
    if getattr(p, 'isx', False): xstamp(p, len(L))
    p("s_barrier")
def flag_store(p, base, local):
    p(f"s_lshl_b32 s{t}, s{sU}, 2\ns_add_u32 s{t}, s{t}, {base}\nv_mov_b32 v10, s{sEP}\nv_mov_b32 v11, 0\ns_mov_b64 exec, 1")
    if local:
        a, b = p.label("fs_slow"), p.label("fs_done")
        p(f"s_cmp_eq_u32 s{sFAST}, 0\ns_cbranch_scc1 {a}\n@cond_begin")
        p(f"buffer_store_dword v10, v11, {sr(SW,4)}, s{t} offen\ns_branch {b}")
        p(f"{a}:\nbuffer_wbl2 sc1\ns_waitcnt vmcnt(0)\nbuffer_store_dword v10, v11, {sr(SW,4)}, s{t} offen sc1\n{b}:\n@cond_end")
    else:
        p(f"buffer_store_dword v10, v11, {sr(SW,4)}, s{t} offen sc1")
    p("s_mov_b64 exec, -1")
def poll(p, base, n):
    a, b = p.label("poll"), p.label("polled")
    p(f"s_lshl_b32 s{t}, s{sU}, 2\ns_add_u32 s{t}, s{t}, {base}\nv_min_u32 v11, {n-1}, v{vLANE}\nv_lshlrev_b32 v11, 2, v11\ns_mov_b32 s{sSPIN}, 0x100000")
    p(f"{a}:\nbuffer_load_dword v10, v11, {sr(SW,4)}, s{t} offen sc1\ns_waitcnt vmcnt(0)\nv_cmp_ne_u32 vcc, s{sEP}, v10")
    p(f"s_cbranch_vccz {b}\ns_sub_u32 s{sSPIN}, s{sSPIN}, 1\ns_cbranch_scc0 {a}\n{b}:")
class cond:
    def __init__(self, p, test): self.p = p; self.test = test
    def __enter__(self):
        self.lab = self.p.label("skip"); self.p(f"{self.test}\ns_cbranch_scc1 {self.lab}\n@cond_begin")
    def __exit__(self, *a): self.p(f"@cond_end\n{self.lab}:")
def only_wave(p, w): return cond(p, f"s_cmp_lg_u32 s{sWAVE}, {w}")
def epoch_fix(p): p(f"s_mul_i32 s{sEP}, s{sEP}, 0x2C9277B5\ns_add_u32 s{sEP}, s{sEP}, 0xAC564B05")

def map4(p):
    if not X.get('m84', 1):
        map5(p, sTT, sJ4, sRG4)
        p(f"s_sub_u32 s{sRB4}, s{sTT}, s{sWAVE}\ns_lshr_b32 s{sRB4}, s{sRB4}, 1\ns_lshl_b32 s{sRG4}, s{sRG4}, 1\ns_add_u32 s{sRG4}, s{sRG4}, s{sJ4}")
        return
    p(f"s_and_b32 s{t}, s{sC}, 6\ns_lshr_b32 s{t+1}, s{sL}, 4\ns_add_u32 s{t}, s{t}, s{t+1}\ns_lshl_b32 s{t}, s{t}, 2\ns_sub_u32 s{t+1}, 60, s{t}")
    p(f"s_bitcmp1_b32 s{sL}, 3\ns_cselect_b32 s{sRB4}, s{t+1}, s{t}\ns_bfe_u32 s{t}, s{sL}, 0x10002\ns_lshl_b32 s{t}, s{t}, 1\ns_add_u32 s{sRB4}, s{sRB4}, s{t}")
    p(f"s_and_b32 s{t}, s{sL}, 3\ns_and_b32 s{sJ4}, s{sC}, 1\ns_lshl_b32 s{sJ4}, s{sJ4}, 2\ns_add_u32 s{sJ4}, s{sJ4}, s{t}")
    p(f"s_lshl_b32 s{t}, s{t}, 1\ns_lshr_b32 s{sRG4}, s{sL}, 2\ns_add_u32 s{sRG4}, s{sRG4}, s{t}")
    p(f"s_lshl_b32 s{sTT}, s{sRB4}, 1\ns_add_u32 s{sTT}, s{sTT}, s{sWAVE}")
def map5(p, tt, j, rg):
    p(f"s_sub_u32 s{tt}, s{sRB3}, s{sWAVE}\ns_lshr_b32 s{rg}, s{sL}, 3\ns_and_b32 s{j}, s{rg}, 1\ns_lshl_b32 s{j}, s{j}, 1\ns_add_u32 s{tt}, s{tt}, s{j}")
    p(f"s_lshl_b32 s{tt}, s{tt}, 1\ns_add_u32 s{tt}, s{tt}, s{sWAVE}\ns_and_b32 s{j}, s{sL}, 7")
def prologue(p, kname):
    p(f".globl {kname}\n.p2align 8\n.type {kname},@function\n{kname}:")
    p(f"s_cmp_ge_u32 s2, 256\ns_cbranch_scc1 END")
    for (s, off, size) in SRDS: p(f"s_load_dwordx2 {sr(s,2)}, s[0:1], {off}")
    p(f"s_getpc_b64 {sr(ST,2)}\ns_mov_b32 s{ST+2}, CODE_BYTES\ns_mov_b32 s{ST+3}, 0x20000\ns_lshr_b32 s{sL}, s2, 3\ns_lshl_b32 s{t}, s{sL}, 7")
    p(f"v_xor_b32 v3, 0x100, v0\nv_lshlrev_b32 v3, 12, v3\ns_mov_b64 exec, 0xffff\nbuffer_load_dword v190, v3, {sr(ST,4)}, s{t} offen\ns_mov_b64 exec, -1")
    p(f"v_lshrrev_b32 v3, 6, v0\nv_and_b32 v{vLANE}, 63, v0\nv_readfirstlane_b32 s3, v3")
    for (s, off, size) in SRDS: p(f"s_mov_b32 s{s+2}, {size}\ns_mov_b32 s{s+3}, 0x20000")
    p(f"v_lshlrev_b32 v{vL16}, 4, v{vLANE}\ns_and_b32 s{sC}, s2, 7\ns_mov_b32 s{sMASKHI}, 0xffff0000\ns_and_b32 s{sWAVE}, s3, 3")
    p(f"s_lshl_b32 s{sI2}, s{sC}, 2\ns_lshr_b32 s{t}, s{sL}, 3\ns_add_u32 s{sI2}, s{sI2}, s{t}")
    p(f"s_bfe_u32 s{sP2}, s{sL}, 0x10002\ns_and_b32 s{sQ2}, s{sL}, 3")
    p(f"s_lshl_b32 s{t}, s{sC}, 2\ns_sub_u32 s{t+1}, 60, s{t}\ns_cmp_ge_u32 s{sL}, 16\ns_cselect_b32 s{sRB3}, s{t+1}, s{t}")
    p(f"s_add_u32 s{sRB3}, s{sRB3}, s{sWAVE}\ns_and_b32 s{sJ3}, s{sL}, 15")
    p(f"s_lshr_b32 s{sRG}, s{sL}, 2\ns_lshl_b32 s{t}, s{sC}, 3\ns_add_u32 s{sRG}, s{sRG}, s{t}\ns_and_b32 s{sQ}, s{sL}, 3")
    p(f"s_cmp_ge_u32 s3, 4\ns_cbranch_scc1 XPROG")

A_MF, A_MX = 0, 32
def P1(p):
    st = "sc1"
    sG0M, sJ0M, sJ31M, sXR = 80, 82, 84, 86
    if X.get('stamp'): p(f"v_mov_b32 v{vSTMP}, 0")
    if X.get('dbg'): p(f"s_load_dwordx2 s[2:3], s[0:1], 88\ns_memrealtime s[100:101]\ns_waitcnt lgkmcnt(0)\nv_writelane_b32 v{vSTMP}, s100, 31")
    p(f"s_lshl_b32 s{sG}, s{sRG}, 3\ns_lshl_b32 s{t}, s{sWAVE}, 1\ns_add_u32 s{sG}, s{sG}, s{t}")
    p(f"v_lshlrev_b32 v4, 2, v{vLANE}\ns_mul_i32 s{sXR}, s{sWAVE}, {P1_XR}")
    p(f"s_mul_i32 s88, s{sG}, 1280\ns_add_u32 s92, s88, 1280")
    for gb in range(2):
        b = 88+4*gb
        p(f"s_sub_u32 s{b+1}, {2048*1280}, s{b}\ns_sub_u32 s{b+2}, {1024*1280}, s{b}\ns_add_u32 s{b+3}, {1024*1280}, s{b}")
    p(f"s_cmp_eq_u32 s{sG}, 0\ns_cselect_b32 s89, {512*1280}, s89\ns_cselect_b32 s91, {1536*1280}, s91\ns_cselect_b32 s{sG0M}, -1, 0\ns_mov_b32 s{sG0M+1}, 0")
    p("s_waitcnt lgkmcnt(0)")
    stamp(p, 0)
    for k in range(8):
        p(f"s_add_u32 m0, s{sXR}, {k*1280}")
        p(f"buffer_load_dwordx4 v{vL16}, {sr(SX,4)}, s{88+k} offen lds")
        p(f"buffer_load_dword v4, {sr(SX,4)}, s{88+k} offen offset:1024 lds @@x")
    p(f"s_load_dword s{sEP}, {sr(SW,2)}, 0")
    vA0, vA1, vB0, vB1, vB2, vSG, vT, vST, vST2, vXA, vXS, vC0, vC1 = 32, 33, 34, 36, 38, 40, 41, 42, 43, 44, 45, 46, 47
    sPI = t+5
    def pi_calc(d):
        p(f"s_mul_i32 s{d}, s{sWAVE}, 3\ns_add_u32 s{d}, s{d}, 4\ns_lshl_b32 s{t}, s{sWAVE}, 1\ns_sub_u32 s{t}, s{t}, 4\ns_cmp_ge_u32 s{sWAVE}, 2\ns_cselect_b32 s{d}, s{t}, s{d}")
    vJ, vD, vM, vFJ0, vAW, vTW = 9, 12, 16, 20, 21, 25
    p(f"v_and_b32 v{vJ}, 31, v{vLANE}")
    p(f"v_cmp_eq_u32 {sr(sJ0M,2)}, 0, v{vJ}\nv_cmp_eq_u32 {sr(sJ31M,2)}, 31, v{vJ}")
    p(f"v_lshrrev_b32 v10, 5, v{vLANE}\nv_mul_u32_u24 v11, 5120, v10\nv_add_u32 v11, s{sXR}, v11\nv_mul_u32_u24 v{vJ}, 20, v{vJ}")
    p(f"v_add_u32 v{vD}, v11, v{vJ}\nv_sub_u32 v{vM}, v11, v{vJ}\nv_add_u32 v{vM}, 1260, v{vM}")
    for kk in range(1, 4): p(f"v_add_u32 v{vD+kk}, {1280*kk}, v{vD}\nv_add_u32 v{vM+kk}, {1280*kk}, v{vM}")
    p(f"v_cndmask_b32 v{vFJ0}, 0, 1.0, {sr(sJ0M,2)}")
    p(f"v_mul_u32_u24 v11, 640, v10\nv_add3_u32 v{vAW}, v11, v{vJ}, s{sXR}")
    for cmb in range(1, 4): p(f"v_add_u32 v{vAW+cmb}, {1280*cmb}, v{vAW}")
    p(f"s_lshl_b32 s{t}, s{sWAVE}, 3\ns_add_u32 s{t}, s{t}, {P1_T}\nv_lshl_add_u32 v{vTW}, v10, 2, s{t}")
    pi_calc(sPI)
    p(f"v_and_b32 v10, 7, v{vLANE}\nv_lshrrev_b32 v11, 1, v10\nv_mul_u32_u24 v{vA0}, {P1_XR}, v11")
    p(f"v_and_b32 v10, 1, v{vLANE}\nv_mul_u32_u24 v11, 640, v10\nv_add_u32 v{vA0}, v{vA0}, v11")
    p(f"v_lshlrev_b32 v{vSG}, 31, v10\nv_or_b32 v{vSG}, 1.0, v{vSG}")
    p(f"v_bfe_u32 v10, v{vLANE}, 3, 1\nv_mul_u32_u24 v11, 1280, v10\nv_add_u32 v{vA0}, v{vA0}, v11")
    p(f"v_lshrrev_b32 v10, 4, v{vLANE}\nv_lshl_add_u32 v{vA0}, v10, 4, v{vA0}")
    p(f"v_lshlrev_b32 v{vT}, 4, v10\nv_add_u32 v{vXA}, {P1_XA}, v{vT}\nv_add_u32 v{vT}, {P1_T}, v{vT}")
    p(f"s_cmp_lt_u32 s{sWAVE}, 2\ns_cselect_b32 s{t}, 2560, 0\ns_cselect_b32 s{t+1}, 0, 1.0\nv_add_u32 v{vA1}, s{t}, v{vA0}\nv_mul_f32 v{vC1}, s{t+1}, v{vSG}")
    p(f"s_cmp_eq_u32 s{sWAVE}, 1\ns_cselect_b32 s{t}, 2560, 0\ns_cselect_b32 s{t+1}, 0, 1.0\nv_add_u32 v{vA0}, s{t}, v{vA0}\nv_mul_f32 v{vC0}, s{t+1}, v{vSG}")
    swz_rd(p, vB0, 10, halfstride=5120)
    p(f"s_mul_i32 s{t}, s{sPI}, 10240\ns_add_u32 s{t}, s{t}, {P1_B}\nv_add_u32 v{vB0}, s{t}, v{vB0}\nv_add_u32 v{vB0+1}, s{t}, v{vB0+1}")
    for i, v in ((1, vB1), (2, vB2)): p(f"v_add_u32 v{v}, {10240*i}, v{vB0}\nv_add_u32 v{v+1}, {10240*i}, v{vB0+1}")
    p(f"s_mul_i32 s{t+4}, s{sQ}, 81920\ns_lshr_b32 s{t}, s{sRG}, 2\ns_mul_i32 s{t}, s{t}, 5120\ns_add_u32 s{t+4}, s{t+4}, s{t}")
    p(f"s_and_b32 s{t}, s{sRG}, 3\ns_lshl_b32 s{t}, s{t}, 8\ns_add_u32 s{t+4}, s{t+4}, s{t}\ns_add_u32 s{t+4}, s{t+4}, {WS_AB}")
    for s_ in range(3):
        p(f"s_add_u32 s{t}, s{sPI}, {s_}\ns_cmp_ge_u32 s{t}, 5\ns_cselect_b32 s{t+1}, {655360-5120}, 0\ns_lshl_b32 s{t}, s{t}, 10\ns_add_u32 s{t}, s{t}, s{t+1}\ns_add_u32 s{t}, s{t}, s{t+4}\nv_mov_b32 v{5+s_}, s{t}")
    p(f"v_lshrrev_b32 v10, 5, v{vLANE}\nv_mul_u32_u24 v{vST}, 327680, v10\nv_and_b32 v10, 15, v{vLANE}\nv_lshlrev_b32 v{vXS}, 2, v10\nv_lshl_add_u32 v{vST}, v10, 4, v{vST}")
    p(f"v_bfe_u32 v10, v{vLANE}, 4, 1\nv_lshl_add_u32 v{vST2}, v10, 3, v{vST}\nv_add_u32 v{vST2}, v{vST2}, v7")
    p(f"v_cmp_eq_u32 vcc, 1, v10\nv_cndmask_b32 v5, v5, v6, vcc\nv_add_u32 v{vST}, v{vST}, v5")
    p(f"s_mov_b32 s93, {fhex(1/640)}\ns_mov_b32 s94, {fhex(1/1280)}\ns_mov_b32 s95, {fhex(1e-5)}\ns_waitcnt lgkmcnt(0)")
    epoch_fix(p)
    p("@wait vm=x")
    stamp(p, 20)
    RAW = 64
    for kk in range(4):
        r = RAW + 12*kk
        p(f"ds_read2_b32 {vr(r,2)}, v{vD+kk} offset0:0 offset1:1")
        p(f"ds_read2_b32 {vr(r+10,2)}, v{vM+kk} offset0:4 offset1:5")
        p(f"ds_read2_b32 {vr(r+8,2)}, v{vM+kk} offset0:2 offset1:3")
        p(f"ds_read2_b32 {vr(r+2,2)}, v{vD+kk} offset0:2 offset1:3")
        p(f"ds_read2_b32 {vr(r+6,2)}, v{vM+kk} offset0:0 offset1:1")
        p(f"ds_read_b32 v{r+4}, v{vD+kk} offset:16 @@xr{kk}")
    T, CA = 112, 152
    S2 = [48, 50, 52, 54]; Q2 = [56, 58, 60, 62]; Y = [26, 27, 28, 29]
    for kk in range(4):
        r = RAW + 12*kk
        p(f"@wait lg=xr{kk}")
        for k in range(5):
            a, b = 4, 6
            p(f"v_lshlrev_b32 v{a}, 16, v{r+k}\nv_and_b32 v{a+1}, s{sMASKHI}, v{r+k}")
            p(f"v_lshlrev_b32 v{b}, 16, v{r+6+5-k}\nv_and_b32 v{b+1}, s{sMASKHI}, v{r+6+4-k}")
            if k == 0: p(f"v_cndmask_b32 v{b}, v{b}, 0, {sr(sJ0M,2)}")
            tt, cc = T+10*kk+2*k, CA+10*kk+2*k
            p(f"v_pk_add_f32 {vr(tt,2)}, {vr(a,2)}, {vr(b,2)}")
            p(f"v_pk_add_f32 {vr(cc,2)}, {vr(a,2)}, {vr(b,2)} neg_lo:[0,1] neg_hi:[0,1]")
            if k == 0: p(f"v_pk_mul_f32 {vr(Q2[kk],2)}, {vr(tt,2)}, {vr(tt,2)}")
            else:
                p(f"v_pk_add_f32 {vr(S2[kk],2)}, {vr(tt,2)}, {vr(S2[kk] if k > 1 else tt-2,2)}")
                p(f"v_pk_fma_f32 {vr(Q2[kk],2)}, {vr(tt,2)}, {vr(tt,2)}, {vr(Q2[kk],2)}")
            p(f"v_pk_fma_f32 {vr(Q2[kk],2)}, {vr(cc,2)}, {vr(cc,2)}, {vr(Q2[kk],2)}")
        p(f"v_lshlrev_b32 v{Y[kk]}, 16, v{r+6}\nv_cndmask_b32 v{Y[kk]}, 0, v{Y[kk]}, {sr(sJ31M,2)}")
        p(f"v_add_f32 v{S2[kk]}, v{S2[kk]}, v{S2[kk]+1}\nv_add_f32 v{Q2[kk]}, v{Q2[kk]}, v{Q2[kk]+1}")
        p(f"v_add_f32 v{S2[kk]}, v{S2[kk]}, v{Y[kk]}\nv_add_f32 v4, v{Y[kk]}, v{Y[kk]}\nv_fmac_f32 v{Q2[kk]}, v4, v{Y[kk]}")
    red = S2 + Q2
    for mod in ("quad_perm:[1,0,3,2]", "quad_perm:[2,3,0,1]", "row_half_mirror", "row_mirror"):
        for x in red: p(f"v_add_f32_dpp v{x}, v{x}, v{x} {mod} {FULL}")
    for x in red: p(f"v_mov_b32 v{x+1}, v{x}")
    for x in red: p(f"v_permlane16_swap_b32 v{x}, v{x+1}")
    for x in red: p(f"v_add_f32 v{x}, v{x}, v{x+1}")
    M = lambda k: S2[k]
    R = lambda k: Q2[k]
    for k in range(4): p(f"v_mul_f32 v{M(k)}, s93, v{M(k)}")
    for k in range(4): p(f"v_mul_f32 v{M(k)+1}, v{M(k)}, v{M(k)}")
    for k in range(4): p(f"v_fma_f32 v{R(k)}, v{R(k)}, s94, -v{M(k)+1}")
    for k in range(4): p(f"v_add_f32 v{R(k)}, s95, v{R(k)}")
    for k in range(4): p(f"v_rsq_f32 v{R(k)}, v{R(k)}")
    for k in range(4): p(f"v_fmac_f32 v{T+10*k}, v{vFJ0}, v{M(k)}")
    for k in range(4): p(f"v_sub_f32 v{Y[k]}, v{Y[k]}, v{M(k)}")
    OUT = 64; A1, A3, B0, B2, B1, K1, K2 = 72, 74, 76, 78, 80, 82, 84; U, W, e = 86, 90, 94
    g0 = sr(sG0M, 2)
    p(f"v_cndmask_b32 v{A1}, v{R(1)}, 0, {g0}\nv_cndmask_b32 v{A3}, v{R(3)}, 0, {g0}")
    p(f"v_cndmask_b32 v{B0}, v{R(0)}, 0, {g0}\nv_cndmask_b32 v{B2}, v{R(2)}, 0, {g0}")
    p(f"v_cndmask_b32 v{B1}, -v{R(1)}, v{R(1)}, {g0}")
    p(f"v_mul_f32 v{K1}, v{R(0)}, v{M(0)}\nv_mul_f32 v{K2}, v{R(2)}, v{M(2)}")
    p(f"v_fmac_f32 v{K1}, v{A1}, v{M(1)}\nv_fmac_f32 v{K2}, v{A3}, v{M(3)}")
    p(f"v_mul_f32 v{K1}, -2.0, v{K1}\nv_mul_f32 v{K2}, -2.0, v{K2}")
    bc = "op_sel_hi:[0,1,0]"; bc1 = "op_sel_hi:[0,1,1]"
    for k in range(5):
        tt = lambda r_: vr(T+10*r_+2*k, 2)
        cc = lambda r_: vr(CA+10*r_+2*k, 2)
        u, w = U, U+2; u2, w2 = W, W+2
        p(f"v_pk_fma_f32 {vr(u,2)}, {vr(R(0),2)}, {tt(0)}, {vr(K1,2)} {bc}")
        p(f"v_pk_fma_f32 {vr(w,2)}, {vr(R(2),2)}, {tt(2)}, {vr(K2,2)} {bc}")
        p(f"v_pk_mul_f32 {vr(u2,2)}, {vr(B0,2)}, {cc(0)} op_sel_hi:[0,1]")
        p(f"v_pk_mul_f32 {vr(w2,2)}, {vr(B2,2)}, {cc(2)} op_sel_hi:[0,1]")
        p(f"v_pk_fma_f32 {vr(u,2)}, {vr(A1,2)}, {tt(1)}, {vr(u,2)} {bc1}")
        p(f"v_pk_fma_f32 {vr(w,2)}, {vr(A3,2)}, {tt(3)}, {vr(w,2)} {bc1}")
        p(f"v_pk_fma_f32 {vr(u2,2)}, {vr(B1,2)}, {cc(1)}, {vr(u2,2)} {bc1}")
        p(f"v_pk_fma_f32 {vr(w2,2)}, {vr(R(3),2)}, {cc(3)}, {vr(w2,2)} {bc1} neg_lo:[1,0,0] neg_hi:[1,0,0]")
        p(f"v_pk_add_f32 {vr(e,2)}, {vr(u,2)}, {vr(w,2)}")
        p(f"v_pk_add_f32 {vr(e+2,2)}, {vr(u,2)}, {vr(w,2)} neg_lo:[0,1] neg_hi:[0,1]")
        p(f"v_pk_add_f32 {vr(e+4,2)}, {vr(u2,2)}, {vr(w2,2)} neg_lo:[0,1] neg_hi:[0,1]")
        p(f"v_pk_add_f32 {vr(e+6,2)}, {vr(u2,2)}, {vr(w2,2)}")
        o = lambda cmb, kk_: (OUT+2*cmb+(kk_ & 1)) if kk_ < 4 else 102+cmb
        for cmb in range(4): p(f"v_cvt_pk_bf16_f32 v{o(cmb,k)}, v{e+2*cmb}, v{e+2*cmb+1}")
        if k in (1, 3):
            for cmb in range(4): p(f"ds_write2_b32 v{vAW+cmb}, v{OUT+2*cmb}, v{OUT+2*cmb+1} offset0:{k-1} offset1:{k}")
    for cmb in range(4): p(f"ds_write_b32 v{vAW+cmb}, v{102+cmb} offset:16")
    p(f"v_mul_f32 v{U}, v{R(0)}, v{Y[0]}\nv_mul_f32 v{U+1}, v{R(2)}, v{Y[2]}")
    p(f"v_fmac_f32 v{U}, v{A1}, v{Y[1]}\nv_fmac_f32 v{U+1}, v{A3}, v{Y[3]}")
    p(f"v_add_f32 v{U+2}, v{U}, v{U+1}\nv_sub_f32 v{U+3}, v{U}, v{U+1}")
    p(f"s_mov_b64 exec, {sr(sJ31M,2)}\nds_write2_b32 v{vTW}, v{U+2}, v{U+3} offset0:0 offset1:8\ns_mov_b64 exec, -1")
    with cond(p, f"s_cmp_lg_u32 s{sG}, 0"):
        p(f"v_mul_f32 v{K1}, v{R(1)}, v{M(1)}\nv_fmac_f32 v{K1}, v{R(3)}, v{M(3)}\nv_mul_f32 v{K1}, -2.0, v{K1}")
        for k in range(5):
            p(f"v_pk_fma_f32 {vr(W,2)}, {vr(R(1),2)}, {vr(T+10+2*k,2)}, {vr(K1,2)} {bc}")
            p(f"v_pk_fma_f32 {vr(W,2)}, {vr(R(3),2)}, {vr(T+30+2*k,2)}, {vr(W,2)} {bc1}")
            p(f"v_cvt_pk_bf16_f32 v{106+k}, v{W}, v{W+1}")
        p(f"v_mul_f32 v{W}, v{R(1)}, v{Y[1]}\nv_fmac_f32 v{W}, v{R(3)}, v{Y[3]}")
        p(f"v_add_u32 v11, {P1_XA}, v{vJ}\nv_mov_b32 v10, {P1_T+64}\ns_mov_b64 exec, {g0}")
        p(f"ds_write2_b32 v11, v106, v107 offset0:0 offset1:1\nds_write2_b32 v11, v108, v109 offset0:2 offset1:3\nds_write_b32 v11, v110 offset:16")
        p(f"s_mov_b64 exec, 0x80000000\nds_write_b32 v10, v{W}\ns_mov_b64 exec, -1")
    stamp(p, 21)
    p("s_waitcnt lgkmcnt(0)"); bar(p, "B1")
    stamp(p, 22)
    FA0, FB0, FB1, ACC, ACX, TI = 64, 104, 144, 12, 24, 48
    FA1 = lambda ks: ar(4*ks, 4)
    p(f"ds_read_b128 {vr(TI,4)}, v{vT} @@ti")
    for ks in range(10):
        p(f"ds_read_b128 {vr(FA0+4*ks,4)}, v{vA0} offset:{64*ks}")
        p(f"ds_read_b128 {vr(FB0+4*ks,4)}, v{vB0+(ks&1)} offset:{1024*(ks>>1)} @@s0_{ks}")
    p("@wait lg=ti")
    for r_ in range(4): p(f"v_mul_f32 v{ACC+r_}, v{vC0}, v{TI+r_}\nv_mul_f32 v{ACC+4+r_}, v{vC1}, v{TI+r_}")
    for ks in range(10):
        p(f"@wait lg=s0_{ks}")
        p(f"{MF16} {vr(ACC,4)}, {vr(FA0+4*ks,4)}, {vr(FB0+4*ks,4)}, {vr(ACC,4)}")
        p(f"ds_read_b128 {FA1(ks)}, v{vA1} offset:{64*ks}")
        p(f"ds_read_b128 {vr(FB1+4*ks,4)}, v{vB1+(ks&1)} offset:{1024*(ks>>1)} @@s1_{ks}")
    def xchain(fb, s_, load):
        lab = p.label("P1_nx"); lab2 = p.label("P1_sinx")
        p(f"s_cmp_lg_u32 s{sRG}, 0\ns_cbranch_scc1 {lab}\n@cond_begin")
        pi_calc(t+3)
        p(f"s_add_u32 s{t}, s{t+3}, {s_}\ns_cmp_ge_u32 s{t}, 5\ns_cselect_b32 s{t+1}, {1280-320}, 0\ns_lshl_b32 s{t}, s{t}, 6\ns_add_u32 s{t}, s{t}, s{t+1}")
        p(f"s_mul_i32 s{t+2}, s{sQ}, 320\ns_add_u32 s{t}, s{t}, s{t+2}\ns_add_u32 s{t}, s{t}, {WS_XB}")
        if fb is not None:
            p(f"s_cmp_lg_u32 s{t+1}, 0\ns_cbranch_scc1 {lab2}")
            if load:
                p(f"v_mov_b32 v4, {P1_T+64}\nds_read_b32 v{TI+4}, v4")
                for ks in range(10): p(f"ds_read_b128 {vr(FA0+4*ks,4)}, v{vXA} offset:{64*ks}")
            p("s_waitcnt lgkmcnt(0)")
            for r_ in range(4): p(f"v_mul_f32 v{ACX+r_}, v{vSG}, v{TI+4}")
            for ks in range(10): p(f"{MF16} {vr(ACX,4)}, {vr(FA0+4*ks,4)}, {vr(fb+4*ks,4)}, {vr(ACX,4)}")
            p(f"s_mov_b64 exec, 0xffff\nbuffer_store_dword v{ACX}, v{vXS}, {sr(SW,4)}, s{t} offen {st}\ns_mov_b64 exec, -1\ns_branch {lab}")
            p(f"{lab2}:\ns_nop 7")
        p(f"s_mov_b32 exec_lo, 0\ns_mov_b32 exec_hi, 0xffff\nbuffer_store_dword v{ACC+4*s_}, v{vXS}, {sr(SW,4)}, s{t} offen {st}\ns_mov_b64 exec, -1")
        p(f"@cond_end\n{lab}:\ns_nop 1")
    xchain(FB0, 0, True)
    with cond(p, f"s_cmp_ge_u32 s{sWAVE}, 2"):
        for ks in range(10): p(f"ds_read_b128 {vr(FB0+4*ks,4)}, v{vB2+(ks&1)} offset:{1024*(ks>>1)}")
    for ks in range(10):
        p(f"@wait lg=s1_{ks}")
        p(f"{MF16} {vr(ACC+4,4)}, {FA1(ks)}, {vr(FB1+4*ks,4)}, {vr(ACC+4,4)}")
    with cond(p, f"s_cmp_ge_u32 s{sWAVE}, 2"):
        p("s_waitcnt lgkmcnt(0)")
        for ks in range(10): p(f"{MF16} {vr(ACC+8,4)}, {FA1(ks)}, {vr(FB0+4*ks,4)}, {vr(ACC+8,4) if ks else 0}")
    p(f"v_cvt_pk_bf16_f32 v4, v{ACC}, v{ACC+1}\nv_cvt_pk_bf16_f32 v5, v{ACC+2}, v{ACC+3}\nv_cvt_pk_bf16_f32 v6, v{ACC+4}, v{ACC+5}\nv_cvt_pk_bf16_f32 v7, v{ACC+6}, v{ACC+7}")
    p("v_permlane16_swap_b32 v4, v6\nv_permlane16_swap_b32 v5, v7")
    p(f"buffer_store_dwordx4 v[4:7], v{vST}, {sr(SW,4)}, 0 offen {st}")
    xchain(FB1, 1, False)
    with cond(p, f"s_cmp_ge_u32 s{sWAVE}, 2"):
        p(f"s_nop 3\nv_cvt_pk_bf16_f32 v8, v{ACC+8}, v{ACC+9}\nv_cvt_pk_bf16_f32 v9, v{ACC+10}, v{ACC+11}")
        p(f"buffer_store_dwordx2 v[8:9], v{vST2}, {sr(SW,4)}, 0 offen {st}")
        xchain(None, 2, False)
    stamp(p, 1)

P2_XD, P2_RING, P2_ACC, P2_ACX, P2_XB = 32, 64, 144, 164, 184
vPW, vRA, vRB, vHA, vHB, vSA, vSB, vXBo, vSG2, vSP2 = 16, 17, 18, 19, 20, 21, 22, 23, 24, 26
def P2_xload(p):
    p(f"v_and_b32 v10, 3, v{vLANE}\ns_lshl_b32 s{t+3}, s{sWAVE}, 2\nv_add_u32 v10, s{t+3}, v10\nv_mul_u32_u24 v10, 2560, v10")
    p(f"v_lshrrev_b32 v11, 2, v{vLANE}\nv_lshlrev_b32 v11, 4, v11\ns_mul_i32 s{t+3}, s{sQ2}, 160\nv_add_u32 v11, s{t+3}, v11")
    p(f"v_sub_u32 v28, 1264, v11\nv_add_u32 v29, 16, v28\nv_cmp_eq_u32 vcc, 0, v11\nv_mov_b32 v30, 640\nv_cndmask_b32 v29, v29, v30, vcc")
    p(f"s_lshl_b32 s{t}, s{sI2}, 5\ns_add_u32 s{t+1}, s{t}, s{sP2}\ns_mul_i32 s{t+1}, s{t+1}, 1280")
    p(f"s_sub_u32 s{t}, s{sP2}, s{t}\ns_add_u32 s{t}, s{t}, 2046\ns_mul_i32 s{t}, s{t}, 1280")
    p(f"v_add_u32 v30, s{t+1}, v10\nv_sub_u32 v31, s{t}, v10")
    for sd in range(2):
        r = P2_RING + 12*sd
        p(f"v_add_u32 v10, v{30+sd}, v11\nbuffer_load_dwordx4 {vr(r,4)}, v10, {sr(SX,4)}, 0 offen")
        p(f"v_add_u32 v10, v{30+sd}, v28\nbuffer_load_dwordx4 {vr(r+4,4)}, v10, {sr(SX,4)}, 0 offen")
        p(f"v_add_u32 v10, v{30+sd}, v29\nbuffer_load_dword v{r+8}, v10, {sr(SX,4)}, 0 offen @@xp")
def P2_prep(p):
    swz_rd(p, 4, 10)
    p(f"s_mul_i32 s{t}, s{sWAVE}, {P2S_W}\ns_add_u32 s{t}, s{t}, {P2S}\ns_mul_i32 s{t+1}, s{sWAVE}, {P1_XR}")
    p(f"v_add_u32 v6, s{t+1}, v4\nv_add_u32 v7, s{t+1}, v5\nv_add_u32 v4, s{t}, v4\nv_add_u32 v5, s{t}, v5\nv_lshrrev_b32 v8, 4, v{vLANE}\nv_lshl_add_u32 v8, v8, 4, s{t}")
    for k in range(8): p(f"ds_read_b128 {ar(A_MF+4*k,4)}, v{4+(k&1)+2*(k>>2)} offset:{2048*((k>>1)&1) + (5120 if k >= 4 else 0)}")
    for k in range(8): p(f"ds_read_b128 {ar(A_MX+4*k,4)}, v8 offset:{4096+64*k}")
    p(f"s_lshr_b32 s{t}, s{sWAVE}, 1\ns_lshl_b32 s{t}, s{t}, 1\ns_add_u32 s{t}, s{t}, s{sP2}\ns_lshl_b32 s{t}, s{t}, 2\ns_add_u32 s{t}, s{t}, s{sQ2}")
    p(f"s_lshl_b32 s{t}, s{t}, 1\ns_and_b32 s{t+1}, s{sWAVE}, 1\ns_add_u32 s{t}, s{t}, s{t+1}\ns_mul_i32 s{t}, s{t}, 40960\ns_add_u32 s{t}, s{t}, {WS_AB}")
    p(f"s_add_u32 s{t+1}, s{sI2}, s{sQ2}\ns_and_b32 s{t+1}, s{t+1}, 3\ns_lshl_b32 s{t+1}, s{t+1}, 1")
    for k in range(8):
        p(f"s_add_u32 s{t+2}, s{t+1}, {k}\ns_and_b32 s{t+2}, s{t+2}, 7\ns_mul_i32 s{t+2}, s{t+2}, 5120\ns_add_u32 s{80+k}, s{t+2}, s{t}")
    p(f"v_add_u32 v3, 4096, v{vL16}")
    p(f"v_lshrrev_b32 v10, 2, v{vLANE}\nv_lshlrev_b32 v{vXBo}, 5, v10\ns_mul_i32 s69, s{sQ2}, 320\ns_mul_i32 s{t+1}, s{sP2}, 1280\ns_add_u32 s69, s69, s{t+1}\ns_add_u32 s69, s69, {WS_XB}")
    p(f"s_mul_i32 s{t+2}, s{sWAVE}, {SCR_W}\ns_add_u32 s{t+2}, s{t+2}, {SCR}")
    p(f"v_and_b32 v12, 15, v{vLANE}\nv_mul_u32_u24 v12, 336, v12\nv_lshrrev_b32 v13, 4, v{vLANE}\nv_lshl_add_u32 v12, v13, 4, v12\nv_add_u32 v{vPW}, s{t+2}, v12")
    p(f"v_and_b32 v12, 3, v{vLANE}\ns_lshl_b32 s{t+3}, s{sWAVE}, 2\nv_add_u32 v12, s{t+3}, v12")
    p(f"v_mul_u32_u24 v13, 336, v12\nv_add_u32 v13, {SCR}, v13\nv_add_u32 v{vRA}, v13, v{vXBo}")
    p(f"s_cmp_eq_u32 s{sP2}, 0\ns_cselect_b32 s{t+3}, 336, 0\ns_cselect_b32 s{t+4}, 0, 0x80000000\nv_add_u32 v{vRB}, s{t+3}, v{vRA}")
    p(f"v_lshlrev_b32 v13, 8, v10\nv_lshl_add_u32 v{vHA}, v12, 4, v13\nv_sub_u32 v14, 15, v12\nv_lshl_add_u32 v{vHB}, v14, 4, v13")
    p(f"v_lshlrev_b32 v{vSG2}, 31, v{vLANE}\nv_or_b32 v{vSG2}, 1.0, v{vSG2}\nv_xor_b32 v{vSP2}, s{t+4}, v{vSG2}")
    p(f"v_lshlrev_b32 v{vSA}, 3, v12\nv_lshlrev_b32 v{vSB}, 3, v14")
    p(f"s_cmp_eq_u32 s{sQ2}, 0\ns_cselect_b32 s70, 15, 0\ns_mov_b32 s71, 0")
    p(f"s_lshl_b32 s{t}, s{sI2}, 1\ns_add_u32 s{t}, s{t}, s{sP2}\ns_sub_u32 s{t+1}, 126, s{t}\ns_lshl_b32 s{t+3}, s{sP2}, 1\ns_add_u32 s{t+1}, s{t+1}, s{t+3}")
    p(f"s_mul_i32 s{t+3}, s{sQ2}, 2560\ns_add_u32 s{t+3}, s{t+3}, {WS_H}\ns_lshl_b32 s{t+4}, s{sQ2}, 7\ns_add_u32 s{t+4}, s{t+4}, {WS_HS}")
    for (sh, ss, src) in ((88, 92, t), (90, 93, t+1)):
        p(f"s_mul_i32 s{sh}, s{src}, 20480\ns_add_u32 s{sh}, s{sh}, s{t+3}\ns_add_u32 s{sh+1}, s{sh}, 10240")
        p(f"s_lshl_b32 s{ss}, s{src}, 9\ns_add_u32 s{ss}, s{ss}, s{t+4}")
    p(f"v_cmp_gt_u32 vcc, 40, v{vLANE}\nv_mov_b32 v10, 0x40000000\nv_cndmask_b32 v{vHA}, v10, v{vHA}, vcc\nv_cndmask_b32 v{vHB}, v10, v{vHB}, vcc")
    p("@wait vm=xp")
    for sd in range(2):
        r = P2_RING + 12*sd; x = P2_XD + 16*sd
        for k in range(4): p(f"v_lshlrev_b32 v{x+2*k}, 16, v{r+k}\nv_and_b32 v{x+2*k+1}, s{sMASKHI}, v{r+k}")
        p(f"v_lshlrev_b32 v{x+8}, 16, v{r+8}")
        for i in range(1, 8):
            wi = 8 - i
            if wi & 1: p(f"v_and_b32 v{x+8+i}, s{sMASKHI}, v{r+4+(wi>>1)}")
            else: p(f"v_lshlrev_b32 v{x+8+i}, 16, v{r+4+(wi>>1)}")
def P2_main(p):
    RING, ACC, ACX = P2_RING, P2_ACC, P2_ACX
    def ld(k):
        for nt in range(5):
            r = RING + ((k & 3)*5 + nt)*4
            p(f"buffer_load_dwordx4 {vr(r,4)}, v{vL16 if nt < 4 else 3}, {sr(SW,4)}, s{80+k} offen offset:{(nt&3)*1024} sc1 @@ab{k}_{nt}")
    for k in range(4): ld(k)
    p(f"buffer_load_dwordx4 {vr(P2_XB,4)}, v{vXBo}, {sr(SW,4)}, s69 offen sc1\nbuffer_load_dwordx4 {vr(P2_XB+4,4)}, v{vXBo}, {sr(SW,4)}, s69 offen offset:16 sc1")
    for k in range(8):
        for nt in range(5):
            r = RING + ((k & 3)*5 + nt)*4
            p(f"@wait vm=ab{k}_{nt}")
            p(f"{MF16} {vr(ACC+4*nt,4)}, {vr(r,4)}, {ar(A_MF+4*k,4)}, {vr(ACC+4*nt,4) if k else 0}")
            p(f"{MF16} {vr(ACX+4*nt,4)}, {vr(r,4)}, {ar(A_MX+4*k,4)}, {vr(ACX+4*nt,4) if k else 0}")
        if k < 4: ld(k+4)
    stamp(p, 23)
    for nt in range(5): p(f"ds_write_b128 v{vPW}, {vr(ACC+4*nt,4)} offset:{64*nt}")
    p("s_mov_b32 exec_lo, 0x00010001\ns_mov_b32 exec_hi, 0x00010001")
    for nt in range(5): p(f"ds_write_b128 v{vPW}, {vr(ACX+4*nt,4)} offset:{16*336+64*nt}")
    p("s_mov_b64 exec, -1\ns_waitcnt lgkmcnt(0)"); bar(p, "B4")
    STt = 160; L = P2_RING
    for sd in range(2):
        for hh in range(2):
            for wv in range(4):
                p(f"ds_read_b128 {vr(L+32*sd+8*wv+4*hh,4)}, v{vRA if sd == 0 else vRB} offset:{wv*SCR_W+16*hh} @@pq{sd}{hh}")
    for sd in range(2):
        b = L + 32*sd; x = P2_XD + 16*sd; o = 144 + 8*sd
        su = (vSG2, 0) if sd == 0 else (vSP2, 1)
        sw = (vSP2, 0) if sd == 0 else (vSG2, 1)
        for k in range(4):
            p(f"@wait lg=pq{sd}{k>>1}")
            P0, P1_, Q0, Q1 = b+2*k, b+8+2*k, b+16+2*k, b+24+2*k
            p(f"v_pk_add_f32 {vr(P0,2)}, {vr(P0,2)}, {vr(P1_,2)}\nv_pk_add_f32 {vr(Q0,2)}, {vr(Q0,2)}, {vr(Q1,2)}")
            p(f"v_pk_add_f32 {vr(P1_,2)}, {vr(P0,2)}, {vr(Q0,2)} neg_lo:[0,1] neg_hi:[0,1]")
            p(f"v_pk_add_f32 {vr(Q1,2)}, {vr(P0,2)}, {vr(Q0,2)}")
            for (dst, (sv, ng)) in ((P1_, su), (Q1, sw)):
                p(f"v_pk_fma_f32 {vr(dst,2)}, {vr(sv,2)}, {vr(P2_XB+2*k,2)}, {vr(dst,2)} op_sel_hi:[0,1,1]" + (" neg_lo:[1,0,0] neg_hi:[1,0,0]" if ng else ""))
            lo, hi = (P1_, Q1) if sd == 0 else (Q1, P1_)
            if k == 0: p(f"v_cndmask_b32 v{lo}, v{lo}, 0, s[70:71]")
            p(f"v_pk_add_f32 {vr(x+2*k,2)}, {vr(x+2*k,2)}, {vr(lo,2)}\nv_pk_add_f32 {vr(x+8+2*k,2)}, {vr(x+8+2*k,2)}, {vr(hi,2)}")
            p(f"v_cvt_pk_bf16_f32 v{o+k}, v{x+2*k}, v{x+2*k+1}\nv_cvt_pk_bf16_f32 v{o+4+k}, v{x+8+2*k}, v{x+8+2*k+1}")
        sh = 88 if sd == 0 else 90; vh = vHA if sd == 0 else vHB
        p(f"buffer_store_dwordx4 {vr(o,4)}, v{vh}, {sr(SW,4)}, s{sh} offen")
        p(f"buffer_store_dwordx4 {vr(o+4,4)}, v{vh}, {sr(SW,4)}, s{sh+1} offen")
    for k in range(8):
        for sd in range(2):
            x = P2_XD + 16*sd; s_, q_ = STt+4*sd, STt+4*sd+2
            if k == 0: p(f"v_pk_mul_f32 {vr(q_,2)}, {vr(x,2)}, {vr(x,2)}")
            else: p(f"v_pk_add_f32 {vr(s_,2)}, {vr(s_ if k > 1 else x,2)}, {vr(x+2*k,2)}\nv_pk_fma_f32 {vr(q_,2)}, {vr(x+2*k,2)}, {vr(x+2*k,2)}, {vr(q_,2)}")
    red = [STt, STt+2, STt+4, STt+6]
    p(f"v_cmp_gt_u32 vcc, 40, v{vLANE}")
    for x in red: p(f"v_add_f32 v{x}, v{x}, v{x+1}")
    for x in red: p(f"v_cndmask_b32 v{x}, 0, v{x}, vcc")
    for mod in ("row_ror:4", "row_ror:8"):
        for x in red: p(f"v_add_f32_dpp v{x}, v{x}, v{x} {mod} {FULL}")
    for sw in ("v_permlane16_swap_b32", "v_permlane32_swap_b32"):
        for x in red: p(f"v_mov_b32 v{x+1}, v{x}")
        for x in red: p(f"{sw} v{x}, v{x+1}")
        for x in red: p(f"v_add_f32 v{x}, v{x}, v{x+1}")
    p(f"v_mov_b32 v{STt+1}, v{STt+2}\nv_mov_b32 v{STt+5}, v{STt+6}\ns_mov_b64 exec, 15")
    p(f"buffer_store_dwordx2 {vr(STt,2)}, v{vSA}, {sr(SW,4)}, s92 offen\nbuffer_store_dwordx2 {vr(STt+4,2)}, v{vSB}, {sr(SW,4)}, s93 offen")
    p("s_mov_b64 exec, -1")

P3_AZ2, P3_AZ1, P3_BF = 16, 40, 160
vWB1 = 184; sGK1 = 90; vK0 = 14
def HF(ks, par):
    i = 2*ks + par
    return vr(64+4*i, 4) if i < 24 else ar(4*(i-24), 4)
def P3_prep(p):
    p(f"v_add_u32 v{vWB1}, {WZ}, v{vL16}")
    p(f"s_lshl_b32 s80, s{sRB3}, 10\ns_add_u32 s80, s80, {WS_HS}")
    p(f"s_mul_i32 s81, s{sRB3}, 40960\ns_add_u32 s81, s81, {WS_H}\ns_add_u32 s82, s81, 20480")
    p(f"s_mov_b32 s{sGK1}, {fhex(GK1)}\ns_mov_b32 s{sGK1+1}, {fhex(GK1)}\nv_mov_b32 v{vK0}, {fhex(GK0)}")
    p(f"s_lshl_b32 s83, s{sRB3}, 12\ns_add_u32 s83, s83, {WS_ZS}\ns_lshl_b32 s84, s{sJ3}, 4\ns_add_u32 s84, s84, s83")
    p(f"s_mul_i32 s85, s{sJ3}, 192\ns_add_u32 s85, s85, s{sRB3}\ns_lshl_b32 s85, s85, 10\ns_add_u32 s85, s85, {WS_Z2}\ns_add_u32 s92, s85, 65536\ns_add_u32 s93, s85, 131072")
    p(f"s_lshl_b32 s86, s{sWAVE}, 8\ns_add_u32 s86, s86, {TBL}\ns_mov_b32 s87, {fhex(1e-5)}\ns_mov_b32 s88, {fhex(1/640)}\ns_mov_b32 s89, {fhex(1/768)}")
    p(f"v_lshrrev_b32 v185, 5, v{vLANE}\nv_lshlrev_b32 v185, 6, v185\nv_and_b32 v10, 7, v{vLANE}\nv_lshl_add_u32 v185, v10, 3, v185\nv_add_u32 v185, s86, v185")
    p(f"v_lshrrev_b32 v12, 4, v{vLANE}\nv_lshl_add_u32 v12, v12, 4, s86")
    p(f"v_and_b32 v10, 15, v{vLANE}\nv_lshlrev_b32 v186, 2, v10\nv_add_u32 v186, {CST}, v186")
    p(f"v_lshrrev_b32 v187, 2, v{vLANE}\nv_lshlrev_b32 v187, 8, v187\nv_and_b32 v10, 3, v{vLANE}\nv_lshl_add_u32 v13, v10, 4, v187")
def gelu4(p, x, tmp):
    for step in range(6):
        for h in range(2):
            xx = x+2*h; a = tmp+4*h; b = a+2
            if step == 0: p(f"v_pk_mul_f32 {vr(a,2)}, {vr(xx,2)}, {vr(xx,2)}")
            if step == 1: p(f"v_pk_fma_f32 {vr(a,2)}, {vr(a,2)}, {sr(sGK1,2)}, {vr(vK0,2)} op_sel_hi:[1,1,0]")
            if step == 2: p(f"v_pk_mul_f32 {vr(a,2)}, {vr(a,2)}, {vr(xx,2)}")
            if step == 3: p(f"v_exp_f32 v{b}, v{a}\nv_exp_f32 v{b+1}, v{a+1}")
            if step == 4: p(f"v_pk_add_f32 {vr(b,2)}, {vr(b,2)}, 1.0 op_sel_hi:[1,0]")
            if step == 5: p(f"v_rcp_f32 v{a}, v{b}\nv_rcp_f32 v{a+1}, v{b+1}")
    for h in range(2): p(f"v_pk_mul_f32 {vr(x+2*h,2)}, {vr(x+2*h,2)}, {vr(tmp+4*h,2)}")
def hfrag(p, ks):
    if ks >= 20: return
    for par in range(2):
        p(f"buffer_load_dwordx4 {HF(ks,par)}, v{vL16}, {sr(SW,4)}, s{81+par} offen offset:{(ks&3)*1024} sc1 @@h{ks}")
    if (ks & 3) == 3 and ks < 19: p(f"s_add_u32 s81, s81, 4096\ns_add_u32 s82, s82, 4096")
def P3_pass(p, z1, k0=0, k1=20):
    acc = P3_AZ1 if z1 else P3_AZ2
    HA = X.get('ha', 6)
    seq = [(ks, nt) for ks in range(k0, k1) for nt in range(3)]
    def rd(i):
        if i < len(seq):
            ks, nt = seq[i]
            p(f"ds_read_b128 {vr(P3_BF+4*(i%6),4)}, v{vWB1 if z1 else vL16} offset:{nt*20480+ks*1024} @@wf{z1}_{ks}_{nt}")
    for i in range(5): rd(i)
    for i, (ks, nt) in enumerate(seq):
        p(f"@wait lg=wf{z1}_{ks}_{nt}" + (f" vm=h{ks}" if not z1 else ""))
        bf = vr(P3_BF+4*(i%6), 4)
        for par in range(2):
            a = vr(acc + (par*3+nt)*4, 4); c = a if ks else 0
            p(f"{MF16} {a}, {bf}, {HF(ks,par)}, {c}" if z1 else f"{MF16} {a}, {HF(ks,par)}, {bf}, {c}")
        rd(i+5)
        if not z1 and nt == 0: hfrag(p, ks+HA)
        if not z1 and (ks, nt) == (X.get('ln1k', 3), 2): P3_ln1(p)
def P3_loads(p):
    for ks in range(X.get('ha', 6)):
        hfrag(p, ks)
        if ks == 1: p(f"buffer_load_dwordx4 v[4:7], v{vL16}, {sr(SW,4)}, s80 offen sc1 @@hs")
def P3_ln1(p):
    p("@wait vm=hs")
    for x in range(4, 8): p(f"v_add_f32_dpp v{x}, v{x}, v{x} row_ror:8 {FULL}")
    for x in range(4): p(f"v_mov_b32 v{8+x}, v{4+x}")
    for x in range(4): p(f"v_permlane16_swap_b32 v{4+x}, v{8+x}")
    for x in range(4): p(f"v_add_f32 v{4+x}, v{4+x}, v{8+x}")
    p(f"v_mul_f32 v8, s88, v4\nv_mul_f32 v9, s88, v6\nv_mul_f32 v4, v8, v8\nv_mul_f32 v6, v9, v9")
    p(f"v_fma_f32 v5, v5, s88, -v4\nv_fma_f32 v7, v7, s88, -v6\nv_add_f32 v5, s87, v5\nv_add_f32 v7, s87, v7")
    p(f"v_rsq_f32 v10, v5\nv_rsq_f32 v11, v7\nv_sub_f32 v8, 0, v8\nv_sub_f32 v9, 0, v9")
    p(f"ds_write_b64 v185, v[8:9]\nds_write_b64 v185, v[10:11] offset:128")
def P3_z2a(p):
    B = P3_BF; NM, RR, TMP = B, B+8, B+16
    CSr = [4, 6, 8]
    for nt in range(3): p(f"ds_read_b32 v{CSr[nt]}, v186 offset:{64*nt}")
    for par in range(2):
        p(f"ds_read_b128 {vr(NM+4*par,4)}, v12 offset:{64*par}\nds_read_b128 {vr(RR+4*par,4)}, v12 offset:{128+64*par} @@nr{par}")
    for par in range(2):
        p(f"@wait lg=nr{par}")
        for nt in range(3):
            a = P3_AZ2 + (par*3+nt)*4
            for h in range(2): p(f"v_pk_fma_f32 {vr(a+2*h,2)}, {vr(NM+4*par+2*h,2)}, {vr(CSr[nt],2)}, {vr(a+2*h,2)} op_sel_hi:[1,0,1]")
            for h in range(2): p(f"v_pk_mul_f32 {vr(a+2*h,2)}, {vr(a+2*h,2)}, {vr(RR+4*par+2*h,2)}")
            gelu4(p, a, TMP)
    for par in range(2):
        for h in range(2):
            a = lambda nt: vr(P3_AZ2 + (par*3+nt)*4 + 2*h, 2)
            S_, Q_ = vr(NM+4*par+2*h, 2), vr(RR+4*par+2*h, 2)
            p(f"v_pk_add_f32 {S_}, {a(0)}, {a(1)}\nv_pk_mul_f32 {Q_}, {a(0)}, {a(0)}")
            p(f"v_pk_add_f32 {S_}, {S_}, {a(2)}\nv_pk_fma_f32 {Q_}, {a(1)}, {a(1)}, {Q_}\nv_pk_fma_f32 {Q_}, {a(2)}, {a(2)}, {Q_}")
    for base in (NM, RR):
        for r in range(4): p(f"v_add_f32_dpp v{base+r}, v{base+r}, v{base+r} row_ror:8 {FULL}")
    for base in (NM, RR):
        for r in range(4): p(f"v_add_f32_dpp v{base+r}, v{base+4+r}, v{base+4+r} row_ror:8 row_mask:0xf bank_mask:0xc")
    for i, (base, r) in enumerate(((NM, 0), (RR, 0), (NM, 1), (RR, 1))):
        p(f"v_add_f32_dpp v{TMP+i}, v{base+r}, v{base+r} row_half_mirror {FULL}")
    for i, (base, r) in enumerate(((NM, 2), (RR, 2), (NM, 3), (RR, 3))):
        p(f"v_add_f32_dpp v{TMP+i}, v{base+r}, v{base+r} row_half_mirror row_mask:0xf bank_mask:0xa")
    for mod in ("quad_perm:[1,0,3,2]", "quad_perm:[2,3,0,1]"):
        for i in range(4): p(f"v_add_f32_dpp v{TMP+i}, v{TMP+i}, v{TMP+i} {mod} {FULL}")
    p("s_mov_b32 exec_lo, 0x11111111\ns_mov_b32 exec_hi, 0x11111111")
    p(f"buffer_store_dwordx4 {vr(TMP,4)}, v187, {sr(SW,4)}, s84 offen @@zs\ns_mov_b64 exec, -1")
def P3_z2b(p):
    B = P3_BF
    for i in range(4): p(f"buffer_load_dwordx4 {vr(B+4*i,4)}, v13, {sr(SW,4)}, s83 offen offset:{64*i} sc1 @@zl")
    p("@wait vm=zl")
    for h in range(2):
        p(f"v_pk_add_f32 {vr(B+2*h,2)}, {vr(B+2*h,2)}, {vr(B+4+2*h,2)}\nv_pk_add_f32 {vr(B+8+2*h,2)}, {vr(B+8+2*h,2)}, {vr(B+12+2*h,2)}")
    for h in range(2): p(f"v_pk_add_f32 {vr(B+2*h,2)}, {vr(B+2*h,2)}, {vr(B+8+2*h,2)}")
    for mod in ("quad_perm:[1,0,3,2]", "quad_perm:[2,3,0,1]"):
        for i in range(4): p(f"v_add_f32_dpp v{B+i}, v{B+i}, v{B+i} {mod} {FULL}")
    p(f"v_mul_f32 v{B}, s89, v{B}\nv_mul_f32 v{B+2}, s89, v{B+2}\nv_mul_f32 v{B+4}, v{B}, v{B}\nv_mul_f32 v{B+5}, v{B+2}, v{B+2}")
    p(f"v_fma_f32 v{B+1}, v{B+1}, s89, -v{B+4}\nv_fma_f32 v{B+3}, v{B+3}, s89, -v{B+5}\nv_add_f32 v{B+1}, s87, v{B+1}\nv_add_f32 v{B+3}, s87, v{B+3}")
    p(f"v_rsq_f32 v{B+1}, v{B+1}\nv_rsq_f32 v{B+3}, v{B+3}")
    p(f"v_mul_f32 v{B}, -v{B}, v{B+1}\nv_mul_f32 v{B+2}, -v{B+2}, v{B+3}")
    NM, RR = B+8, B+16
    for bk in range(4):
        for i in range(2):
            p(f"v_mov_b32_dpp v{NM+2*bk+i}, v{B+2*i} row_newbcast:{4*bk} {FULL}")
            p(f"v_mov_b32_dpp v{RR+2*bk+i}, v{B+2*i+1} row_newbcast:{4*bk} {FULL}")
    for nt in range(3):
        for par in range(2):
            a = P3_AZ2 + (par*3+nt)*4
            for h in range(2): p(f"v_pk_fma_f32 {vr(a+2*h,2)}, {vr(a+2*h,2)}, {vr(RR+4*par+2*h,2)}, {vr(NM+4*par+2*h,2)}")
        o = [B, B+4, 4][nt]
        for r in range(4): p(f"v_cvt_pk_bf16_f32 v{o+r}, v{P3_AZ2+nt*4+r}, v{P3_AZ2+(3+nt)*4+r}")
        p(f"buffer_store_dwordx4 {vr(o,4)}, v{vL16}, {sr(SW,4)}, s{[85,92,93][nt]} offen {['sc1', 'sc0 sc1', 'sc1 nt', 'nt', ''][X.get('z2m', 0)]} @@z2s")
def P3_z1e(p):
    CS, NR, TMP = P3_BF, 16, 24
    p(f"v_and_b32 v12, 15, v{vLANE}\nv_lshl_add_u32 v12, v12, 2, s86\nv_lshrrev_b32 v13, 4, v{vLANE}\nv_lshlrev_b32 v13, 4, v13\nv_add_u32 v13, {CST+192}, v13")
    for par in range(2): p(f"ds_read_b32 v{NR+4*par}, v12 offset:{64*par}\nds_read_b32 v{NR+4*par+2}, v12 offset:{128+64*par}")
    for nt in range(3): p(f"ds_read_b128 {vr(CS+4*nt,4)}, v13 offset:{64*nt} @@z1c{nt}")
    p(f"s_mul_i32 s{SSD}, s{sRB3}, {2*48*512}\ns_mul_i32 s{t+1}, s{sJ3}, 1536\ns_add_u32 s{SSD}, s{SSD}, s{t+1}\ns_add_u32 s{SSD}, s{SSD}, {WS_Z1}\ns_add_u32 s{SSD+1}, s{SSD}, {48*512}")
    p(f"v_lshlrev_b32 v8, 3, v{vLANE}")
    for par in range(2):
        for nt in range(3):
            a = P3_AZ1 + (par*3+nt)*4
            p(f"@wait lg=z1c{nt}")
            for h in range(2): p(f"v_pk_fma_f32 {vr(a+2*h,2)}, {vr(CS+4*nt+2*h,2)}, {vr(NR+4*par,2)}, {vr(a+2*h,2)} op_sel_hi:[1,0,1]")
            for h in range(2): p(f"v_pk_mul_f32 {vr(a+2*h,2)}, {vr(a+2*h,2)}, {vr(NR+4*par+2,2)} op_sel_hi:[1,0]")
            gelu4(p, a, TMP)
            p(f"v_cvt_pk_bf16_f32 v{a}, v{a}, v{a+1}\nv_cvt_pk_bf16_f32 v{a+1}, v{a+2}, v{a+3}")
            p(f"buffer_store_dwordx2 {vr(a,2)}, v8, {sr(SW,4)}, s{SSD+par} offen offset:{512*nt} {'sc1' if X.get('m84', 1) else ''} @@z1s")

KC = 6
MB_FT = 28672
MB_BASE = [0, MB_FT, 2*MB_FT, 3*MB_FT, 0, SCR]
def unit_bases(p, d):
    p(f"s_mul_i32 s{d}, s{sWAVE}, 14336\ns_lshl_b32 s{d+1}, s{sWAVE}, 13\ns_add_u32 s{d+1}, s{d+1}, {SCR}")
    p(f"s_lshl_b32 s{d+2}, s{sWAVE}, 11\ns_cmp_lt_u32 s{sWAVE}, 2\ns_cselect_b32 s{t+5}, 0, {155648-4096-57344}\ns_add_u32 s{d+2}, s{d+2}, s{t+5}\ns_add_u32 s{d+2}, s{d+2}, 57344")
def unit_loc(u): return (0, u*2048) if u < 7 else ((1, (u-7)*2048) if u < 11 else (2, 0))
def WA(s_, k):
    i = s_*KC + k
    return ar(4*i, 4) if i < 16 else vr(160+4*(i-16), 4)
def WXr(s_, k):
    i = s_*(16-KC) + k
    return ar(4*i, 4) if i < 16 else vr(96+4*(i-16), 4)
def z2_offsets(p, k0, n):
    p(f"s_mul_i32 s{t}, s{sJ4}, 384\ns_lshl_b32 s{t+1}, s{sWAVE}, 4\ns_add_u32 s{t}, s{t}, s{t+1}\ns_lshl_b32 s{t}, s{t}, 10\ns_add_u32 s{t}, s{t}, {WS_Z2}")
    p(f"s_lshl_b32 s{t+1}, s{sRG4}, 1")
    for k in range(n):
        p(f"s_add_u32 s{t+2}, s{t+1}, {k0+k}\ns_and_b32 s{t+2}, s{t+2}, 15\ns_lshl_b32 s{t+2}, s{t+2}, 10\ns_add_u32 s{80+k}, s{t+2}, s{t}")
    p(f"v_mov_b32 v3, v{vL16}")
def mb_waddr(p, role):
    for s_ in range(0 if role else 1, 4):
        e = 3+s_ if role else s_-1
        p(f"s_add_u32 s{t}, s{sWAVE}, {s_}\ns_and_b32 s{t}, s{t}, 3\ns_mul_i32 s{t}, s{t}, 7168\ns_add_u32 s{t}, s{t}, {e*1024}\nv_add_u32 v{4+s_}, s{t}, v{vL16}")
C_RING, C_ACC, C_OWN, C_Z1 = 64, 112, 136, 52
C_MBR = [16, 20, 24, 28, 32, 40, 44]
def P4_prepC(p):
    unit_bases(p, sB0); swz_rd(p, 4, 10)
    for b in range(3): p(f"v_add_u32 v{64+2*b}, s{sB0+b}, v4\nv_add_u32 v{65+2*b}, s{sB0+b}, v5")
    for s_ in range(4):
        for k in range(KC):
            b, off = unit_loc(s_*3 + (k >> 1))
            p(f"ds_read_b128 {WA(s_,k)}, v{64+2*b+(k&1)} offset:{off}")
    z2_offsets(p, 0, KC); mb_waddr(p, 0); hpack(p)
    p(f"s_mul_i32 s{t}, s{sWAVE}, 7168\nv_add_u32 v4, s{t}, v{vL16}")
    p(f"v_lshlrev_b32 v8, 3, v{vLANE}\ns_mul_i32 s70, s{sTT}, 24576\ns_mul_i32 s{t+1}, s{sJ4}, 3072\ns_add_u32 s70, s70, {WS_V}\ns_add_u32 s70, s70, s{t+1}")
    p(f"v_and_b32 v10, 15, v{vLANE}\nv_lshlrev_b32 v10, 2, v10\ns_lshr_b32 s{t}, s{sTT}, 1\ns_lshl_b32 s{t}, s{t}, 5\ns_and_b32 s{t+1}, s{sTT}, 1\ns_add_u32 s{t}, s{t}, s{t+1}\ns_lshl_b32 s{t}, s{t}, 1")
    p(f"s_lshr_b32 s{t+2}, s{sTT}, 1\ns_lshl_b32 s{t+2}, s{t+2}, 6\ns_lshl_b32 s{t+3}, s{sJ4}, 3\ns_add_u32 s{t+2}, s{t+2}, s{t+3}\ns_add_u32 s{t+2}, s{t+2}, {FL_F3B}")
    p(f"v_and_b32 v9, 1, v{vLANE}\nv_lshl_add_u32 v9, v9, 2, s{t+2}")
    p(f"v_mov_b32 v{C_OWN}, 0\nbuffer_load_short_d16_hi v{C_OWN}, v10, {sr(SBS,4)}, s{t} offen @@bias\n@wait vm=bias")
    for r in range(1, 24): p(f"v_mov_b32 v{C_OWN+r}, v{C_OWN}")
def P4(p, role):
    NK = (16-KC) if role else KC
    N = 6*NK; R = 12 if role else 10
    RING = 16 if role else C_RING
    W = WXr if role else WA
    def accreg(ft, s_):
        if role: return vr(64 + ((ft&1)*4+s_)*4, 4)
        return vr(C_OWN+ft*4, 4) if s_ == 0 else vr(C_ACC+((ft&1)*3+s_-1)*4, 4)
    def ld(n):
        ft, k = n // NK, n % NK
        if X.get('p4nold') and n > 0: return
        if k == 0 and ft: p(f"v_add_u32 v3, 65536, v3")
        p(f"buffer_load_dwordx4 {vr(RING+(n%R)*4,4)}, v3, {sr(SW,4)}, s{80+k} offen sc1 @@z{n}")
    R0 = X.get('R0', 6)
    if X.get('p4sleep'): p(f"s_sleep {X['p4sleep']}")
    if role: xstamp(p, 25)
    for n in range(R0): ld(n)
    if role and X.get('xst'): p("@wait vm=z0"); xstamp(p, 26); p(f"@wait vm=z{R0-1}"); xstamp(p, 27)
    def wr(ft):
        if ft:
            for s_ in range(0 if role else 1, 4): p(f"v_add_u32 v{4+s_}, {MB_BASE[ft]-MB_BASE[ft-1]}, v{4+s_}")
        for s_ in range(0 if role else 1, 4): p(f"ds_write_b128 v{4+s_}, {accreg(ft,s_)}")
    def mb(ft, pk=False):
        L = []
        if ft: L.append(f"v_add_u32 v4, {MB_BASE[ft]-MB_BASE[ft-1]}, v4")
        L.append("\n".join(f"ds_read_b128 {vr(C_MBR[e],4)}, v4 offset:{e*1024} @@mb{ft}_{e}" for e in range(7)))
        o = C_OWN+4*ft
        if pk:
            for e in range(7):
                L.append(f"@wait lg=mb{ft}_{e}")
                for h in range(2): L.append(f"v_pk_add_f32 {vr(o+2*h,2)}, {vr(o+2*h,2)}, {vr(C_MBR[e]+2*h,2)}")
        else:
            L += ["s_nop 0"]*X.get('mbgap', 10)
            for e in range(7):
                for r in range(4): L.append((f"@wait lg=mb{ft}_{e}\n" if r == 0 else "") + f"v_add_f32 v{o+r}, v{o+r}, v{C_MBR[e]+r}")
        return L
    fill = []
    PER = X.get('p4v', 3)
    LEAD = X.get('lead', 1)
    nl = R0; mbq = []; nq = [0]
    def T(j):
        if (X.get('p4nobar', 10) >> j) & 1: return
        p("s_waitcnt lgkmcnt(0)"); bar(p, f"T{j}")
        while nq[0] < j:
            if not role: mbq.append(nq[0])
            nq[0] += 1
    def pump(cnt):
        for _ in range(cnt):
            if not fill and mbq: fill.extend(mb(mbq.pop(0)))
            if fill:
                l = fill.pop(0)
                if l != "s_nop 0": p(l)
    consumed = lambda j: nq[0] > j and j not in mbq and not any(f"mb{j}_" in l for l in fill)
    safe0 = [False]
    for n in range(N):
        ft, k = n // NK, n % NK
        if not (X.get('p4nold') and n > 0): p(f"@wait vm=z{n}")
        z = vr(RING+(n%R)*4, 4)
        for s_ in range(4):
            d = accreg(ft, s_)
            c = d if (k or (s_ == 0 and not role)) else "0"
            if not (X.get('p4nomf') and k): p(f"{MF16} {d}, {z}, {W(s_,k)}, {c}")
            pump(PER)
        while nl < min(N, n + 1 + R) and nl < n + 1 + R0 + 2*(n+1): ld(nl); nl += 1
        if k == 1 and ft >= 1:
            if ft == 5 and not role: assert safe0[0], "slot 0 reuse unsafe"
            wr(ft-1)
            j = ft if role else ft - LEAD
            if j >= 1:
                if not role and consumed(0) and not (X.get('p4nobar', 10) >> j) & 1: safe0[0] = True
                T(j)
        if not role and ft == 3 and k == 3: p(f"buffer_load_dword v15, v9, {sr(SW,4)}, 0 offen sc1 @@f3b")
        if not role and ft == 4 and k == 3:
            a, b = p.label("f3b"), p.label("f3bok")
            p(f"@wait vm=f3b\ns_mov_b32 s{sSPIN}, 0x100000\n{a}:\nv_cmp_ne_u32 vcc, s{sEP}, v15\ns_cbranch_vccz {b}\n@cond_begin")
            p(f"buffer_load_dword v15, v9, {sr(SW,4)}, 0 offen sc1\ns_waitcnt vmcnt(0)\ns_sub_u32 s{sSPIN}, s{sSPIN}, 1\ns_cbranch_scc0 {a}\n@cond_end\n{b}:")
            for f in range(6): p(f"buffer_load_dwordx2 {vr(C_Z1+2*f,2)}, v8, {sr(SW,4)}, s70 offen offset:{512*f} sc1 @@z1l")
    wr(5)
    if not role:
        pump(1000)
        for j in range(6-LEAD, 6): T(j); pump(1000)
    p("s_waitcnt lgkmcnt(0)"); bar(p, "Bf")
    if role: return
    m5 = mb(5, True)
    p(m5[0]); p(m5[1])
    def vout(u):
        o = RING + 4*u
        for ff in range(2):
            ft = 2*u+ff; z = RING+16+4*ff; g = C_OWN+4*ft
            for h in range(2): p(f"v_lshlrev_b32 v{z+2*h}, 16, v{C_Z1+2*ft+h}\nv_and_b32 v{z+2*h+1}, s{sMASKHI}, v{C_Z1+2*ft+h}")
            for h in range(2): p(f"v_pk_mul_f32 {vr(z+2*h,2)}, {vr(z+2*h,2)}, {vr(g+2*h,2)}")
            for h in range(2): p(f"v_cvt_pk_bf16_f32 v{o+2*ff+h}, v{z+2*h}, v{z+2*h+1}")
        p(f"buffer_store_dwordx4 {vr(o,4)}, v{vL16}, {sr(SW,4)}, s70 offen offset:{1024*u} {'sc1' if X.get('m84', 1) else ''} @@vs")
    p("@wait vm=z1l")
    vout(0); vout(1)
    p("\n".join(m5[2:]))
    vout(2)

HRES = 16
HP = [36, 37, 38, 39, 104, 105, 106, 107, 108, 109]
sT5, sJ5, sR5 = SCS, SCS+1, SCS+2
def hload(p):
    A, B = 72, 84
    map5(p, sT5, sJ5, sR5)
    p(f"s_cmp_ge_u32 s{sJ5}, 4\ns_cselect_b32 s{t}, -1, 1\ns_cselect_b32 s{t+1}, 956, 0\ns_cselect_b64 vcc, -1, 0")
    p(f"s_mov_b64 s[94:95], vcc")
    p(f"s_mul_i32 s{t+2}, s{sJ5}, 80\nv_lshrrev_b32 v70, 4, v{vLANE}\nv_lshl_add_u32 v70, v70, 2, s{t+2}\nv_mul_lo_u32 v70, v70, s{t}\nv_add_u32 v70, s{t+1}, v70")
    p(f"v_and_b32 v71, 15, v{vLANE}\nv_lshlrev_b32 v71, 4, v71\ns_lshl_b32 s{t}, s{t}, 4")
    p(f"s_mul_i32 s{t+3}, s{sT5}, 20480\ns_add_u32 s{t+3}, s{t+3}, {WS_H}")
    for et in range(5):
        for (dst, add) in ((A+2*et, 0), (B+2*et, 4)):
            p(f"v_add_u32 v10, {add}, v70")
            if et == 0 and add: p(f"v_cmp_eq_u32 vcc, 640, v10\nv_mov_b32 v11, 320\nv_cndmask_b32 v10, v10, v11, vcc")
            p(f"v_lshrrev_b32 v11, 3, v10\nv_lshl_add_u32 v11, v11, 8, v71\nv_and_b32 v10, 7, v10\nv_lshl_add_u32 v10, v10, 1, v11")
            p(f"buffer_load_dword{'x2' if not add else ''} {vr(dst, 1 if add else 2)}, v10, {sr(SW,4)}, s{t+3} offen sc1 @@hres")
        if et < 4: p(f"v_add_u32 v70, s{t}, v70")
def hpack(p):
    A, B = 72, 84
    p(f"s_mov_b32 s{t}, 0x07060100\n@wait vm=hres")
    for et in range(5):
        a, b = A+2*et, B+2*et
        p(f"v_perm_b32 v10, v{a+1}, v{b}, s{t}\nv_perm_b32 v11, v{a}, v{a+1}, s{t}")
        p(f"v_cndmask_b32 v{HP[2*et]}, v{a}, v10, s[94:95]\nv_cndmask_b32 v{HP[2*et+1]}, v{a+1}, v11, s[94:95]")
def P5_prep(p):
    for i in range(10): p(f"v_lshlrev_b32 v{HRES+2*i}, 16, v{HP[i]}\nv_and_b32 v{HRES+2*i+1}, s{sMASKHI}, v{HP[i]}")
    p(f"v_add_u32 v5, {WZ}, v{vL16}")
    p(f"v_and_b32 v10, 15, v{vLANE}\nv_mul_u32_u24 v10, 2560, v10\nv_lshrrev_b32 v11, 4, v{vLANE}\nv_lshl_add_u32 v6, v11, 3, v10")
    p(f"s_lshr_b32 s86, s{sT5}, 1\ns_lshl_b32 s86, s86, 5\ns_and_b32 s{t+1}, s{sT5}, 1\ns_add_u32 s86, s86, s{t+1}\ns_mul_i32 s86, s86, 1280\ns_mul_i32 s{t+1}, s{sJ5}, 160\ns_add_u32 s86, s86, s{t+1}")
    p(f"s_mul_i32 s80, s{sT5}, 24576\ns_add_u32 s80, s80, {WS_V}")
    for i in range(1, 6): p(f"s_add_u32 s{80+i}, s80, {4096*i}")
def P5_main(p):
    NB = 24
    breg = lambda i: ar(4*(i % NB), 4) if (i % NB) < 16 else vr(160+4*((i % NB)-16), 4)
    def vl(ks):
        if ks < 24: p(f"buffer_load_dwordx4 {vr(64+4*ks,4)}, v{vL16}, {sr(SW,4)}, s{80+(ks>>2)} offen offset:{(ks&3)*1024} sc1 @@v{ks}")
    def bl(i):
        if i < 120:
            o = i*1024
            p(f"ds_read_b128 {breg(i)}, v{vL16 if o < WZ else 5} offset:{o % WZ} @@wb{i}")
    VA = X.get('va', 8); BA = X.get('ba', 12)
    for ks in range(VA): vl(ks)
    bar(p, "B10")
    for i in range(BA): bl(i)
    for i in range(120):
        ks, et = i // 5, i % 5
        a = vr(HRES+4*et, 4)
        p(f"@wait vm=v{ks} lg=wb{i}")
        p(f"{MF16} {a}, {breg(i)}, {vr(64+4*ks,4)}, {a}")
        if i + BA == 60: bar(p, "B11")
        bl(i+BA)
        if et == 0: vl(ks+VA)
    for et in range(5):
        a = HRES+4*et; o = 36+2*et
        p(f"v_cvt_pk_bf16_f32 v{o}, v{a}, v{a+1}\nv_cvt_pk_bf16_f32 v{o+1}, v{a+2}, v{a+3}")
        p(f"buffer_store_dwordx2 {vr(o,2)}, v6, {sr(SOUT,4)}, s86 offen offset:{32*et}")

def thr(p, n=None):
    n = X.get('xthr', 4) if n is None else n
    if n: p(f"s_waitcnt vmcnt({n})")
def LIN(p, tag, which, part=(0, 15), th=None):
    if part[0] == 0:
        if tag == 'wz': p(f"s_mul_i32 s{sB0}, s{sJ3}, 61440\ns_add_u32 s{sB0}, s{sB0}, {WS_WI + (48*20480 if which == 0 else 0)}\ns_lshr_b32 s{sB2}, s{sL}, 4\ns_lshl_b32 s{sB2}, s{sB2}, 13")
        else: p(f"s_mul_i32 s{sB0}, s{sJ4}, 122880\ns_add_u32 s{sB0}, s{sB0}, {WS_WO + which*61440}\ns_lshl_b32 s{sB2}, s{sRG4}, 12")
        p(f"s_mul_i32 s{sB1}, s{sWAVE}, 15360\ns_add_u32 s{sB0}, s{sB0}, s{sB1}")
        if which: p(f"s_add_u32 s{sB1}, s{sB1}, {WZ}")
    for i in range(*part):
        p(f"s_add_u32 m0, s{sB1}, s{sB2}\ns_add_u32 s{sB3}, s{sB0}, s{sB2}\nbuffer_load_dwordx4 v{vL16}, {sr(SW,4)}, s{sB3} offen sc1 lds @@{tag}{which}")
        thr(p, th)
        if i < 14: p(f"s_add_u32 s{sB2}, s{sB2}, 1024\ns_cmp_eq_u32 s{sB2}, 15360\ns_cselect_b32 s{sB2}, 0, s{sB2}")
vWSS, vWSR = 12, 14
def ws_tile(p, slot):
    p(f"s_add_u32 s{sB0}, s{sWAVE}, {slot}\ns_and_b32 s{sB0}, s{sB0}, 3\ns_lshr_b32 s{sB1}, s{sB0}, 1\ns_add_u32 s{sB1}, s{sB1}, s{sRB4}\ns_lshl_b32 s{sB1}, s{sB1}, 5")
    p(f"s_and_b32 s{sB0}, s{sB0}, 1\ns_add_u32 s{sB0}, s{sB0}, s{sB1}\ns_lshl_b32 s{sB0}, s{sB0}, 12\ns_lshl_b32 s{sB1}, s{sWAVE}, 10\ns_add_u32 s{sB0}, s{sB0}, s{sB1}")
    p(f"s_mov_b32 s{sB2}, s{sRG4}")
def ws_piece(p, pc, sbase, off, tag):
    p(f"s_add_u32 s{sB3}, s{sB2}, {pc}\ns_and_b32 s{sB3}, s{sB3}, 7\ns_lshl_b32 s{sB3}, s{sB3}, 7\ns_add_u32 s{sB3}, s{sB3}, s{sB0}")
    for hf in range(2): p(f"s_add_u32 m0, s{sbase}, {off+hf*1024}\nbuffer_load_dwordx4 v{vWSS+hf}, {sr(SWS,4)}, s{sB3} offen lds @@{tag}"); thr(p)
def xchunk_dma(p, slot, base, wst):
    p(f"s_mul_i32 s{t}, s{sWAVE}, {wst}\ns_add_u32 s{t}, s{t}, {base}")
    ws_tile(p, slot)
    for i in range(5): ws_piece(p, KC//2 + i, t, i*2048, f"xc{slot}")
def xchunk_read(p, slot, base, wst):
    p(f"s_mul_i32 s{t}, s{sWAVE}, {wst}\ns_add_u32 s{t}, s{t}, {base}\nv_add_u32 v8, s{t}, v{vWSR}\nv_add_u32 v9, s{t}, v{vWSR+1}\n@wait vm=xc{slot}")
    for k in range(10): p(f"ds_read_b128 {WXr(slot,k)}, v{8+(k&1)} offset:{2048*(k>>1)} @@xr{slot}")
def colsum(p, z1):
    with cond(p, f"s_cmp_eq_u32 s{sWAVE}, 3"):
        p(f"s_mul_i32 s{t}, s{sWAVE}, 20480\ns_add_u32 s{t}, s{t}, {WZ if z1 else 0}\nv_add_u32 v8, s{t}, v{vL16}")
        for r in range(4): p(f"v_mov_b32 v{88+r}, 0x3f803f80")
        for hb in range(2):
            for k in range(10): p(f"ds_read_b128 {vr(16+4*k,4)}, v8 offset:{(hb*10+k)*1024}")
            for k in range(10):
                p(f"s_waitcnt lgkmcnt({9-k})")
                p(f"{MF16} v[92:95], {vr(16+4*k,4)}, v[88:91], {'v[92:95]' if (k or hb) else 0}")
        p(f"s_lshl_b32 s{t}, s{sWAVE}, 6\ns_add_u32 s{t}, s{t}, {CST + (192 if z1 else 0)}\nv_add_u32 v8, s{t}, v{vLANE}")
        p("s_mov_b32 exec_lo, 0x00010001\ns_mov_b32 exec_hi, 0x00010001\nds_write_b128 v8, v[92:95]\ns_mov_b64 exec, -1\ns_waitcnt lgkmcnt(0)")
def touch_h(p, dst):
    a, b = 10, 11
    p(f"s_and_b32 s{t}, s{sL}, 15\ns_lshl_b32 s{t}, s{t}, 2\ns_add_u32 s{t}, s{t}, s{sWAVE}\ns_mul_i32 s{t}, s{t}, 2560\ns_sub_u32 s{t+1}, s{sRB3}, s{sWAVE}\ns_mul_i32 s{t+1}, s{t+1}, 40960\ns_add_u32 s{t}, s{t}, s{t+1}\ns_add_u32 s{t}, s{t}, {WS_H}")
    p(f"s_lshl_b32 s{t+1}, s{sRB3}, 12\ns_lshl_b32 s{t+2}, s{sJ3}, 8\ns_add_u32 s{t+1}, s{t+1}, s{t+2}\ns_add_u32 s{t+1}, s{t+1}, {WS_ZS-20*128}")
    p(f"s_lshl_b32 s{t+2}, s{sRB3}, 10\ns_add_u32 s{t+2}, s{t+2}, {WS_HS-22*128}")
    p(f"v_mov_b32 v{a}, s{t}\nv_mov_b32 v{b}, s{t+1}\nv_cmp_lt_u32 vcc, 19, v{vLANE}\nv_cndmask_b32 v{a}, v{a}, v{b}, vcc\nv_mov_b32 v{b}, s{t+2}\nv_cmp_lt_u32 vcc, 21, v{vLANE}\nv_cndmask_b32 v{a}, v{a}, v{b}, vcc")
    p(f"v_lshl_add_u32 v{a}, v{vLANE}, 7, v{a}\ns_mov_b64 exec, 0x3fffffff\nbuffer_load_dword v{dst}, v{a}, {sr(SW,4)}, 0 offen\ns_mov_b64 exec, -1")
def code_touch(p, dst):
    if not X.get('ct', 1): return
    with only_wave(p, 0):
        p(f"s_lshl_b32 s{t}, s{sL}, 7\nv_lshlrev_b32 v10, 12, v{vLANE}\ns_mov_b64 exec, 0xffff\nbuffer_load_dword v{dst}, v10, {sr(SX,4)}, s{t} offen\ns_mov_b64 exec, -1")

def xprog(p):
    sPHI, sPL, sRLa, sRLb = 87, 86, 84, 85
    p(f"s_mov_b32 s{SX}, s{ST}\ns_mov_b32 s{SX+1}, s{ST+1}".replace("s_mov_b32", "s_mov_b32") if False else "")
    if X.get('xst'): p(f"v_mov_b32 v{vSTMP}, 0")
    p(f"s_mov_b64 s[94:95], {sr(ST,2)}")
    p(f"s_mul_i32 s{sPL}, s{sWAVE}, {P2S_W}\ns_add_u32 s{sPL}, s{sPL}, {P2S}")
    swz_src(p, 6, 1280, 10, both=False)
    p(f"s_or_b32 s{t+1}, s{sQ}, s{sWAVE}\ns_cmp_eq_u32 s{t+1}, 0\ns_cselect_b32 s{t+1}, {320*1280}, 0")
    p(f"v_cmp_gt_u32 vcc, 8, v{vLANE}\nv_mov_b32 v10, s{t+1}\nv_cndmask_b32 v7, 0, v10, vcc")
    p(f"s_and_b32 s{t}, s{sWAVE}, 1\ns_mul_i32 s{sB0}, s{sQ}, {80*1280}\ns_mul_i32 s{t+1}, s{t}, {40*1280}\ns_add_u32 s{sB0}, s{sB0}, s{t+1}")
    p(f"s_mul_i32 s{sB1}, s{sWAVE}, {5*5120}\ns_add_u32 s{sB1}, s{sB1}, {P1_B}")
    p(f"s_and_b32 s{sB2}, s{sRG}, 7\ns_cmp_ge_u32 s{sB2}, 5\ns_cselect_b32 s{t+1}, 5, 0\ns_sub_u32 s{sB2}, s{sB2}, s{t+1}")
    p("s_waitcnt lgkmcnt(0)")
    xstamp(p, 0)
    p(f"s_load_dword s{sEP}, {sr(SW,2)}, 0\ns_getreg_b32 s{sU}, hwreg(HW_REG_XCC_ID, 0, 4)")
    p(f"s_mov_b64 {sr(SX,2)}, s[94:95]\ns_mov_b32 s{SX+2}, CODE_BYTES")
    p(f"s_cmp_ge_u32 s{sWAVE}, 2\ns_cselect_b32 s{ST}, s{SSD}, s{SCD}\ns_cselect_b32 s{ST+1}, s{SSD+1}, s{SCD+1}\ns_mov_b32 s{ST+2}, 819200")
    if X.get('tlb'):
        sh = X['tlb']
        with only_wave(p, X.get('tlbw', 3)):
            p(f"v_lshlrev_b32 v9, {sh+5}, v{vLANE}\ns_lshl_b32 s{t}, s{sL}, {sh}")
            for srd in (SW, SWS, SCS, SSS, SWI, SWO, SOUT):
                p(f"buffer_load_dword v189, v9, {sr(srd,4)}, s{t} offen")
    for i in range(5):
        p(f"s_add_u32 s{t}, s{sB2}, s{sWAVE}\ns_and_b32 s{t}, s{t}, 1\ns_lshl_b32 s{t}, s{t}, 6\nv_xor_b32 v8, s{t}, v6")
        p(f"s_cmp_eq_u32 s{sB2}, 0\ns_cselect_b32 s{t}, -1, 0\nv_and_b32 v5, s{t}, v7\nv_add_u32 v8, v8, v5")
        p(f"s_mul_i32 s{t+1}, s{sB2}, 5120\ns_lshl_b32 s{t+2}, s{t+1}, 1\ns_add_u32 s{t+1}, s{t+1}, s{sB1}\ns_add_u32 s{t+2}, s{t+2}, s{sB0}")
        for pc in range(5): p(f"s_add_u32 m0, s{t+1}, {pc*1024-pc*128}\nbuffer_load_dwordx4 v8, {sr(ST,4)}, s{t+2} offen offset:{pc*128} lds @@b{i}")
        if i < 4: p(f"s_add_u32 s{sB2}, s{sB2}, 1\ns_cmp_eq_u32 s{sB2}, 5\ns_cselect_b32 s{sB2}, 0, s{sB2}")
        if i == 0:
            p(f"s_lshl_b32 s{sPHI}, s{sQ}, 6\ns_add_u32 s{sPHI}, s{sPHI}, s{sRG}")
            p(f"s_lshl_b32 s{t}, s{sPHI}, 2\ns_add_u32 s{t}, s{t}, s{sWAVE}\ns_mul_i32 s{t+1}, s{t}, 3277\ns_lshr_b32 s{t+1}, s{t+1}, 16\ns_mul_i32 s{t+2}, s{t+1}, 20\ns_sub_u32 s{t+2}, s{t}, s{t+2}")
            p(f"s_mul_i32 s{sRLa}, s{t+1}, 40\ns_add_u32 s{sRLa}, s{sRLa}, s{t+2}\ns_lshl_b32 s{sRLa}, s{sRLa}, 10\ns_add_u32 s{sRLa}, s{sRLa}, {WS_WI}")
            p(f"s_lshl_b32 s{t+3}, s{t+2}, 5\ns_sub_u32 s{t+4}, 960, s{t+3}\ns_cmp_ge_u32 s{t+2}, 10\ns_cselect_b32 s{t+3}, s{t+4}, s{t+3}\ns_cselect_b32 s{t+4}, -1, 1")
            p(f"v_lshrrev_b32 v10, 2, v{vLANE}\nv_mul_lo_u32 v11, v10, s{t+4}\nv_add_u32 v11, s{t+3}, v11\ns_lshl_b32 s{t+4}, s{t+4}, 4\nv_add_u32 v12, s{t+4}, v11")
            p(f"v_cmp_eq_u32 vcc, 640, v11\nv_mov_b32 v13, 320\nv_cndmask_b32 v11, v11, v13, vcc")
            p(f"v_and_b32 v13, 3, v{vLANE}\nv_lshlrev_b32 v13, 4, v13\ns_lshl_b32 s{t+1}, s{t+1}, 6\ns_movk_i32 s{t+5}, 3072")
            p(f"v_mad_u32_u24 v20, v11, s{t+5}, v13\nv_mad_u32_u24 v21, v12, s{t+5}, v13\nv_add_u32 v20, s{t+1}, v20\nv_add_u32 v21, s{t+1}, v21")
            p(f"s_lshl_b32 s{t}, s{sPHI}, 1\ns_and_b32 s{t+1}, s{sWAVE}, 1\ns_add_u32 s{t}, s{t}, s{t+1}\ns_mul_i32 s{t+1}, s{t}, 2731\ns_lshr_b32 s{t+1}, s{t+1}, 16\ns_mul_i32 s{t+2}, s{t+1}, 24\ns_sub_u32 s{t+2}, s{t}, s{t+2}")
            for c_, d in ((0, sRLb), (1, 83)):
                p(f"s_lshl_b32 s{t+3}, s{t+1}, 1\ns_add_u32 s{t+3}, s{t+3}, {c_}\ns_mul_i32 s{t+4}, s{t+3}, 52\ns_lshr_b32 s{t+4}, s{t+4}, 8\ns_mul_i32 s{t+4}, s{t+4}, 115\ns_add_u32 s{t+3}, s{t+3}, s{t+4}")
                p(f"s_mul_i32 s{t+4}, s{t+2}, 5\ns_add_u32 s{t+3}, s{t+3}, s{t+4}\ns_lshl_b32 s{d}, s{t+3}, 10\ns_add_u32 s{d}, s{d}, {WS_WO}")
            p(f"s_mul_i32 s{t+2}, s{t+2}, {32*1280}\ns_lshl_b32 s{t+1}, s{t+1}, 6\ns_add_u32 s{t+2}, s{t+2}, s{t+1}\nv_mul_u32_u24 v22, 1280, v10\nv_add3_u32 v22, v22, v13, s{t+2}\nv_add_u32 v23, {16*1280}, v22")
            p(f"s_cmp_ge_u32 s{sPHI}, 240\ns_cselect_b32 s{t}, 0x40000000, 0\ns_cmp_lt_u32 s{sWAVE}, 2\ns_cselect_b32 s{t+1}, 0x40000000, s{t}")
            p(f"s_add_u32 s{sRLa}, s{sRLa}, s{t}\ns_add_u32 s{sRLb}, s{sRLb}, s{t+1}\ns_add_u32 s83, s83, s{t+1}")
            for k in range(2): p(f"s_add_u32 m0, s{sPL}, {1024*k}\nbuffer_load_dwordx4 v{20+k}, {sr(SWI,4)}, s{t} offen lds @@rl")
            for k in range(2): p(f"s_add_u32 m0, s{sPL}, {2048+1024*k}\nbuffer_load_dwordx4 v{22+k}, {sr(SWO,4)}, s{t+1} offen lds @@rl")
    xstamp(p, 20)
    p("s_waitcnt lgkmcnt(0)"); epoch_fix(p)
    with only_wave(p, 3):
        p(f"s_lshl_b32 s{t}, s{sC}, 5\ns_add_u32 s{t}, s{t}, s{sL}\ns_lshl_b32 s{t}, s{t}, 2\ns_add_u32 s{t}, s{t}, {FL_X}\ns_add_u32 s{sU}, s{sU}, s{sEP}")
        p(f"v_mov_b32 v10, s{sU}\nv_mov_b32 v11, 0\ns_mov_b64 exec, 1\nbuffer_store_dword v10, v11, {sr(SW,4)}, s{t} offen sc1\ns_mov_b64 exec, -1")
    p(f"v_lshrrev_b32 v10, 4, v{vLANE}\nv_bfe_u32 v11, v{vLANE}, 2, 2\nv_lshl_add_u32 v24, v10, 3, v11\nv_lshl_add_u32 v25, v10, 2, v11\nv_and_b32 v10, 3, v{vLANE}\nv_lshlrev_b32 v10, 3, v10\nv_add_u32 v10, s{sPL}, v10")
    p(f"v_lshl_add_u32 v24, v24, 6, v10\nv_lshl_add_u32 v25, v25, 6, v10\n@wait vm=rl")
    for c_ in range(2):
        for h in range(2):
            p(f"ds_read_b64_tr_b16 {vr(32+4*c_+2*h,2)}, v24 offset:{256*h+32*c_}\nds_read_b64_tr_b16 {vr(40+4*c_+2*h,2)}, v25 offset:{2048+1024*h+32*c_}")
    p("s_waitcnt lgkmcnt(0)")
    p(f"s_add_u32 s{t}, s{sRLa}, 20480\ns_mov_b32 s{t+1}, s83")
    p(f"buffer_store_dwordx4 v[32:35], v{vL16}, {sr(SW,4)}, s{sRLa} offen sc1\nbuffer_store_dwordx4 v[36:39], v{vL16}, {sr(SW,4)}, s{t} offen sc1")
    p(f"buffer_store_dwordx4 v[40:43], v{vL16}, {sr(SW,4)}, s{sRLb} offen sc1\nbuffer_store_dwordx4 v[44:47], v{vL16}, {sr(SW,4)}, s{t+1} offen sc1 @@rls")
    p("@wait vm=b4"); bar(p, "B1")
    swz_src(p, 26, 8192, 10)
    p(f"s_add_u32 s{t+3}, s{sI2}, s{sQ2}\ns_and_b32 s{t+3}, s{t+3}, 3\ns_lshl_b32 s{t+4}, s{t+3}, 3\nv_add_u32 v28, s{t+4}, v{vLANE}\nv_and_b32 v28, 31, v28\nv_lshlrev_b32 v28, 4, v28")
    p(f"s_lshl_b32 s{t}, s{sI2}, 5\ns_add_u32 s92, s{t}, 32\ns_add_u32 s{t}, s{t}, s{sP2}\ns_lshl_b32 s{t}, s{t}, 12\ns_lshl_b32 s92, s92, 12")
    p(f"s_and_b32 s{t+2}, s{sWAVE}, 1\ns_lshl_b32 s{t+2}, s{t+2}, 9\ns_add_u32 s{t}, s{t}, s{t+2}\ns_add_u32 s92, s92, s{t+2}")
    for pc in range(4): p(f"s_add_u32 s{t+4}, s{t+3}, {pc}\ns_and_b32 s{t+4}, s{t+4}, 3\ns_lshl_b32 s{t+4}, s{t+4}, 7\ns_add_u32 s{88+pc}, s{t+4}, s{t}")
    p(f"s_mul_i32 s93, s{sWAVE}, {P1_XR}")
    p(f"s_cmp_ge_u32 s{sWAVE}, 2\ns_cselect_b32 s{ST}, s{SSS}, s{SCS}\ns_cselect_b32 s{ST+1}, s{SSS+1}, s{SCS+1}\ns_mov_b32 s{ST+2}, 8388608")
    for pc in range(4):
        for hf in range(2):
            dst = f"s{sPL}, {pc*2048+hf*1024}" if pc < 2 else f"s93, {5120+(pc-2)*2048+hf*1024}"
            p(f"s_add_u32 m0, {dst}\nbuffer_load_dwordx4 v{26+hf}, {sr(ST,4)}, s{88+pc} offen lds")
    p(f"s_add_u32 m0, s{sPL}, 4096\ns_mov_b32 exec_hi, 0\nbuffer_load_dwordx4 v28, {sr(ST,4)}, s92 offen lds @@p2p\ns_mov_b32 exec_hi, -1")
    touch_h(p, 4); code_touch(p, 4)
    swz_src(p, vWSS, 8192, 10); swz_rd(p, vWSR, 10); map4(p)
    p("@wait vm=rls"); bar(p, "B2")
    p("@wait vm=p2p"); bar(p, "B2b")
    nX = X.get('nx', 2)
    XB_ = [(WZ, 10240), (WZ+40960, 10240)]
    for s_ in range(nX): xchunk_dma(p, s_, *XB_[s_])
    for s_ in range(nX): xchunk_read(p, s_, *XB_[s_])
    p("s_waitcnt lgkmcnt(0)"); bar(p, "B3")
    bar(p, "B4")
    LIN(p, 'wz', 0, th=X.get('thz0', 0))
    p("@wait vm=wz0"); bar(p, "B5")
    colsum(p, 0)
    def adma(us):
        last = -1
        for u in us:
            if u // 3 != last: ws_tile(p, u // 3); last = u // 3
            b, off = unit_loc(u)
            ws_piece(p, u % 3, 88+b, off, "wa")
    unit_bases(p, 88)
    if X.get('xs5'): p(f"s_sleep {X['xs5']}")
    n1 = X.get('wz1a', 15)
    LIN(p, 'wz', 1, (0, n1), th=X.get('thz1', 2)); code_touch(p, 4)
    bar(p, "B5b")
    LIN(p, 'wz', 1, (n1, 15), th=0)
    early = [7, 8, 9, 10]
    adma(early)
    p("@wait vm=wz1"); bar(p, "B6")
    for s_ in range(nX, 4):
        xchunk_dma(p, s_, 0, 14336)
        if s_ == nX: adma([11]); colsum(p, 1)
        xchunk_read(p, s_, 0, 14336); p(f"@wait lg=xr{s_}")
        if s_ == nX: bar(p, "B7")
    if nX == 4: adma([11]); colsum(p, 1); bar(p, "B7")
    adma(range(7))
    z2_offsets(p, KC, 16-KC); mb_waddr(p, 1); code_touch(p, 8)
    if X.get('ztouch'):
        p(f"v_lshlrev_b32 v9, 16, v{vLANE}\ns_mov_b64 exec, 0x3f\nbuffer_load_dword v8, v9, {sr(SW,4)}, s80 offen sc1\ns_mov_b64 exec, -1")
    p("s_waitcnt vmcnt(0)"); bar(p, "B8")
    with only_wave(p, 0):
        p(f"s_lshl_b32 s{sU}, s{sJ4}, 5"); poll(p, FL_F3, 32)
    bar(p, "B9")
    P4(p, 1)
    map5(p, t+4, sJ4, sRG4)
    LIN(p, 'wo', 0, th=X.get('wothr', 0)); LIN(p, 'wo', 1, (0, 6), th=X.get('wothr', 0))
    p("@wait vm=wo0"); bar(p, "B10")
    LIN(p, 'wo', 1, (6, 15), th=X.get('wothr', 0))
    p("s_waitcnt vmcnt(0)"); bar(p, "B11")
    if X.get('xst'):
        p(f"s_lshl_b32 s{t}, s{sL}, 3\ns_add_u32 s{t}, s{t}, s{sC}\ns_lshl_b32 s{t}, s{t}, 2\ns_add_u32 s{t}, s{t}, s{sWAVE}\ns_lshl_b32 s{t+1}, s{t}, 8\ns_add_u32 s{t+1}, s{t+1}, {WS_STAMP+0x40000}\nv_lshlrev_b32 v10, 2, v{vLANE}")
        p(f"buffer_store_dword v{vSTMP}, v10, {sr(SW,4)}, s{t+1} offen")

def cprog(p):
    P1(p)
    n0 = len(p.lines); P2_xload(p)
    p(f"s_lshl_b32 s{sU}, s{sQ}, 6\ns_add_u32 s{sU}, s{sU}, s{sRG}\ns_waitcnt vmcnt(6)"); bar(p, "B2")
    stamp(p, 2)
    with only_wave(p, 0): flag_store(p, FL_F1, False)
    bar(p, "B2b")
    P2_prep(p)
    stamp(p, 3)
    a, b = p.label("xp"), p.label("xpd")
    p(f"s_lshl_b32 s{t}, s{sC}, 7\ns_add_u32 s{t}, s{t}, {FL_X}\nv_and_b32 v11, 31, v{vLANE}\nv_lshlrev_b32 v11, 2, v11\ns_mov_b32 s{sSPIN}, 0x100000")
    p(f"{a}:\nbuffer_load_dword v10, v11, {sr(SW,4)}, s{t} offen sc1\ns_waitcnt vmcnt(0)\nv_subrev_u32 v10, s{sEP}, v10\nv_cmp_lt_u32 vcc, 15, v10")
    p(f"s_cbranch_vccz {b}\ns_sub_u32 s{sSPIN}, s{sSPIN}, 1\ns_cbranch_scc0 {a}\n{b}:")
    p(f"v_readfirstlane_b32 s{t}, v10\nv_cmp_ne_u32 vcc, s{t}, v10\ns_cmp_eq_u64 vcc, 0\ns_cselect_b32 s{sFAST}, 1, 0")
    if X.get('slow'): p(f"s_mov_b32 s{sFAST}, 0")
    with only_wave(p, 1):
        p(f"s_lshl_b32 s{sU}, s{sQ2}, 6"); poll(p, FL_F1, 64)
    with only_wave(p, 2):
        p(f"s_mul_i32 s{sU}, s{sJ3}, 3\ns_add_u32 s{sU}, s{sU}, 48\ns_lshr_b32 s{sU}, s{sU}, 1\ns_mul_i32 s{sU}, s{sU}, 5"); poll(p, FL_F1, 10)
    stamp(p, 4)
    p("s_waitcnt lgkmcnt(0)"); bar(p, "B3")
    stamp(p, 5)
    P2_main(p)
    stamp(p, 6)
    p("s_waitcnt vmcnt(0)"); bar(p, "B5")
    with only_wave(p, 0):
        p(f"s_lshl_b32 s{sU}, s{sC}, 5\ns_add_u32 s{sU}, s{sU}, s{sL}"); flag_store(p, FL_F2, True)
    P3_prep(p)
    stamp(p, 7)
    p(f"s_sub_u32 s{t}, 63, s{sRB3}\ns_min_u32 s{sU}, s{t}, s{sRB3}\ns_lshl_b32 s{sU}, s{sU}, 3"); poll(p, FL_F2, 8)
    stamp(p, 8)
    P3_loads(p); P3_pass(p, 0)
    bar(p, "B5b")
    stamp(p, 9)
    P3_z2a(p)
    p(f"s_lshl_b32 s{sU}, s{sRB3}, 4\ns_add_u32 s{sU}, s{sU}, s{sJ3}\n@wait vm=zs"); flag_store(p, FL_FS, True)
    bar(p, "B6")
    stamp(p, 10)
    K1 = X.get('k1', 6)
    P3_pass(p, 1, 0, K1)
    p(f"s_lshl_b32 s{sU}, s{sRB3}, 4"); poll(p, FL_FS, 16)
    stamp(p, 11)
    P3_z2b(p)
    p("@wait vm=z2s")
    if X.get('rer'):
        for nt in range(3): p(f"buffer_load_dwordx4 v[4:7], v{vL16}, {sr(SW,4)}, s{[85,92,93][nt]} offen sc1")
    bar(p, "B7")
    with only_wave(p, 0):
        p(f"s_lshr_b32 s{sU}, s{sJ3}, 1\ns_lshl_b32 s{sU}, s{sU}, 5\ns_lshr_b32 s{t}, s{sRB3}, 2\ns_lshl_b32 s{t}, s{t}, 1\ns_add_u32 s{sU}, s{sU}, s{t}\ns_and_b32 s{t}, s{sJ3}, 1\ns_add_u32 s{sU}, s{sU}, s{t}")
        if X.get('z2m', 0) >= 3: p("buffer_wbl2 sc1\ns_waitcnt vmcnt(0)")
        flag_store(p, FL_F3, False)
    stamp(p, 12)
    P3_pass(p, 1, K1, 20)
    hload(p); map4(p); P3_z1e(p)
    stamp(p, 13)
    bar(p, "B8")
    stamp(p, 14)
    P4_prepC(p)
    stamp(p, 15)
    p(f"s_lshl_b32 s{sU}, s{sRB3}, 4\ns_add_u32 s{sU}, s{sU}, s{sJ3}\n@wait vm=z1s"); flag_store(p, FL_F3B, not X.get('m84', 1))
    p("s_waitcnt lgkmcnt(0)"); bar(p, "B9")
    stamp(p, 16)
    P4(p, 0)
    stamp(p, 17)
    p(f"s_lshl_b32 s{sU}, s{sTT}, 3\ns_add_u32 s{sU}, s{sU}, s{sJ4}\n@wait vm=vs"); flag_store(p, FL_F4, not X.get('m84', 1))
    P5_prep(p)
    p(f"s_lshl_b32 s{sU}, s{sT5}, 3"); poll(p, FL_F4, 8)
    stamp(p, 18)
    P5_main(p)
    stamp(p, 19)
    with cond(p, f"s_or_b32 s{t}, s{sC}, s{sWAVE}\ns_or_b32 s{t}, s{t}, s{sL}\ns_cmp_lg_u32 s{t}, 0"):
        p(f"v_mov_b32 v10, s{sEP}\nv_mov_b32 v11, 0\ns_mov_b64 exec, 1\nbuffer_store_dword v10, v11, {sr(SW,4)}, 0 offen\ns_mov_b64 exec, -1")
    if X.get('stamp'):
        p("s_waitcnt vmcnt(0)")
        stamp(p, 24)
        p(f"s_lshl_b32 s{t}, s{sL}, 3\ns_add_u32 s{t}, s{t}, s{sC}\ns_lshl_b32 s{t}, s{t}, 2\ns_add_u32 s{t}, s{t}, s{sWAVE}\ns_lshl_b32 s{t+1}, s{t}, 8\ns_add_u32 s{t+1}, s{t+1}, {WS_STAMP}\nv_lshlrev_b32 v10, 2, v{vLANE}")
        p(f"buffer_store_dword v{vSTMP}, v10, {sr(SW,4)}, s{t+1} offen")
        if X.get('dbg'):
            lab = p.label("dbg")
            order = [0, 20, 21, 22, 1, 2, 3, 4, 5, 23, 6, 7, 8, 9, 10, 11, 12, 13, 14, 15, 16, 17, 18, 19, 24]
            idx = [i for i in order if (X['stamp'] >> i) & 1 or i in (0, 24)][:16]
            p(f"s_cmp_lg_u32 s{t}, {X['dbg']-1}\ns_cbranch_scc1 {lab}\ns_mov_b32 s{ST}, s2\ns_mov_b32 s{ST+1}, s3\ns_mov_b32 s{ST+2}, 256\nv_readlane_b32 s{t+2}, v{vSTMP}, 31\nv_mov_b32 v11, 0")
            for n_, i in enumerate(idx):
                p(f"v_readlane_b32 s{t+3}, v{vSTMP}, {i}\ns_nop 1\ns_sub_u32 s{t+3}, s{t+3}, s{t+2}\nv_writelane_b32 v11, s{t+3}, {n_}")
            p(f"buffer_store_dword v11, v10, {sr(ST,4)}, 0 offen\n{lab}:")

def build():
    kn = NAME + "_kernel"
    p = Prog(); prologue(p, kn); cprog(p); p("END:\ns_endpgm")
    q = Prog(); q.nlabel = 5000; q.isx = True; q("XPROG:\ns_nop 4"); xprog(q); q("s_endpgm\nCODE_END:\n.set CODE_BYTES, CODE_END - " + kn + " - 128")
    assert NBAR[id(p)] == NBAR[id(q)], (NBAR[id(p)], NBAR[id(q)])
    return ("; @launch grid=(256,1,1) block=(512,1,1) lds=163840\n" + '.amdgcn_target "amdgcn-amd-amdhsa--gfx950"\n.text\n' + p.finish() + q.finish() +
f""".section .rodata,"a"
.p2align 6
.amdhsa_kernel {kn}
  .amdhsa_next_free_vgpr 256
  .amdhsa_next_free_sgpr 102
  .amdhsa_accum_offset 192
  .amdhsa_group_segment_fixed_size 0
  .amdhsa_kernarg_size 104
  .amdhsa_user_sgpr_count 2
  .amdhsa_user_sgpr_kernarg_segment_ptr 1
  .amdhsa_system_sgpr_workgroup_id_x 1
.end_amdhsa_kernel
""")
if __name__ == "__main__":
    for a in sys.argv[2:]:
        k, v = a.split("="); X[k] = int(v)
    open(sys.argv[1], "w").write(build())
```

```python
import sys, struct
from asmlib import Prog, vr, ar, sr
NAME = "sequential_preLN__spectral_fnet__mixer_gmlp__prompt"
X = {}
def fhex(x): return hex(struct.unpack("<I", struct.pack("<f", x))[0])
FL_F1, FL_F2, FL_FS, FL_F3, FL_F3B, FL_F4, FL_X = 0x1000, 0x2000, 0x3000, 0x5000, 0x6000, 0x7000, 0x8000
WS_AB, WS_XB, WS_H, WS_HS, WS_Z2, WS_Z1, WS_ZS = 0x010000, 0x158000, 0x180000, 0x400000, 0x480000, 0x800000, 0xB00000
WS_V = WS_Z1
WS_WI, WS_WO, WS_STAMP, WS_SIZE = 0xC00000, 0xE00000, 0xF00000, 0x1000000
SX, SCS, SSS, SCD, SSD, SWI, SWS, SBS, SWO, SOUT, SW, ST = 4, 8, 12, 16, 20, 24, 28, 32, 36, 40, 44, 48
sWAVE, sC, sL, sMASKHI = 52, 53, 54, 55
sI2, sP2, sQ2 = 56, 57, 58
sRB3, sJ3 = 59, 60
sRB4, sJ4, sRG4, sTT = 61, 62, 63, 64
sB0, sB1, sB2, sB3 = 65, 66, 67, 68
sRG, sQ, sG = 69, 70, 71
t = 72
sEP, sFAST, sSPIN, sU = 96, 97, 98, 99
SRDS = [(SX, 0, 2621440), (SW, 96, WS_SIZE), (SCD, 24, 819200), (SSD, 32, 819200), (SCS, 8, 8388608), (SSS, 16, 8388608),
        (SWI, 48, 1966080), (SWS, 56, 8388608), (SBS, 64, 4096), (SWO, 72, 983040), (SOUT, 80, 2621440)]
vLANE, vL16, vSTMP = 1, 2, 0
P1_XR = 10272; P1_B = 41216; P1_XA = P1_B + 102400; P1_T = P1_XA + 640
P2S = 145408; P2S_W = 4608
WZ = 61440; SCR = 122880; SCR_W = 9216; TBL = SCR + 4*SCR_W; CST = TBL + 1024
FULL = "row_mask:0xf bank_mask:0xf"
MF16 = "v_mfma_f32_16x16x32_bf16"
LOG2E = 1.4426950408889634
GK0, GK1 = -LOG2E*1.5957691216057308, -LOG2E*0.07135481282

def stamp(p, i):
    if not X.get('stamp'): return
    if X['stamp'] > 1 and not (X['stamp'] >> i) & 1 and i not in (0, 24): return
    p(f"s_memrealtime s[100:101]\ns_waitcnt lgkmcnt(0)\nv_writelane_b32 v{vSTMP}, s100, {i}")
    if i in (0, 24): p(f"s_memtime s[100:101]\ns_waitcnt lgkmcnt(0)\nv_writelane_b32 v{vSTMP}, s100, {32+i}")
def xstamp(p, i):
    if not X.get('xst'): return
    p(f"s_memrealtime s[100:101]\ns_waitcnt lgkmcnt(0)\nv_writelane_b32 v{vSTMP}, s100, {i}")
def G(*lines):
    out = []
    for l in lines: out += [x.strip() for x in l.split("\n") if x.strip()]
    return out
def emit(p, gs):
    for g in gs: p("\n".join(g))
def swz_src(p, vdst, row_bytes, tmp, both=True):
    p(f"v_lshrrev_b32 v{tmp}, 3, v{vLANE}\nv_mul_u32_u24 v{vdst}, {row_bytes}, v{tmp}")
    p(f"v_lshrrev_b32 v{tmp}, 4, v{vLANE}\nv_and_b32 v{tmp+1}, 7, v{vLANE}\nv_xor_b32 v{tmp}, v{tmp}, v{tmp+1}\nv_lshl_add_u32 v{vdst}, v{tmp}, 4, v{vdst}")
    if both: p(f"v_xor_b32 v{vdst+1}, 64, v{vdst}\nv_add_u32 v{vdst+1}, {8*row_bytes}, v{vdst+1}")
def swz_rd(p, vdst, tmp, halfstride=1024):
    p(f"v_and_b32 v{tmp}, 15, v{vLANE}")
    if halfstride == 1024: p(f"v_lshlrev_b32 v{vdst}, 7, v{tmp}")
    else: p(f"v_bfe_u32 v{tmp+1}, v{vLANE}, 3, 1\nv_mul_u32_u24 v{tmp+1}, {halfstride-1024}, v{tmp+1}\nv_lshl_add_u32 v{vdst}, v{tmp}, 7, v{tmp+1}")
    p(f"v_lshrrev_b32 v{tmp}, 1, v{tmp}\nv_lshrrev_b32 v{tmp+1}, 4, v{vLANE}\nv_xor_b32 v{tmp}, v{tmp}, v{tmp+1}")
    p(f"v_lshl_add_u32 v{vdst}, v{tmp}, 4, v{vdst}\nv_xor_b32 v{vdst+1}, 64, v{vdst}")
NBAR = {}
def bar(p, name):
    L = NBAR.setdefault(id(p), []); L.append(name)
    if getattr(p, 'isx', False): xstamp(p, len(L))
    p("s_barrier")
def flag_store(p, base, local):
    p(f"s_lshl_b32 s{t}, s{sU}, 2\ns_add_u32 s{t}, s{t}, {base}\nv_mov_b32 v10, s{sEP}\nv_mov_b32 v11, 0\ns_mov_b64 exec, 1")
    if local:
        a, b = p.label("fs_slow"), p.label("fs_done")
        p(f"s_cmp_eq_u32 s{sFAST}, 0\ns_cbranch_scc1 {a}\n@cond_begin")
        p(f"buffer_store_dword v10, v11, {sr(SW,4)}, s{t} offen\ns_branch {b}")
        p(f"{a}:\nbuffer_wbl2 sc1\ns_waitcnt vmcnt(0)\nbuffer_store_dword v10, v11, {sr(SW,4)}, s{t} offen sc1\n{b}:\n@cond_end")
    else:
        p(f"buffer_store_dword v10, v11, {sr(SW,4)}, s{t} offen sc1")
    p("s_mov_b64 exec, -1")
def poll(p, base, n):
    a, b = p.label("poll"), p.label("polled")
    p(f"s_lshl_b32 s{t}, s{sU}, 2\ns_add_u32 s{t}, s{t}, {base}\nv_min_u32 v11, {n-1}, v{vLANE}\nv_lshlrev_b32 v11, 2, v11\ns_mov_b32 s{sSPIN}, 0x100000")
    p(f"{a}:\nbuffer_load_dword v10, v11, {sr(SW,4)}, s{t} offen sc1\ns_waitcnt vmcnt(0)\nv_cmp_ne_u32 vcc, s{sEP}, v10")
    p(f"s_cbranch_vccz {b}\ns_sub_u32 s{sSPIN}, s{sSPIN}, 1\ns_cbranch_scc0 {a}\n{b}:")
class cond:
    def __init__(self, p, test): self.p = p; self.test = test
    def __enter__(self):
        self.lab = self.p.label("skip"); self.p(f"{self.test}\ns_cbranch_scc1 {self.lab}\n@cond_begin")
    def __exit__(self, *a): self.p(f"@cond_end\n{self.lab}:")
def only_wave(p, w): return cond(p, f"s_cmp_lg_u32 s{sWAVE}, {w}")
def epoch_fix(p): p(f"s_mul_i32 s{sEP}, s{sEP}, 0x2C9277B5\ns_add_u32 s{sEP}, s{sEP}, 0xAC564B05")

def map4(p):
    if not X.get('m84', 1):
        map5(p, sTT, sJ4, sRG4)
        p(f"s_sub_u32 s{sRB4}, s{sTT}, s{sWAVE}\ns_lshr_b32 s{sRB4}, s{sRB4}, 1\ns_lshl_b32 s{sRG4}, s{sRG4}, 1\ns_add_u32 s{sRG4}, s{sRG4}, s{sJ4}")
        return
    p(f"s_and_b32 s{t}, s{sC}, 6\ns_lshr_b32 s{t+1}, s{sL}, 4\ns_add_u32 s{t}, s{t}, s{t+1}\ns_lshl_b32 s{t}, s{t}, 2\ns_sub_u32 s{t+1}, 60, s{t}")
    p(f"s_bitcmp1_b32 s{sL}, 3\ns_cselect_b32 s{sRB4}, s{t+1}, s{t}\ns_bfe_u32 s{t}, s{sL}, 0x10002\ns_lshl_b32 s{t}, s{t}, 1\ns_add_u32 s{sRB4}, s{sRB4}, s{t}")
    p(f"s_and_b32 s{t}, s{sL}, 3\ns_and_b32 s{sJ4}, s{sC}, 1\ns_lshl_b32 s{sJ4}, s{sJ4}, 2\ns_add_u32 s{sJ4}, s{sJ4}, s{t}")
    p(f"s_lshl_b32 s{t}, s{t}, 1\ns_lshr_b32 s{sRG4}, s{sL}, 2\ns_add_u32 s{sRG4}, s{sRG4}, s{t}")
    p(f"s_lshl_b32 s{sTT}, s{sRB4}, 1\ns_add_u32 s{sTT}, s{sTT}, s{sWAVE}")
def map5(p, tt, j, rg):
    p(f"s_sub_u32 s{tt}, s{sRB3}, s{sWAVE}\ns_lshr_b32 s{rg}, s{sL}, 3\ns_and_b32 s{j}, s{rg}, 1\ns_lshl_b32 s{j}, s{j}, 1\ns_add_u32 s{tt}, s{tt}, s{j}")
    p(f"s_lshl_b32 s{tt}, s{tt}, 1\ns_add_u32 s{tt}, s{tt}, s{sWAVE}\ns_and_b32 s{j}, s{sL}, 7")
def prologue(p, kname):
    p(f".globl {kname}\n.p2align 8\n.type {kname},@function\n{kname}:")
    p(f"s_cmp_ge_u32 s2, 256\ns_cbranch_scc1 END")
    for (s, off, size) in SRDS: p(f"s_load_dwordx2 {sr(s,2)}, s[0:1], {off}")
    p(f"s_getpc_b64 {sr(ST,2)}\ns_mov_b32 s{ST+2}, CODE_BYTES\ns_mov_b32 s{ST+3}, 0x20000\ns_lshr_b32 s{sL}, s2, 3\ns_lshl_b32 s{t}, s{sL}, 7")
    p(f"v_xor_b32 v3, 0x100, v0\nv_lshlrev_b32 v3, 12, v3\ns_mov_b64 exec, 0xffff\nbuffer_load_dword v190, v3, {sr(ST,4)}, s{t} offen\ns_mov_b64 exec, -1")
    p(f"v_lshrrev_b32 v3, 6, v0\nv_and_b32 v{vLANE}, 63, v0\nv_readfirstlane_b32 s3, v3")
    for (s, off, size) in SRDS: p(f"s_mov_b32 s{s+2}, {size}\ns_mov_b32 s{s+3}, 0x20000")
    p(f"v_lshlrev_b32 v{vL16}, 4, v{vLANE}\ns_and_b32 s{sC}, s2, 7\ns_mov_b32 s{sMASKHI}, 0xffff0000\ns_and_b32 s{sWAVE}, s3, 3")
    p(f"s_lshl_b32 s{sI2}, s{sC}, 2\ns_lshr_b32 s{t}, s{sL}, 3\ns_add_u32 s{sI2}, s{sI2}, s{t}")
    p(f"s_bfe_u32 s{sP2}, s{sL}, 0x10002\ns_and_b32 s{sQ2}, s{sL}, 3")
    p(f"s_lshl_b32 s{t}, s{sC}, 2\ns_sub_u32 s{t+1}, 60, s{t}\ns_cmp_ge_u32 s{sL}, 16\ns_cselect_b32 s{sRB3}, s{t+1}, s{t}")
    p(f"s_add_u32 s{sRB3}, s{sRB3}, s{sWAVE}\ns_and_b32 s{sJ3}, s{sL}, 15")
    p(f"s_lshr_b32 s{sRG}, s{sL}, 2\ns_lshl_b32 s{t}, s{sC}, 3\ns_add_u32 s{sRG}, s{sRG}, s{t}\ns_and_b32 s{sQ}, s{sL}, 3")
    p(f"s_cmp_ge_u32 s3, 4\ns_cbranch_scc1 XPROG")

A_MF, A_MX = 0, 32
def P1(p):
    st = "sc1"
    sG0M, sJ0M, sJ31M, sXR = 80, 82, 84, 86
    if X.get('stamp'): p(f"v_mov_b32 v{vSTMP}, 0")
    if X.get('dbg'): p(f"s_load_dwordx2 s[2:3], s[0:1], 88\ns_memrealtime s[100:101]\ns_waitcnt lgkmcnt(0)\nv_writelane_b32 v{vSTMP}, s100, 31")
    p(f"s_lshl_b32 s{sG}, s{sRG}, 3\ns_lshl_b32 s{t}, s{sWAVE}, 1\ns_add_u32 s{sG}, s{sG}, s{t}")
    p(f"v_lshlrev_b32 v4, 2, v{vLANE}\ns_mul_i32 s{sXR}, s{sWAVE}, {P1_XR}")
    p(f"s_mul_i32 s88, s{sG}, 1280\ns_add_u32 s92, s88, 1280")
    for gb in range(2):
        b = 88+4*gb
        p(f"s_sub_u32 s{b+1}, {2048*1280}, s{b}\ns_sub_u32 s{b+2}, {1024*1280}, s{b}\ns_add_u32 s{b+3}, {1024*1280}, s{b}")
    p(f"s_cmp_eq_u32 s{sG}, 0\ns_cselect_b32 s89, {512*1280}, s89\ns_cselect_b32 s91, {1536*1280}, s91\ns_cselect_b32 s{sG0M}, -1, 0\ns_mov_b32 s{sG0M+1}, 0")
    p("s_waitcnt lgkmcnt(0)")
    stamp(p, 0)
    for k in range(8):
        p(f"s_add_u32 m0, s{sXR}, {k*1280}")
        p(f"buffer_load_dwordx4 v{vL16}, {sr(SX,4)}, s{88+k} offen lds")
        p(f"buffer_load_dword v4, {sr(SX,4)}, s{88+k} offen offset:1024 lds @@x")
    p(f"s_load_dword s{sEP}, {sr(SW,2)}, 0")
    vA0, vA1, vB0, vB1, vB2, vSG, vT, vST, vST2, vXA, vXS, vC0, vC1 = 32, 33, 34, 36, 38, 40, 41, 42, 43, 44, 45, 46, 47
    sPI = t+5
    def pi_calc(d):
        p(f"s_mul_i32 s{d}, s{sWAVE}, 3\ns_add_u32 s{d}, s{d}, 4\ns_lshl_b32 s{t}, s{sWAVE}, 1\ns_sub_u32 s{t}, s{t}, 4\ns_cmp_ge_u32 s{sWAVE}, 2\ns_cselect_b32 s{d}, s{t}, s{d}")
    vJ, vD, vM, vFJ0, vAW, vTW = 9, 12, 16, 20, 21, 25
    p(f"v_and_b32 v{vJ}, 31, v{vLANE}")
    p(f"v_cmp_eq_u32 {sr(sJ0M,2)}, 0, v{vJ}\nv_cmp_eq_u32 {sr(sJ31M,2)}, 31, v{vJ}")
    p(f"v_lshrrev_b32 v10, 5, v{vLANE}\nv_mul_u32_u24 v11, 5120, v10\nv_add_u32 v11, s{sXR}, v11\nv_mul_u32_u24 v{vJ}, 20, v{vJ}")
    p(f"v_add_u32 v{vD}, v11, v{vJ}\nv_sub_u32 v{vM}, v11, v{vJ}\nv_add_u32 v{vM}, 1260, v{vM}")
    for kk in range(1, 4): p(f"v_add_u32 v{vD+kk}, {1280*kk}, v{vD}\nv_add_u32 v{vM+kk}, {1280*kk}, v{vM}")
    p(f"v_cndmask_b32 v{vFJ0}, 0, 1.0, {sr(sJ0M,2)}")
    p(f"v_mul_u32_u24 v11, 640, v10\nv_add3_u32 v{vAW}, v11, v{vJ}, s{sXR}")
    for cmb in range(1, 4): p(f"v_add_u32 v{vAW+cmb}, {1280*cmb}, v{vAW}")
    p(f"s_lshl_b32 s{t}, s{sWAVE}, 3\ns_add_u32 s{t}, s{t}, {P1_T}\nv_lshl_add_u32 v{vTW}, v10, 2, s{t}")
    pi_calc(sPI)
    p(f"v_and_b32 v10, 7, v{vLANE}\nv_lshrrev_b32 v11, 1, v10\nv_mul_u32_u24 v{vA0}, {P1_XR}, v11")
    p(f"v_and_b32 v10, 1, v{vLANE}\nv_mul_u32_u24 v11, 640, v10\nv_add_u32 v{vA0}, v{vA0}, v11")
    p(f"v_lshlrev_b32 v{vSG}, 31, v10\nv_or_b32 v{vSG}, 1.0, v{vSG}")
    p(f"v_bfe_u32 v10, v{vLANE}, 3, 1\nv_mul_u32_u24 v11, 1280, v10\nv_add_u32 v{vA0}, v{vA0}, v11")
    p(f"v_lshrrev_b32 v10, 4, v{vLANE}\nv_lshl_add_u32 v{vA0}, v10, 4, v{vA0}")
    p(f"v_lshlrev_b32 v{vT}, 4, v10\nv_add_u32 v{vXA}, {P1_XA}, v{vT}\nv_add_u32 v{vT}, {P1_T}, v{vT}")
    p(f"s_cmp_lt_u32 s{sWAVE}, 2\ns_cselect_b32 s{t}, 2560, 0\ns_cselect_b32 s{t+1}, 0, 1.0\nv_add_u32 v{vA1}, s{t}, v{vA0}\nv_mul_f32 v{vC1}, s{t+1}, v{vSG}")
    p(f"s_cmp_eq_u32 s{sWAVE}, 1\ns_cselect_b32 s{t}, 2560, 0\ns_cselect_b32 s{t+1}, 0, 1.0\nv_add_u32 v{vA0}, s{t}, v{vA0}\nv_mul_f32 v{vC0}, s{t+1}, v{vSG}")
    swz_rd(p, vB0, 10, halfstride=5120)
    p(f"s_mul_i32 s{t}, s{sPI}, 10240\ns_add_u32 s{t}, s{t}, {P1_B}\nv_add_u32 v{vB0}, s{t}, v{vB0}\nv_add_u32 v{vB0+1}, s{t}, v{vB0+1}")
    for i, v in ((1, vB1), (2, vB2)): p(f"v_add_u32 v{v}, {10240*i}, v{vB0}\nv_add_u32 v{v+1}, {10240*i}, v{vB0+1}")
    p(f"s_mul_i32 s{t+4}, s{sQ}, 81920\ns_lshr_b32 s{t}, s{sRG}, 2\ns_mul_i32 s{t}, s{t}, 5120\ns_add_u32 s{t+4}, s{t+4}, s{t}")
    p(f"s_and_b32 s{t}, s{sRG}, 3\ns_lshl_b32 s{t}, s{t}, 8\ns_add_u32 s{t+4}, s{t+4}, s{t}\ns_add_u32 s{t+4}, s{t+4}, {WS_AB}")
    for s_ in range(3):
        p(f"s_add_u32 s{t}, s{sPI}, {s_}\ns_cmp_ge_u32 s{t}, 5\ns_cselect_b32 s{t+1}, {655360-5120}, 0\ns_lshl_b32 s{t}, s{t}, 10\ns_add_u32 s{t}, s{t}, s{t+1}\ns_add_u32 s{t}, s{t}, s{t+4}\nv_mov_b32 v{5+s_}, s{t}")
    p(f"v_lshrrev_b32 v10, 5, v{vLANE}\nv_mul_u32_u24 v{vST}, 327680, v10\nv_and_b32 v10, 15, v{vLANE}\nv_lshlrev_b32 v{vXS}, 2, v10\nv_lshl_add_u32 v{vST}, v10, 4, v{vST}")
    p(f"v_bfe_u32 v10, v{vLANE}, 4, 1\nv_lshl_add_u32 v{vST2}, v10, 3, v{vST}\nv_add_u32 v{vST2}, v{vST2}, v7")
    p(f"v_cmp_eq_u32 vcc, 1, v10\nv_cndmask_b32 v5, v5, v6, vcc\nv_add_u32 v{vST}, v{vST}, v5")
    p(f"s_mov_b32 s93, {fhex(1/640)}\ns_mov_b32 s94, {fhex(1/1280)}\ns_mov_b32 s95, {fhex(1e-5)}\ns_waitcnt lgkmcnt(0)")
    epoch_fix(p)
    p("@wait vm=x")
    stamp(p, 20)
    RAW = 64
    for kk in range(4):
        r = RAW + 12*kk
        p(f"ds_read2_b32 {vr(r,2)}, v{vD+kk} offset0:0 offset1:1")
        p(f"ds_read2_b32 {vr(r+10,2)}, v{vM+kk} offset0:4 offset1:5")
        p(f"ds_read2_b32 {vr(r+8,2)}, v{vM+kk} offset0:2 offset1:3")
        p(f"ds_read2_b32 {vr(r+2,2)}, v{vD+kk} offset0:2 offset1:3")
        p(f"ds_read2_b32 {vr(r+6,2)}, v{vM+kk} offset0:0 offset1:1")
        p(f"ds_read_b32 v{r+4}, v{vD+kk} offset:16 @@xr{kk}")
    T, CA = 112, 152
    S2 = [48, 50, 52, 54]; Q2 = [56, 58, 60, 62]; Y = [26, 27, 28, 29]
    for kk in range(4):
        r = RAW + 12*kk
        p(f"@wait lg=xr{kk}")
        for k in range(5):
            a, b = 4, 6
            p(f"v_lshlrev_b32 v{a}, 16, v{r+k}\nv_and_b32 v{a+1}, s{sMASKHI}, v{r+k}")
            p(f"v_lshlrev_b32 v{b}, 16, v{r+6+5-k}\nv_and_b32 v{b+1}, s{sMASKHI}, v{r+6+4-k}")
            if k == 0: p(f"v_cndmask_b32 v{b}, v{b}, 0, {sr(sJ0M,2)}")
            tt, cc = T+10*kk+2*k, CA+10*kk+2*k
            p(f"v_pk_add_f32 {vr(tt,2)}, {vr(a,2)}, {vr(b,2)}")
            p(f"v_pk_add_f32 {vr(cc,2)}, {vr(a,2)}, {vr(b,2)} neg_lo:[0,1] neg_hi:[0,1]")
            if k == 0: p(f"v_pk_mul_f32 {vr(Q2[kk],2)}, {vr(tt,2)}, {vr(tt,2)}")
            else:
                p(f"v_pk_add_f32 {vr(S2[kk],2)}, {vr(tt,2)}, {vr(S2[kk] if k > 1 else tt-2,2)}")
                p(f"v_pk_fma_f32 {vr(Q2[kk],2)}, {vr(tt,2)}, {vr(tt,2)}, {vr(Q2[kk],2)}")
            p(f"v_pk_fma_f32 {vr(Q2[kk],2)}, {vr(cc,2)}, {vr(cc,2)}, {vr(Q2[kk],2)}")
        p(f"v_lshlrev_b32 v{Y[kk]}, 16, v{r+6}\nv_cndmask_b32 v{Y[kk]}, 0, v{Y[kk]}, {sr(sJ31M,2)}")
        p(f"v_add_f32 v{S2[kk]}, v{S2[kk]}, v{S2[kk]+1}\nv_add_f32 v{Q2[kk]}, v{Q2[kk]}, v{Q2[kk]+1}")
        p(f"v_add_f32 v{S2[kk]}, v{S2[kk]}, v{Y[kk]}\nv_add_f32 v4, v{Y[kk]}, v{Y[kk]}\nv_fmac_f32 v{Q2[kk]}, v4, v{Y[kk]}")
    red = S2 + Q2
    for mod in ("quad_perm:[1,0,3,2]", "quad_perm:[2,3,0,1]", "row_half_mirror", "row_mirror"):
        for x in red: p(f"v_add_f32_dpp v{x}, v{x}, v{x} {mod} {FULL}")
    for x in red: p(f"v_mov_b32 v{x+1}, v{x}")
    for x in red: p(f"v_permlane16_swap_b32 v{x}, v{x+1}")
    for x in red: p(f"v_add_f32 v{x}, v{x}, v{x+1}")
    M = lambda k: S2[k]
    R = lambda k: Q2[k]
    for k in range(4): p(f"v_mul_f32 v{M(k)}, s93, v{M(k)}")
    for k in range(4): p(f"v_mul_f32 v{M(k)+1}, v{M(k)}, v{M(k)}")
    for k in range(4): p(f"v_fma_f32 v{R(k)}, v{R(k)}, s94, -v{M(k)+1}")
    for k in range(4): p(f"v_add_f32 v{R(k)}, s95, v{R(k)}")
    for k in range(4): p(f"v_rsq_f32 v{R(k)}, v{R(k)}")
    for k in range(4): p(f"v_fmac_f32 v{T+10*k}, v{vFJ0}, v{M(k)}")
    for k in range(4): p(f"v_sub_f32 v{Y[k]}, v{Y[k]}, v{M(k)}")
    OUT = 64; A1, A3, B0, B2, B1, K1, K2 = 72, 74, 76, 78, 80, 82, 84; U, W, e = 86, 90, 94
    g0 = sr(sG0M, 2)
    p(f"v_cndmask_b32 v{A1}, v{R(1)}, 0, {g0}\nv_cndmask_b32 v{A3}, v{R(3)}, 0, {g0}")
    p(f"v_cndmask_b32 v{B0}, v{R(0)}, 0, {g0}\nv_cndmask_b32 v{B2}, v{R(2)}, 0, {g0}")
    p(f"v_cndmask_b32 v{B1}, -v{R(1)}, v{R(1)}, {g0}")
    p(f"v_mul_f32 v{K1}, v{R(0)}, v{M(0)}\nv_mul_f32 v{K2}, v{R(2)}, v{M(2)}")
    p(f"v_fmac_f32 v{K1}, v{A1}, v{M(1)}\nv_fmac_f32 v{K2}, v{A3}, v{M(3)}")
    p(f"v_mul_f32 v{K1}, -2.0, v{K1}\nv_mul_f32 v{K2}, -2.0, v{K2}")
    bc = "op_sel_hi:[0,1,0]"; bc1 = "op_sel_hi:[0,1,1]"
    for k in range(5):
        tt = lambda r_: vr(T+10*r_+2*k, 2)
        cc = lambda r_: vr(CA+10*r_+2*k, 2)
        u, w = U, U+2; u2, w2 = W, W+2
        p(f"v_pk_fma_f32 {vr(u,2)}, {vr(R(0),2)}, {tt(0)}, {vr(K1,2)} {bc}")
        p(f"v_pk_fma_f32 {vr(w,2)}, {vr(R(2),2)}, {tt(2)}, {vr(K2,2)} {bc}")
        p(f"v_pk_mul_f32 {vr(u2,2)}, {vr(B0,2)}, {cc(0)} op_sel_hi:[0,1]")
        p(f"v_pk_mul_f32 {vr(w2,2)}, {vr(B2,2)}, {cc(2)} op_sel_hi:[0,1]")
        p(f"v_pk_fma_f32 {vr(u,2)}, {vr(A1,2)}, {tt(1)}, {vr(u,2)} {bc1}")
        p(f"v_pk_fma_f32 {vr(w,2)}, {vr(A3,2)}, {tt(3)}, {vr(w,2)} {bc1}")
        p(f"v_pk_fma_f32 {vr(u2,2)}, {vr(B1,2)}, {cc(1)}, {vr(u2,2)} {bc1}")
        p(f"v_pk_fma_f32 {vr(w2,2)}, {vr(R(3),2)}, {cc(3)}, {vr(w2,2)} {bc1} neg_lo:[1,0,0] neg_hi:[1,0,0]")
        p(f"v_pk_add_f32 {vr(e,2)}, {vr(u,2)}, {vr(w,2)}")
        p(f"v_pk_add_f32 {vr(e+2,2)}, {vr(u,2)}, {vr(w,2)} neg_lo:[0,1] neg_hi:[0,1]")
        p(f"v_pk_add_f32 {vr(e+4,2)}, {vr(u2,2)}, {vr(w2,2)} neg_lo:[0,1] neg_hi:[0,1]")
        p(f"v_pk_add_f32 {vr(e+6,2)}, {vr(u2,2)}, {vr(w2,2)}")
        o = lambda cmb, kk_: (OUT+2*cmb+(kk_ & 1)) if kk_ < 4 else 102+cmb
        for cmb in range(4): p(f"v_cvt_pk_bf16_f32 v{o(cmb,k)}, v{e+2*cmb}, v{e+2*cmb+1}")
        if k in (1, 3):
            for cmb in range(4): p(f"ds_write2_b32 v{vAW+cmb}, v{OUT+2*cmb}, v{OUT+2*cmb+1} offset0:{k-1} offset1:{k}")
    for cmb in range(4): p(f"ds_write_b32 v{vAW+cmb}, v{102+cmb} offset:16")
    p(f"v_mul_f32 v{U}, v{R(0)}, v{Y[0]}\nv_mul_f32 v{U+1}, v{R(2)}, v{Y[2]}")
    p(f"v_fmac_f32 v{U}, v{A1}, v{Y[1]}\nv_fmac_f32 v{U+1}, v{A3}, v{Y[3]}")
    p(f"v_add_f32 v{U+2}, v{U}, v{U+1}\nv_sub_f32 v{U+3}, v{U}, v{U+1}")
    p(f"s_mov_b64 exec, {sr(sJ31M,2)}\nds_write2_b32 v{vTW}, v{U+2}, v{U+3} offset0:0 offset1:8\ns_mov_b64 exec, -1")
    with cond(p, f"s_cmp_lg_u32 s{sG}, 0"):
        p(f"v_mul_f32 v{K1}, v{R(1)}, v{M(1)}\nv_fmac_f32 v{K1}, v{R(3)}, v{M(3)}\nv_mul_f32 v{K1}, -2.0, v{K1}")
        for k in range(5):
            p(f"v_pk_fma_f32 {vr(W,2)}, {vr(R(1),2)}, {vr(T+10+2*k,2)}, {vr(K1,2)} {bc}")
            p(f"v_pk_fma_f32 {vr(W,2)}, {vr(R(3),2)}, {vr(T+30+2*k,2)}, {vr(W,2)} {bc1}")
            p(f"v_cvt_pk_bf16_f32 v{106+k}, v{W}, v{W+1}")
        p(f"v_mul_f32 v{W}, v{R(1)}, v{Y[1]}\nv_fmac_f32 v{W}, v{R(3)}, v{Y[3]}")
        p(f"v_add_u32 v11, {P1_XA}, v{vJ}\nv_mov_b32 v10, {P1_T+64}\ns_mov_b64 exec, {g0}")
        p(f"ds_write2_b32 v11, v106, v107 offset0:0 offset1:1\nds_write2_b32 v11, v108, v109 offset0:2 offset1:3\nds_write_b32 v11, v110 offset:16")
        p(f"s_mov_b64 exec, 0x80000000\nds_write_b32 v10, v{W}\ns_mov_b64 exec, -1")
    stamp(p, 21)
    p("s_waitcnt lgkmcnt(0)"); bar(p, "B1")
    stamp(p, 22)
    FA0, FB0, FB1, ACC, ACX, TI = 64, 104, 144, 12, 24, 48
    FA1 = lambda ks: ar(4*ks, 4)
    p(f"ds_read_b128 {vr(TI,4)}, v{vT} @@ti")
    for ks in range(10):
        p(f"ds_read_b128 {vr(FA0+4*ks,4)}, v{vA0} offset:{64*ks}")
        p(f"ds_read_b128 {vr(FB0+4*ks,4)}, v{vB0+(ks&1)} offset:{1024*(ks>>1)} @@s0_{ks}")
    p("@wait lg=ti")
    for r_ in range(4): p(f"v_mul_f32 v{ACC+r_}, v{vC0}, v{TI+r_}\nv_mul_f32 v{ACC+4+r_}, v{vC1}, v{TI+r_}")
    for ks in range(10):
        p(f"@wait lg=s0_{ks}")
        p(f"{MF16} {vr(ACC,4)}, {vr(FA0+4*ks,4)}, {vr(FB0+4*ks,4)}, {vr(ACC,4)}")
        p(f"ds_read_b128 {FA1(ks)}, v{vA1} offset:{64*ks}")
        p(f"ds_read_b128 {vr(FB1+4*ks,4)}, v{vB1+(ks&1)} offset:{1024*(ks>>1)} @@s1_{ks}")
    def xchain(fb, s_, load):
        lab = p.label("P1_nx"); lab2 = p.label("P1_sinx")
        p(f"s_cmp_lg_u32 s{sRG}, 0\ns_cbranch_scc1 {lab}\n@cond_begin")
        pi_calc(t+3)
        p(f"s_add_u32 s{t}, s{t+3}, {s_}\ns_cmp_ge_u32 s{t}, 5\ns_cselect_b32 s{t+1}, {1280-320}, 0\ns_lshl_b32 s{t}, s{t}, 6\ns_add_u32 s{t}, s{t}, s{t+1}")
        p(f"s_mul_i32 s{t+2}, s{sQ}, 320\ns_add_u32 s{t}, s{t}, s{t+2}\ns_add_u32 s{t}, s{t}, {WS_XB}")
        if fb is not None:
            p(f"s_cmp_lg_u32 s{t+1}, 0\ns_cbranch_scc1 {lab2}")
            if load:
                p(f"v_mov_b32 v4, {P1_T+64}\nds_read_b32 v{TI+4}, v4")
                for ks in range(10): p(f"ds_read_b128 {vr(FA0+4*ks,4)}, v{vXA} offset:{64*ks}")
            p("s_waitcnt lgkmcnt(0)")
            for r_ in range(4): p(f"v_mul_f32 v{ACX+r_}, v{vSG}, v{TI+4}")
            for ks in range(10): p(f"{MF16} {vr(ACX,4)}, {vr(FA0+4*ks,4)}, {vr(fb+4*ks,4)}, {vr(ACX,4)}")
            p(f"s_mov_b64 exec, 0xffff\nbuffer_store_dword v{ACX}, v{vXS}, {sr(SW,4)}, s{t} offen {st}\ns_mov_b64 exec, -1\ns_branch {lab}")
            p(f"{lab2}:\ns_nop 7")
        p(f"s_mov_b32 exec_lo, 0\ns_mov_b32 exec_hi, 0xffff\nbuffer_store_dword v{ACC+4*s_}, v{vXS}, {sr(SW,4)}, s{t} offen {st}\ns_mov_b64 exec, -1")
        p(f"@cond_end\n{lab}:\ns_nop 1")
    xchain(FB0, 0, True)
    with cond(p, f"s_cmp_ge_u32 s{sWAVE}, 2"):
        for ks in range(10): p(f"ds_read_b128 {vr(FB0+4*ks,4)}, v{vB2+(ks&1)} offset:{1024*(ks>>1)}")
    for ks in range(10):
        p(f"@wait lg=s1_{ks}")
        p(f"{MF16} {vr(ACC+4,4)}, {FA1(ks)}, {vr(FB1+4*ks,4)}, {vr(ACC+4,4)}")
    with cond(p, f"s_cmp_ge_u32 s{sWAVE}, 2"):
        p("s_waitcnt lgkmcnt(0)")
        for ks in range(10): p(f"{MF16} {vr(ACC+8,4)}, {FA1(ks)}, {vr(FB0+4*ks,4)}, {vr(ACC+8,4) if ks else 0}")
    p(f"v_cvt_pk_bf16_f32 v4, v{ACC}, v{ACC+1}\nv_cvt_pk_bf16_f32 v5, v{ACC+2}, v{ACC+3}\nv_cvt_pk_bf16_f32 v6, v{ACC+4}, v{ACC+5}\nv_cvt_pk_bf16_f32 v7, v{ACC+6}, v{ACC+7}")
    p("v_permlane16_swap_b32 v4, v6\nv_permlane16_swap_b32 v5, v7")
    p(f"buffer_store_dwordx4 v[4:7], v{vST}, {sr(SW,4)}, 0 offen {st}")
    xchain(FB1, 1, False)
    with cond(p, f"s_cmp_ge_u32 s{sWAVE}, 2"):
        p(f"s_nop 3\nv_cvt_pk_bf16_f32 v8, v{ACC+8}, v{ACC+9}\nv_cvt_pk_bf16_f32 v9, v{ACC+10}, v{ACC+11}")
        p(f"buffer_store_dwordx2 v[8:9], v{vST2}, {sr(SW,4)}, 0 offen {st}")
        xchain(None, 2, False)
    stamp(p, 1)

P2_XD, P2_RING, P2_ACC, P2_ACX, P2_XB = 32, 64, 144, 164, 184
vPW, vRA, vRB, vHA, vHB, vSA, vSB, vXBo, vSG2, vSP2 = 16, 17, 18, 19, 20, 21, 22, 23, 24, 26
def P2_xload(p):
    p(f"v_and_b32 v10, 3, v{vLANE}\ns_lshl_b32 s{t+3}, s{sWAVE}, 2\nv_add_u32 v10, s{t+3}, v10\nv_mul_u32_u24 v10, 2560, v10")
    p(f"v_lshrrev_b32 v11, 2, v{vLANE}\nv_lshlrev_b32 v11, 4, v11\ns_mul_i32 s{t+3}, s{sQ2}, 160\nv_add_u32 v11, s{t+3}, v11")
    p(f"v_sub_u32 v28, 1264, v11\nv_add_u32 v29, 16, v28\nv_cmp_eq_u32 vcc, 0, v11\nv_mov_b32 v30, 640\nv_cndmask_b32 v29, v29, v30, vcc")
    p(f"s_lshl_b32 s{t}, s{sI2}, 5\ns_add_u32 s{t+1}, s{t}, s{sP2}\ns_mul_i32 s{t+1}, s{t+1}, 1280")
    p(f"s_sub_u32 s{t}, s{sP2}, s{t}\ns_add_u32 s{t}, s{t}, 2046\ns_mul_i32 s{t}, s{t}, 1280")
    p(f"v_add_u32 v30, s{t+1}, v10\nv_sub_u32 v31, s{t}, v10")
    for sd in range(2):
        r = P2_RING + 12*sd
        p(f"v_add_u32 v10, v{30+sd}, v11\nbuffer_load_dwordx4 {vr(r,4)}, v10, {sr(SX,4)}, 0 offen")
        p(f"v_add_u32 v10, v{30+sd}, v28\nbuffer_load_dwordx4 {vr(r+4,4)}, v10, {sr(SX,4)}, 0 offen")
        p(f"v_add_u32 v10, v{30+sd}, v29\nbuffer_load_dword v{r+8}, v10, {sr(SX,4)}, 0 offen @@xp")
def P2_prep(p):
    swz_rd(p, 4, 10)
    p(f"s_mul_i32 s{t}, s{sWAVE}, {P2S_W}\ns_add_u32 s{t}, s{t}, {P2S}\ns_mul_i32 s{t+1}, s{sWAVE}, {P1_XR}")
    p(f"v_add_u32 v6, s{t+1}, v4\nv_add_u32 v7, s{t+1}, v5\nv_add_u32 v4, s{t}, v4\nv_add_u32 v5, s{t}, v5\nv_lshrrev_b32 v8, 4, v{vLANE}\nv_lshl_add_u32 v8, v8, 4, s{t}")
    for k in range(8): p(f"ds_read_b128 {ar(A_MF+4*k,4)}, v{4+(k&1)+2*(k>>2)} offset:{2048*((k>>1)&1) + (5120 if k >= 4 else 0)}")
    for k in range(8): p(f"ds_read_b128 {ar(A_MX+4*k,4)}, v8 offset:{4096+64*k}")
    p(f"s_lshr_b32 s{t}, s{sWAVE}, 1\ns_lshl_b32 s{t}, s{t}, 1\ns_add_u32 s{t}, s{t}, s{sP2}\ns_lshl_b32 s{t}, s{t}, 2\ns_add_u32 s{t}, s{t}, s{sQ2}")
    p(f"s_lshl_b32 s{t}, s{t}, 1\ns_and_b32 s{t+1}, s{sWAVE}, 1\ns_add_u32 s{t}, s{t}, s{t+1}\ns_mul_i32 s{t}, s{t}, 40960\ns_add_u32 s{t}, s{t}, {WS_AB}")
    p(f"s_add_u32 s{t+1}, s{sI2}, s{sQ2}\ns_and_b32 s{t+1}, s{t+1}, 3\ns_lshl_b32 s{t+1}, s{t+1}, 1")
    for k in range(8):
        p(f"s_add_u32 s{t+2}, s{t+1}, {k}\ns_and_b32 s{t+2}, s{t+2}, 7\ns_mul_i32 s{t+2}, s{t+2}, 5120\ns_add_u32 s{80+k}, s{t+2}, s{t}")
    p(f"v_add_u32 v3, 4096, v{vL16}")
    p(f"v_lshrrev_b32 v10, 2, v{vLANE}\nv_lshlrev_b32 v{vXBo}, 5, v10\ns_mul_i32 s69, s{sQ2}, 320\ns_mul_i32 s{t+1}, s{sP2}, 1280\ns_add_u32 s69, s69, s{t+1}\ns_add_u32 s69, s69, {WS_XB}")
    p(f"s_mul_i32 s{t+2}, s{sWAVE}, {SCR_W}\ns_add_u32 s{t+2}, s{t+2}, {SCR}")
    p(f"v_and_b32 v12, 15, v{vLANE}\nv_mul_u32_u24 v12, 336, v12\nv_lshrrev_b32 v13, 4, v{vLANE}\nv_lshl_add_u32 v12, v13, 4, v12\nv_add_u32 v{vPW}, s{t+2}, v12")
    p(f"v_and_b32 v12, 3, v{vLANE}\ns_lshl_b32 s{t+3}, s{sWAVE}, 2\nv_add_u32 v12, s{t+3}, v12")
    p(f"v_mul_u32_u24 v13, 336, v12\nv_add_u32 v13, {SCR}, v13\nv_add_u32 v{vRA}, v13, v{vXBo}")
    p(f"s_cmp_eq_u32 s{sP2}, 0\ns_cselect_b32 s{t+3}, 336, 0\ns_cselect_b32 s{t+4}, 0, 0x80000000\nv_add_u32 v{vRB}, s{t+3}, v{vRA}")
    p(f"v_lshlrev_b32 v13, 8, v10\nv_lshl_add_u32 v{vHA}, v12, 4, v13\nv_sub_u32 v14, 15, v12\nv_lshl_add_u32 v{vHB}, v14, 4, v13")
    p(f"v_lshlrev_b32 v{vSG2}, 31, v{vLANE}\nv_or_b32 v{vSG2}, 1.0, v{vSG2}\nv_xor_b32 v{vSP2}, s{t+4}, v{vSG2}")
    p(f"v_lshlrev_b32 v{vSA}, 3, v12\nv_lshlrev_b32 v{vSB}, 3, v14")
    p(f"s_cmp_eq_u32 s{sQ2}, 0\ns_cselect_b32 s70, 15, 0\ns_mov_b32 s71, 0")
    p(f"s_lshl_b32 s{t}, s{sI2}, 1\ns_add_u32 s{t}, s{t}, s{sP2}\ns_sub_u32 s{t+1}, 126, s{t}\ns_lshl_b32 s{t+3}, s{sP2}, 1\ns_add_u32 s{t+1}, s{t+1}, s{t+3}")
    p(f"s_mul_i32 s{t+3}, s{sQ2}, 2560\ns_add_u32 s{t+3}, s{t+3}, {WS_H}\ns_lshl_b32 s{t+4}, s{sQ2}, 7\ns_add_u32 s{t+4}, s{t+4}, {WS_HS}")
    for (sh, ss, src) in ((88, 92, t), (90, 93, t+1)):
        p(f"s_mul_i32 s{sh}, s{src}, 20480\ns_add_u32 s{sh}, s{sh}, s{t+3}\ns_add_u32 s{sh+1}, s{sh}, 10240")
        p(f"s_lshl_b32 s{ss}, s{src}, 9\ns_add_u32 s{ss}, s{ss}, s{t+4}")
    p(f"v_cmp_gt_u32 vcc, 40, v{vLANE}\nv_mov_b32 v10, 0x40000000\nv_cndmask_b32 v{vHA}, v10, v{vHA}, vcc\nv_cndmask_b32 v{vHB}, v10, v{vHB}, vcc")
    p("@wait vm=xp")
    for sd in range(2):
        r = P2_RING + 12*sd; x = P2_XD + 16*sd
        for k in range(4): p(f"v_lshlrev_b32 v{x+2*k}, 16, v{r+k}\nv_and_b32 v{x+2*k+1}, s{sMASKHI}, v{r+k}")
        p(f"v_lshlrev_b32 v{x+8}, 16, v{r+8}")
        for i in range(1, 8):
            wi = 8 - i
            if wi & 1: p(f"v_and_b32 v{x+8+i}, s{sMASKHI}, v{r+4+(wi>>1)}")
            else: p(f"v_lshlrev_b32 v{x+8+i}, 16, v{r+4+(wi>>1)}")
def P2_main(p):
    RING, ACC, ACX = P2_RING, P2_ACC, P2_ACX
    def ld(k):
        for nt in range(5):
            r = RING + ((k & 3)*5 + nt)*4
            p(f"buffer_load_dwordx4 {vr(r,4)}, v{vL16 if nt < 4 else 3}, {sr(SW,4)}, s{80+k} offen offset:{(nt&3)*1024} sc1 @@ab{k}_{nt}")
    for k in range(4): ld(k)
    p(f"buffer_load_dwordx4 {vr(P2_XB,4)}, v{vXBo}, {sr(SW,4)}, s69 offen sc1\nbuffer_load_dwordx4 {vr(P2_XB+4,4)}, v{vXBo}, {sr(SW,4)}, s69 offen offset:16 sc1")
    for k in range(8):
        for nt in range(5):
            r = RING + ((k & 3)*5 + nt)*4
            p(f"@wait vm=ab{k}_{nt}")
            p(f"{MF16} {vr(ACC+4*nt,4)}, {vr(r,4)}, {ar(A_MF+4*k,4)}, {vr(ACC+4*nt,4) if k else 0}")
            p(f"{MF16} {vr(ACX+4*nt,4)}, {vr(r,4)}, {ar(A_MX+4*k,4)}, {vr(ACX+4*nt,4) if k else 0}")
        if k < 4: ld(k+4)
    stamp(p, 23)
    for nt in range(5): p(f"ds_write_b128 v{vPW}, {vr(ACC+4*nt,4)} offset:{64*nt}")
    p("s_mov_b32 exec_lo, 0x00010001\ns_mov_b32 exec_hi, 0x00010001")
    for nt in range(5): p(f"ds_write_b128 v{vPW}, {vr(ACX+4*nt,4)} offset:{16*336+64*nt}")
    p("s_mov_b64 exec, -1\ns_waitcnt lgkmcnt(0)"); bar(p, "B4")
    STt = 160; L = P2_RING
    for sd in range(2):
        for hh in range(2):
            for wv in range(4):
                p(f"ds_read_b128 {vr(L+32*sd+8*wv+4*hh,4)}, v{vRA if sd == 0 else vRB} offset:{wv*SCR_W+16*hh} @@pq{sd}{hh}")
    for sd in range(2):
        b = L + 32*sd; x = P2_XD + 16*sd; o = 144 + 8*sd
        su = (vSG2, 0) if sd == 0 else (vSP2, 1)
        sw = (vSP2, 0) if sd == 0 else (vSG2, 1)
        for k in range(4):
            p(f"@wait lg=pq{sd}{k>>1}")
            P0, P1_, Q0, Q1 = b+2*k, b+8+2*k, b+16+2*k, b+24+2*k
            p(f"v_pk_add_f32 {vr(P0,2)}, {vr(P0,2)}, {vr(P1_,2)}\nv_pk_add_f32 {vr(Q0,2)}, {vr(Q0,2)}, {vr(Q1,2)}")
            p(f"v_pk_add_f32 {vr(P1_,2)}, {vr(P0,2)}, {vr(Q0,2)} neg_lo:[0,1] neg_hi:[0,1]")
            p(f"v_pk_add_f32 {vr(Q1,2)}, {vr(P0,2)}, {vr(Q0,2)}")
            for (dst, (sv, ng)) in ((P1_, su), (Q1, sw)):
                p(f"v_pk_fma_f32 {vr(dst,2)}, {vr(sv,2)}, {vr(P2_XB+2*k,2)}, {vr(dst,2)} op_sel_hi:[0,1,1]" + (" neg_lo:[1,0,0] neg_hi:[1,0,0]" if ng else ""))
            lo, hi = (P1_, Q1) if sd == 0 else (Q1, P1_)
            if k == 0: p(f"v_cndmask_b32 v{lo}, v{lo}, 0, s[70:71]")
            p(f"v_pk_add_f32 {vr(x+2*k,2)}, {vr(x+2*k,2)}, {vr(lo,2)}\nv_pk_add_f32 {vr(x+8+2*k,2)}, {vr(x+8+2*k,2)}, {vr(hi,2)}")
            p(f"v_cvt_pk_bf16_f32 v{o+k}, v{x+2*k}, v{x+2*k+1}\nv_cvt_pk_bf16_f32 v{o+4+k}, v{x+8+2*k}, v{x+8+2*k+1}")
        sh = 88 if sd == 0 else 90; vh = vHA if sd == 0 else vHB
        p(f"buffer_store_dwordx4 {vr(o,4)}, v{vh}, {sr(SW,4)}, s{sh} offen")
        p(f"buffer_store_dwordx4 {vr(o+4,4)}, v{vh}, {sr(SW,4)}, s{sh+1} offen")
    for k in range(8):
        for sd in range(2):
            x = P2_XD + 16*sd; s_, q_ = STt+4*sd, STt+4*sd+2
            if k == 0: p(f"v_pk_mul_f32 {vr(q_,2)}, {vr(x,2)}, {vr(x,2)}")
            else: p(f"v_pk_add_f32 {vr(s_,2)}, {vr(s_ if k > 1 else x,2)}, {vr(x+2*k,2)}\nv_pk_fma_f32 {vr(q_,2)}, {vr(x+2*k,2)}, {vr(x+2*k,2)}, {vr(q_,2)}")
    red = [STt, STt+2, STt+4, STt+6]
    p(f"v_cmp_gt_u32 vcc, 40, v{vLANE}")
    for x in red: p(f"v_add_f32 v{x}, v{x}, v{x+1}")
    for x in red: p(f"v_cndmask_b32 v{x}, 0, v{x}, vcc")
    for mod in ("row_ror:4", "row_ror:8"):
        for x in red: p(f"v_add_f32_dpp v{x}, v{x}, v{x} {mod} {FULL}")
    for sw in ("v_permlane16_swap_b32", "v_permlane32_swap_b32"):
        for x in red: p(f"v_mov_b32 v{x+1}, v{x}")
        for x in red: p(f"{sw} v{x}, v{x+1}")
        for x in red: p(f"v_add_f32 v{x}, v{x}, v{x+1}")
    p(f"v_mov_b32 v{STt+1}, v{STt+2}\nv_mov_b32 v{STt+5}, v{STt+6}\ns_mov_b64 exec, 15")
    p(f"buffer_store_dwordx2 {vr(STt,2)}, v{vSA}, {sr(SW,4)}, s92 offen\nbuffer_store_dwordx2 {vr(STt+4,2)}, v{vSB}, {sr(SW,4)}, s93 offen")
    p("s_mov_b64 exec, -1")

P3_AZ2, P3_AZ1, P3_BF = 16, 40, 160
vWB1 = 184; sGK1 = 90; vK0 = 14
def HF(ks, par):
    i = 2*ks + par
    return vr(64+4*i, 4) if i < 24 else ar(4*(i-24), 4)
def P3_prep(p):
    p(f"v_add_u32 v{vWB1}, {WZ}, v{vL16}")
    p(f"s_lshl_b32 s80, s{sRB3}, 10\ns_add_u32 s80, s80, {WS_HS}")
    p(f"s_mul_i32 s81, s{sRB3}, 40960\ns_add_u32 s81, s81, {WS_H}\ns_add_u32 s82, s81, 20480")
    p(f"s_mov_b32 s{sGK1}, {fhex(GK1)}\ns_mov_b32 s{sGK1+1}, {fhex(GK1)}\nv_mov_b32 v{vK0}, {fhex(GK0)}")
    p(f"s_lshl_b32 s83, s{sRB3}, 12\ns_add_u32 s83, s83, {WS_ZS}\ns_lshl_b32 s84, s{sJ3}, 4\ns_add_u32 s84, s84, s83")
    p(f"s_mul_i32 s85, s{sJ3}, 192\ns_add_u32 s85, s85, s{sRB3}\ns_lshl_b32 s85, s85, 10\ns_add_u32 s85, s85, {WS_Z2}\ns_add_u32 s92, s85, 65536\ns_add_u32 s93, s85, 131072")
    p(f"s_lshl_b32 s86, s{sWAVE}, 8\ns_add_u32 s86, s86, {TBL}\ns_mov_b32 s87, {fhex(1e-5)}\ns_mov_b32 s88, {fhex(1/640)}\ns_mov_b32 s89, {fhex(1/768)}")
    p(f"v_lshrrev_b32 v185, 5, v{vLANE}\nv_lshlrev_b32 v185, 6, v185\nv_and_b32 v10, 7, v{vLANE}\nv_lshl_add_u32 v185, v10, 3, v185\nv_add_u32 v185, s86, v185")
    p(f"v_lshrrev_b32 v12, 4, v{vLANE}\nv_lshl_add_u32 v12, v12, 4, s86")
    p(f"v_and_b32 v10, 15, v{vLANE}\nv_lshlrev_b32 v186, 2, v10\nv_add_u32 v186, {CST}, v186")
    p(f"v_lshrrev_b32 v187, 2, v{vLANE}\nv_lshlrev_b32 v187, 8, v187\nv_and_b32 v10, 3, v{vLANE}\nv_lshl_add_u32 v13, v10, 4, v187")
def gelu4(p, x, tmp):
    for step in range(6):
        for h in range(2):
            xx = x+2*h; a = tmp+4*h; b = a+2
            if step == 0: p(f"v_pk_mul_f32 {vr(a,2)}, {vr(xx,2)}, {vr(xx,2)}")
            if step == 1: p(f"v_pk_fma_f32 {vr(a,2)}, {vr(a,2)}, {sr(sGK1,2)}, {vr(vK0,2)} op_sel_hi:[1,1,0]")
            if step == 2: p(f"v_pk_mul_f32 {vr(a,2)}, {vr(a,2)}, {vr(xx,2)}")
            if step == 3: p(f"v_exp_f32 v{b}, v{a}\nv_exp_f32 v{b+1}, v{a+1}")
            if step == 4: p(f"v_pk_add_f32 {vr(b,2)}, {vr(b,2)}, 1.0 op_sel_hi:[1,0]")
            if step == 5: p(f"v_rcp_f32 v{a}, v{b}\nv_rcp_f32 v{a+1}, v{b+1}")
    for h in range(2): p(f"v_pk_mul_f32 {vr(x+2*h,2)}, {vr(x+2*h,2)}, {vr(tmp+4*h,2)}")
def hfrag(p, ks):
    if ks >= 20: return
    for par in range(2):
        p(f"buffer_load_dwordx4 {HF(ks,par)}, v{vL16}, {sr(SW,4)}, s{81+par} offen offset:{(ks&3)*1024} sc1 @@h{ks}")
    if (ks & 3) == 3 and ks < 19: p(f"s_add_u32 s81, s81, 4096\ns_add_u32 s82, s82, 4096")
def P3_pass(p, z1, k0=0, k1=20):
    acc = P3_AZ1 if z1 else P3_AZ2
    HA = X.get('ha', 6)
    seq = [(ks, nt) for ks in range(k0, k1) for nt in range(3)]
    def rd(i):
        if i < len(seq):
            ks, nt = seq[i]
            p(f"ds_read_b128 {vr(P3_BF+4*(i%6),4)}, v{vWB1 if z1 else vL16} offset:{nt*20480+ks*1024} @@wf{z1}_{ks}_{nt}")
    for i in range(5): rd(i)
    for i, (ks, nt) in enumerate(seq):
        p(f"@wait lg=wf{z1}_{ks}_{nt}" + (f" vm=h{ks}" if not z1 else ""))
        bf = vr(P3_BF+4*(i%6), 4)
        for par in range(2):
            a = vr(acc + (par*3+nt)*4, 4); c = a if ks else 0
            p(f"{MF16} {a}, {bf}, {HF(ks,par)}, {c}" if z1 else f"{MF16} {a}, {HF(ks,par)}, {bf}, {c}")
        rd(i+5)
        if not z1 and nt == 0: hfrag(p, ks+HA)
        if not z1 and (ks, nt) == (X.get('ln1k', 3), 2): P3_ln1(p)
def P3_loads(p):
    for ks in range(X.get('ha', 6)):
        hfrag(p, ks)
        if ks == 1: p(f"buffer_load_dwordx4 v[4:7], v{vL16}, {sr(SW,4)}, s80 offen sc1 @@hs")
def P3_ln1(p):
    p("@wait vm=hs")
    for x in range(4, 8): p(f"v_add_f32_dpp v{x}, v{x}, v{x} row_ror:8 {FULL}")
    for x in range(4): p(f"v_mov_b32 v{8+x}, v{4+x}")
    for x in range(4): p(f"v_permlane16_swap_b32 v{4+x}, v{8+x}")
    for x in range(4): p(f"v_add_f32 v{4+x}, v{4+x}, v{8+x}")
    p(f"v_mul_f32 v8, s88, v4\nv_mul_f32 v9, s88, v6\nv_mul_f32 v4, v8, v8\nv_mul_f32 v6, v9, v9")
    p(f"v_fma_f32 v5, v5, s88, -v4\nv_fma_f32 v7, v7, s88, -v6\nv_add_f32 v5, s87, v5\nv_add_f32 v7, s87, v7")
    p(f"v_rsq_f32 v10, v5\nv_rsq_f32 v11, v7\nv_sub_f32 v8, 0, v8\nv_sub_f32 v9, 0, v9")
    p(f"ds_write_b64 v185, v[8:9]\nds_write_b64 v185, v[10:11] offset:128")
def P3_z2a(p):
    B = P3_BF; NM, RR, TMP = B, B+8, B+16
    CSr = [4, 6, 8]
    for nt in range(3): p(f"ds_read_b32 v{CSr[nt]}, v186 offset:{64*nt}")
    for par in range(2):
        p(f"ds_read_b128 {vr(NM+4*par,4)}, v12 offset:{64*par}\nds_read_b128 {vr(RR+4*par,4)}, v12 offset:{128+64*par} @@nr{par}")
    for par in range(2):
        p(f"@wait lg=nr{par}")
        for nt in range(3):
            a = P3_AZ2 + (par*3+nt)*4
            for h in range(2): p(f"v_pk_fma_f32 {vr(a+2*h,2)}, {vr(NM+4*par+2*h,2)}, {vr(CSr[nt],2)}, {vr(a+2*h,2)} op_sel_hi:[1,0,1]")
            for h in range(2): p(f"v_pk_mul_f32 {vr(a+2*h,2)}, {vr(a+2*h,2)}, {vr(RR+4*par+2*h,2)}")
            gelu4(p, a, TMP)
    for par in range(2):
        for h in range(2):
            a = lambda nt: vr(P3_AZ2 + (par*3+nt)*4 + 2*h, 2)
            S_, Q_ = vr(NM+4*par+2*h, 2), vr(RR+4*par+2*h, 2)
            p(f"v_pk_add_f32 {S_}, {a(0)}, {a(1)}\nv_pk_mul_f32 {Q_}, {a(0)}, {a(0)}")
            p(f"v_pk_add_f32 {S_}, {S_}, {a(2)}\nv_pk_fma_f32 {Q_}, {a(1)}, {a(1)}, {Q_}\nv_pk_fma_f32 {Q_}, {a(2)}, {a(2)}, {Q_}")
    for base in (NM, RR):
        for r in range(4): p(f"v_add_f32_dpp v{base+r}, v{base+r}, v{base+r} row_ror:8 {FULL}")
    for base in (NM, RR):
        for r in range(4): p(f"v_add_f32_dpp v{base+r}, v{base+4+r}, v{base+4+r} row_ror:8 row_mask:0xf bank_mask:0xc")
    for i, (base, r) in enumerate(((NM, 0), (RR, 0), (NM, 1), (RR, 1))):
        p(f"v_add_f32_dpp v{TMP+i}, v{base+r}, v{base+r} row_half_mirror {FULL}")
    for i, (base, r) in enumerate(((NM, 2), (RR, 2), (NM, 3), (RR, 3))):
        p(f"v_add_f32_dpp v{TMP+i}, v{base+r}, v{base+r} row_half_mirror row_mask:0xf bank_mask:0xa")
    for mod in ("quad_perm:[1,0,3,2]", "quad_perm:[2,3,0,1]"):
        for i in range(4): p(f"v_add_f32_dpp v{TMP+i}, v{TMP+i}, v{TMP+i} {mod} {FULL}")
    p("s_mov_b32 exec_lo, 0x11111111\ns_mov_b32 exec_hi, 0x11111111")
    p(f"buffer_store_dwordx4 {vr(TMP,4)}, v187, {sr(SW,4)}, s84 offen @@zs\ns_mov_b64 exec, -1")
def P3_z2b(p):
    B = P3_BF
    for i in range(4): p(f"buffer_load_dwordx4 {vr(B+4*i,4)}, v13, {sr(SW,4)}, s83 offen offset:{64*i} sc1 @@zl")
    p("@wait vm=zl")
    for h in range(2):
        p(f"v_pk_add_f32 {vr(B+2*h,2)}, {vr(B+2*h,2)}, {vr(B+4+2*h,2)}\nv_pk_add_f32 {vr(B+8+2*h,2)}, {vr(B+8+2*h,2)}, {vr(B+12+2*h,2)}")
    for h in range(2): p(f"v_pk_add_f32 {vr(B+2*h,2)}, {vr(B+2*h,2)}, {vr(B+8+2*h,2)}")
    for mod in ("quad_perm:[1,0,3,2]", "quad_perm:[2,3,0,1]"):
        for i in range(4): p(f"v_add_f32_dpp v{B+i}, v{B+i}, v{B+i} {mod} {FULL}")
    p(f"v_mul_f32 v{B}, s89, v{B}\nv_mul_f32 v{B+2}, s89, v{B+2}\nv_mul_f32 v{B+4}, v{B}, v{B}\nv_mul_f32 v{B+5}, v{B+2}, v{B+2}")
    p(f"v_fma_f32 v{B+1}, v{B+1}, s89, -v{B+4}\nv_fma_f32 v{B+3}, v{B+3}, s89, -v{B+5}\nv_add_f32 v{B+1}, s87, v{B+1}\nv_add_f32 v{B+3}, s87, v{B+3}")
    p(f"v_rsq_f32 v{B+1}, v{B+1}\nv_rsq_f32 v{B+3}, v{B+3}")
    p(f"v_mul_f32 v{B}, -v{B}, v{B+1}\nv_mul_f32 v{B+2}, -v{B+2}, v{B+3}")
    NM, RR = B+8, B+16
    for bk in range(4):
        for i in range(2):
            p(f"v_mov_b32_dpp v{NM+2*bk+i}, v{B+2*i} row_newbcast:{4*bk} {FULL}")
            p(f"v_mov_b32_dpp v{RR+2*bk+i}, v{B+2*i+1} row_newbcast:{4*bk} {FULL}")
    for nt in range(3):
        for par in range(2):
            a = P3_AZ2 + (par*3+nt)*4
            for h in range(2): p(f"v_pk_fma_f32 {vr(a+2*h,2)}, {vr(a+2*h,2)}, {vr(RR+4*par+2*h,2)}, {vr(NM+4*par+2*h,2)}")
        o = [B, B+4, 4][nt]
        for r in range(4): p(f"v_cvt_pk_bf16_f32 v{o+r}, v{P3_AZ2+nt*4+r}, v{P3_AZ2+(3+nt)*4+r}")
        p(f"buffer_store_dwordx4 {vr(o,4)}, v{vL16}, {sr(SW,4)}, s{[85,92,93][nt]} offen {['sc1', 'sc0 sc1', 'sc1 nt', 'nt', ''][X.get('z2m', 0)]} @@z2s")
def P3_z1e(p):
    CS, NR, TMP = P3_BF, 16, 24
    p(f"v_and_b32 v12, 15, v{vLANE}\nv_lshl_add_u32 v12, v12, 2, s86\nv_lshrrev_b32 v13, 4, v{vLANE}\nv_lshlrev_b32 v13, 4, v13\nv_add_u32 v13, {CST+192}, v13")
    for par in range(2): p(f"ds_read_b32 v{NR+4*par}, v12 offset:{64*par}\nds_read_b32 v{NR+4*par+2}, v12 offset:{128+64*par}")
    for nt in range(3): p(f"ds_read_b128 {vr(CS+4*nt,4)}, v13 offset:{64*nt} @@z1c{nt}")
    p(f"s_mul_i32 s{SSD}, s{sRB3}, {2*48*512}\ns_mul_i32 s{t+1}, s{sJ3}, 1536\ns_add_u32 s{SSD}, s{SSD}, s{t+1}\ns_add_u32 s{SSD}, s{SSD}, {WS_Z1}\ns_add_u32 s{SSD+1}, s{SSD}, {48*512}")
    p(f"v_lshlrev_b32 v8, 3, v{vLANE}")
    for par in range(2):
        for nt in range(3):
            a = P3_AZ1 + (par*3+nt)*4
            p(f"@wait lg=z1c{nt}")
            for h in range(2): p(f"v_pk_fma_f32 {vr(a+2*h,2)}, {vr(CS+4*nt+2*h,2)}, {vr(NR+4*par,2)}, {vr(a+2*h,2)} op_sel_hi:[1,0,1]")
            for h in range(2): p(f"v_pk_mul_f32 {vr(a+2*h,2)}, {vr(a+2*h,2)}, {vr(NR+4*par+2,2)} op_sel_hi:[1,0]")
            gelu4(p, a, TMP)
            p(f"v_cvt_pk_bf16_f32 v{a}, v{a}, v{a+1}\nv_cvt_pk_bf16_f32 v{a+1}, v{a+2}, v{a+3}")
            p(f"buffer_store_dwordx2 {vr(a,2)}, v8, {sr(SW,4)}, s{SSD+par} offen offset:{512*nt} {'sc1' if X.get('m84', 1) else ''} @@z1s")

KC = 6
MB_FT = 28672
MB_BASE = [0, MB_FT, 2*MB_FT, 3*MB_FT, 0, SCR]
def unit_bases(p, d):
    p(f"s_mul_i32 s{d}, s{sWAVE}, 14336\ns_lshl_b32 s{d+1}, s{sWAVE}, 13\ns_add_u32 s{d+1}, s{d+1}, {SCR}")
    p(f"s_lshl_b32 s{d+2}, s{sWAVE}, 11\ns_cmp_lt_u32 s{sWAVE}, 2\ns_cselect_b32 s{t+5}, 0, {155648-4096-57344}\ns_add_u32 s{d+2}, s{d+2}, s{t+5}\ns_add_u32 s{d+2}, s{d+2}, 57344")
def unit_loc(u): return (0, u*2048) if u < 7 else ((1, (u-7)*2048) if u < 11 else (2, 0))
def WA(s_, k):
    i = s_*KC + k
    return ar(4*i, 4) if i < 16 else vr(160+4*(i-16), 4)
def WXr(s_, k):
    i = s_*(16-KC) + k
    return ar(4*i, 4) if i < 16 else vr(96+4*(i-16), 4)
def z2_offsets(p, k0, n):
    p(f"s_mul_i32 s{t}, s{sJ4}, 384\ns_lshl_b32 s{t+1}, s{sWAVE}, 4\ns_add_u32 s{t}, s{t}, s{t+1}\ns_lshl_b32 s{t}, s{t}, 10\ns_add_u32 s{t}, s{t}, {WS_Z2}")
    p(f"s_lshl_b32 s{t+1}, s{sRG4}, 1")
    for k in range(n):
        p(f"s_add_u32 s{t+2}, s{t+1}, {k0+k}\ns_and_b32 s{t+2}, s{t+2}, 15\ns_lshl_b32 s{t+2}, s{t+2}, 10\ns_add_u32 s{80+k}, s{t+2}, s{t}")
    p(f"v_mov_b32 v3, v{vL16}")
def mb_waddr(p, role):
    for s_ in range(0 if role else 1, 4):
        e = 3+s_ if role else s_-1
        p(f"s_add_u32 s{t}, s{sWAVE}, {s_}\ns_and_b32 s{t}, s{t}, 3\ns_mul_i32 s{t}, s{t}, 7168\ns_add_u32 s{t}, s{t}, {e*1024}\nv_add_u32 v{4+s_}, s{t}, v{vL16}")
C_RING, C_ACC, C_OWN, C_Z1 = 64, 112, 136, 52
C_MBR = [16, 20, 24, 28, 32, 40, 44]
def P4_prepC(p):
    unit_bases(p, sB0); swz_rd(p, 4, 10)
    for b in range(3): p(f"v_add_u32 v{64+2*b}, s{sB0+b}, v4\nv_add_u32 v{65+2*b}, s{sB0+b}, v5")
    for s_ in range(4):
        for k in range(KC):
            b, off = unit_loc(s_*3 + (k >> 1))
            p(f"ds_read_b128 {WA(s_,k)}, v{64+2*b+(k&1)} offset:{off}")
    z2_offsets(p, 0, KC); mb_waddr(p, 0); hpack(p)
    p(f"s_mul_i32 s{t}, s{sWAVE}, 7168\nv_add_u32 v4, s{t}, v{vL16}")
    p(f"v_lshlrev_b32 v8, 3, v{vLANE}\ns_mul_i32 s70, s{sTT}, 24576\ns_mul_i32 s{t+1}, s{sJ4}, 3072\ns_add_u32 s70, s70, {WS_V}\ns_add_u32 s70, s70, s{t+1}")
    p(f"v_and_b32 v10, 15, v{vLANE}\nv_lshlrev_b32 v10, 2, v10\ns_lshr_b32 s{t}, s{sTT}, 1\ns_lshl_b32 s{t}, s{t}, 5\ns_and_b32 s{t+1}, s{sTT}, 1\ns_add_u32 s{t}, s{t}, s{t+1}\ns_lshl_b32 s{t}, s{t}, 1")
    p(f"s_lshr_b32 s{t+2}, s{sTT}, 1\ns_lshl_b32 s{t+2}, s{t+2}, 6\ns_lshl_b32 s{t+3}, s{sJ4}, 3\ns_add_u32 s{t+2}, s{t+2}, s{t+3}\ns_add_u32 s{t+2}, s{t+2}, {FL_F3B}")
    p(f"v_and_b32 v9, 1, v{vLANE}\nv_lshl_add_u32 v9, v9, 2, s{t+2}")
    p(f"v_mov_b32 v{C_OWN}, 0\nbuffer_load_short_d16_hi v{C_OWN}, v10, {sr(SBS,4)}, s{t} offen @@bias\n@wait vm=bias")
    for r in range(1, 24): p(f"v_mov_b32 v{C_OWN+r}, v{C_OWN}")
def P4(p, role):
    NK = (16-KC) if role else KC
    N = 6*NK; R = 12 if role else 10
    RING = 16 if role else C_RING
    W = WXr if role else WA
    def accreg(ft, s_):
        if role: return vr(64 + ((ft&1)*4+s_)*4, 4)
        return vr(C_OWN+ft*4, 4) if s_ == 0 else vr(C_ACC+((ft&1)*3+s_-1)*4, 4)
    def ld(n):
        ft, k = n // NK, n % NK
        if X.get('p4nold') and n > 0: return
        if k == 0 and ft: p(f"v_add_u32 v3, 65536, v3")
        p(f"buffer_load_dwordx4 {vr(RING+(n%R)*4,4)}, v3, {sr(SW,4)}, s{80+k} offen sc1 @@z{n}")
    R0 = X.get('R0', 6)
    if X.get('p4sleep'): p(f"s_sleep {X['p4sleep']}")
    if role: xstamp(p, 25)
    for n in range(R0): ld(n)
    if role and X.get('xst'): p("@wait vm=z0"); xstamp(p, 26); p(f"@wait vm=z{R0-1}"); xstamp(p, 27)
    def wr(ft):
        if ft:
            for s_ in range(0 if role else 1, 4): p(f"v_add_u32 v{4+s_}, {MB_BASE[ft]-MB_BASE[ft-1]}, v{4+s_}")
        for s_ in range(0 if role else 1, 4): p(f"ds_write_b128 v{4+s_}, {accreg(ft,s_)}")
    def mb(ft, pk=False):
        L = []
        if ft: L.append(f"v_add_u32 v4, {MB_BASE[ft]-MB_BASE[ft-1]}, v4")
        L.append("\n".join(f"ds_read_b128 {vr(C_MBR[e],4)}, v4 offset:{e*1024} @@mb{ft}_{e}" for e in range(7)))
        o = C_OWN+4*ft
        if pk:
            for e in range(7):
                L.append(f"@wait lg=mb{ft}_{e}")
                for h in range(2): L.append(f"v_pk_add_f32 {vr(o+2*h,2)}, {vr(o+2*h,2)}, {vr(C_MBR[e]+2*h,2)}")
        else:
            L += ["s_nop 0"]*X.get('mbgap', 10)
            for e in range(7):
                for r in range(4): L.append((f"@wait lg=mb{ft}_{e}\n" if r == 0 else "") + f"v_add_f32 v{o+r}, v{o+r}, v{C_MBR[e]+r}")
        return L
    fill = []
    PER = X.get('p4v', 3)
    LEAD = X.get('lead', 1)
    nl = R0; mbq = []; nq = [0]
    def T(j):
        if (X.get('p4nobar', 10) >> j) & 1: return
        p("s_waitcnt lgkmcnt(0)"); bar(p, f"T{j}")
        while nq[0] < j:
            if not role: mbq.append(nq[0])
            nq[0] += 1
    def pump(cnt):
        for _ in range(cnt):
            if not fill and mbq: fill.extend(mb(mbq.pop(0)))
            if fill:
                l = fill.pop(0)
                if l != "s_nop 0": p(l)
    consumed = lambda j: nq[0] > j and j not in mbq and not any(f"mb{j}_" in l for l in fill)
    safe0 = [False]
    for n in range(N):
        ft, k = n // NK, n % NK
        if not (X.get('p4nold') and n > 0): p(f"@wait vm=z{n}")
        z = vr(RING+(n%R)*4, 4)
        for s_ in range(4):
            d = accreg(ft, s_)
            c = d if (k or (s_ == 0 and not role)) else "0"
            if not (X.get('p4nomf') and k): p(f"{MF16} {d}, {z}, {W(s_,k)}, {c}")
            pump(PER)
        while nl < min(N, n + 1 + R) and nl < n + 1 + R0 + 2*(n+1): ld(nl); nl += 1
        if k == 1 and ft >= 1:
            if ft == 5 and not role: assert safe0[0], "slot 0 reuse unsafe"
            wr(ft-1)
            j = ft if role else ft - LEAD
            if j >= 1:
                if not role and consumed(0) and not (X.get('p4nobar', 10) >> j) & 1: safe0[0] = True
                T(j)
        if not role and ft == 3 and k == 3: p(f"buffer_load_dword v15, v9, {sr(SW,4)}, 0 offen sc1 @@f3b")
        if not role and ft == 4 and k == 3:
            a, b = p.label("f3b"), p.label("f3bok")
            p(f"@wait vm=f3b\ns_mov_b32 s{sSPIN}, 0x100000\n{a}:\nv_cmp_ne_u32 vcc, s{sEP}, v15\ns_cbranch_vccz {b}\n@cond_begin")
            p(f"buffer_load_dword v15, v9, {sr(SW,4)}, 0 offen sc1\ns_waitcnt vmcnt(0)\ns_sub_u32 s{sSPIN}, s{sSPIN}, 1\ns_cbranch_scc0 {a}\n@cond_end\n{b}:")
            for f in range(6): p(f"buffer_load_dwordx2 {vr(C_Z1+2*f,2)}, v8, {sr(SW,4)}, s70 offen offset:{512*f} sc1 @@z1l")
    wr(5)
    if not role:
        pump(1000)
        for j in range(6-LEAD, 6): T(j); pump(1000)
    p("s_waitcnt lgkmcnt(0)"); bar(p, "Bf")
    if role: return
    m5 = mb(5, True)
    p(m5[0]); p(m5[1])
    def vout(u):
        o = RING + 4*u
        for ff in range(2):
            ft = 2*u+ff; z = RING+16+4*ff; g = C_OWN+4*ft
            for h in range(2): p(f"v_lshlrev_b32 v{z+2*h}, 16, v{C_Z1+2*ft+h}\nv_and_b32 v{z+2*h+1}, s{sMASKHI}, v{C_Z1+2*ft+h}")
            for h in range(2): p(f"v_pk_mul_f32 {vr(z+2*h,2)}, {vr(z+2*h,2)}, {vr(g+2*h,2)}")
            for h in range(2): p(f"v_cvt_pk_bf16_f32 v{o+2*ff+h}, v{z+2*h}, v{z+2*h+1}")
        p(f"buffer_store_dwordx4 {vr(o,4)}, v{vL16}, {sr(SW,4)}, s70 offen offset:{1024*u} {'sc1' if X.get('m84', 1) else ''} @@vs")
    p("@wait vm=z1l")
    vout(0); vout(1)
    p("\n".join(m5[2:]))
    vout(2)

HRES = 16
HP = [36, 37, 38, 39, 104, 105, 106, 107, 108, 109]
sT5, sJ5, sR5 = SCS, SCS+1, SCS+2
def hload(p):
    A, B = 72, 84
    map5(p, sT5, sJ5, sR5)
    p(f"s_cmp_ge_u32 s{sJ5}, 4\ns_cselect_b32 s{t}, -1, 1\ns_cselect_b32 s{t+1}, 956, 0\ns_cselect_b64 vcc, -1, 0")
    p(f"s_mov_b64 s[94:95], vcc")
    p(f"s_mul_i32 s{t+2}, s{sJ5}, 80\nv_lshrrev_b32 v70, 4, v{vLANE}\nv_lshl_add_u32 v70, v70, 2, s{t+2}\nv_mul_lo_u32 v70, v70, s{t}\nv_add_u32 v70, s{t+1}, v70")
    p(f"v_and_b32 v71, 15, v{vLANE}\nv_lshlrev_b32 v71, 4, v71\ns_lshl_b32 s{t}, s{t}, 4")
    p(f"s_mul_i32 s{t+3}, s{sT5}, 20480\ns_add_u32 s{t+3}, s{t+3}, {WS_H}")
    for et in range(5):
        for (dst, add) in ((A+2*et, 0), (B+2*et, 4)):
            p(f"v_add_u32 v10, {add}, v70")
            if et == 0 and add: p(f"v_cmp_eq_u32 vcc, 640, v10\nv_mov_b32 v11, 320\nv_cndmask_b32 v10, v10, v11, vcc")
            p(f"v_lshrrev_b32 v11, 3, v10\nv_lshl_add_u32 v11, v11, 8, v71\nv_and_b32 v10, 7, v10\nv_lshl_add_u32 v10, v10, 1, v11")
            p(f"buffer_load_dword{'x2' if not add else ''} {vr(dst, 1 if add else 2)}, v10, {sr(SW,4)}, s{t+3} offen sc1 @@hres")
        if et < 4: p(f"v_add_u32 v70, s{t}, v70")
def hpack(p):
    A, B = 72, 84
    p(f"s_mov_b32 s{t}, 0x07060100\n@wait vm=hres")
    for et in range(5):
        a, b = A+2*et, B+2*et
        p(f"v_perm_b32 v10, v{a+1}, v{b}, s{t}\nv_perm_b32 v11, v{a}, v{a+1}, s{t}")
        p(f"v_cndmask_b32 v{HP[2*et]}, v{a}, v10, s[94:95]\nv_cndmask_b32 v{HP[2*et+1]}, v{a+1}, v11, s[94:95]")
def P5_prep(p):
    for i in range(10): p(f"v_lshlrev_b32 v{HRES+2*i}, 16, v{HP[i]}\nv_and_b32 v{HRES+2*i+1}, s{sMASKHI}, v{HP[i]}")
    p(f"v_add_u32 v5, {WZ}, v{vL16}")
    p(f"v_and_b32 v10, 15, v{vLANE}\nv_mul_u32_u24 v10, 2560, v10\nv_lshrrev_b32 v11, 4, v{vLANE}\nv_lshl_add_u32 v6, v11, 3, v10")
    p(f"s_lshr_b32 s86, s{sT5}, 1\ns_lshl_b32 s86, s86, 5\ns_and_b32 s{t+1}, s{sT5}, 1\ns_add_u32 s86, s86, s{t+1}\ns_mul_i32 s86, s86, 1280\ns_mul_i32 s{t+1}, s{sJ5}, 160\ns_add_u32 s86, s86, s{t+1}")
    p(f"s_mul_i32 s80, s{sT5}, 24576\ns_add_u32 s80, s80, {WS_V}")
    for i in range(1, 6): p(f"s_add_u32 s{80+i}, s80, {4096*i}")
def P5_main(p):
    NB = 24
    breg = lambda i: ar(4*(i % NB), 4) if (i % NB) < 16 else vr(160+4*((i % NB)-16), 4)
    def vl(ks):
        if ks < 24: p(f"buffer_load_dwordx4 {vr(64+4*ks,4)}, v{vL16}, {sr(SW,4)}, s{80+(ks>>2)} offen offset:{(ks&3)*1024} sc1 @@v{ks}")
    def bl(i):
        if i < 120:
            o = i*1024
            p(f"ds_read_b128 {breg(i)}, v{vL16 if o < WZ else 5} offset:{o % WZ} @@wb{i}")
    VA = X.get('va', 8); BA = X.get('ba', 12)
    for ks in range(VA): vl(ks)
    bar(p, "B10")
    for i in range(BA): bl(i)
    for i in range(120):
        ks, et = i // 5, i % 5
        a = vr(HRES+4*et, 4)
        p(f"@wait vm=v{ks} lg=wb{i}")
        p(f"{MF16} {a}, {breg(i)}, {vr(64+4*ks,4)}, {a}")
        if i + BA == 60: bar(p, "B11")
        bl(i+BA)
        if et == 0: vl(ks+VA)
    for et in range(5):
        a = HRES+4*et; o = 36+2*et
        p(f"v_cvt_pk_bf16_f32 v{o}, v{a}, v{a+1}\nv_cvt_pk_bf16_f32 v{o+1}, v{a+2}, v{a+3}")
        p(f"buffer_store_dwordx2 {vr(o,2)}, v6, {sr(SOUT,4)}, s86 offen offset:{32*et} {['', 'sc1', 'nt', 'sc0 sc1'][X.get('osc', 0)]}")

def thr(p, n=None):
    n = X.get('xthr', 4) if n is None else n
    if n: p(f"s_waitcnt vmcnt({n})")
def LIN(p, tag, which, part=(0, 15), th=None):
    if part[0] == 0:
        if tag == 'wz': p(f"s_mul_i32 s{sB0}, s{sJ3}, 61440\ns_add_u32 s{sB0}, s{sB0}, {WS_WI + (48*20480 if which == 0 else 0)}\ns_lshr_b32 s{sB2}, s{sL}, 4\ns_lshl_b32 s{sB2}, s{sB2}, 13")
        else: p(f"s_mul_i32 s{sB0}, s{sJ4}, 122880\ns_add_u32 s{sB0}, s{sB0}, {WS_WO + which*61440}\ns_lshl_b32 s{sB2}, s{sRG4}, 12")
        p(f"s_mul_i32 s{sB1}, s{sWAVE}, 15360\ns_add_u32 s{sB0}, s{sB0}, s{sB1}")
        if which: p(f"s_add_u32 s{sB1}, s{sB1}, {WZ}")
    for i in range(*part):
        p(f"s_add_u32 m0, s{sB1}, s{sB2}\ns_add_u32 s{sB3}, s{sB0}, s{sB2}\nbuffer_load_dwordx4 v{vL16}, {sr(SW,4)}, s{sB3} offen sc1 lds @@{tag}{which}")
        thr(p, th)
        if i < 14: p(f"s_add_u32 s{sB2}, s{sB2}, 1024\ns_cmp_eq_u32 s{sB2}, 15360\ns_cselect_b32 s{sB2}, 0, s{sB2}")
vWSS, vWSR = 12, 14
def ws_tile(p, slot):
    p(f"s_add_u32 s{sB0}, s{sWAVE}, {slot}\ns_and_b32 s{sB0}, s{sB0}, 3\ns_lshr_b32 s{sB1}, s{sB0}, 1\ns_add_u32 s{sB1}, s{sB1}, s{sRB4}\ns_lshl_b32 s{sB1}, s{sB1}, 5")
    p(f"s_and_b32 s{sB0}, s{sB0}, 1\ns_add_u32 s{sB0}, s{sB0}, s{sB1}\ns_lshl_b32 s{sB0}, s{sB0}, 12\ns_lshl_b32 s{sB1}, s{sWAVE}, 10\ns_add_u32 s{sB0}, s{sB0}, s{sB1}")
    p(f"s_mov_b32 s{sB2}, s{sRG4}")
def ws_piece(p, pc, sbase, off, tag):
    p(f"s_add_u32 s{sB3}, s{sB2}, {pc}\ns_and_b32 s{sB3}, s{sB3}, 7\ns_lshl_b32 s{sB3}, s{sB3}, 7\ns_add_u32 s{sB3}, s{sB3}, s{sB0}")
    for hf in range(2): p(f"s_add_u32 m0, s{sbase}, {off+hf*1024}\nbuffer_load_dwordx4 v{vWSS+hf}, {sr(SWS,4)}, s{sB3} offen lds @@{tag}"); thr(p)
def xchunk_dma(p, slot, base, wst):
    p(f"s_mul_i32 s{t}, s{sWAVE}, {wst}\ns_add_u32 s{t}, s{t}, {base}")
    ws_tile(p, slot)
    for i in range(5): ws_piece(p, KC//2 + i, t, i*2048, f"xc{slot}")
def xchunk_read(p, slot, base, wst):
    p(f"s_mul_i32 s{t}, s{sWAVE}, {wst}\ns_add_u32 s{t}, s{t}, {base}\nv_add_u32 v8, s{t}, v{vWSR}\nv_add_u32 v9, s{t}, v{vWSR+1}\n@wait vm=xc{slot}")
    for k in range(10): p(f"ds_read_b128 {WXr(slot,k)}, v{8+(k&1)} offset:{2048*(k>>1)} @@xr{slot}")
def colsum(p, z1):
    with cond(p, f"s_cmp_eq_u32 s{sWAVE}, 3"):
        p(f"s_mul_i32 s{t}, s{sWAVE}, 20480\ns_add_u32 s{t}, s{t}, {WZ if z1 else 0}\nv_add_u32 v8, s{t}, v{vL16}")
        for r in range(4): p(f"v_mov_b32 v{88+r}, 0x3f803f80")
        for hb in range(2):
            for k in range(10): p(f"ds_read_b128 {vr(16+4*k,4)}, v8 offset:{(hb*10+k)*1024}")
            for k in range(10):
                p(f"s_waitcnt lgkmcnt({9-k})")
                p(f"{MF16} v[92:95], {vr(16+4*k,4)}, v[88:91], {'v[92:95]' if (k or hb) else 0}")
        p(f"s_lshl_b32 s{t}, s{sWAVE}, 6\ns_add_u32 s{t}, s{t}, {CST + (192 if z1 else 0)}\nv_add_u32 v8, s{t}, v{vLANE}")
        p("s_mov_b32 exec_lo, 0x00010001\ns_mov_b32 exec_hi, 0x00010001\nds_write_b128 v8, v[92:95]\ns_mov_b64 exec, -1\ns_waitcnt lgkmcnt(0)")
def touch_h(p, dst):
    a, b = 10, 11
    p(f"s_and_b32 s{t}, s{sL}, 15\ns_lshl_b32 s{t}, s{t}, 2\ns_add_u32 s{t}, s{t}, s{sWAVE}\ns_mul_i32 s{t}, s{t}, 2560\ns_sub_u32 s{t+1}, s{sRB3}, s{sWAVE}\ns_mul_i32 s{t+1}, s{t+1}, 40960\ns_add_u32 s{t}, s{t}, s{t+1}\ns_add_u32 s{t}, s{t}, {WS_H}")
    p(f"s_lshl_b32 s{t+1}, s{sRB3}, 12\ns_lshl_b32 s{t+2}, s{sJ3}, 8\ns_add_u32 s{t+1}, s{t+1}, s{t+2}\ns_add_u32 s{t+1}, s{t+1}, {WS_ZS-20*128}")
    p(f"s_lshl_b32 s{t+2}, s{sRB3}, 10\ns_add_u32 s{t+2}, s{t+2}, {WS_HS-22*128}")
    p(f"v_mov_b32 v{a}, s{t}\nv_mov_b32 v{b}, s{t+1}\nv_cmp_lt_u32 vcc, 19, v{vLANE}\nv_cndmask_b32 v{a}, v{a}, v{b}, vcc\nv_mov_b32 v{b}, s{t+2}\nv_cmp_lt_u32 vcc, 21, v{vLANE}\nv_cndmask_b32 v{a}, v{a}, v{b}, vcc")
    p(f"v_lshl_add_u32 v{a}, v{vLANE}, 7, v{a}\ns_mov_b64 exec, 0x3fffffff\nbuffer_load_dword v{dst}, v{a}, {sr(SW,4)}, 0 offen\ns_mov_b64 exec, -1")
def code_touch(p, dst):
    if not X.get('ct', 1): return
    with only_wave(p, 0):
        p(f"s_lshl_b32 s{t}, s{sL}, 7\nv_lshlrev_b32 v10, 12, v{vLANE}\ns_mov_b64 exec, 0xffff\nbuffer_load_dword v{dst}, v10, {sr(SX,4)}, s{t} offen\ns_mov_b64 exec, -1")

def xprog(p):
    sPHI, sPL, sRLa, sRLb = 87, 86, 84, 85
    p(f"s_mov_b32 s{SX}, s{ST}\ns_mov_b32 s{SX+1}, s{ST+1}".replace("s_mov_b32", "s_mov_b32") if False else "")
    if X.get('xst'): p(f"v_mov_b32 v{vSTMP}, 0")
    p(f"s_mov_b64 s[94:95], {sr(ST,2)}")
    p(f"s_mul_i32 s{sPL}, s{sWAVE}, {P2S_W}\ns_add_u32 s{sPL}, s{sPL}, {P2S}")
    swz_src(p, 6, 1280, 10, both=False)
    p(f"s_or_b32 s{t+1}, s{sQ}, s{sWAVE}\ns_cmp_eq_u32 s{t+1}, 0\ns_cselect_b32 s{t+1}, {320*1280}, 0")
    p(f"v_cmp_gt_u32 vcc, 8, v{vLANE}\nv_mov_b32 v10, s{t+1}\nv_cndmask_b32 v7, 0, v10, vcc")
    p(f"s_and_b32 s{t}, s{sWAVE}, 1\ns_mul_i32 s{sB0}, s{sQ}, {80*1280}\ns_mul_i32 s{t+1}, s{t}, {40*1280}\ns_add_u32 s{sB0}, s{sB0}, s{t+1}")
    p(f"s_mul_i32 s{sB1}, s{sWAVE}, {5*5120}\ns_add_u32 s{sB1}, s{sB1}, {P1_B}")
    p(f"s_and_b32 s{sB2}, s{sRG}, 7\ns_cmp_ge_u32 s{sB2}, 5\ns_cselect_b32 s{t+1}, 5, 0\ns_sub_u32 s{sB2}, s{sB2}, s{t+1}")
    p("s_waitcnt lgkmcnt(0)")
    xstamp(p, 0)
    p(f"s_load_dword s{sEP}, {sr(SW,2)}, 0\ns_getreg_b32 s{sU}, hwreg(HW_REG_XCC_ID, 0, 4)")
    p(f"s_mov_b64 {sr(SX,2)}, s[94:95]\ns_mov_b32 s{SX+2}, CODE_BYTES")
    p(f"s_cmp_ge_u32 s{sWAVE}, 2\ns_cselect_b32 s{ST}, s{SSD}, s{SCD}\ns_cselect_b32 s{ST+1}, s{SSD+1}, s{SCD+1}\ns_mov_b32 s{ST+2}, 819200")
    if X.get('tlb'):
        sh = X['tlb']
        with only_wave(p, X.get('tlbw', 3)):
            p(f"v_lshlrev_b32 v9, {sh+5}, v{vLANE}\ns_lshl_b32 s{t}, s{sL}, {sh}")
            for srd in (SW, SWS, SCS, SSS, SWI, SWO, SOUT):
                p(f"buffer_load_dword v189, v9, {sr(srd,4)}, s{t} offen")
    for i in range(5):
        p(f"s_add_u32 s{t}, s{sB2}, s{sWAVE}\ns_and_b32 s{t}, s{t}, 1\ns_lshl_b32 s{t}, s{t}, 6\nv_xor_b32 v8, s{t}, v6")
        p(f"s_cmp_eq_u32 s{sB2}, 0\ns_cselect_b32 s{t}, -1, 0\nv_and_b32 v5, s{t}, v7\nv_add_u32 v8, v8, v5")
        p(f"s_mul_i32 s{t+1}, s{sB2}, 5120\ns_lshl_b32 s{t+2}, s{t+1}, 1\ns_add_u32 s{t+1}, s{t+1}, s{sB1}\ns_add_u32 s{t+2}, s{t+2}, s{sB0}")
        for pc in range(5): p(f"s_add_u32 m0, s{t+1}, {pc*1024-pc*128}\nbuffer_load_dwordx4 v8, {sr(ST,4)}, s{t+2} offen offset:{pc*128} lds @@b{i}")
        if i < 4: p(f"s_add_u32 s{sB2}, s{sB2}, 1\ns_cmp_eq_u32 s{sB2}, 5\ns_cselect_b32 s{sB2}, 0, s{sB2}")
        if i == 0:
            p(f"s_lshl_b32 s{sPHI}, s{sQ}, 6\ns_add_u32 s{sPHI}, s{sPHI}, s{sRG}")
            p(f"s_lshl_b32 s{t}, s{sPHI}, 2\ns_add_u32 s{t}, s{t}, s{sWAVE}\ns_mul_i32 s{t+1}, s{t}, 3277\ns_lshr_b32 s{t+1}, s{t+1}, 16\ns_mul_i32 s{t+2}, s{t+1}, 20\ns_sub_u32 s{t+2}, s{t}, s{t+2}")
            p(f"s_mul_i32 s{sRLa}, s{t+1}, 40\ns_add_u32 s{sRLa}, s{sRLa}, s{t+2}\ns_lshl_b32 s{sRLa}, s{sRLa}, 10\ns_add_u32 s{sRLa}, s{sRLa}, {WS_WI}")
            p(f"s_lshl_b32 s{t+3}, s{t+2}, 5\ns_sub_u32 s{t+4}, 960, s{t+3}\ns_cmp_ge_u32 s{t+2}, 10\ns_cselect_b32 s{t+3}, s{t+4}, s{t+3}\ns_cselect_b32 s{t+4}, -1, 1")
            p(f"v_lshrrev_b32 v10, 2, v{vLANE}\nv_mul_lo_u32 v11, v10, s{t+4}\nv_add_u32 v11, s{t+3}, v11\ns_lshl_b32 s{t+4}, s{t+4}, 4\nv_add_u32 v12, s{t+4}, v11")
            p(f"v_cmp_eq_u32 vcc, 640, v11\nv_mov_b32 v13, 320\nv_cndmask_b32 v11, v11, v13, vcc")
            p(f"v_and_b32 v13, 3, v{vLANE}\nv_lshlrev_b32 v13, 4, v13\ns_lshl_b32 s{t+1}, s{t+1}, 6\ns_movk_i32 s{t+5}, 3072")
            p(f"v_mad_u32_u24 v20, v11, s{t+5}, v13\nv_mad_u32_u24 v21, v12, s{t+5}, v13\nv_add_u32 v20, s{t+1}, v20\nv_add_u32 v21, s{t+1}, v21")
            p(f"s_lshl_b32 s{t}, s{sPHI}, 1\ns_and_b32 s{t+1}, s{sWAVE}, 1\ns_add_u32 s{t}, s{t}, s{t+1}\ns_mul_i32 s{t+1}, s{t}, 2731\ns_lshr_b32 s{t+1}, s{t+1}, 16\ns_mul_i32 s{t+2}, s{t+1}, 24\ns_sub_u32 s{t+2}, s{t}, s{t+2}")
            for c_, d in ((0, sRLb), (1, 83)):
                p(f"s_lshl_b32 s{t+3}, s{t+1}, 1\ns_add_u32 s{t+3}, s{t+3}, {c_}\ns_mul_i32 s{t+4}, s{t+3}, 52\ns_lshr_b32 s{t+4}, s{t+4}, 8\ns_mul_i32 s{t+4}, s{t+4}, 115\ns_add_u32 s{t+3}, s{t+3}, s{t+4}")
                p(f"s_mul_i32 s{t+4}, s{t+2}, 5\ns_add_u32 s{t+3}, s{t+3}, s{t+4}\ns_lshl_b32 s{d}, s{t+3}, 10\ns_add_u32 s{d}, s{d}, {WS_WO}")
            p(f"s_mul_i32 s{t+2}, s{t+2}, {32*1280}\ns_lshl_b32 s{t+1}, s{t+1}, 6\ns_add_u32 s{t+2}, s{t+2}, s{t+1}\nv_mul_u32_u24 v22, 1280, v10\nv_add3_u32 v22, v22, v13, s{t+2}\nv_add_u32 v23, {16*1280}, v22")
            p(f"s_cmp_ge_u32 s{sPHI}, 240\ns_cselect_b32 s{t}, 0x40000000, 0\ns_cmp_lt_u32 s{sWAVE}, 2\ns_cselect_b32 s{t+1}, 0x40000000, s{t}")
            p(f"s_add_u32 s{sRLa}, s{sRLa}, s{t}\ns_add_u32 s{sRLb}, s{sRLb}, s{t+1}\ns_add_u32 s83, s83, s{t+1}")
            for k in range(2): p(f"s_add_u32 m0, s{sPL}, {1024*k}\nbuffer_load_dwordx4 v{20+k}, {sr(SWI,4)}, s{t} offen lds @@rl")
            for k in range(2): p(f"s_add_u32 m0, s{sPL}, {2048+1024*k}\nbuffer_load_dwordx4 v{22+k}, {sr(SWO,4)}, s{t+1} offen lds @@rl")
    xstamp(p, 20)
    p("s_waitcnt lgkmcnt(0)"); epoch_fix(p)
    with only_wave(p, 3):
        p(f"s_lshl_b32 s{t}, s{sC}, 5\ns_add_u32 s{t}, s{t}, s{sL}\ns_lshl_b32 s{t}, s{t}, 2\ns_add_u32 s{t}, s{t}, {FL_X}\ns_add_u32 s{sU}, s{sU}, s{sEP}")
        p(f"v_mov_b32 v10, s{sU}\nv_mov_b32 v11, 0\ns_mov_b64 exec, 1\nbuffer_store_dword v10, v11, {sr(SW,4)}, s{t} offen sc1\ns_mov_b64 exec, -1")
    p(f"v_lshrrev_b32 v10, 4, v{vLANE}\nv_bfe_u32 v11, v{vLANE}, 2, 2\nv_lshl_add_u32 v24, v10, 3, v11\nv_lshl_add_u32 v25, v10, 2, v11\nv_and_b32 v10, 3, v{vLANE}\nv_lshlrev_b32 v10, 3, v10\nv_add_u32 v10, s{sPL}, v10")
    p(f"v_lshl_add_u32 v24, v24, 6, v10\nv_lshl_add_u32 v25, v25, 6, v10\n@wait vm=rl")
    for c_ in range(2):
        for h in range(2):
            p(f"ds_read_b64_tr_b16 {vr(32+4*c_+2*h,2)}, v24 offset:{256*h+32*c_}\nds_read_b64_tr_b16 {vr(40+4*c_+2*h,2)}, v25 offset:{2048+1024*h+32*c_}")
    p("s_waitcnt lgkmcnt(0)")
    p(f"s_add_u32 s{t}, s{sRLa}, 20480\ns_mov_b32 s{t+1}, s83")
    p(f"buffer_store_dwordx4 v[32:35], v{vL16}, {sr(SW,4)}, s{sRLa} offen sc1\nbuffer_store_dwordx4 v[36:39], v{vL16}, {sr(SW,4)}, s{t} offen sc1")
    p(f"buffer_store_dwordx4 v[40:43], v{vL16}, {sr(SW,4)}, s{sRLb} offen sc1\nbuffer_store_dwordx4 v[44:47], v{vL16}, {sr(SW,4)}, s{t+1} offen sc1 @@rls")
    p("@wait vm=b4"); bar(p, "B1")
    swz_src(p, 26, 8192, 10)
    p(f"s_add_u32 s{t+3}, s{sI2}, s{sQ2}\ns_and_b32 s{t+3}, s{t+3}, 3\ns_lshl_b32 s{t+4}, s{t+3}, 3\nv_add_u32 v28, s{t+4}, v{vLANE}\nv_and_b32 v28, 31, v28\nv_lshlrev_b32 v28, 4, v28")
    p(f"s_lshl_b32 s{t}, s{sI2}, 5\ns_add_u32 s92, s{t}, 32\ns_add_u32 s{t}, s{t}, s{sP2}\ns_lshl_b32 s{t}, s{t}, 12\ns_lshl_b32 s92, s92, 12")
    p(f"s_and_b32 s{t+2}, s{sWAVE}, 1\ns_lshl_b32 s{t+2}, s{t+2}, 9\ns_add_u32 s{t}, s{t}, s{t+2}\ns_add_u32 s92, s92, s{t+2}")
    for pc in range(4): p(f"s_add_u32 s{t+4}, s{t+3}, {pc}\ns_and_b32 s{t+4}, s{t+4}, 3\ns_lshl_b32 s{t+4}, s{t+4}, 7\ns_add_u32 s{88+pc}, s{t+4}, s{t}")
    p(f"s_mul_i32 s93, s{sWAVE}, {P1_XR}")
    p(f"s_cmp_ge_u32 s{sWAVE}, 2\ns_cselect_b32 s{ST}, s{SSS}, s{SCS}\ns_cselect_b32 s{ST+1}, s{SSS+1}, s{SCS+1}\ns_mov_b32 s{ST+2}, 8388608")
    for pc in range(4):
        for hf in range(2):
            dst = f"s{sPL}, {pc*2048+hf*1024}" if pc < 2 else f"s93, {5120+(pc-2)*2048+hf*1024}"
            p(f"s_add_u32 m0, {dst}\nbuffer_load_dwordx4 v{26+hf}, {sr(ST,4)}, s{88+pc} offen lds")
    p(f"s_add_u32 m0, s{sPL}, 4096\ns_mov_b32 exec_hi, 0\nbuffer_load_dwordx4 v28, {sr(ST,4)}, s92 offen lds @@p2p\ns_mov_b32 exec_hi, -1")
    touch_h(p, 4); code_touch(p, 4)
    swz_src(p, vWSS, 8192, 10); swz_rd(p, vWSR, 10); map4(p)
    p("@wait vm=rls"); bar(p, "B2")
    p("@wait vm=p2p"); bar(p, "B2b")
    nX = X.get('nx', 2)
    XB_ = [(WZ, 10240), (WZ+40960, 10240)]
    for s_ in range(nX): xchunk_dma(p, s_, *XB_[s_])
    for s_ in range(nX): xchunk_read(p, s_, *XB_[s_])
    p("s_waitcnt lgkmcnt(0)"); bar(p, "B3")
    bar(p, "B4")
    LIN(p, 'wz', 0, th=X.get('thz0', 0))
    p("@wait vm=wz0"); bar(p, "B5")
    colsum(p, 0)
    def adma(us):
        last = -1
        for u in us:
            if u // 3 != last: ws_tile(p, u // 3); last = u // 3
            b, off = unit_loc(u)
            ws_piece(p, u % 3, 88+b, off, "wa")
    unit_bases(p, 88)
    if X.get('xs5'): p(f"s_sleep {X['xs5']}")
    n1 = X.get('wz1a', 15)
    LIN(p, 'wz', 1, (0, n1), th=X.get('thz1', 2)); code_touch(p, 4)
    bar(p, "B5b")
    LIN(p, 'wz', 1, (n1, 15), th=0)
    early = [7, 8, 9, 10]
    adma(early)
    p("@wait vm=wz1"); bar(p, "B6")
    for s_ in range(nX, 4):
        xchunk_dma(p, s_, 0, 14336)
        if s_ == nX: adma([11]); colsum(p, 1)
        xchunk_read(p, s_, 0, 14336); p(f"@wait lg=xr{s_}")
        if s_ == nX: bar(p, "B7")
    if nX == 4: adma([11]); colsum(p, 1); bar(p, "B7")
    adma(range(7))
    z2_offsets(p, KC, 16-KC); mb_waddr(p, 1); code_touch(p, 8)
    if X.get('ztouch'):
        p(f"v_lshlrev_b32 v9, 16, v{vLANE}\ns_mov_b64 exec, 0x3f\nbuffer_load_dword v8, v9, {sr(SW,4)}, s80 offen sc1\ns_mov_b64 exec, -1")
    p("s_waitcnt vmcnt(0)"); bar(p, "B8")
    with only_wave(p, 0):
        p(f"s_lshl_b32 s{sU}, s{sJ4}, 5"); poll(p, FL_F3, 32)
    bar(p, "B9")
    P4(p, 1)
    map5(p, t+4, sJ4, sRG4)
    LIN(p, 'wo', 0, th=X.get('wothr', 0)); LIN(p, 'wo', 1, (0, 6), th=X.get('wothr', 0))
    p("@wait vm=wo0"); bar(p, "B10")
    LIN(p, 'wo', 1, (6, 15), th=X.get('wothr', 0))
    p("s_waitcnt vmcnt(0)"); bar(p, "B11")
    if X.get('wb') == 1:
        with only_wave(p, 0): p("buffer_wbl2 sc1\ns_waitcnt vmcnt(0)")
    if X.get('wb') == 2:
        with cond(p, f"s_or_b32 s{t}, s{sWAVE}, s{sL}\ns_cmp_lg_u32 s{t}, 0"): p("buffer_wbl2 sc1\ns_waitcnt vmcnt(0)")
    if X.get('xst'):
        p(f"s_lshl_b32 s{t}, s{sL}, 3\ns_add_u32 s{t}, s{t}, s{sC}\ns_lshl_b32 s{t}, s{t}, 2\ns_add_u32 s{t}, s{t}, s{sWAVE}\ns_lshl_b32 s{t+1}, s{t}, 8\ns_add_u32 s{t+1}, s{t+1}, {WS_STAMP+0x40000}\nv_lshlrev_b32 v10, 2, v{vLANE}")
        p(f"buffer_store_dword v{vSTMP}, v10, {sr(SW,4)}, s{t+1} offen")

def cprog(p):
    P1(p)
    n0 = len(p.lines); P2_xload(p)
    p(f"s_lshl_b32 s{sU}, s{sQ}, 6\ns_add_u32 s{sU}, s{sU}, s{sRG}\ns_waitcnt vmcnt(6)"); bar(p, "B2")
    stamp(p, 2)
    with only_wave(p, 0): flag_store(p, FL_F1, False)
    bar(p, "B2b")
    P2_prep(p)
    stamp(p, 3)
    a, b = p.label("xp"), p.label("xpd")
    p(f"s_lshl_b32 s{t}, s{sC}, 7\ns_add_u32 s{t}, s{t}, {FL_X}\nv_and_b32 v11, 31, v{vLANE}\nv_lshlrev_b32 v11, 2, v11\ns_mov_b32 s{sSPIN}, 0x100000")
    p(f"{a}:\nbuffer_load_dword v10, v11, {sr(SW,4)}, s{t} offen sc1\ns_waitcnt vmcnt(0)\nv_subrev_u32 v10, s{sEP}, v10\nv_cmp_lt_u32 vcc, 15, v10")
    p(f"s_cbranch_vccz {b}\ns_sub_u32 s{sSPIN}, s{sSPIN}, 1\ns_cbranch_scc0 {a}\n{b}:")
    p(f"v_readfirstlane_b32 s{t}, v10\nv_cmp_ne_u32 vcc, s{t}, v10\ns_cmp_eq_u64 vcc, 0\ns_cselect_b32 s{sFAST}, 1, 0")
    if X.get('slow'): p(f"s_mov_b32 s{sFAST}, 0")
    with only_wave(p, 1):
        p(f"s_lshl_b32 s{sU}, s{sQ2}, 6"); poll(p, FL_F1, 64)
    with only_wave(p, 2):
        p(f"s_mul_i32 s{sU}, s{sJ3}, 3\ns_add_u32 s{sU}, s{sU}, 48\ns_lshr_b32 s{sU}, s{sU}, 1\ns_mul_i32 s{sU}, s{sU}, 5"); poll(p, FL_F1, 10)
    stamp(p, 4)
    p("s_waitcnt lgkmcnt(0)"); bar(p, "B3")
    stamp(p, 5)
    P2_main(p)
    stamp(p, 6)
    p("s_waitcnt vmcnt(0)"); bar(p, "B5")
    with only_wave(p, 0):
        p(f"s_lshl_b32 s{sU}, s{sC}, 5\ns_add_u32 s{sU}, s{sU}, s{sL}"); flag_store(p, FL_F2, True)
    P3_prep(p)
    stamp(p, 7)
    p(f"s_sub_u32 s{t}, 63, s{sRB3}\ns_min_u32 s{sU}, s{t}, s{sRB3}\ns_lshl_b32 s{sU}, s{sU}, 3"); poll(p, FL_F2, 8)
    stamp(p, 8)
    P3_loads(p); P3_pass(p, 0)
    bar(p, "B5b")
    stamp(p, 9)
    P3_z2a(p)
    p(f"s_lshl_b32 s{sU}, s{sRB3}, 4\ns_add_u32 s{sU}, s{sU}, s{sJ3}\n@wait vm=zs"); flag_store(p, FL_FS, True)
    bar(p, "B6")
    stamp(p, 10)
    K1 = X.get('k1', 6)
    P3_pass(p, 1, 0, K1)
    p(f"s_lshl_b32 s{sU}, s{sRB3}, 4"); poll(p, FL_FS, 16)
    stamp(p, 11)
    P3_z2b(p)
    p("@wait vm=z2s")
    if X.get('rer'):
        for nt in range(3): p(f"buffer_load_dwordx4 v[4:7], v{vL16}, {sr(SW,4)}, s{[85,92,93][nt]} offen sc1")
    bar(p, "B7")
    with only_wave(p, 0):
        p(f"s_lshr_b32 s{sU}, s{sJ3}, 1\ns_lshl_b32 s{sU}, s{sU}, 5\ns_lshr_b32 s{t}, s{sRB3}, 2\ns_lshl_b32 s{t}, s{t}, 1\ns_add_u32 s{sU}, s{sU}, s{t}\ns_and_b32 s{t}, s{sJ3}, 1\ns_add_u32 s{sU}, s{sU}, s{t}")
        if X.get('z2m', 0) >= 3: p("buffer_wbl2 sc1\ns_waitcnt vmcnt(0)")
        flag_store(p, FL_F3, False)
    stamp(p, 12)
    P3_pass(p, 1, K1, 20)
    hload(p); map4(p); P3_z1e(p)
    stamp(p, 13)
    bar(p, "B8")
    stamp(p, 14)
    P4_prepC(p)
    stamp(p, 15)
    p(f"s_lshl_b32 s{sU}, s{sRB3}, 4\ns_add_u32 s{sU}, s{sU}, s{sJ3}\n@wait vm=z1s"); flag_store(p, FL_F3B, not X.get('m84', 1))
    p("s_waitcnt lgkmcnt(0)"); bar(p, "B9")
    stamp(p, 16)
    P4(p, 0)
    stamp(p, 17)
    p(f"s_lshl_b32 s{sU}, s{sTT}, 3\ns_add_u32 s{sU}, s{sU}, s{sJ4}\n@wait vm=vs"); flag_store(p, FL_F4, not X.get('m84', 1))
    P5_prep(p)
    p(f"s_lshl_b32 s{sU}, s{sT5}, 3"); poll(p, FL_F4, 8)
    stamp(p, 18)
    P5_main(p)
    stamp(p, 19)
    with cond(p, f"s_or_b32 s{t}, s{sC}, s{sWAVE}\ns_or_b32 s{t}, s{t}, s{sL}\ns_cmp_lg_u32 s{t}, 0"):
        p(f"v_mov_b32 v10, s{sEP}\nv_mov_b32 v11, 0\ns_mov_b64 exec, 1\nbuffer_store_dword v10, v11, {sr(SW,4)}, 0 offen\ns_mov_b64 exec, -1")
    if X.get('stamp'):
        p("s_waitcnt vmcnt(0)")
        stamp(p, 24)
        p(f"s_lshl_b32 s{t}, s{sL}, 3\ns_add_u32 s{t}, s{t}, s{sC}\ns_lshl_b32 s{t}, s{t}, 2\ns_add_u32 s{t}, s{t}, s{sWAVE}\ns_lshl_b32 s{t+1}, s{t}, 8\ns_add_u32 s{t+1}, s{t+1}, {WS_STAMP}\nv_lshlrev_b32 v10, 2, v{vLANE}")
        p(f"buffer_store_dword v{vSTMP}, v10, {sr(SW,4)}, s{t+1} offen")
        if X.get('dbg'):
            lab = p.label("dbg")
            order = [0, 20, 21, 22, 1, 2, 3, 4, 5, 23, 6, 7, 8, 9, 10, 11, 12, 13, 14, 15, 16, 17, 18, 19, 24]
            idx = [i for i in order if (X['stamp'] >> i) & 1 or i in (0, 24)][:16]
            p(f"s_cmp_lg_u32 s{t}, {X['dbg']-1}\ns_cbranch_scc1 {lab}\ns_mov_b32 s{ST}, s2\ns_mov_b32 s{ST+1}, s3\ns_mov_b32 s{ST+2}, 256\nv_readlane_b32 s{t+2}, v{vSTMP}, 31\nv_mov_b32 v11, 0")
            for n_, i in enumerate(idx):
                p(f"v_readlane_b32 s{t+3}, v{vSTMP}, {i}\ns_nop 1\ns_sub_u32 s{t+3}, s{t+3}, s{t+2}\nv_writelane_b32 v11, s{t+3}, {n_}")
            p(f"buffer_store_dword v11, v10, {sr(ST,4)}, 0 offen\n{lab}:")

def build():
    kn = NAME + "_kernel"
    p = Prog(); prologue(p, kn); cprog(p); p("END:\ns_endpgm")
    q = Prog(); q.nlabel = 5000; q.isx = True; q("XPROG:\ns_nop 4"); xprog(q); q("s_endpgm\nCODE_END:\n.set CODE_BYTES, CODE_END - " + kn + " - 128")
    assert NBAR[id(p)] == NBAR[id(q)], (NBAR[id(p)], NBAR[id(q)])
    return ("; @launch grid=(256,1,1) block=(512,1,1) lds=163840\n" + '.amdgcn_target "amdgcn-amd-amdhsa--gfx950"\n.text\n' + p.finish() + q.finish() +
f""".section .rodata,"a"
.p2align 6
.amdhsa_kernel {kn}
  .amdhsa_next_free_vgpr 256
  .amdhsa_next_free_sgpr 102
  .amdhsa_accum_offset 192
  .amdhsa_group_segment_fixed_size 0
  .amdhsa_kernarg_size 104
  .amdhsa_user_sgpr_count 2
  .amdhsa_user_sgpr_kernarg_segment_ptr 1
  .amdhsa_system_sgpr_workgroup_id_x 1
.end_amdhsa_kernel
""")
if __name__ == "__main__":
    for a in sys.argv[2:]:
        k, v = a.split("="); X[k] = int(v)
    open(sys.argv[1], "w").write(build())
```

```python
import sys, struct
from asmlib import Prog, vr, ar, sr
NAME = "sequential_preLN__spectral_fnet__mixer_gmlp__prompt"
X = {}
def fhex(x): return hex(struct.unpack("<I", struct.pack("<f", x))[0])
FL_F1, FL_F2, FL_FS, FL_F3, FL_F3B, FL_F4, FL_X = 0x1000, 0x2000, 0x3000, 0x5000, 0x6000, 0x7000, 0x8000
WS_AB, WS_XB, WS_H, WS_HS, WS_Z2, WS_Z1, WS_ZS = 0x010000, 0x158000, 0x180000, 0x400000, 0x480000, 0x800000, 0xB00000
WS_V = WS_Z1
FL_BIG = {FL_F1: 0x160000, FL_F3: 0x168000}
WS_WI, WS_WO, WS_STAMP, WS_SIZE = 0xC00000, 0xE00000, 0xF00000, 0x1000000
SX, SCS, SSS, SCD, SSD, SWI, SWS, SBS, SWO, SOUT, SW, ST = 4, 8, 12, 16, 20, 24, 28, 32, 36, 40, 44, 48
sWAVE, sC, sL, sMASKHI = 52, 53, 54, 55
sI2, sP2, sQ2 = 56, 57, 58
sRB3, sJ3 = 59, 60
sRB4, sJ4, sRG4, sTT = 61, 62, 63, 64
sB0, sB1, sB2, sB3 = 65, 66, 67, 68
sRG, sQ, sG = 69, 70, 71
t = 72
sEP, sFAST, sSPIN, sU = 96, 97, 98, 99
SRDS = [(SX, 0, 2621440), (SW, 96, WS_SIZE), (SWI, 48, 1966080), (SWS, 56, 8388608), (SBS, 64, 4096), (SWO, 72, 983040), (SOUT, 80, 2621440)]
vLANE, vL16, vSTMP = 1, 2, 0
vWSS, vWSX, vWSR = 30, 12, 14
P1_XR = 10272; P1_B = 41216; P1_XA = P1_B + 102400; P1_T = P1_XA + 640
P2S = 145408; P2S_W = 4608
WZ = 61440; SCR = 122880; SCR_W = 9216; TBL = SCR + 4*SCR_W; CST = TBL + 1024; CNT = P1_T + 96
XBUF = [f"s_mul_i32 s{t}, s{sWAVE}, 10240\ns_add_u32 s{t}, s{t}, {WZ+256}",
        f"s_mul_i32 s{t}, s{sWAVE}, 10240\ns_cmp_lt_u32 s{sWAVE}, 2\ns_cselect_b32 s{t+1}, {102656-(41216-20480)}, 0\ns_add_u32 s{t}, s{t}, s{t+1}\ns_add_u32 s{t}, s{t}, {41216-20480}"]
FULL = "row_mask:0xf bank_mask:0xf"
MF16 = "v_mfma_f32_16x16x32_bf16"
LOG2E = 1.4426950408889634
GK0, GK1 = -LOG2E*1.5957691216057308, -LOG2E*0.07135481282

def stamp(p, i):
    if not X.get('stamp'): return
    if X['stamp'] > 1 and not (X['stamp'] >> i) & 1 and i not in (0, 24): return
    p(f"s_memrealtime s[100:101]\ns_waitcnt lgkmcnt(0)\nv_writelane_b32 v{vSTMP}, s100, {i}")
    if i in (0, 24): p(f"s_memtime s[100:101]\ns_waitcnt lgkmcnt(0)\nv_writelane_b32 v{vSTMP}, s100, {32+i}")
def xstamp(p, i):
    if not X.get('xst'): return
    p(f"s_memrealtime s[100:101]\ns_waitcnt lgkmcnt(0)\nv_writelane_b32 v{vSTMP}, s100, {i}")
def G(*lines):
    out = []
    for l in lines: out += [x.strip() for x in l.split("\n") if x.strip()]
    return out
def emit(p, gs):
    for g in gs: p("\n".join(g))
def swz_src(p, vdst, row_bytes, tmp, both=True):
    p(f"v_lshrrev_b32 v{tmp}, 3, v{vLANE}\nv_mul_u32_u24 v{vdst}, {row_bytes}, v{tmp}")
    p(f"v_lshrrev_b32 v{tmp}, 4, v{vLANE}\nv_and_b32 v{tmp+1}, 7, v{vLANE}\nv_xor_b32 v{tmp}, v{tmp}, v{tmp+1}\nv_lshl_add_u32 v{vdst}, v{tmp}, 4, v{vdst}")
    if both: p(f"v_xor_b32 v{vdst+1}, 64, v{vdst}\nv_add_u32 v{vdst+1}, {8*row_bytes}, v{vdst+1}")
def swz_rd(p, vdst, tmp, halfstride=1024):
    p(f"v_and_b32 v{tmp}, 15, v{vLANE}")
    if halfstride == 1024: p(f"v_lshlrev_b32 v{vdst}, 7, v{tmp}")
    else: p(f"v_bfe_u32 v{tmp+1}, v{vLANE}, 3, 1\nv_mul_u32_u24 v{tmp+1}, {halfstride-1024}, v{tmp+1}\nv_lshl_add_u32 v{vdst}, v{tmp}, 7, v{tmp+1}")
    p(f"v_lshrrev_b32 v{tmp}, 1, v{tmp}\nv_lshrrev_b32 v{tmp+1}, 4, v{vLANE}\nv_xor_b32 v{tmp}, v{tmp}, v{tmp+1}")
    p(f"v_lshl_add_u32 v{vdst}, v{tmp}, 4, v{vdst}\nv_xor_b32 v{vdst+1}, 64, v{vdst}")
NBAR = {}
def bar(p, name):
    L = NBAR.setdefault(id(p), []); L.append(name)
    if getattr(p, 'isx', False): xstamp(p, len(L))
    p("s_barrier")
def flag_store(p, base, local):
    p(f"s_lshl_b32 s{t}, s{sU}, 2\ns_add_u32 s{t}, s{t}, {base}\nv_mov_b32 v10, s{sEP}\nv_mov_b32 v11, 0\ns_mov_b64 exec, 1")
    if local:
        a, b = p.label("fs_slow"), p.label("fs_done")
        p(f"s_cmp_eq_u32 s{sFAST}, 0\ns_cbranch_scc1 {a}\n@cond_begin")
        p(f"buffer_store_dword v10, v11, {sr(SW,4)}, s{t} offen\ns_branch {b}")
        p(f"{a}:\nbuffer_wbl2 sc1\ns_waitcnt vmcnt(0)\nbuffer_store_dword v10, v11, {sr(SW,4)}, s{t} offen sc1\n{b}:\n@cond_end")
    else:
        p(f"buffer_store_dword v10, v11, {sr(SW,4)}, s{t} offen sc1")
    p("s_mov_b64 exec, -1")
def gflag_store(p, base):
    m = X.get('fm', 0)
    if m == 0: return flag_store(p, base, False)
    if m == 1:
        p(f"s_lshl_b32 s{t}, s{sU}, 7\ns_add_u32 s{t}, s{t}, {FL_BIG[base]}\nv_mov_b32 v10, s{sEP}\nv_mov_b32 v11, 0\ns_mov_b64 exec, 1\nbuffer_store_dword v10, v11, {sr(SW,4)}, s{t} offen sc1\ns_mov_b64 exec, -1")
    if m == 2:
        p(f"s_lshl_b32 s{t}, s{sU}, 2\ns_add_u32 s{t}, s{t}, {FL_BIG[base]}\nv_mov_b32 v10, s{sEP}\nv_lshlrev_b32 v11, 10, v{vLANE}\ns_mov_b64 exec, 0xff\nbuffer_store_dword v10, v11, {sr(SW,4)}, s{t} offen sc1\ns_mov_b64 exec, -1")
def gpoll(p, base, n):
    m = X.get('fm', 0)
    if m == 0: return poll(p, base, n)
    if m == 1: return poll(p, FL_BIG[base], n, sh=7)
    if m == 2:
        p(f"s_lshl_b32 s{t}, s{sC}, 8\ns_add_u32 s{sU}, s{sU}, s{t}"); return poll(p, FL_BIG[base], n)
def poll(p, base, n, sh=2):
    a, b = p.label("poll"), p.label("polled")
    p(f"s_lshl_b32 s{t}, s{sU}, {sh}\ns_add_u32 s{t}, s{t}, {base}\nv_min_u32 v11, {n-1}, v{vLANE}\nv_lshlrev_b32 v11, {sh}, v11\ns_mov_b32 s{sSPIN}, 0x100000")
    p(f"{a}:\nbuffer_load_dword v10, v11, {sr(SW,4)}, s{t} offen sc1\ns_waitcnt vmcnt(0)\nv_cmp_ne_u32 vcc, s{sEP}, v10")
    p(f"s_cbranch_vccz {b}\n" + (f"s_sleep {X['psl']}\n" if X.get('psl') else "") + f"s_sub_u32 s{sSPIN}, s{sSPIN}, 1\ns_cbranch_scc0 {a}\n{b}:")
class cond:
    def __init__(self, p, test): self.p = p; self.test = test
    def __enter__(self):
        self.lab = self.p.label("skip"); self.p(f"{self.test}\ns_cbranch_scc1 {self.lab}\n@cond_begin")
    def __exit__(self, *a): self.p(f"@cond_end\n{self.lab}:")
def only_wave(p, w): return cond(p, f"s_cmp_lg_u32 s{sWAVE}, {w}")
def epoch_fix(p): p(f"s_mul_i32 s{sEP}, s{sEP}, 0x2C9277B5\ns_add_u32 s{sEP}, s{sEP}, 0xAC564B05")

def map4(p):
    if not X.get('m84', 0):
        map5(p, sTT, sJ4, sRG4)
        p(f"s_sub_u32 s{sRB4}, s{sTT}, s{sWAVE}\ns_lshr_b32 s{sRB4}, s{sRB4}, 1\ns_lshl_b32 s{sRG4}, s{sRG4}, 1\ns_add_u32 s{sRG4}, s{sRG4}, s{sJ4}")
        return
    p(f"s_and_b32 s{t}, s{sC}, 6\ns_lshr_b32 s{t+1}, s{sL}, 4\ns_add_u32 s{t}, s{t}, s{t+1}\ns_lshl_b32 s{t}, s{t}, 2\ns_sub_u32 s{t+1}, 60, s{t}")
    p(f"s_bitcmp1_b32 s{sL}, 3\ns_cselect_b32 s{sRB4}, s{t+1}, s{t}\ns_bfe_u32 s{t}, s{sL}, 0x10002\ns_lshl_b32 s{t}, s{t}, 1\ns_add_u32 s{sRB4}, s{sRB4}, s{t}")
    p(f"s_and_b32 s{t}, s{sL}, 3\ns_and_b32 s{sJ4}, s{sC}, 1\ns_lshl_b32 s{sJ4}, s{sJ4}, 2\ns_add_u32 s{sJ4}, s{sJ4}, s{t}")
    p(f"s_lshl_b32 s{t}, s{t}, 1\ns_lshr_b32 s{sRG4}, s{sL}, 2\ns_add_u32 s{sRG4}, s{sRG4}, s{t}")
    p(f"s_lshl_b32 s{sTT}, s{sRB4}, 1\ns_add_u32 s{sTT}, s{sTT}, s{sWAVE}")
def map5(p, tt, j, rg):
    p(f"s_sub_u32 s{tt}, s{sRB3}, s{sWAVE}\ns_lshr_b32 s{rg}, s{sL}, 3\ns_and_b32 s{j}, s{rg}, 1\ns_lshl_b32 s{j}, s{j}, 1\ns_add_u32 s{tt}, s{tt}, s{j}")
    p(f"s_lshl_b32 s{tt}, s{tt}, 1\ns_add_u32 s{tt}, s{tt}, s{sWAVE}\ns_and_b32 s{j}, s{sL}, 7")
def prologue(p, kname):
    p(f".globl {kname}\n.p2align 8\n.type {kname},@function\n{kname}:")
    p(f"s_cmp_ge_u32 s2, 256\ns_cbranch_scc1 END")
    for (s, off, size) in SRDS: p(f"s_load_dwordx2 {sr(s,2)}, s[0:1], {off}")
    p(f"s_getpc_b64 {sr(ST,2)}\ns_mov_b32 s{ST+2}, CODE_BYTES\ns_mov_b32 s{ST+3}, 0x20000\ns_lshr_b32 s{sL}, s2, 3\ns_lshl_b32 s{t}, s{sL}, 7")
    p(f"v_xor_b32 v3, 0x100, v0\nv_lshlrev_b32 v3, 12, v3\ns_mov_b64 exec, 0xffff\nbuffer_load_dword v190, v3, {sr(ST,4)}, s{t} offen\ns_mov_b64 exec, -1")
    p(f"v_lshrrev_b32 v3, 6, v0\nv_and_b32 v{vLANE}, 63, v0\nv_readfirstlane_b32 s3, v3")
    for (s, off, size) in SRDS: p(f"s_mov_b32 s{s+2}, {size}\ns_mov_b32 s{s+3}, 0x20000")
    p(f"v_lshlrev_b32 v{vL16}, 4, v{vLANE}\ns_and_b32 s{sC}, s2, 7\ns_mov_b32 s{sMASKHI}, 0xffff0000\ns_and_b32 s{sWAVE}, s3, 3")
    p(f"s_lshl_b32 s{sI2}, s{sC}, 2\ns_lshr_b32 s{t}, s{sL}, 3\ns_add_u32 s{sI2}, s{sI2}, s{t}")
    p(f"s_bfe_u32 s{sP2}, s{sL}, 0x10002\ns_and_b32 s{sQ2}, s{sL}, 3")
    p(f"s_lshl_b32 s{t}, s{sC}, 2\ns_sub_u32 s{t+1}, 60, s{t}\ns_cmp_ge_u32 s{sL}, 16\ns_cselect_b32 s{sRB3}, s{t+1}, s{t}")
    p(f"s_add_u32 s{sRB3}, s{sRB3}, s{sWAVE}\ns_and_b32 s{sJ3}, s{sL}, 15")
    p(f"s_lshr_b32 s{sRG}, s{sL}, 2\ns_lshl_b32 s{t}, s{sC}, 3\ns_add_u32 s{sRG}, s{sRG}, s{t}\ns_and_b32 s{sQ}, s{sL}, 3")
    p(f"s_cmp_ge_u32 s3, 4\ns_cbranch_scc1 XPROG")

A_MF, A_MX = 0, 32
def P1(p):
    st = "sc1"
    sG0M, sJ0M, sJ31M, sXR = 80, 82, 84, 86
    if X.get('stamp'): p(f"v_mov_b32 v{vSTMP}, 0")
    if X.get('dbg'): p(f"s_load_dwordx2 s[2:3], s[0:1], 88\ns_memrealtime s[100:101]\ns_waitcnt lgkmcnt(0)\nv_writelane_b32 v{vSTMP}, s100, 31")
    p(f"s_lshl_b32 s{sG}, s{sRG}, 3\ns_lshl_b32 s{t}, s{sWAVE}, 1\ns_add_u32 s{sG}, s{sG}, s{t}")
    p(f"v_lshlrev_b32 v4, 2, v{vLANE}\ns_mul_i32 s{sXR}, s{sWAVE}, {P1_XR}")
    p(f"s_mul_i32 s88, s{sG}, 1280\ns_add_u32 s92, s88, 1280")
    for gb in range(2):
        b = 88+4*gb
        p(f"s_sub_u32 s{b+1}, {2048*1280}, s{b}\ns_sub_u32 s{b+2}, {1024*1280}, s{b}\ns_add_u32 s{b+3}, {1024*1280}, s{b}")
    p(f"s_cmp_eq_u32 s{sG}, 0\ns_cselect_b32 s89, {512*1280}, s89\ns_cselect_b32 s91, {1536*1280}, s91\ns_cselect_b32 s{sG0M}, -1, 0\ns_mov_b32 s{sG0M+1}, 0")
    p("s_waitcnt lgkmcnt(0)")
    stamp(p, 0)
    for k in range(8):
        p(f"s_add_u32 m0, s{sXR}, {k*1280}")
        p(f"buffer_load_dwordx4 v{vL16}, {sr(SX,4)}, s{88+k} offen lds")
        p(f"buffer_load_dword v4, {sr(SX,4)}, s{88+k} offen offset:1024 lds @@x")
    p(f"s_load_dword s{sEP}, {sr(SW,2)}, 0\nv_mov_b32 v5, {CNT}\nv_mov_b32 v6, 0\nds_write_b32 v5, v6")
    map4(p); swz_src(p, vWSS, 8192, 10)
    bulk = p.capture(lambda q: [xchunk_dma(q, c_, XBUF[c_]) for c_ in range(X.get('nc', 2))])
    cut = [i for i, l in enumerate(bulk) if l.startswith("buffer_load")]
    cut = cut[min(len(cut), X.get('cb0', 4))-1]+1 if (X.get('cb0', 4) and cut) else 0
    p("\n".join(bulk[:cut])); p(f"s_mov_b32 s87, s{t}"); bulk = [f"s_mov_b32 s{t}, s87"] + bulk[cut:]
    vJ, vD, vM, vFJ0, vAW, vTW = 9, 12, 16, 20, 21, 25
    p(f"v_and_b32 v{vJ}, 31, v{vLANE}")
    p(f"v_cmp_eq_u32 {sr(sJ0M,2)}, 0, v{vJ}\nv_cmp_eq_u32 {sr(sJ31M,2)}, 31, v{vJ}")
    p(f"v_lshrrev_b32 v10, 5, v{vLANE}\nv_mul_u32_u24 v11, 5120, v10\nv_add_u32 v11, s{sXR}, v11\nv_mul_u32_u24 v{vJ}, 20, v{vJ}")
    p(f"v_add_u32 v{vD}, v11, v{vJ}\nv_sub_u32 v{vM}, v11, v{vJ}\nv_add_u32 v{vM}, 1260, v{vM}")
    for kk in range(1, 4): p(f"v_add_u32 v{vD+kk}, {1280*kk}, v{vD}\nv_add_u32 v{vM+kk}, {1280*kk}, v{vM}")
    p(f"v_cndmask_b32 v{vFJ0}, 0, 1.0, {sr(sJ0M,2)}")
    p(f"v_mul_u32_u24 v11, 640, v10\nv_add3_u32 v{vAW}, v11, v{vJ}, s{sXR}")
    for cmb in range(1, 4): p(f"v_add_u32 v{vAW+cmb}, {1280*cmb}, v{vAW}")
    p(f"s_lshl_b32 s{t}, s{sWAVE}, 3\ns_add_u32 s{t}, s{t}, {P1_T}\nv_lshl_add_u32 v{vTW}, v10, 2, s{t}")
    p(f"s_mov_b32 s93, {fhex(1/640)}\ns_mov_b32 s94, {fhex(1/1280)}\ns_mov_b32 s95, {fhex(1e-5)}\ns_waitcnt lgkmcnt(0)")
    epoch_fix(p)
    if X.get('gs', 1) == 2: gen_seq(p)
    p("@wait vm=x")
    stamp(p, 20)
    RAW = 64
    for kk in range(4):
        r = RAW + 12*kk
        p(f"ds_read2_b32 {vr(r,2)}, v{vD+kk} offset0:0 offset1:1")
        p(f"ds_read2_b32 {vr(r+10,2)}, v{vM+kk} offset0:4 offset1:5")
        p(f"ds_read2_b32 {vr(r+8,2)}, v{vM+kk} offset0:2 offset1:3")
        p(f"ds_read2_b32 {vr(r+2,2)}, v{vD+kk} offset0:2 offset1:3")
        p(f"ds_read2_b32 {vr(r+6,2)}, v{vM+kk} offset0:0 offset1:1")
        p(f"ds_read_b32 v{r+4}, v{vD+kk} offset:16 @@xr{kk}")
    T, CA = 112, 152
    S2 = [48, 50, 52, 54]; Q2 = [56, 58, 60, 62]; Y = [26, 27, 28, 29]
    for kk in range(4):
        r = RAW + 12*kk
        p(f"@wait lg=xr{kk}")
        for k in range(5):
            a, b = 4, 6
            p(f"v_lshlrev_b32 v{a}, 16, v{r+k}\nv_and_b32 v{a+1}, s{sMASKHI}, v{r+k}")
            p(f"v_lshlrev_b32 v{b}, 16, v{r+6+5-k}\nv_and_b32 v{b+1}, s{sMASKHI}, v{r+6+4-k}")
            if k == 0: p(f"v_cndmask_b32 v{b}, v{b}, 0, {sr(sJ0M,2)}")
            tt, cc = T+10*kk+2*k, CA+10*kk+2*k
            p(f"v_pk_add_f32 {vr(tt,2)}, {vr(a,2)}, {vr(b,2)}")
            p(f"v_pk_add_f32 {vr(cc,2)}, {vr(a,2)}, {vr(b,2)} neg_lo:[0,1] neg_hi:[0,1]")
            if k == 0: p(f"v_pk_mul_f32 {vr(Q2[kk],2)}, {vr(tt,2)}, {vr(tt,2)}")
            else:
                p(f"v_pk_add_f32 {vr(S2[kk],2)}, {vr(tt,2)}, {vr(S2[kk] if k > 1 else tt-2,2)}")
                p(f"v_pk_fma_f32 {vr(Q2[kk],2)}, {vr(tt,2)}, {vr(tt,2)}, {vr(Q2[kk],2)}")
            p(f"v_pk_fma_f32 {vr(Q2[kk],2)}, {vr(cc,2)}, {vr(cc,2)}, {vr(Q2[kk],2)}")
        p(f"v_lshlrev_b32 v{Y[kk]}, 16, v{r+6}\nv_cndmask_b32 v{Y[kk]}, 0, v{Y[kk]}, {sr(sJ31M,2)}")
        p(f"v_add_f32 v{S2[kk]}, v{S2[kk]}, v{S2[kk]+1}\nv_add_f32 v{Q2[kk]}, v{Q2[kk]}, v{Q2[kk]+1}")
        p(f"v_add_f32 v{S2[kk]}, v{S2[kk]}, v{Y[kk]}\nv_add_f32 v4, v{Y[kk]}, v{Y[kk]}\nv_fmac_f32 v{Q2[kk]}, v4, v{Y[kk]}")
    red = S2 + Q2
    for mod in ("quad_perm:[1,0,3,2]", "quad_perm:[2,3,0,1]", "row_half_mirror", "row_mirror"):
        for x in red: p(f"v_add_f32_dpp v{x}, v{x}, v{x} {mod} {FULL}")
    for x in red: p(f"v_mov_b32 v{x+1}, v{x}")
    for x in red: p(f"v_permlane16_swap_b32 v{x}, v{x+1}")
    for x in red: p(f"v_add_f32 v{x}, v{x}, v{x+1}")
    M = lambda k: S2[k]
    R = lambda k: Q2[k]
    for k in range(4): p(f"v_mul_f32 v{M(k)}, s93, v{M(k)}")
    for k in range(4): p(f"v_mul_f32 v{M(k)+1}, v{M(k)}, v{M(k)}")
    for k in range(4): p(f"v_fma_f32 v{R(k)}, v{R(k)}, s94, -v{M(k)+1}")
    for k in range(4): p(f"v_add_f32 v{R(k)}, s95, v{R(k)}")
    for k in range(4): p(f"v_rsq_f32 v{R(k)}, v{R(k)}")
    for k in range(4): p(f"v_fmac_f32 v{T+10*k}, v{vFJ0}, v{M(k)}")
    for k in range(4): p(f"v_sub_f32 v{Y[k]}, v{Y[k]}, v{M(k)}")
    OUT = 64; A1, A3, B0, B2, B1, K1, K2 = 72, 74, 76, 78, 80, 82, 84; U, W, e = 86, 90, 94
    g0 = sr(sG0M, 2)
    p(f"v_cndmask_b32 v{A1}, v{R(1)}, 0, {g0}\nv_cndmask_b32 v{A3}, v{R(3)}, 0, {g0}")
    p(f"v_cndmask_b32 v{B0}, v{R(0)}, 0, {g0}\nv_cndmask_b32 v{B2}, v{R(2)}, 0, {g0}")
    p(f"v_cndmask_b32 v{B1}, -v{R(1)}, v{R(1)}, {g0}")
    p(f"v_mul_f32 v{K1}, v{R(0)}, v{M(0)}\nv_mul_f32 v{K2}, v{R(2)}, v{M(2)}")
    p(f"v_fmac_f32 v{K1}, v{A1}, v{M(1)}\nv_fmac_f32 v{K2}, v{A3}, v{M(3)}")
    p(f"v_mul_f32 v{K1}, -2.0, v{K1}\nv_mul_f32 v{K2}, -2.0, v{K2}")
    bc = "op_sel_hi:[0,1,0]"; bc1 = "op_sel_hi:[0,1,1]"
    for k in range(5):
        tt = lambda r_: vr(T+10*r_+2*k, 2)
        cc = lambda r_: vr(CA+10*r_+2*k, 2)
        u, w = U, U+2; u2, w2 = W, W+2
        p(f"v_pk_fma_f32 {vr(u,2)}, {vr(R(0),2)}, {tt(0)}, {vr(K1,2)} {bc}")
        p(f"v_pk_fma_f32 {vr(w,2)}, {vr(R(2),2)}, {tt(2)}, {vr(K2,2)} {bc}")
        p(f"v_pk_mul_f32 {vr(u2,2)}, {vr(B0,2)}, {cc(0)} op_sel_hi:[0,1]")
        p(f"v_pk_mul_f32 {vr(w2,2)}, {vr(B2,2)}, {cc(2)} op_sel_hi:[0,1]")
        p(f"v_pk_fma_f32 {vr(u,2)}, {vr(A1,2)}, {tt(1)}, {vr(u,2)} {bc1}")
        p(f"v_pk_fma_f32 {vr(w,2)}, {vr(A3,2)}, {tt(3)}, {vr(w,2)} {bc1}")
        p(f"v_pk_fma_f32 {vr(u2,2)}, {vr(B1,2)}, {cc(1)}, {vr(u2,2)} {bc1}")
        p(f"v_pk_fma_f32 {vr(w2,2)}, {vr(R(3),2)}, {cc(3)}, {vr(w2,2)} {bc1} neg_lo:[1,0,0] neg_hi:[1,0,0]")
        p(f"v_pk_add_f32 {vr(e,2)}, {vr(u,2)}, {vr(w,2)}")
        p(f"v_pk_add_f32 {vr(e+2,2)}, {vr(u,2)}, {vr(w,2)} neg_lo:[0,1] neg_hi:[0,1]")
        p(f"v_pk_add_f32 {vr(e+4,2)}, {vr(u2,2)}, {vr(w2,2)} neg_lo:[0,1] neg_hi:[0,1]")
        p(f"v_pk_add_f32 {vr(e+6,2)}, {vr(u2,2)}, {vr(w2,2)}")
        o = lambda cmb, kk_: (OUT+2*cmb+(kk_ & 1)) if kk_ < 4 else 102+cmb
        for cmb in range(4): p(f"v_cvt_pk_bf16_f32 v{o(cmb,k)}, v{e+2*cmb}, v{e+2*cmb+1}")
        if k in (1, 3):
            for cmb in range(4): p(f"ds_write2_b32 v{vAW+cmb}, v{OUT+2*cmb}, v{OUT+2*cmb+1} offset0:{k-1} offset1:{k}")
    for cmb in range(4): p(f"ds_write_b32 v{vAW+cmb}, v{102+cmb} offset:16")
    p(f"v_mul_f32 v{U}, v{R(0)}, v{Y[0]}\nv_mul_f32 v{U+1}, v{R(2)}, v{Y[2]}")
    p(f"v_fmac_f32 v{U}, v{A1}, v{Y[1]}\nv_fmac_f32 v{U+1}, v{A3}, v{Y[3]}")
    p(f"v_add_f32 v{U+2}, v{U}, v{U+1}\nv_sub_f32 v{U+3}, v{U}, v{U+1}")
    p(f"s_mov_b64 exec, {sr(sJ31M,2)}\nds_write2_b32 v{vTW}, v{U+2}, v{U+3} offset0:0 offset1:8\ns_mov_b64 exec, -1")
    with cond(p, f"s_cmp_lg_u32 s{sG}, 0"):
        p(f"v_mul_f32 v{K1}, v{R(1)}, v{M(1)}\nv_fmac_f32 v{K1}, v{R(3)}, v{M(3)}\nv_mul_f32 v{K1}, -2.0, v{K1}")
        for k in range(5):
            p(f"v_pk_fma_f32 {vr(W,2)}, {vr(R(1),2)}, {vr(T+10+2*k,2)}, {vr(K1,2)} {bc}")
            p(f"v_pk_fma_f32 {vr(W,2)}, {vr(R(3),2)}, {vr(T+30+2*k,2)}, {vr(W,2)} {bc1}")
            p(f"v_cvt_pk_bf16_f32 v{106+k}, v{W}, v{W+1}")
        p(f"v_mul_f32 v{W}, v{R(1)}, v{Y[1]}\nv_fmac_f32 v{W}, v{R(3)}, v{Y[3]}")
        p(f"v_add_u32 v11, {P1_XA}, v{vJ}\nv_mov_b32 v10, {P1_T+64}\ns_mov_b64 exec, {g0}")
        p(f"ds_write2_b32 v11, v106, v107 offset0:0 offset1:1\nds_write2_b32 v11, v108, v109 offset0:2 offset1:3\nds_write_b32 v11, v110 offset:16")
        p(f"s_mov_b64 exec, 0x80000000\nds_write_b32 v10, v{W}\ns_mov_b64 exec, -1")
    stamp(p, 21)
    p("s_waitcnt lgkmcnt(0)"); bar(p, "B1")
    stamp(p, 22)
    p("\n".join(bulk))

def recur(p, P, k2, n=2):
    for j in range(2, 8):
        for c in range(n):
            p(f"v_pk_fma_f32 {vr(P[c]+2*j,2)}, {k2}, {vr(P[c]+2*j-2,2)}, {vr(P[c]+2*j-4,2)} neg_lo:[0,0,1] neg_hi:[0,0,1]".replace("£", ""))
def gen_hid(p, vE, dC, dS, T):
    EF, X0, CT, SP, K2 = T+32, T+33, T+34, T+36, T+38
    p(f"v_mul_f32 v{EF}, {fhex(1/640)}, v{vE}\nv_lshrrev_b32 v{X0}, 4, v{vLANE}\nv_lshlrev_b32 v{X0}, 3, v{X0}\nv_cvt_f32_u32 v{X0}, v{X0}\nv_mul_f32 v{X0}, v{X0}, v{EF}")
    p(f"v_cos_f32 v{CT}, v{EF}\nv_sin_f32 v{SP}, v{EF}\nv_sin_f32_e64 v{SP+1}, -v{EF}\nv_add_f32 v{K2}, v{CT}, v{CT}")
    P = [T, T+16]
    for kp in range(5):
        for c in range(2):
            ks = 2*kp + c
            p(f"v_fmamk_f32 v{P[c]+2}, v{EF}, {fhex(32.0*ks)}, v{X0}" if ks else f"v_mov_b32 v{P[c]+2}, v{X0}")
        for c in range(2): p(f"v_cos_f32 v{P[c]}, v{P[c]+2}\nv_sin_f32_e64 v{P[c]+1}, -v{P[c]+2}")
        for c in range(2): p(f"v_pk_mul_f32 {vr(P[c]+2,2)}, {vr(P[c],2)}, {vr(CT,2)} op_sel_hi:[1,0]")
        for c in range(2): p(f"v_pk_fma_f32 {vr(P[c]+2,2)}, {vr(P[c],2)}, {vr(SP,2)}, {vr(P[c]+2,2)} op_sel:[1,0,0] op_sel_hi:[0,1,1]")
        for j in range(2, 8):
            for c in range(2): p(f"v_pk_fma_f32 {vr(P[c]+2*j,2)}, {vr(K2,2)}, {vr(P[c]+2*j-2,2)}, {vr(P[c]+2*j-4,2)} op_sel_hi:[0,1,1] neg_lo:[0,0,1] neg_hi:[0,0,1]")
        for c in range(2):
            for jj in range(4):
                if dC is not None: p(f"v_cvt_pk_bf16_f32 v{dC+4*(2*kp+c)+jj}, v{P[c]+4*jj}, v{P[c]+4*jj+2}")
                if dS is not None: p(f"v_cvt_pk_bf16_f32 v{dS+4*(2*kp+c)+jj}, v{P[c]+4*jj+1}, v{P[c]+4*jj+3}")
def gen_seq(p):
    T = 88; TF, BS, K2, O = T+32, T+34, T+36, T+40
    p(f"s_lshl_b32 s{t}, s{sI2}, 5\ns_add_u32 s{t+1}, s{t}, 32\ns_add_u32 s{t}, s{t}, s{sP2}\nv_and_b32 v{TF}, 15, v{vLANE}\nv_lshl_add_u32 v{TF}, v{TF}, 1, s{t}\nv_cvt_f32_u32 v{TF}, v{TF}\nv_cvt_f32_u32 v{TF+1}, s{t+1}")
    p(f"v_mul_f32 v{TF}, {fhex(1/2048)}, v{TF}\nv_mul_f32 v{TF+1}, {fhex(1/2048)}, v{TF+1}")
    p(f"s_and_b32 s{t}, s{sWAVE}, 1\ns_lshl_b32 s{t}, s{t}, 8\nv_lshrrev_b32 v{O}, 4, v{vLANE}\nv_lshl_add_u32 v{O}, v{O}, 3, s{t}\nv_cvt_f32_u32 v{O}, v{O}")
    p(f"s_cmp_ge_u32 s{sWAVE}, 2\ns_cselect_b32 s{t}, {fhex(0.25)}, 0\nv_fma_f32 v{BS}, v{TF}, v{O}, s{t}\nv_fma_f32 v{BS+1}, v{TF+1}, v{O}, s{t}")
    p(f"v_cos_f32 v{K2}, v{TF}\nv_cos_f32 v{K2+1}, v{TF+1}\ns_add_u32 s{t+1}, s{sI2}, s{sQ2}\ns_lshl_b32 s{t+1}, s{t+1}, 1\nv_pk_add_f32 {vr(K2,2)}, {vr(K2,2)}, {vr(K2,2)}")
    P = [T, T+16]
    for kp in range(4):
        for c in range(2):
            p(f"s_add_u32 s{t}, s{t+1}, {2*kp+c}\ns_and_b32 s{t}, s{t}, 7\ns_lshl_b32 s{t}, s{t}, 5\nv_cvt_f32_u32 v{O}, s{t}\nv_pk_fma_f32 {vr(P[c],2)}, {vr(TF,2)}, {vr(O,2)}, {vr(BS,2)} op_sel_hi:[1,0,1]")
            p(f"v_fract_f32 v{P[c]}, v{P[c]}\nv_fract_f32 v{P[c]+1}, v{P[c]+1}\nv_pk_add_f32 {vr(P[c]+2,2)}, {vr(P[c],2)}, {vr(TF,2)}")
        for c in range(2):
            for r in range(4): p(f"v_cos_f32 v{P[c]+r}, v{P[c]+r}")
        for j in range(2, 8):
            for c in range(2): p(f"v_pk_fma_f32 {vr(P[c]+2*j,2)}, {vr(K2,2)}, {vr(P[c]+2*j-2,2)}, {vr(P[c]+2*j-4,2)} neg_lo:[0,0,1] neg_hi:[0,0,1]")
        for c in range(2):
            for jj in range(4): p(f"v_cvt_pk_bf16_f32 v{O+2+jj}, v{P[c]+4*jj}, v{P[c]+4*jj+2}\nv_cvt_pk_bf16_f32 v{O+6+jj}, v{P[c]+4*jj+1}, v{P[c]+4*jj+3}")
            for jj in range(4): p(f"v_accvgpr_write_b32 a{A_MF+4*(2*kp+c)+jj}, v{O+2+jj}\nv_accvgpr_write_b32 a{A_MX+4*(2*kp+c)+jj}, v{O+6+jj}")
P2_XD, P2_RING, P2_ACC, P2_ACX, P2_XB = 32, 64, 144, 164, 184
vPW, vRA, vRB, vHA, vHB, vSA, vSB, vXBo, vSG2, vSP2 = 16, 17, 18, 19, 20, 21, 22, 23, 24, 26
def P2_xload(p):
    p(f"v_and_b32 v10, 3, v{vLANE}\ns_lshl_b32 s{t+3}, s{sWAVE}, 2\nv_add_u32 v10, s{t+3}, v10\nv_mul_u32_u24 v10, 2560, v10")
    p(f"v_lshrrev_b32 v11, 2, v{vLANE}\nv_lshlrev_b32 v11, 4, v11\ns_mul_i32 s{t+3}, s{sQ2}, 160\nv_add_u32 v11, s{t+3}, v11")
    p(f"v_sub_u32 v28, 1264, v11\nv_add_u32 v29, 16, v28\nv_cmp_eq_u32 vcc, 0, v11\nv_mov_b32 v30, 640\nv_cndmask_b32 v29, v29, v30, vcc")
    p(f"s_lshl_b32 s{t}, s{sI2}, 5\ns_add_u32 s{t+1}, s{t}, s{sP2}\ns_mul_i32 s{t+1}, s{t+1}, 1280")
    p(f"s_sub_u32 s{t}, s{sP2}, s{t}\ns_add_u32 s{t}, s{t}, 2046\ns_mul_i32 s{t}, s{t}, 1280")
    p(f"v_add_u32 v30, s{t+1}, v10\nv_sub_u32 v31, s{t}, v10")
    for sd in range(2):
        r = P2_RING + 12*sd
        p(f"v_add_u32 v10, v{30+sd}, v11\nbuffer_load_dwordx4 {vr(r,4)}, v10, {sr(SX,4)}, 0 offen")
        p(f"v_add_u32 v10, v{30+sd}, v28\nbuffer_load_dwordx4 {vr(r+4,4)}, v10, {sr(SX,4)}, 0 offen")
        p(f"v_add_u32 v10, v{30+sd}, v29\nbuffer_load_dword v{r+8}, v10, {sr(SX,4)}, 0 offen @@xp")
def P2_prepA(p):
    p(f"s_lshr_b32 s{t}, s{sWAVE}, 1\ns_lshl_b32 s{t}, s{t}, 1\ns_add_u32 s{t}, s{t}, s{sP2}\ns_lshl_b32 s{t}, s{t}, 2\ns_add_u32 s{t}, s{t}, s{sQ2}")
    p(f"s_lshl_b32 s{t}, s{t}, 1\ns_and_b32 s{t+1}, s{sWAVE}, 1\ns_add_u32 s{t}, s{t}, s{t+1}\ns_mul_i32 s{t}, s{t}, 40960\ns_add_u32 s{t}, s{t}, {WS_AB}")
    p(f"s_add_u32 s{t+1}, s{sI2}, s{sQ2}\ns_and_b32 s{t+1}, s{t+1}, 3\ns_lshl_b32 s{t+1}, s{t+1}, 1")
    for k in range(8):
        p(f"s_add_u32 s{t+2}, s{t+1}, {k}\ns_and_b32 s{t+2}, s{t+2}, 7\ns_mul_i32 s{t+2}, s{t+2}, 5120\ns_add_u32 s{80+k}, s{t+2}, s{t}")
    p(f"v_add_u32 v3, 4096, v{vL16}")
    p(f"v_lshrrev_b32 v10, 2, v{vLANE}\nv_lshlrev_b32 v{vXBo}, 5, v10\ns_mul_i32 s69, s{sQ2}, 320\ns_mul_i32 s{t+1}, s{sP2}, 1280\ns_add_u32 s69, s69, s{t+1}\ns_add_u32 s69, s69, {WS_XB}")
    p(f"s_mul_i32 s{t+2}, s{sWAVE}, {SCR_W}\ns_add_u32 s{t+2}, s{t+2}, {SCR+256}")
    p(f"v_and_b32 v12, 15, v{vLANE}\nv_mul_u32_u24 v12, 336, v12\nv_lshrrev_b32 v13, 4, v{vLANE}\nv_lshl_add_u32 v12, v13, 4, v12\nv_add_u32 v{vPW}, s{t+2}, v12")
    p(f"v_and_b32 v12, 3, v{vLANE}\ns_lshl_b32 s{t+3}, s{sWAVE}, 2\nv_add_u32 v12, s{t+3}, v12")
    p(f"v_mul_u32_u24 v13, 336, v12\nv_add_u32 v13, {SCR+256}, v13\nv_add_u32 v{vRA}, v13, v{vXBo}")
    p(f"s_cmp_eq_u32 s{sP2}, 0\ns_cselect_b32 s{t+3}, 336, 0\ns_cselect_b32 s{t+4}, 0, 0x80000000\nv_add_u32 v{vRB}, s{t+3}, v{vRA}")
    p(f"v_lshlrev_b32 v13, 8, v10\nv_lshl_add_u32 v{vHA}, v12, 4, v13\nv_sub_u32 v14, 15, v12\nv_lshl_add_u32 v{vHB}, v14, 4, v13")
    p(f"v_lshlrev_b32 v{vSG2}, 31, v{vLANE}\nv_or_b32 v{vSG2}, 1.0, v{vSG2}\nv_xor_b32 v{vSP2}, s{t+4}, v{vSG2}")
    p(f"v_lshlrev_b32 v{vSA}, 3, v12\nv_lshlrev_b32 v{vSB}, 3, v14")
    p(f"s_cmp_eq_u32 s{sQ2}, 0\ns_cselect_b32 s70, 15, 0\ns_mov_b32 s71, 0")
    p(f"s_lshl_b32 s{t}, s{sI2}, 1\ns_add_u32 s{t}, s{t}, s{sP2}\ns_sub_u32 s{t+1}, 126, s{t}\ns_lshl_b32 s{t+3}, s{sP2}, 1\ns_add_u32 s{t+1}, s{t+1}, s{t+3}")
    p(f"s_mul_i32 s{t+3}, s{sQ2}, 2560\ns_add_u32 s{t+3}, s{t+3}, {WS_H}\ns_lshl_b32 s{t+4}, s{sQ2}, 7\ns_add_u32 s{t+4}, s{t+4}, {WS_HS}")
    for (sh, ss, src) in ((88, 92, t), (90, 93, t+1)):
        p(f"s_mul_i32 s{sh}, s{src}, 20480\ns_add_u32 s{sh}, s{sh}, s{t+3}\ns_add_u32 s{sh+1}, s{sh}, 10240")
        p(f"s_lshl_b32 s{ss}, s{src}, 9\ns_add_u32 s{ss}, s{ss}, s{t+4}")
    p(f"v_cmp_gt_u32 vcc, 40, v{vLANE}\nv_mov_b32 v10, 0x40000000\nv_cndmask_b32 v{vHA}, v10, v{vHA}, vcc\nv_cndmask_b32 v{vHB}, v10, v{vHB}, vcc")
def P2_prepB(p):
    p("@wait vm=xp")
    for sd in range(2):
        r = P2_RING + 12*sd; x = P2_XD + 16*sd
        for k in range(4): p(f"v_lshlrev_b32 v{x+2*k}, 16, v{r+k}\nv_and_b32 v{x+2*k+1}, s{sMASKHI}, v{r+k}")
        p(f"v_lshlrev_b32 v{x+8}, 16, v{r+8}")
        for i in range(1, 8):
            wi = 8 - i
            if wi & 1: p(f"v_and_b32 v{x+8+i}, s{sMASKHI}, v{r+4+(wi>>1)}")
            else: p(f"v_lshlrev_b32 v{x+8+i}, 16, v{r+4+(wi>>1)}")
def P2_main(p):
    RING, ACC, ACX = P2_RING, P2_ACC, P2_ACX
    def ld(k):
        for nt in range(5):
            r = RING + ((k & 3)*5 + nt)*4
            p(f"buffer_load_dwordx4 {vr(r,4)}, v{vL16 if nt < 4 else 3}, {sr(SW,4)}, s{80+k} offen offset:{(nt&3)*1024} sc1 @@ab{k}_{nt}")
    for k in range(4): ld(k)
    p(f"buffer_load_dwordx4 {vr(P2_XB,4)}, v{vXBo}, {sr(SW,4)}, s69 offen sc1\nbuffer_load_dwordx4 {vr(P2_XB+4,4)}, v{vXBo}, {sr(SW,4)}, s69 offen offset:16 sc1")
    for k in range(8):
        for nt in range(5):
            r = RING + ((k & 3)*5 + nt)*4
            p(f"@wait vm=ab{k}_{nt}")
            p(f"{MF16} {vr(ACC+4*nt,4)}, {vr(r,4)}, {ar(A_MF+4*k,4)}, {vr(ACC+4*nt,4) if k else 0}")
            p(f"{MF16} {vr(ACX+4*nt,4)}, {vr(r,4)}, {ar(A_MX+4*k,4)}, {vr(ACX+4*nt,4) if k else 0}")
        if k < 4: ld(k+4)
        if k == X.get('b3b', 4): bar(p, "B3b")
    stamp(p, 23)
    for nt in range(5): p(f"ds_write_b128 v{vPW}, {vr(ACC+4*nt,4)} offset:{64*nt}")
    p("s_mov_b32 exec_lo, 0x00010001\ns_mov_b32 exec_hi, 0x00010001")
    for nt in range(5): p(f"ds_write_b128 v{vPW}, {vr(ACX+4*nt,4)} offset:{16*336+64*nt}")
    p("s_mov_b64 exec, -1\ns_waitcnt lgkmcnt(0)"); bar(p, "B4")
    STt = 160; L = P2_RING
    for sd in range(2):
        for hh in range(2):
            for wv in range(4):
                p(f"ds_read_b128 {vr(L+32*sd+8*wv+4*hh,4)}, v{vRA if sd == 0 else vRB} offset:{wv*SCR_W+16*hh} @@pq{sd}{hh}")
    for sd in range(2):
        b = L + 32*sd; x = P2_XD + 16*sd; o = 144 + 8*sd
        su = (vSG2, 0) if sd == 0 else (vSP2, 1)
        sw = (vSP2, 0) if sd == 0 else (vSG2, 1)
        for k in range(4):
            p(f"@wait lg=pq{sd}{k>>1}")
            P0, P1_, Q0, Q1 = b+2*k, b+8+2*k, b+16+2*k, b+24+2*k
            p(f"v_pk_add_f32 {vr(P0,2)}, {vr(P0,2)}, {vr(P1_,2)}\nv_pk_add_f32 {vr(Q0,2)}, {vr(Q0,2)}, {vr(Q1,2)}")
            p(f"v_pk_add_f32 {vr(P1_,2)}, {vr(P0,2)}, {vr(Q0,2)} neg_lo:[0,1] neg_hi:[0,1]")
            p(f"v_pk_add_f32 {vr(Q1,2)}, {vr(P0,2)}, {vr(Q0,2)}")
            for (dst, (sv, ng)) in ((P1_, su), (Q1, sw)):
                p(f"v_pk_fma_f32 {vr(dst,2)}, {vr(sv,2)}, {vr(P2_XB+2*k,2)}, {vr(dst,2)} op_sel_hi:[0,1,1]" + (" neg_lo:[1,0,0] neg_hi:[1,0,0]" if ng else ""))
            lo, hi = (P1_, Q1) if sd == 0 else (Q1, P1_)
            if k == 0: p(f"v_cndmask_b32 v{lo}, v{lo}, 0, s[70:71]")
            p(f"v_pk_add_f32 {vr(x+2*k,2)}, {vr(x+2*k,2)}, {vr(lo,2)}\nv_pk_add_f32 {vr(x+8+2*k,2)}, {vr(x+8+2*k,2)}, {vr(hi,2)}")
            p(f"v_cvt_pk_bf16_f32 v{o+k}, v{x+2*k}, v{x+2*k+1}\nv_cvt_pk_bf16_f32 v{o+4+k}, v{x+8+2*k}, v{x+8+2*k+1}")
        sh = 88 if sd == 0 else 90; vh = vHA if sd == 0 else vHB
        p(f"buffer_store_dwordx4 {vr(o,4)}, v{vh}, {sr(SW,4)}, s{sh} offen")
        p(f"buffer_store_dwordx4 {vr(o+4,4)}, v{vh}, {sr(SW,4)}, s{sh+1} offen")
    for k in range(8):
        for sd in range(2):
            x = P2_XD + 16*sd; s_, q_ = STt+4*sd, STt+4*sd+2
            if k == 0: p(f"v_pk_mul_f32 {vr(q_,2)}, {vr(x,2)}, {vr(x,2)}")
            else: p(f"v_pk_add_f32 {vr(s_,2)}, {vr(s_ if k > 1 else x,2)}, {vr(x+2*k,2)}\nv_pk_fma_f32 {vr(q_,2)}, {vr(x+2*k,2)}, {vr(x+2*k,2)}, {vr(q_,2)}")
    red = [STt, STt+2, STt+4, STt+6]
    p(f"v_cmp_gt_u32 vcc, 40, v{vLANE}")
    for x in red: p(f"v_add_f32 v{x}, v{x}, v{x+1}")
    for x in red: p(f"v_cndmask_b32 v{x}, 0, v{x}, vcc")
    for mod in ("row_ror:4", "row_ror:8"):
        for x in red: p(f"v_add_f32_dpp v{x}, v{x}, v{x} {mod} {FULL}")
    for sw in ("v_permlane16_swap_b32", "v_permlane32_swap_b32"):
        for x in red: p(f"v_mov_b32 v{x+1}, v{x}")
        for x in red: p(f"{sw} v{x}, v{x+1}")
        for x in red: p(f"v_add_f32 v{x}, v{x}, v{x+1}")
    p(f"v_mov_b32 v{STt+1}, v{STt+2}\nv_mov_b32 v{STt+5}, v{STt+6}\ns_mov_b64 exec, 15")
    p(f"buffer_store_dwordx2 {vr(STt,2)}, v{vSA}, {sr(SW,4)}, s92 offen\nbuffer_store_dwordx2 {vr(STt+4,2)}, v{vSB}, {sr(SW,4)}, s93 offen")
    p("s_mov_b64 exec, -1")

P3_AZ2, P3_AZ1, P3_BF = 16, 40, 160
vWB1 = 184; sGK1 = 90; vK0 = 14
def HF(ks, par):
    i = 2*ks + par
    return vr(64+4*i, 4) if i < 24 else ar(4*(i-24), 4)
def P3_prep(p):
    p(f"v_add_u32 v{vWB1}, {WZ}, v{vL16}")
    p(f"s_lshl_b32 s80, s{sRB3}, 10\ns_add_u32 s80, s80, {WS_HS}")
    p(f"s_mul_i32 s81, s{sRB3}, 40960\ns_add_u32 s81, s81, {WS_H}\ns_add_u32 s82, s81, 20480")
    p(f"s_mov_b32 s{sGK1}, {fhex(GK1)}\ns_mov_b32 s{sGK1+1}, {fhex(GK1)}\nv_mov_b32 v{vK0}, {fhex(GK0)}")
    p(f"s_lshl_b32 s83, s{sRB3}, 12\ns_add_u32 s83, s83, {WS_ZS}\ns_lshl_b32 s84, s{sJ3}, 4\ns_add_u32 s84, s84, s83")
    p(f"s_mul_i32 s85, s{sJ3}, 192\ns_add_u32 s85, s85, s{sRB3}\ns_lshl_b32 s85, s85, 10\ns_add_u32 s85, s85, {WS_Z2}\ns_add_u32 s92, s85, 65536\ns_add_u32 s93, s85, 131072")
    p(f"s_lshl_b32 s86, s{sWAVE}, 8\ns_add_u32 s86, s86, {TBL}\ns_mov_b32 s87, {fhex(1e-5)}\ns_mov_b32 s88, {fhex(1/640)}\ns_mov_b32 s89, {fhex(1/768)}")
    p(f"v_lshrrev_b32 v185, 5, v{vLANE}\nv_lshlrev_b32 v185, 6, v185\nv_and_b32 v10, 7, v{vLANE}\nv_lshl_add_u32 v185, v10, 3, v185\nv_add_u32 v185, s86, v185")
    p(f"v_lshrrev_b32 v12, 4, v{vLANE}\nv_lshl_add_u32 v12, v12, 4, s86")
    p(f"v_and_b32 v10, 15, v{vLANE}\nv_lshlrev_b32 v186, 2, v10\nv_add_u32 v186, {CST}, v186")
    p(f"v_lshrrev_b32 v187, 2, v{vLANE}\nv_lshlrev_b32 v187, 8, v187\nv_and_b32 v10, 3, v{vLANE}\nv_lshl_add_u32 v13, v10, 4, v187")
def gelu4(p, x, tmp):
    for step in range(6):
        for h in range(2):
            xx = x+2*h; a = tmp+4*h; b = a+2
            if step == 0: p(f"v_pk_mul_f32 {vr(a,2)}, {vr(xx,2)}, {vr(xx,2)}")
            if step == 1: p(f"v_pk_fma_f32 {vr(a,2)}, {vr(a,2)}, {sr(sGK1,2)}, {vr(vK0,2)} op_sel_hi:[1,1,0]")
            if step == 2: p(f"v_pk_mul_f32 {vr(a,2)}, {vr(a,2)}, {vr(xx,2)}")
            if step == 3: p(f"v_exp_f32 v{b}, v{a}\nv_exp_f32 v{b+1}, v{a+1}")
            if step == 4: p(f"v_pk_add_f32 {vr(b,2)}, {vr(b,2)}, 1.0 op_sel_hi:[1,0]")
            if step == 5: p(f"v_rcp_f32 v{a}, v{b}\nv_rcp_f32 v{a+1}, v{b+1}")
    for h in range(2): p(f"v_pk_mul_f32 {vr(x+2*h,2)}, {vr(x+2*h,2)}, {vr(tmp+4*h,2)}")
def hfrag(p, ks):
    if ks >= 20: return
    for par in range(2):
        p(f"buffer_load_dwordx4 {HF(ks,par)}, v{vL16}, {sr(SW,4)}, s{81+par} offen offset:{(ks&3)*1024} sc1 @@h{ks}")
    if (ks & 3) == 3 and ks < 19: p(f"s_add_u32 s81, s81, 4096\ns_add_u32 s82, s82, 4096")
def P3_pass(p, z1, k0=0, k1=20):
    acc = P3_AZ1 if z1 else P3_AZ2
    HA = X.get('ha', 6)
    seq = [(ks, nt) for ks in range(k0, k1) for nt in range(3)]
    def rd(i):
        if i < len(seq):
            ks, nt = seq[i]
            p(f"ds_read_b128 {vr(P3_BF+4*(i%6),4)}, v{vWB1 if z1 else vL16} offset:{nt*20480+ks*1024} @@wf{z1}_{ks}_{nt}")
    for i in range(5): rd(i)
    for i, (ks, nt) in enumerate(seq):
        p(f"@wait lg=wf{z1}_{ks}_{nt}" + (f" vm=h{ks}" if not z1 else ""))
        bf = vr(P3_BF+4*(i%6), 4)
        for par in range(2):
            a = vr(acc + (par*3+nt)*4, 4); c = a if ks else 0
            p(f"{MF16} {a}, {bf}, {HF(ks,par)}, {c}" if z1 else f"{MF16} {a}, {HF(ks,par)}, {bf}, {c}")
        rd(i+5)
        if not z1 and nt == 0: hfrag(p, ks+HA)
        if not z1 and (ks, nt) == (X.get('ln1k', 3), 2): P3_ln1(p)
        if not z1 and (ks, nt) == (X.get('b5a', 10), 2): bar(p, "B5a")
def P3_loads(p):
    for ks in range(X.get('ha', 6)):
        hfrag(p, ks)
        if ks == 1: p(f"buffer_load_dwordx4 v[4:7], v{vL16}, {sr(SW,4)}, s80 offen sc1 @@hs")
def P3_ln1(p):
    p("@wait vm=hs")
    for x in range(4, 8): p(f"v_add_f32_dpp v{x}, v{x}, v{x} row_ror:8 {FULL}")
    for x in range(4): p(f"v_mov_b32 v{8+x}, v{4+x}")
    for x in range(4): p(f"v_permlane16_swap_b32 v{4+x}, v{8+x}")
    for x in range(4): p(f"v_add_f32 v{4+x}, v{4+x}, v{8+x}")
    p(f"v_mul_f32 v8, s88, v4\nv_mul_f32 v9, s88, v6\nv_mul_f32 v4, v8, v8\nv_mul_f32 v6, v9, v9")
    p(f"v_fma_f32 v5, v5, s88, -v4\nv_fma_f32 v7, v7, s88, -v6\nv_add_f32 v5, s87, v5\nv_add_f32 v7, s87, v7")
    p(f"v_rsq_f32 v10, v5\nv_rsq_f32 v11, v7\nv_sub_f32 v8, 0, v8\nv_sub_f32 v9, 0, v9")
    p(f"ds_write_b64 v185, v[8:9]\nds_write_b64 v185, v[10:11] offset:128")
def P3_z2a(p):
    B = P3_BF; NM, RR, TMP = B, B+8, B+16
    CSr = [4, 6, 8]
    for nt in range(3): p(f"ds_read_b32 v{CSr[nt]}, v186 offset:{64*nt}")
    for par in range(2):
        p(f"ds_read_b128 {vr(NM+4*par,4)}, v12 offset:{64*par}\nds_read_b128 {vr(RR+4*par,4)}, v12 offset:{128+64*par} @@nr{par}")
    for par in range(2):
        p(f"@wait lg=nr{par}")
        for nt in range(3):
            a = P3_AZ2 + (par*3+nt)*4
            for h in range(2): p(f"v_pk_fma_f32 {vr(a+2*h,2)}, {vr(NM+4*par+2*h,2)}, {vr(CSr[nt],2)}, {vr(a+2*h,2)} op_sel_hi:[1,0,1]")
            for h in range(2): p(f"v_pk_mul_f32 {vr(a+2*h,2)}, {vr(a+2*h,2)}, {vr(RR+4*par+2*h,2)}")
            gelu4(p, a, TMP)
    for par in range(2):
        for h in range(2):
            a = lambda nt: vr(P3_AZ2 + (par*3+nt)*4 + 2*h, 2)
            S_, Q_ = vr(NM+4*par+2*h, 2), vr(RR+4*par+2*h, 2)
            p(f"v_pk_add_f32 {S_}, {a(0)}, {a(1)}\nv_pk_mul_f32 {Q_}, {a(0)}, {a(0)}")
            p(f"v_pk_add_f32 {S_}, {S_}, {a(2)}\nv_pk_fma_f32 {Q_}, {a(1)}, {a(1)}, {Q_}\nv_pk_fma_f32 {Q_}, {a(2)}, {a(2)}, {Q_}")
    for base in (NM, RR):
        for r in range(4): p(f"v_add_f32_dpp v{base+r}, v{base+r}, v{base+r} row_ror:8 {FULL}")
    for base in (NM, RR):
        for r in range(4): p(f"v_add_f32_dpp v{base+r}, v{base+4+r}, v{base+4+r} row_ror:8 row_mask:0xf bank_mask:0xc")
    for i, (base, r) in enumerate(((NM, 0), (RR, 0), (NM, 1), (RR, 1))):
        p(f"v_add_f32_dpp v{TMP+i}, v{base+r}, v{base+r} row_half_mirror {FULL}")
    for i, (base, r) in enumerate(((NM, 2), (RR, 2), (NM, 3), (RR, 3))):
        p(f"v_add_f32_dpp v{TMP+i}, v{base+r}, v{base+r} row_half_mirror row_mask:0xf bank_mask:0xa")
    for mod in ("quad_perm:[1,0,3,2]", "quad_perm:[2,3,0,1]"):
        for i in range(4): p(f"v_add_f32_dpp v{TMP+i}, v{TMP+i}, v{TMP+i} {mod} {FULL}")
    p("s_mov_b32 exec_lo, 0x11111111\ns_mov_b32 exec_hi, 0x11111111")
    p(f"buffer_store_dwordx4 {vr(TMP,4)}, v187, {sr(SW,4)}, s84 offen @@zs\ns_mov_b64 exec, -1")
def P3_z2b(p):
    B = P3_BF
    for i in range(4): p(f"buffer_load_dwordx4 {vr(B+4*i,4)}, v13, {sr(SW,4)}, s83 offen offset:{64*i} sc1 @@zl")
    p("@wait vm=zl")
    for h in range(2):
        p(f"v_pk_add_f32 {vr(B+2*h,2)}, {vr(B+2*h,2)}, {vr(B+4+2*h,2)}\nv_pk_add_f32 {vr(B+8+2*h,2)}, {vr(B+8+2*h,2)}, {vr(B+12+2*h,2)}")
    for h in range(2): p(f"v_pk_add_f32 {vr(B+2*h,2)}, {vr(B+2*h,2)}, {vr(B+8+2*h,2)}")
    for mod in ("quad_perm:[1,0,3,2]", "quad_perm:[2,3,0,1]"):
        for i in range(4): p(f"v_add_f32_dpp v{B+i}, v{B+i}, v{B+i} {mod} {FULL}")
    p(f"v_mul_f32 v{B}, s89, v{B}\nv_mul_f32 v{B+2}, s89, v{B+2}\nv_mul_f32 v{B+4}, v{B}, v{B}\nv_mul_f32 v{B+5}, v{B+2}, v{B+2}")
    p(f"v_fma_f32 v{B+1}, v{B+1}, s89, -v{B+4}\nv_fma_f32 v{B+3}, v{B+3}, s89, -v{B+5}\nv_add_f32 v{B+1}, s87, v{B+1}\nv_add_f32 v{B+3}, s87, v{B+3}")
    p(f"v_rsq_f32 v{B+1}, v{B+1}\nv_rsq_f32 v{B+3}, v{B+3}")
    p(f"v_mul_f32 v{B}, -v{B}, v{B+1}\nv_mul_f32 v{B+2}, -v{B+2}, v{B+3}")
    NM, RR = B+8, B+16
    for bk in range(4):
        for i in range(2):
            p(f"v_mov_b32_dpp v{NM+2*bk+i}, v{B+2*i} row_newbcast:{4*bk} {FULL}")
            p(f"v_mov_b32_dpp v{RR+2*bk+i}, v{B+2*i+1} row_newbcast:{4*bk} {FULL}")
    for nt in range(3):
        for par in range(2):
            a = P3_AZ2 + (par*3+nt)*4
            for h in range(2): p(f"v_pk_fma_f32 {vr(a+2*h,2)}, {vr(a+2*h,2)}, {vr(RR+4*par+2*h,2)}, {vr(NM+4*par+2*h,2)}")
        o = [B, B+4, 4][nt]
        for r in range(4): p(f"v_cvt_pk_bf16_f32 v{o+r}, v{P3_AZ2+nt*4+r}, v{P3_AZ2+(3+nt)*4+r}")
        p(f"buffer_store_dwordx4 {vr(o,4)}, v{vL16}, {sr(SW,4)}, s{[85,92,93][nt]} offen {['sc1', 'sc0 sc1', 'sc1 nt', 'nt', ''][X.get('z2m', 0)]} @@z2s")
def P3_z1e(p):
    CS, NR, TMP = P3_BF, 16, 24
    p(f"v_and_b32 v12, 15, v{vLANE}\nv_lshl_add_u32 v12, v12, 2, s86\nv_lshrrev_b32 v13, 4, v{vLANE}\nv_lshlrev_b32 v13, 4, v13\nv_add_u32 v13, {CST+192}, v13")
    for par in range(2): p(f"ds_read_b32 v{NR+4*par}, v12 offset:{64*par}\nds_read_b32 v{NR+4*par+2}, v12 offset:{128+64*par}")
    for nt in range(3): p(f"ds_read_b128 {vr(CS+4*nt,4)}, v13 offset:{64*nt} @@z1c{nt}")
    p(f"s_mul_i32 s{SSD}, s{sRB3}, {2*48*512}\ns_mul_i32 s{t+1}, s{sJ3}, 1536\ns_add_u32 s{SSD}, s{SSD}, s{t+1}\ns_add_u32 s{SSD}, s{SSD}, {WS_Z1}\ns_add_u32 s{SSD+1}, s{SSD}, {48*512}")
    p(f"v_lshlrev_b32 v8, 3, v{vLANE}")
    for par in range(2):
        for nt in range(3):
            a = P3_AZ1 + (par*3+nt)*4
            p(f"@wait lg=z1c{nt}")
            for h in range(2): p(f"v_pk_fma_f32 {vr(a+2*h,2)}, {vr(CS+4*nt+2*h,2)}, {vr(NR+4*par,2)}, {vr(a+2*h,2)} op_sel_hi:[1,0,1]")
            for h in range(2): p(f"v_pk_mul_f32 {vr(a+2*h,2)}, {vr(a+2*h,2)}, {vr(NR+4*par+2,2)} op_sel_hi:[1,0]")
            gelu4(p, a, TMP)
            p(f"v_cvt_pk_bf16_f32 v{a}, v{a}, v{a+1}\nv_cvt_pk_bf16_f32 v{a+1}, v{a+2}, v{a+3}")
            p(f"buffer_store_dwordx2 {vr(a,2)}, v8, {sr(SW,4)}, s{SSD+par} offen offset:{512*nt} {'sc1' if X.get('m84', 0) else ''} @@z1s")

Z_CS, Z_NR, Z_T = 16, 28, 32
def z1e_prep(p):
    p(f"v_and_b32 v12, 15, v{vLANE}\nv_lshl_add_u32 v12, v12, 2, s86\nv_lshrrev_b32 v13, 4, v{vLANE}\nv_lshlrev_b32 v13, 4, v13\nv_add_u32 v13, {CST+192}, v13")
    for par in range(2): p(f"ds_read_b32 v{Z_NR+2*par}, v12 offset:{64*par}\nds_read_b32 v{Z_NR+2*par+1}, v12 offset:{128+64*par}")
    for nt in range(3): p(f"ds_read_b128 {vr(Z_CS+4*nt,4)}, v13 offset:{64*nt}")
    p(f"s_mul_i32 s{SSD}, s{sRB3}, {2*48*512}\ns_mul_i32 s{t+1}, s{sJ3}, 1536\ns_add_u32 s{SSD}, s{SSD}, s{t+1}\ns_add_u32 s{SSD}, s{SSD}, {WS_Z1}\ns_add_u32 s{SSD+1}, s{SSD}, {48*512}")
    p(f"s_lshl_b32 s{SSD+2}, s{sRB3}, 4\ns_add_u32 s{SSD+2}, s{SSD+2}, s{sJ3}")
def z1e_lines():
    L = []
    for par in range(2):
        for nt in range(3):
            a = P3_AZ1 + (par*3+nt)*4; T = Z_T
            for r in range(4): L.append(f"v_fmac_f32 v{a+r}, v{Z_CS+4*nt+r}, v{Z_NR+2*par}")
            for r in range(4): L.append(f"v_mul_f32 v{a+r}, v{a+r}, v{Z_NR+2*par+1}")
            for r in range(4): L.append(f"v_mul_f32 v{T+r}, v{a+r}, v{a+r}")
            for r in range(4): L.append(f"v_fmamk_f32 v{T+r}, v{T+r}, {fhex(GK1)}, v{vK0}")
            for r in range(4): L.append(f"v_mul_f32 v{T+r}, v{T+r}, v{a+r}")
            for r in range(4): L.append(f"v_exp_f32 v{T+r}, v{T+r}")
            for r in range(4): L.append(f"v_add_f32 v{T+r}, 1.0, v{T+r}")
            for r in range(4): L.append(f"v_rcp_f32 v{T+r}, v{T+r}")
            for r in range(4): L.append(f"v_mul_f32 v{a+r}, v{a+r}, v{T+r}")
            L.append(f"v_cvt_pk_bf16_f32 v{a}, v{a}, v{a+1}"); L.append(f"v_cvt_pk_bf16_f32 v{a+1}, v{a+2}, v{a+3}")
    L.append("\n".join(f"buffer_store_dwordx2 {vr(P3_AZ1+(par*3+nt)*4,2)}, v8, {sr(SW,4)}, s{SSD+par} offen offset:{512*nt} @@z1s" for par in range(2) for nt in range(3)))
    return L + ["s_nop 0"]*X.get('z1gap', 16) + ["@FLAG"]
KC = 6
MB_FT = 28672
MB_BASE = [0, MB_FT, 2*MB_FT, 3*MB_FT, 0, SCR]
def unit_bases(p, d):
    p(f"s_mul_i32 s{d}, s{sWAVE}, 14336\ns_lshl_b32 s{d+1}, s{sWAVE}, 13\ns_add_u32 s{d+1}, s{d+1}, {SCR}")
    p(f"s_lshl_b32 s{d+2}, s{sWAVE}, 11\ns_cmp_lt_u32 s{sWAVE}, 2\ns_cselect_b32 s{t+5}, 0, {155648-4096-57344}\ns_add_u32 s{d+2}, s{d+2}, s{t+5}\ns_add_u32 s{d+2}, s{d+2}, 57344")
def unit_loc(u): return (0, u*2048) if u < 7 else ((1, (u-7)*2048) if u < 11 else (2, 0))
def WA(s_, k):
    i = s_*KC + k
    return ar(4*i, 4) if i < 16 else vr(160+4*(i-16), 4)
def WXr(s_, k):
    i = s_*(16-KC) + k
    return ar(4*i, 4) if i < 16 else vr(96+4*(i-16), 4)
def z2_offsets(p, k0, n):
    p(f"s_mul_i32 s{t}, s{sJ4}, 384\ns_lshl_b32 s{t+1}, s{sWAVE}, 4\ns_add_u32 s{t}, s{t}, s{t+1}\ns_lshl_b32 s{t}, s{t}, 10\ns_add_u32 s{t}, s{t}, {WS_Z2}")
    p(f"s_lshl_b32 s{t+1}, s{sRG4}, 1")
    for k in range(n):
        p(f"s_add_u32 s{t+2}, s{t+1}, {k0+k}\ns_and_b32 s{t+2}, s{t+2}, 15\ns_lshl_b32 s{t+2}, s{t+2}, 10\ns_add_u32 s{80+k}, s{t+2}, s{t}")
    p(f"v_mov_b32 v3, v{vL16}")
def mb_waddr(p, role):
    for s_ in range(0 if role else 1, 4):
        e = 3+s_ if role else s_-1
        p(f"s_add_u32 s{t}, s{sWAVE}, {s_}\ns_and_b32 s{t}, s{t}, 3\ns_mul_i32 s{t}, s{t}, 7168\ns_add_u32 s{t}, s{t}, {e*1024}\nv_add_u32 v{4+s_}, s{t}, v{vL16}")
C_RING, C_ACC, C_OWN, C_Z1 = 64, 112, 136, 52
C_MBR = [16, 20, 24, 28, 32, 40, 44]
WAD = [185, 187, 189]
def P4_prepA(p):
    map4(p); hload(p)
    unit_bases(p, sB0); swz_rd(p, 12, 10)
    for b in range(3): p(f"v_add_u32 v{WAD[b]}, s{sB0+b}, v12\nv_add_u32 v{WAD[b]+1}, s{sB0+b}, v13")
    p(f"v_and_b32 v10, 15, v{vLANE}\nv_lshlrev_b32 v10, 2, v10\ns_lshr_b32 s{t}, s{sTT}, 1\ns_lshl_b32 s{t}, s{t}, 5\ns_and_b32 s{t+1}, s{sTT}, 1\ns_add_u32 s{t}, s{t}, s{t+1}\ns_lshl_b32 s{t}, s{t}, 1")
    p(f"v_mov_b32 v191, 0\nbuffer_load_short_d16_hi v191, v10, {sr(SBS,4)}, s{t} offen @@bias")
    z2_offsets(p, 0, KC)
    p(f"v_lshlrev_b32 v8, 3, v{vLANE}\ns_mul_i32 s70, s{sTT}, 24576\ns_mul_i32 s{t+1}, s{sJ4}, 3072\ns_add_u32 s70, s70, {WS_V}\ns_add_u32 s70, s70, s{t+1}")
    p(f"s_lshr_b32 s{t+2}, s{sTT}, 1\ns_lshl_b32 s{t+2}, s{t+2}, 6\ns_lshl_b32 s{t+3}, s{sJ4}, 3\ns_add_u32 s{t+2}, s{t+2}, s{t+3}\ns_add_u32 s{t+2}, s{t+2}, {FL_F3B}")
    p(f"v_and_b32 v9, 1, v{vLANE}\nv_lshl_add_u32 v9, v9, 2, s{t+2}")
def P4_prepA2(p):
    mb_waddr(p, 0)
    p(f"s_mul_i32 s{t}, s{sWAVE}, 7168\nv_add_u32 v4, s{t}, v{vL16}")
def P4_prepB(p):
    hpack(p); z1e_prep(p)
    p("@wait vm=bias")
    for r in range(24): p(f"v_mov_b32 v{C_OWN+r}, v191")
def P4_prepC(p):
    for s_ in range(4):
        for k in range(KC):
            b, off = unit_loc(s_*3 + (k >> 1))
            p(f"ds_read_b128 {WA(s_,k)}, v{WAD[b]+(k&1)} offset:{off}")
def P4(p, role):
    NK = (16-KC) if role else KC
    N = 6*NK; R = 12 if role else 10
    RING = 16 if role else C_RING
    W = WXr if role else WA
    def accreg(ft, s_):
        if role: return vr(64 + ((ft&1)*4+s_)*4, 4)
        return vr(C_OWN+ft*4, 4) if s_ == 0 else vr(C_ACC+((ft&1)*3+s_-1)*4, 4)
    def ld(n):
        ft, k = n // NK, n % NK
        if X.get('p4nold') and n > 0: return
        if k == 0 and ft: p(f"v_add_u32 v3, 65536, v3")
        p(f"buffer_load_dwordx4 {vr(RING+(n%R)*4,4)}, v3, {sr(SW,4)}, s{80+k} offen sc1 @@z{n}")
    R0 = X.get('R0', 6)
    if X.get('p4sleep'): p(f"s_sleep {X['p4sleep']}")
    if role: xstamp(p, 25)
    for n in range(R0): ld(n)
    if role and X.get('xst'): p("@wait vm=z0"); xstamp(p, 26); p(f"@wait vm=z{R0-1}"); xstamp(p, 27)
    def wr(ft):
        if ft:
            for s_ in range(0 if role else 1, 4): p(f"v_add_u32 v{4+s_}, {MB_BASE[ft]-MB_BASE[ft-1]}, v{4+s_}")
        for s_ in range(0 if role else 1, 4): p(f"ds_write_b128 v{4+s_}, {accreg(ft,s_)}")
    def mb(ft, pk=False):
        L = []
        if ft: L.append(f"v_add_u32 v4, {MB_BASE[ft]-MB_BASE[ft-1]}, v4")
        L.append("\n".join(f"ds_read_b128 {vr(C_MBR[e],4)}, v4 offset:{e*1024} @@mb{ft}_{e}" for e in range(7)))
        o = C_OWN+4*ft
        if pk:
            for e in range(7):
                L.append(f"@wait lg=mb{ft}_{e}")
                for h in range(2): L.append(f"v_pk_add_f32 {vr(o+2*h,2)}, {vr(o+2*h,2)}, {vr(C_MBR[e]+2*h,2)}")
        else:
            L += ["s_nop 0"]*X.get('mbgap', 10)
            for e in range(7):
                for r in range(4): L.append((f"@wait lg=mb{ft}_{e}\n" if r == 0 else "") + f"v_add_f32 v{o+r}, v{o+r}, v{C_MBR[e]+r}")
        return L
    fill = z1e_lines() if (X.get('z1p4', 1) and not role) else []
    PER = X.get('p4v', 4)
    LEAD = X.get('lead', 0)
    nl = R0; mbq = []; nq = [0]
    def T(j):
        if (X.get('p4nobar', 10) >> j) & 1: return
        p("s_waitcnt lgkmcnt(0)"); bar(p, f"T{j}")
        while nq[0] < j:
            if not role: mbq.append(nq[0])
            nq[0] += 1
    def pump(cnt):
        for _ in range(cnt):
            if not fill and mbq: fill.extend(mb(mbq.pop(0)))
            if fill:
                l = fill.pop(0)
                if l == "@FLAG": p(f"@wait vm=z1s\ns_mov_b32 s{sU}, s{SSD+2}"); flag_store(p, FL_F3B, True)
                elif l != "s_nop 0": p(l)
    consumed = lambda j: nq[0] > j and j not in mbq and not any(f"mb{j}_" in l for l in fill)
    safe0 = [False]
    for n in range(N):
        ft, k = n // NK, n % NK
        if not (X.get('p4nold') and n > 0): p(f"@wait vm=z{n}")
        z = vr(RING+(n%R)*4, 4)
        for s_ in range(4):
            d = accreg(ft, s_)
            c = d if (k or (s_ == 0 and not role)) else "0"
            if not (X.get('p4nomf') and k): p(f"{MF16} {d}, {z}, {W(s_,k)}, {c}")
            pump(PER)
        while nl < min(N, n + 1 + R) and nl < n + 1 + R0 + 2*(n+1): ld(nl); nl += 1
        if k == 1 and ft >= 1:
            if ft == 5 and not role: assert safe0[0], "slot 0 reuse unsafe"
            wr(ft-1)
            j = ft if role else ft - LEAD
            if j >= 1:
                if not role and consumed(0) and not (X.get('p4nobar', 10) >> j) & 1: safe0[0] = True
                T(j)
        if not role and ft == 4 and k == 0: p(f"buffer_load_dword v15, v9, {sr(SW,4)}, 0 offen sc1 @@f3b")
        if not role and ft == 4 and k == 5:
            assert '@FLAG' not in fill
            a, b = p.label("f3b"), p.label("f3bok")
            p(f"@wait vm=f3b\ns_mov_b32 s{sSPIN}, 0x100000\n{a}:\nv_cmp_ne_u32 vcc, s{sEP}, v15\ns_cbranch_vccz {b}\n@cond_begin")
            p(f"buffer_load_dword v15, v9, {sr(SW,4)}, 0 offen sc1\ns_waitcnt vmcnt(0)\ns_sub_u32 s{sSPIN}, s{sSPIN}, 1\ns_cbranch_scc0 {a}\n@cond_end\n{b}:")
            for f in range(6): p(f"buffer_load_dwordx2 {vr(C_Z1+2*f,2)}, v8, {sr(SW,4)}, s70 offen offset:{512*f} sc1 @@z1l")
    wr(5)
    if not role:
        pump(1000)
        for j in range(6-LEAD, 6): T(j); pump(1000)
    p("s_waitcnt lgkmcnt(0)"); bar(p, "Bf")
    if role: return
    m5 = mb(5, True)
    p(m5[0]); p(m5[1])
    def vout(u):
        o = RING + 4*u
        for ff in range(2):
            ft = 2*u+ff; z = RING+16+4*ff; g = C_OWN+4*ft
            for h in range(2): p(f"v_lshlrev_b32 v{z+2*h}, 16, v{C_Z1+2*ft+h}\nv_and_b32 v{z+2*h+1}, s{sMASKHI}, v{C_Z1+2*ft+h}")
            for h in range(2): p(f"v_pk_mul_f32 {vr(z+2*h,2)}, {vr(z+2*h,2)}, {vr(g+2*h,2)}")
            for h in range(2): p(f"v_cvt_pk_bf16_f32 v{o+2*ff+h}, v{z+2*h}, v{z+2*h+1}")
        p(f"buffer_store_dwordx4 {vr(o,4)}, v{vL16}, {sr(SW,4)}, s70 offen offset:{1024*u} {'sc1' if X.get('m84', 0) else ''} @@vs")
    p("@wait vm=z1l")
    vout(0); vout(1)
    p("\n".join(m5[2:]))
    vout(2)

HRES = 16
HP = [36, 37, 38, 39, 104, 105, 106, 107, 108, 109]
sT5, sJ5, sR5 = SCS, SCS+1, SCS+2
def hload(p):
    A, B = 16, 26
    map5(p, sT5, sJ5, sR5)
    p(f"s_cmp_ge_u32 s{sJ5}, 4\ns_cselect_b32 s{t}, -1, 1\ns_cselect_b32 s{t+1}, 956, 0\ns_cselect_b64 vcc, -1, 0")
    p(f"s_mov_b64 s[94:95], vcc")
    p(f"s_mul_i32 s{t+2}, s{sJ5}, 80\nv_lshrrev_b32 v36, 4, v{vLANE}\nv_lshl_add_u32 v36, v36, 2, s{t+2}\nv_mul_lo_u32 v36, v36, s{t}\nv_add_u32 v36, s{t+1}, v36")
    p(f"v_and_b32 v37, 15, v{vLANE}\nv_lshlrev_b32 v37, 4, v37\ns_lshl_b32 s{t}, s{t}, 4")
    p(f"s_mul_i32 s{t+3}, s{sT5}, 20480\ns_add_u32 s{t+3}, s{t+3}, {WS_H}")
    for et in range(5):
        for (dst, add) in ((A+2*et, 0), (B+2*et, 4)):
            p(f"v_add_u32 v10, {add}, v36")
            if et == 0 and add: p(f"v_cmp_eq_u32 vcc, 640, v10\nv_mov_b32 v11, 320\nv_cndmask_b32 v10, v10, v11, vcc")
            p(f"v_lshrrev_b32 v11, 3, v10\nv_lshl_add_u32 v11, v11, 8, v37\nv_and_b32 v10, 7, v10\nv_lshl_add_u32 v10, v10, 1, v11")
            p(f"buffer_load_dword{'x2' if not add else ''} {vr(dst, 1 if add else 2)}, v10, {sr(SW,4)}, s{t+3} offen sc1 @@hres")
        if et < 4: p(f"v_add_u32 v36, s{t}, v36")
def hpack(p):
    A, B = 16, 26
    p(f"s_mov_b32 s{t}, 0x07060100\n@wait vm=hres")
    for et in range(5):
        a, b = A+2*et, B+2*et
        p(f"v_perm_b32 v10, v{a+1}, v{b}, s{t}\nv_perm_b32 v11, v{a}, v{a+1}, s{t}")
        p(f"v_cndmask_b32 v{HP[2*et]}, v{a}, v10, s[94:95]\nv_cndmask_b32 v{HP[2*et+1]}, v{a+1}, v11, s[94:95]")
def P5_prep(p):
    for i in range(10): p(f"v_lshlrev_b32 v{HRES+2*i}, 16, v{HP[i]}\nv_and_b32 v{HRES+2*i+1}, s{sMASKHI}, v{HP[i]}")
    p(f"v_add_u32 v5, {WZ}, v{vL16}")
    p(f"v_and_b32 v10, 15, v{vLANE}\nv_mul_u32_u24 v10, 2560, v10\nv_lshrrev_b32 v11, 4, v{vLANE}\nv_lshl_add_u32 v6, v11, 3, v10")
    p(f"s_lshr_b32 s86, s{sT5}, 1\ns_lshl_b32 s86, s86, 5\ns_and_b32 s{t+1}, s{sT5}, 1\ns_add_u32 s86, s86, s{t+1}\ns_mul_i32 s86, s86, 1280\ns_mul_i32 s{t+1}, s{sJ5}, 160\ns_add_u32 s86, s86, s{t+1}")
    p(f"s_mul_i32 s80, s{sT5}, 24576\ns_add_u32 s80, s80, {WS_V}")
    for i in range(1, 6): p(f"s_add_u32 s{80+i}, s80, {4096*i}")
def P5_main(p):
    NB = 24
    breg = lambda i: ar(4*(i % NB), 4) if (i % NB) < 16 else vr(160+4*((i % NB)-16), 4)
    def vl(ks):
        if ks < 24: p(f"buffer_load_dwordx4 {vr(64+4*ks,4)}, v{vL16}, {sr(SW,4)}, s{80+(ks>>2)} offen offset:{(ks&3)*1024} sc1 @@v{ks}")
    def bl(i):
        if i < 120:
            o = i*1024
            p(f"ds_read_b128 {breg(i)}, v{vL16 if o < WZ else 5} offset:{o % WZ} @@wb{i}")
    VA = X.get('va', 8); BA = X.get('ba', 12)
    for ks in range(VA): vl(ks)
    bar(p, "B10")
    for i in range(BA): bl(i)
    for i in range(120):
        ks, et = i // 5, i % 5
        a = vr(HRES+4*et, 4)
        p(f"@wait vm=v{ks} lg=wb{i}")
        p(f"{MF16} {a}, {breg(i)}, {vr(64+4*ks,4)}, {a}")
        if i + BA == 60: bar(p, "B11")
        bl(i+BA)
        if et == 0: vl(ks+VA)
    for et in range(5):
        a = HRES+4*et; o = 36+2*et
        p(f"v_cvt_pk_bf16_f32 v{o}, v{a}, v{a+1}\nv_cvt_pk_bf16_f32 v{o+1}, v{a+2}, v{a+3}")
        p(f"buffer_store_dwordx2 {vr(o,2)}, v6, {sr(SOUT,4)}, s86 offen offset:{32*et} {['', 'sc1', 'nt', 'sc0 sc1'][X.get('osc', 0)]}")

def thr(p, n=None):
    n = X.get('xthr', 0) if n is None else n
    if n: p(f"s_waitcnt vmcnt({n})")
def LIN(p, tag, which, part=(0, 15), th=None):
    if part[0] == 0:
        if tag == 'wz': p(f"s_mul_i32 s{sB0}, s{sJ3}, 61440\ns_add_u32 s{sB0}, s{sB0}, {WS_WI + (48*20480 if which == 0 else 0)}\ns_lshr_b32 s{sB2}, s{sL}, 4\ns_lshl_b32 s{sB2}, s{sB2}, 13")
        else: p(f"s_mul_i32 s{sB0}, s{sJ4}, 122880\ns_add_u32 s{sB0}, s{sB0}, {WS_WO + which*61440}\ns_lshl_b32 s{sB2}, s{sRG4}, 12")
        p(f"s_mul_i32 s{sB1}, s{sWAVE}, 15360\ns_add_u32 s{sB0}, s{sB0}, s{sB1}")
        if which: p(f"s_add_u32 s{sB1}, s{sB1}, {WZ}")
    for i in range(*part):
        p(f"s_add_u32 m0, s{sB1}, s{sB2}\ns_add_u32 s{sB3}, s{sB0}, s{sB2}\nbuffer_load_dwordx4 v{vL16}, {sr(SW,4)}, s{sB3} offen sc1 lds @@{tag}{which}")
        thr(p, th)
        if i < 14: p(f"s_add_u32 s{sB2}, s{sB2}, 1024\ns_cmp_eq_u32 s{sB2}, 15360\ns_cselect_b32 s{sB2}, 0, s{sB2}")
def ws_tile(p, slot):
    p(f"s_add_u32 s{sB0}, s{sWAVE}, {slot}\ns_and_b32 s{sB0}, s{sB0}, 3\ns_lshr_b32 s{sB1}, s{sB0}, 1\ns_add_u32 s{sB1}, s{sB1}, s{sRB4}\ns_lshl_b32 s{sB1}, s{sB1}, 5")
    p(f"s_and_b32 s{sB0}, s{sB0}, 1\ns_add_u32 s{sB0}, s{sB0}, s{sB1}\ns_lshl_b32 s{sB0}, s{sB0}, 12\ns_lshl_b32 s{sB1}, s{sWAVE}, 10\ns_add_u32 s{sB0}, s{sB0}, s{sB1}")
    p(f"s_mov_b32 s{sB2}, s{sRG4}")
def ws_piece(p, pc, sbase, off, tag, vs=12):
    p(f"s_add_u32 s{sB3}, s{sB2}, {pc}\ns_and_b32 s{sB3}, s{sB3}, 7\ns_lshl_b32 s{sB3}, s{sB3}, 7\ns_add_u32 s{sB3}, s{sB3}, s{sB0}")
    for hf in range(2): p(f"s_add_u32 m0, s{sbase}, {off+hf*1024}\nbuffer_load_dwordx4 v{vs+hf}, {sr(SWS,4)}, s{sB3} offen lds @@{tag}"); thr(p)
def xchunk_dma(p, slot, expr, vs=None):
    p(expr)
    ws_tile(p, slot)
    for i in range(5): ws_piece(p, KC//2 + i, t, i*2048, f"xc{slot}", vWSS if vs is None else vs)
def xchunk_read(p, slot, expr, wait=True):
    p(expr)
    p(f"v_add_u32 v8, s{t}, v{vWSR}\nv_add_u32 v9, s{t}, v{vWSR+1}" + (f"\n@wait vm=xc{slot}" if wait else ""))
    for k in range(10): p(f"ds_read_b128 {WXr(slot,k)}, v{8+(k&1)} offset:{2048*(k>>1)} @@xr{slot}")
def colsum(p, z1):
    with cond(p, f"s_cmp_eq_u32 s{sWAVE}, 3"):
        p(f"s_mul_i32 s{t}, s{sWAVE}, 20480\ns_add_u32 s{t}, s{t}, {WZ if z1 else 0}\nv_add_u32 v8, s{t}, v{vL16}")
        for r in range(4): p(f"v_mov_b32 v{88+r}, 0x3f803f80")
        for hb in range(2):
            for k in range(10): p(f"ds_read_b128 {vr(16+4*k,4)}, v8 offset:{(hb*10+k)*1024}")
            for k in range(10):
                p(f"s_waitcnt lgkmcnt({9-k})")
                p(f"{MF16} v[92:95], {vr(16+4*k,4)}, v[88:91], {'v[92:95]' if (k or hb) else 0}")
        p(f"s_lshl_b32 s{t}, s{sWAVE}, 6\ns_add_u32 s{t}, s{t}, {CST + (192 if z1 else 0)}\nv_add_u32 v8, s{t}, v{vLANE}")
        p("s_mov_b32 exec_lo, 0x00010001\ns_mov_b32 exec_hi, 0x00010001\nds_write_b128 v8, v[92:95]\ns_mov_b64 exec, -1\ns_waitcnt lgkmcnt(0)")
def touch_h(p, dst):
    a, b = 10, 11
    p(f"s_and_b32 s{t}, s{sL}, 15\ns_lshl_b32 s{t}, s{t}, 2\ns_add_u32 s{t}, s{t}, s{sWAVE}\ns_mul_i32 s{t}, s{t}, 2560\ns_sub_u32 s{t+1}, s{sRB3}, s{sWAVE}\ns_mul_i32 s{t+1}, s{t+1}, 40960\ns_add_u32 s{t}, s{t}, s{t+1}\ns_add_u32 s{t}, s{t}, {WS_H}")
    p(f"s_lshl_b32 s{t+1}, s{sRB3}, 12\ns_lshl_b32 s{t+2}, s{sJ3}, 8\ns_add_u32 s{t+1}, s{t+1}, s{t+2}\ns_add_u32 s{t+1}, s{t+1}, {WS_ZS-20*128}")
    p(f"s_lshl_b32 s{t+2}, s{sRB3}, 10\ns_add_u32 s{t+2}, s{t+2}, {WS_HS-22*128}")
    p(f"v_mov_b32 v{a}, s{t}\nv_mov_b32 v{b}, s{t+1}\nv_cmp_lt_u32 vcc, 19, v{vLANE}\nv_cndmask_b32 v{a}, v{a}, v{b}, vcc\nv_mov_b32 v{b}, s{t+2}\nv_cmp_lt_u32 vcc, 21, v{vLANE}\nv_cndmask_b32 v{a}, v{a}, v{b}, vcc")
    p(f"v_lshl_add_u32 v{a}, v{vLANE}, 7, v{a}\ns_mov_b64 exec, 0x3fffffff\nbuffer_load_dword v{dst}, v{a}, {sr(SW,4)}, 0 offen\ns_mov_b64 exec, -1")
def touch_z1(p, dst):
    p(f"s_mul_i32 s{t}, s{sTT}, 24576\ns_mul_i32 s{t+1}, s{sJ4}, 3072\ns_add_u32 s{t}, s{t}, s{t+1}\ns_add_u32 s{t}, s{t}, {WS_Z1}\nv_lshlrev_b32 v10, 7, v{vLANE}")
    p(f"s_mov_b64 exec, 0xffffff\nbuffer_load_dword v{dst}, v10, {sr(SW,4)}, s{t} offen\ns_mov_b64 exec, -1")
def code_touch(p, dst):
    if not X.get('ct', 1): return
    with only_wave(p, 0):
        p(f"s_lshl_b32 s{t}, s{sL}, 7\nv_lshlrev_b32 v10, 12, v{vLANE}\ns_mov_b64 exec, 0xffff\nbuffer_load_dword v{dst}, v10, {sr(SX,4)}, s{t} offen\ns_mov_b64 exec, -1")

def xprog(p):
    sPHI, sPL, sRLa, sRLb = 87, 86, 84, 85
    p(f"s_mov_b32 s{SX}, s{ST}\ns_mov_b32 s{SX+1}, s{ST+1}".replace("s_mov_b32", "s_mov_b32") if False else "")
    if X.get('xst'): p(f"v_mov_b32 v{vSTMP}, 0")
    p(f"s_mov_b64 s[94:95], {sr(ST,2)}")
    p(f"s_mul_i32 s{sPL}, s{sWAVE}, {P2S_W}\ns_add_u32 s{sPL}, s{sPL}, {P2S}")
    p(f"s_lshl_b32 s{sPHI}, s{sQ}, 6\ns_add_u32 s{sPHI}, s{sPHI}, s{sRG}")
    p(f"s_lshl_b32 s{t}, s{sPHI}, 2\ns_add_u32 s{t}, s{t}, s{sWAVE}\ns_mul_i32 s{t+1}, s{t}, 3277\ns_lshr_b32 s{t+1}, s{t+1}, 16\ns_mul_i32 s{t+2}, s{t+1}, 20\ns_sub_u32 s{t+2}, s{t}, s{t+2}")
    p(f"s_mul_i32 s{sRLa}, s{t+1}, 40\ns_add_u32 s{sRLa}, s{sRLa}, s{t+2}\ns_lshl_b32 s{sRLa}, s{sRLa}, 10\ns_add_u32 s{sRLa}, s{sRLa}, {WS_WI}")
    p(f"s_lshl_b32 s{t+3}, s{t+2}, 5\ns_sub_u32 s{t+4}, 960, s{t+3}\ns_cmp_ge_u32 s{t+2}, 10\ns_cselect_b32 s{t+3}, s{t+4}, s{t+3}\ns_cselect_b32 s{t+4}, -1, 1")
    p(f"v_lshrrev_b32 v10, 2, v{vLANE}\nv_mul_lo_u32 v11, v10, s{t+4}\nv_add_u32 v11, s{t+3}, v11\ns_lshl_b32 s{t+4}, s{t+4}, 4\nv_add_u32 v12, s{t+4}, v11")
    p(f"v_cmp_eq_u32 vcc, 640, v11\nv_mov_b32 v13, 320\nv_cndmask_b32 v11, v11, v13, vcc")
    p(f"v_and_b32 v13, 3, v{vLANE}\nv_lshlrev_b32 v13, 4, v13\ns_lshl_b32 s{t+1}, s{t+1}, 6\ns_movk_i32 s{t+5}, 3072")
    p(f"v_mad_u32_u24 v4, v11, s{t+5}, v13\nv_mad_u32_u24 v5, v12, s{t+5}, v13\nv_add_u32 v4, s{t+1}, v4\nv_add_u32 v5, s{t+1}, v5")
    p(f"s_lshl_b32 s{t}, s{sPHI}, 1\ns_and_b32 s{t+1}, s{sWAVE}, 1\ns_add_u32 s{t}, s{t}, s{t+1}\ns_mul_i32 s{t+1}, s{t}, 2731\ns_lshr_b32 s{t+1}, s{t+1}, 16\ns_mul_i32 s{t+2}, s{t+1}, 24\ns_sub_u32 s{t+2}, s{t}, s{t+2}")
    for c_, d in ((0, sRLb), (1, 83)):
        p(f"s_lshl_b32 s{t+3}, s{t+1}, 1\ns_add_u32 s{t+3}, s{t+3}, {c_}\ns_mul_i32 s{t+4}, s{t+3}, 52\ns_lshr_b32 s{t+4}, s{t+4}, 8\ns_mul_i32 s{t+4}, s{t+4}, 115\ns_add_u32 s{t+3}, s{t+3}, s{t+4}")
        p(f"s_mul_i32 s{t+4}, s{t+2}, 5\ns_add_u32 s{t+3}, s{t+3}, s{t+4}\ns_lshl_b32 s{d}, s{t+3}, 10\ns_add_u32 s{d}, s{d}, {WS_WO}")
    p(f"s_mul_i32 s{t+2}, s{t+2}, {32*1280}\ns_lshl_b32 s{t+1}, s{t+1}, 6\ns_add_u32 s{t+2}, s{t+2}, s{t+1}\nv_mul_u32_u24 v6, 1280, v10\nv_add3_u32 v6, v6, v13, s{t+2}\nv_add_u32 v7, {16*1280}, v6")
    p(f"s_cmp_ge_u32 s{sPHI}, 240\ns_cselect_b32 s{t}, 0x40000000, 0\ns_cmp_lt_u32 s{sWAVE}, 2\ns_cselect_b32 s{t+1}, 0x40000000, s{t}")
    p(f"s_add_u32 s{sRLa}, s{sRLa}, s{t}\ns_add_u32 s{sRLb}, s{sRLb}, s{t+1}\ns_add_u32 s83, s83, s{t+1}")
    p("s_waitcnt lgkmcnt(0)")
    xstamp(p, 0)
    p(f"s_load_dword s{sEP}, {sr(SW,2)}, 0\ns_getreg_b32 s{sU}, hwreg(HW_REG_XCC_ID, 0, 4)")
    p(f"s_mov_b64 {sr(SX,2)}, s[94:95]\ns_mov_b32 s{SX+2}, CODE_BYTES")
    for k in range(2): p(f"s_add_u32 m0, s{sPL}, {1024*k}\nbuffer_load_dwordx4 v{4+k}, {sr(SWI,4)}, s{t} offen lds @@rl")
    for k in range(2): p(f"s_add_u32 m0, s{sPL}, {2048+1024*k}\nbuffer_load_dwordx4 v{6+k}, {sr(SWO,4)}, s{t+1} offen lds @@rl")
    BC, BS_, BX, FC, TMP = 16, 56, 96, 136, 136
    p(f"s_mul_i32 s{t}, s{sQ}, 80\ns_lshl_b32 s{t+1}, s{sWAVE}, 4\ns_add_u32 s{t+1}, s{t+1}, s{t}\nv_and_b32 v8, 15, v{vLANE}\nv_add_u32 v9, s{t+1}, v8\nv_cmp_eq_u32 vcc, 0, v9\nv_mov_b32 v10, 320\nv_cndmask_b32 v9, v9, v10, vcc\nv_cvt_f32_u32 v9, v9")
    p(f"s_add_u32 s{t}, s{t}, 64\nv_add_u32 v8, s{t}, v8\nv_cvt_f32_u32 v8, v8")
    if X.get('xprio', 1): p(f"s_setprio {X.get('xprio', 1)}")
    gen_hid(p, 9, BC, BS_, TMP)
    xstamp(p, 22)
    with only_wave(p, 0): gen_hid(p, 8, BX, None, TMP)
    with only_wave(p, 1): gen_hid(p, 8, None, BX, TMP)
    xstamp(p, 23)
    p("s_waitcnt lgkmcnt(0)"); epoch_fix(p)
    with only_wave(p, 3):
        p(f"s_lshl_b32 s{t}, s{sC}, 5\ns_add_u32 s{t}, s{t}, s{sL}\ns_lshl_b32 s{t}, s{t}, 2\ns_add_u32 s{t}, s{t}, {FL_X}\ns_add_u32 s{sU}, s{sU}, s{sEP}")
        p(f"v_mov_b32 v10, s{sU}\nv_mov_b32 v11, 0\ns_mov_b64 exec, 1\nbuffer_store_dword v10, v11, {sr(SW,4)}, s{t} offen sc1\ns_mov_b64 exec, -1")
    p(f"v_lshrrev_b32 v10, 4, v{vLANE}\nv_bfe_u32 v11, v{vLANE}, 2, 2\nv_lshl_add_u32 v12, v10, 3, v11\nv_lshl_add_u32 v13, v10, 2, v11\nv_and_b32 v10, 3, v{vLANE}\nv_lshlrev_b32 v10, 3, v10\nv_add_u32 v10, s{sPL}, v10")
    p(f"v_lshl_add_u32 v12, v12, 6, v10\nv_lshl_add_u32 v13, v13, 6, v10\n@wait vm=rl")
    for c_ in range(2):
        for h in range(2):
            p(f"ds_read_b64_tr_b16 {vr(176+4*c_+2*h,2)}, v12 offset:{256*h+32*c_}\nds_read_b64_tr_b16 {vr(184+4*c_+2*h,2)}, v13 offset:{2048+1024*h+32*c_}")
    p("s_waitcnt lgkmcnt(0)")
    p(f"s_add_u32 s{t}, s{sRLa}, 20480\ns_mov_b32 s{t+1}, s83")
    p(f"buffer_store_dwordx4 v[176:179], v{vL16}, {sr(SW,4)}, s{sRLa} offen sc1\nbuffer_store_dwordx4 v[180:183], v{vL16}, {sr(SW,4)}, s{t} offen sc1")
    p(f"buffer_store_dwordx4 v[184:187], v{vL16}, {sr(SW,4)}, s{sRLb} offen sc1\nbuffer_store_dwordx4 v[188:191], v{vL16}, {sr(SW,4)}, s{t+1} offen sc1 @@rls")
    xstamp(p, 20)
    vA, vSG, vT, vST, vST2, vXS, vCX = 4, 5, 6, 7, 8, 9, 3
    p(f"v_and_b32 v10, 7, v{vLANE}\nv_lshrrev_b32 v11, 1, v10\nv_mul_u32_u24 v{vA}, {P1_XR}, v11\nv_and_b32 v10, 1, v{vLANE}\nv_mul_u32_u24 v11, 640, v10\nv_add_u32 v{vA}, v{vA}, v11")
    p(f"v_lshlrev_b32 v{vSG}, 31, v10\nv_or_b32 v{vSG}, 1.0, v{vSG}\nv_bfe_u32 v10, v{vLANE}, 3, 1\nv_mul_u32_u24 v11, 1280, v10\nv_add_u32 v{vA}, v{vA}, v11")
    p(f"v_lshrrev_b32 v10, 4, v{vLANE}\nv_lshl_add_u32 v{vA}, v10, 4, v{vA}\nv_lshlrev_b32 v{vT}, 4, v10")
    p(f"s_mul_i32 s{t+4}, s{sQ}, 81920\ns_lshr_b32 s{t}, s{sRG}, 2\ns_mul_i32 s{t}, s{t}, 5120\ns_add_u32 s{t+4}, s{t+4}, s{t}\ns_and_b32 s{t}, s{sRG}, 3\ns_lshl_b32 s{t}, s{t}, 8\ns_add_u32 s{t+4}, s{t+4}, s{t}\ns_add_u32 s{t+4}, s{t+4}, {WS_AB}")
    p(f"s_lshl_b32 s88, s{sWAVE}, 10\ns_add_u32 s88, s88, s{t+4}\ns_mul_i32 s89, s{sWAVE}, 655360\ns_add_u32 s89, s89, s{t+4}\ns_add_u32 s89, s89, 4096")
    p(f"v_lshrrev_b32 v10, 5, v{vLANE}\nv_mul_u32_u24 v{vST}, 327680, v10\nv_and_b32 v10, 15, v{vLANE}\nv_lshlrev_b32 v{vXS}, 2, v10\nv_lshl_add_u32 v{vST}, v10, 4, v{vST}")
    p(f"v_bfe_u32 v10, v{vLANE}, 4, 1\nv_lshl_add_u32 v{vST2}, v10, 3, v{vST}\nv_mul_u32_u24 v10, 655360, v10\nv_add_u32 v{vST}, v{vST}, v10")
    p(f"s_cmp_eq_u32 s{sWAVE}, 0\ns_cselect_b32 s{t}, 1.0, 0\nv_mul_f32 v{vCX}, s{t}, v{vSG}")
    bar(p, "B1")
    AC, TI = 176, 188
    p(f"ds_read_b128 {vr(TI,4)}, v{vT} offset:{P1_T-131072} @@ti".replace(f"v{vT} offset:{P1_T-131072}", "v10") if False else "")
    p(f"v_add_u32 v10, {P1_T}, v{vT}\nds_read_b128 {vr(TI,4)}, v10 @@ti")
    for ks in range(10): p(f"ds_read_b128 {vr(FC+4*ks,4)}, v{vA} offset:{64*ks} @@fc{ks}\nds_read_b128 {ar(4*ks,4)}, v{vA} offset:{2560+64*ks} @@fs{ks}")
    p("@wait vm=rls lg=ti")
    for r_ in range(4): p(f"v_mul_f32 v{AC+r_}, v{vSG}, v{TI+r_}\nv_mul_f32 v{AC+8+r_}, v{vCX}, v{TI+r_}")
    for ks in range(10):
        p(f"@wait lg=fc{ks}\n{MF16} {vr(AC,4)}, {vr(FC+4*ks,4)}, {vr(BC+4*ks,4)}, {vr(AC,4)}")
        p(f"@wait lg=fs{ks}\n{MF16} {vr(AC+4,4)}, {ar(4*ks,4)}, {vr(BS_+4*ks,4)}, {vr(AC+4,4) if ks else 0}")
    with only_wave(p, 0):
        for ks in range(10): p(f"{MF16} {vr(AC+8,4)}, {vr(FC+4*ks,4)}, {vr(BX+4*ks,4)}, {vr(AC+8,4)}")
    with only_wave(p, 1):
        for ks in range(10): p(f"{MF16} {vr(AC+8,4)}, {ar(4*ks,4)}, {vr(BX+4*ks,4)}, {vr(AC+8,4)}")
    p(f"v_cvt_pk_bf16_f32 v12, v{AC}, v{AC+1}\nv_cvt_pk_bf16_f32 v13, v{AC+2}, v{AC+3}\nv_cvt_pk_bf16_f32 v14, v{AC+4}, v{AC+5}\nv_cvt_pk_bf16_f32 v15, v{AC+6}, v{AC+7}")
    p(f"v_permlane16_swap_b32 v12, v14\nv_permlane16_swap_b32 v13, v15\nbuffer_store_dwordx4 v[12:15], v{vST}, {sr(SW,4)}, s88 offen sc1")
    with cond(p, f"s_cmp_ge_u32 s{sWAVE}, 2"):
        p(f"s_nop 4\nv_cvt_pk_bf16_f32 v10, v{AC+8}, v{AC+9}\nv_cvt_pk_bf16_f32 v11, v{AC+10}, v{AC+11}\nbuffer_store_dwordx2 v[10:11], v{vST2}, {sr(SW,4)}, s89 offen sc1")
    with cond(p, f"s_cmp_lg_u32 s{sRG}, 0"):
        p(f"s_mul_i32 s{t+2}, s{sQ}, 320\ns_add_u32 s{t+3}, s{t+2}, {WS_XB}\ns_lshl_b32 s{t+2}, s{sWAVE}, 6\ns_add_u32 s{t+2}, s{t+2}, s{t+3}")
        p(f"s_mov_b32 exec_lo, 0\ns_mov_b32 exec_hi, 0xffff\nbuffer_store_dword v{AC+4}, v{vXS}, {sr(SW,4)}, s{t+2} offen offset:1280 sc1")
        with only_wave(p, 1): p(f"buffer_store_dword v{AC+8}, v{vXS}, {sr(SW,4)}, s{t+3} offen offset:{1280+256} sc1")
        p(f"s_mov_b64 exec, -1\nv_add_u32 v{vT}, {P1_XA}, v{vT}\nv_mov_b32 v{vA}, {P1_T+64}\nds_read_b32 v{TI}, v{vA}")
        for ks in range(10): p(f"ds_read_b128 {ar(4*ks,4)}, v{vT} offset:{64*ks}")
        p("s_waitcnt lgkmcnt(0)")
        for r_ in range(4): p(f"v_mul_f32 v{FC+r_}, v{vSG}, v{TI}\nv_mul_f32 v{FC+4+r_}, v{vSG}, v{TI}")
        for ks in range(10): p(f"{MF16} {vr(FC,4)}, {ar(4*ks,4)}, {vr(BC+4*ks,4)}, {vr(FC,4)}\n{MF16} {vr(FC+4,4)}, {ar(4*ks,4)}, {vr(BX+4*ks,4)}, {vr(FC+4,4)}")
        p(f"s_mov_b64 exec, 0xffff\nbuffer_store_dword v{FC}, v{vXS}, {sr(SW,4)}, s{t+2} offen sc1")
        with only_wave(p, 0): p(f"buffer_store_dword v{FC+4}, v{vXS}, {sr(SW,4)}, s{t+3} offen offset:256 sc1")
        p("s_mov_b64 exec, -1")
    if X.get('xprio', 1): p("s_setprio 0")
    xstamp(p, 21)
    map4(p)
    p(f"v_mov_b32 v4, {CNT}\nv_mov_b32 v5, 1\ns_mov_b32 s{sU}, s{sPHI}\ns_waitcnt vmcnt(0)\ns_mov_b64 exec, 1\nds_add_rtn_u32 v5, v4, v5\ns_mov_b64 exec, -1\ns_waitcnt lgkmcnt(0)\nv_readfirstlane_b32 s{t+1}, v5")
    with cond(p, f"s_cmp_lg_u32 s{t+1}, 3"): gflag_store(p, FL_F1)
    xstamp(p, 24)
    swz_src(p, vWSX, 8192, 10); swz_rd(p, vWSR, 10)
    bar(p, "B2")
    nC = X.get('nc', 2); nX = X.get('nx', 4)
    for s_ in range(nC): xchunk_read(p, s_, XBUF[s_], wait=False)
    p("s_waitcnt lgkmcnt(0)")
    for s_ in range(nC, nX): xchunk_dma(p, s_, XBUF[(s_-nC) % 2], vWSX)
    touch_h(p, 4); code_touch(p, 4)
    bar(p, "B3")
    for s_ in range(nC, nX): xchunk_read(p, s_, XBUF[(s_-nC) % 2])
    p("s_waitcnt lgkmcnt(0)")
    if X.get('b3b', 4) < 8: bar(p, "B3b"); LIN(p, 'wz', 0, th=0); bar(p, "B4")
    else: bar(p, "B4"); LIN(p, 'wz', 0, th=0)
    p("@wait vm=wz0"); bar(p, "B5")
    colsum(p, 0)
    def adma(us):
        last = -1
        for u in us:
            if u // 3 != last: ws_tile(p, u // 3); last = u // 3
            b, off = unit_loc(u)
            ws_piece(p, u % 3, 88+b, off, "wa")
    unit_bases(p, 88)
    if X.get('xs5'): p(f"s_sleep {X['xs5']}")
    n1 = X.get('wz1a', 15)
    W2E = f"s_mul_i32 s{t}, s{sWAVE}, 14336"
    if X.get('b5a', 10) < 20: bar(p, "B5a")
    LIN(p, 'wz', 1, (0, n1), th=X.get('thz1', 0)) if n1 else None
    if X.get('z1t', 1): touch_z1(p, 4)
    code_touch(p, 4)
    early = [7, 8, 9, 10]
    if X.get('ea', 0): adma(early)
    bar(p, "B5b")
    if n1 < 15:
        if X.get('ea', 0): assert n1 == 0
        LIN(p, 'wz', 1, (n1, 15), th=0)
    if nX < 4: xchunk_dma(p, nX, W2E, vWSX)
    if not X.get('ea', 0): adma(early)
    adma([11])
    p("@wait vm=wz1"); bar(p, "B6")
    colsum(p, 1)
    b7 = False
    for s_ in range(nX, 4):
        if s_ > nX: xchunk_dma(p, s_, W2E, vWSX)
        if s_ == X.get('b7at', 3): bar(p, "B7"); b7 = True
        xchunk_read(p, s_, W2E); p(f"@wait lg=xr{s_}")
    if not b7: bar(p, "B7")
    adma(range(7))
    if X.get('wot'):
        p(f"s_lshl_b32 s{t}, s{sL}, 2\ns_add_u32 s{t}, s{t}, s{sWAVE}\ns_mul_i32 s{t}, s{t}, 7680\ns_add_u32 s{t}, s{t}, {WS_WO}\nv_lshlrev_b32 v9, 7, v{vLANE}")
        p(f"s_mov_b32 exec_hi, 0x0fffffff\nbuffer_load_dword v8, v9, {sr(SW,4)}, s{t} offen sc1\ns_mov_b32 exec_hi, -1")
    z2_offsets(p, KC, 16-KC); mb_waddr(p, 1); code_touch(p, 8)
    if X.get('ztouch'):
        p(f"v_lshlrev_b32 v9, 16, v{vLANE}\ns_mov_b64 exec, 0x3f\nbuffer_load_dword v8, v9, {sr(SW,4)}, s80 offen sc1\ns_mov_b64 exec, -1")
    p("s_waitcnt vmcnt(0)"); bar(p, "B8")
    with only_wave(p, 0):
        p(f"s_lshl_b32 s{sU}, s{sJ4}, 5"); gpoll(p, FL_F3, 32)
    bar(p, "B9")
    P4(p, 1)
    map5(p, t+4, sJ4, sRG4)
    LIN(p, 'wo', 0, th=0); LIN(p, 'wo', 1, th=0)
    p("@wait vm=wo0"); bar(p, "B10")
    p("s_waitcnt vmcnt(0)"); bar(p, "B11")
    if X.get('wb') == 1:
        with only_wave(p, 0): p("buffer_wbl2 sc1\ns_waitcnt vmcnt(0)")
    if X.get('wb') == 2:
        with cond(p, f"s_or_b32 s{t}, s{sWAVE}, s{sL}\ns_cmp_lg_u32 s{t}, 0"): p("buffer_wbl2 sc1\ns_waitcnt vmcnt(0)")
    if X.get('xst'):
        p(f"s_lshl_b32 s{t}, s{sL}, 3\ns_add_u32 s{t}, s{t}, s{sC}\ns_lshl_b32 s{t}, s{t}, 2\ns_add_u32 s{t}, s{t}, s{sWAVE}\ns_lshl_b32 s{t+1}, s{t}, 8\ns_add_u32 s{t+1}, s{t+1}, {WS_STAMP+0x40000}\nv_lshlrev_b32 v10, 2, v{vLANE}")
        p(f"buffer_store_dword v{vSTMP}, v10, {sr(SW,4)}, s{t+1} offen")

def cprog(p):
    P1(p)
    p(f"s_lshl_b32 s{sU}, s{sQ}, 6\ns_add_u32 s{sU}, s{sU}, s{sRG}")
    P2_xload(p)
    p(f"s_lshl_b32 s95, s{sC}, 7\ns_add_u32 s95, s95, {FL_X}\nv_and_b32 v28, 31, v{vLANE}\nv_lshlrev_b32 v28, 2, v28\nbuffer_load_dword v29, v28, {sr(SW,4)}, s95 offen sc1 @@xc")
    P2_prepA(p)
    if X.get('gs', 1) == 1: gen_seq(p)
    p("s_waitcnt vmcnt(7)"); bar(p, "B2")
    stamp(p, 2)
    if not X.get('gs', 1): gen_seq(p)
    a, b = p.label("xp"), p.label("xpd")
    p(f"@wait vm=xc\ns_mov_b32 s{sSPIN}, 0x100000\n{a}:\nv_subrev_u32 v30, s{sEP}, v29\nv_cmp_lt_u32 vcc, 15, v30\ns_cbranch_vccz {b}\n@cond_begin")
    p(f"buffer_load_dword v29, v28, {sr(SW,4)}, s95 offen sc1\ns_waitcnt vmcnt(0)\ns_sub_u32 s{sSPIN}, s{sSPIN}, 1\ns_cbranch_scc0 {a}\n@cond_end\n{b}:")
    p(f"v_readfirstlane_b32 s{t}, v30\nv_cmp_ne_u32 vcc, s{t}, v30\ns_cmp_eq_u64 vcc, 0\ns_cselect_b32 s{sFAST}, 1, 0")
    if X.get('slow'): p(f"s_mov_b32 s{sFAST}, 0")
    P2_prepB(p)
    stamp(p, 3)
    with only_wave(p, 1):
        p(f"s_lshl_b32 s{sU}, s{sQ2}, 6"); gpoll(p, FL_F1, 64)
    with only_wave(p, 2):
        p(f"s_mul_i32 s{sU}, s{sJ3}, 3\ns_add_u32 s{sU}, s{sU}, 48\ns_lshr_b32 s{sU}, s{sU}, 1\ns_mul_i32 s{sU}, s{sU}, 5"); gpoll(p, FL_F1, 10)
    stamp(p, 4)
    p("s_waitcnt lgkmcnt(0)"); bar(p, "B3")
    stamp(p, 5)
    P2_main(p)
    stamp(p, 6)
    P3_prep(p)
    p("s_waitcnt vmcnt(0)"); bar(p, "B5")
    with only_wave(p, 0):
        p(f"s_lshl_b32 s{sU}, s{sC}, 5\ns_add_u32 s{sU}, s{sU}, s{sL}"); flag_store(p, FL_F2, True)
    stamp(p, 7)
    p(f"s_sub_u32 s{t}, 63, s{sRB3}\ns_min_u32 s{sU}, s{t}, s{sRB3}\ns_lshl_b32 s{sU}, s{sU}, 3"); poll(p, FL_F2, 8)
    stamp(p, 8)
    P3_loads(p); P3_pass(p, 0)
    bar(p, "B5b")
    stamp(p, 9)
    P3_z2a(p)
    p(f"s_lshl_b32 s{sU}, s{sRB3}, 4\ns_add_u32 s{sU}, s{sU}, s{sJ3}\n@wait vm=zs"); flag_store(p, FL_FS, True)
    bar(p, "B6")
    stamp(p, 10)
    K1 = X.get('k1', 8)
    P3_pass(p, 1, 0, K1)
    p(f"s_lshl_b32 s{sU}, s{sRB3}, 4"); poll(p, FL_FS, 16)
    stamp(p, 11)
    P3_z2b(p)
    P4_prepA(p)
    p("@wait vm=z2s")
    P4_prepA2(p)
    if X.get('rer'):
        for nt in range(3): p(f"buffer_load_dwordx4 v[4:7], v{vL16}, {sr(SW,4)}, s{[85,92,93][nt]} offen sc1")
    bar(p, "B7")
    with only_wave(p, 0):
        p(f"s_lshr_b32 s{sU}, s{sJ3}, 1\ns_lshl_b32 s{sU}, s{sU}, 5\ns_lshr_b32 s{t}, s{sRB3}, 2\ns_lshl_b32 s{t}, s{t}, 1\ns_add_u32 s{sU}, s{sU}, s{t}\ns_and_b32 s{t}, s{sJ3}, 1\ns_add_u32 s{sU}, s{sU}, s{t}")
        if X.get('z2m', 0) >= 3: p("buffer_wbl2 sc1\ns_waitcnt vmcnt(0)")
        gflag_store(p, FL_F3)
    stamp(p, 12)
    P3_pass(p, 1, K1, 20)
    P4_prepB(p)
    stamp(p, 13)
    bar(p, "B8")
    stamp(p, 14)
    P4_prepC(p)
    stamp(p, 15)
    if not X.get('z1p4', 1):
        p(f"s_lshl_b32 s{sU}, s{sRB3}, 4\ns_add_u32 s{sU}, s{sU}, s{sJ3}\n@wait vm=z1s"); flag_store(p, FL_F3B, not X.get('m84', 0))
    p("s_waitcnt lgkmcnt(0)"); bar(p, "B9")
    stamp(p, 16)
    P4(p, 0)
    stamp(p, 17)
    p(f"s_lshl_b32 s{sU}, s{sTT}, 3\ns_add_u32 s{sU}, s{sU}, s{sJ4}\n@wait vm=vs"); flag_store(p, FL_F4, not X.get('m84', 0))
    P5_prep(p)
    p(f"s_lshl_b32 s{sU}, s{sT5}, 3"); poll(p, FL_F4, 8)
    stamp(p, 18)
    P5_main(p)
    stamp(p, 19)
    with cond(p, f"s_or_b32 s{t}, s{sC}, s{sWAVE}\ns_or_b32 s{t}, s{t}, s{sL}\ns_cmp_lg_u32 s{t}, 0"):
        p(f"v_mov_b32 v10, s{sEP}\nv_mov_b32 v11, 0\ns_mov_b64 exec, 1\nbuffer_store_dword v10, v11, {sr(SW,4)}, 0 offen\ns_mov_b64 exec, -1")
    if X.get('stamp'):
        p("s_waitcnt vmcnt(0)")
        stamp(p, 24)
        p(f"s_lshl_b32 s{t}, s{sL}, 3\ns_add_u32 s{t}, s{t}, s{sC}\ns_lshl_b32 s{t}, s{t}, 2\ns_add_u32 s{t}, s{t}, s{sWAVE}\ns_lshl_b32 s{t+1}, s{t}, 8\ns_add_u32 s{t+1}, s{t+1}, {WS_STAMP}\nv_lshlrev_b32 v10, 2, v{vLANE}")
        p(f"buffer_store_dword v{vSTMP}, v10, {sr(SW,4)}, s{t+1} offen")
        if X.get('dbg'):
            lab = p.label("dbg")
            order = [0, 20, 21, 22, 1, 2, 3, 4, 5, 23, 6, 7, 8, 9, 10, 11, 12, 13, 14, 15, 16, 17, 18, 19, 24]
            idx = [i for i in order if (X['stamp'] >> i) & 1 or i in (0, 24)][:16]
            p(f"s_cmp_lg_u32 s{t}, {X['dbg']-1}\ns_cbranch_scc1 {lab}\ns_mov_b32 s{ST}, s2\ns_mov_b32 s{ST+1}, s3\ns_mov_b32 s{ST+2}, 256\nv_readlane_b32 s{t+2}, v{vSTMP}, 31\nv_mov_b32 v11, 0")
            for n_, i in enumerate(idx):
                p(f"v_readlane_b32 s{t+3}, v{vSTMP}, {i}\ns_nop 1\ns_sub_u32 s{t+3}, s{t+3}, s{t+2}\nv_writelane_b32 v11, s{t+3}, {n_}")
            p(f"buffer_store_dword v11, v10, {sr(ST,4)}, 0 offen\n{lab}:")

def build():
    kn = NAME + "_kernel"
    p = Prog(); prologue(p, kn); cprog(p); p("END:\ns_endpgm")
    q = Prog(); q.nlabel = 5000; q.isx = True; q("XPROG:\ns_nop 4"); xprog(q); q("s_endpgm\nCODE_END:\n.set CODE_BYTES, CODE_END - " + kn + " - 128")
    assert NBAR[id(p)] == NBAR[id(q)], (NBAR[id(p)], NBAR[id(q)])
    return ("; @launch grid=(256,1,1) block=(512,1,1) lds=163840\n" + '.amdgcn_target "amdgcn-amd-amdhsa--gfx950"\n.text\n' + p.finish() + q.finish() +
f""".section .rodata,"a"
.p2align 6
.amdhsa_kernel {kn}
  .amdhsa_next_free_vgpr 256
  .amdhsa_next_free_sgpr 102
  .amdhsa_accum_offset 192
  .amdhsa_group_segment_fixed_size 0
  .amdhsa_kernarg_size 104
  .amdhsa_user_sgpr_count 2
  .amdhsa_user_sgpr_kernarg_segment_ptr 1
  .amdhsa_system_sgpr_workgroup_id_x 1
.end_amdhsa_kernel
""")
if __name__ == "__main__":
    for a in sys.argv[2:]:
        k, v = a.split("="); X[k] = int(v)
    open(sys.argv[1], "w").write(build())
```

```python
import sys, struct
from asmlib import Prog, vr, ar, sr
NAME = "sequential_preLN__spectral_fnet__mixer_gmlp__prompt"
X = {}
def fhex(x): return hex(struct.unpack("<I", struct.pack("<f", x))[0])
FL_F1, FL_F2, FL_FS, FL_F3, FL_F3B, FL_F4, FL_X = 0x1000, 0x2000, 0x3000, 0x5000, 0x6000, 0x7000, 0x8000
WS_AB, WS_XB, WS_H, WS_HS, WS_Z2, WS_Z1, WS_ZS = 0x010000, 0x158000, 0x180000, 0x400000, 0x480000, 0x800000, 0xB00000
WS_V = WS_Z1
FL_BIG = {FL_F1: 0x160000, FL_F3: 0x168000}
WS_WI, WS_WO, WS_STAMP, WS_SIZE = 0xC00000, 0xE00000, 0xF00000, 0x1000000
SX, SCS, SSS, SCD, SSD, SWI, SWS, SBS, SWO, SOUT, SW, ST = 4, 8, 12, 16, 20, 24, 28, 32, 36, 40, 44, 48
sWAVE, sC, sL, sMASKHI = 52, 53, 54, 55
sI2, sP2, sQ2 = 56, 57, 58
sRB3, sJ3 = 59, 60
sRB4, sJ4, sRG4, sTT = 61, 62, 63, 64
sB0, sB1, sB2, sB3 = 65, 66, 67, 68
sRG, sQ, sG = 69, 70, 71
t = 72
sEP, sFAST, sSPIN, sU = 96, 97, 98, 99
SRDS = [(SX, 0, 2621440), (SW, 96, WS_SIZE), (SWI, 48, 1966080), (SWS, 56, 8388608), (SBS, 64, 4096), (SWO, 72, 983040), (SOUT, 80, 2621440)]
vLANE, vL16, vSTMP = 1, 2, 0
vWSS, vWSX, vWSR = 30, 12, 14
P1_XR = 10272; P1_B = 41216; P1_XA = P1_B + 102400; P1_T = P1_XA + 640
P2S = 145408; P2S_W = 4608
WZ = 61440; SCR = 122880; SCR_W = 9216; TBL = SCR + 4*SCR_W; CST = TBL + 1024; CNT = P1_T + 96
XBUF = [f"s_mul_i32 s{t}, s{sWAVE}, 10240\ns_add_u32 s{t}, s{t}, {WZ+256}",
        f"s_mul_i32 s{t}, s{sWAVE}, 10240\ns_cmp_lt_u32 s{sWAVE}, 2\ns_cselect_b32 s{t+1}, {102656-(41216-20480)}, 0\ns_add_u32 s{t}, s{t}, s{t+1}\ns_add_u32 s{t}, s{t}, {41216-20480}"]
FULL = "row_mask:0xf bank_mask:0xf"
MF16 = "v_mfma_f32_16x16x32_bf16"
LOG2E = 1.4426950408889634
GK0, GK1 = -LOG2E*1.5957691216057308, -LOG2E*0.07135481282

def stamp(p, i):
    if not X.get('stamp'): return
    if X['stamp'] > 1 and not (X['stamp'] >> i) & 1 and i not in (0, 24): return
    p(f"s_memrealtime s[100:101]\ns_waitcnt lgkmcnt(0)\nv_writelane_b32 v{vSTMP}, s100, {i}")
    if i in (0, 24) or X.get('cyc'): p(f"s_memtime s[100:101]\ns_waitcnt lgkmcnt(0)\nv_writelane_b32 v{vSTMP}, s100, {32+i}")
def xstamp(p, i):
    if not X.get('xst'): return
    p(f"s_memrealtime s[100:101]\ns_waitcnt lgkmcnt(0)\nv_writelane_b32 v{vSTMP}, s100, {i}")
def G(*lines):
    out = []
    for l in lines: out += [x.strip() for x in l.split("\n") if x.strip()]
    return out
def emit(p, gs):
    for g in gs: p("\n".join(g))
def swz_src(p, vdst, row_bytes, tmp, both=True):
    p(f"v_lshrrev_b32 v{tmp}, 3, v{vLANE}\nv_mul_u32_u24 v{vdst}, {row_bytes}, v{tmp}")
    p(f"v_lshrrev_b32 v{tmp}, 4, v{vLANE}\nv_and_b32 v{tmp+1}, 7, v{vLANE}\nv_xor_b32 v{tmp}, v{tmp}, v{tmp+1}\nv_lshl_add_u32 v{vdst}, v{tmp}, 4, v{vdst}")
    if both: p(f"v_xor_b32 v{vdst+1}, 64, v{vdst}\nv_add_u32 v{vdst+1}, {8*row_bytes}, v{vdst+1}")
def swz_rd(p, vdst, tmp, halfstride=1024):
    p(f"v_and_b32 v{tmp}, 15, v{vLANE}")
    if halfstride == 1024: p(f"v_lshlrev_b32 v{vdst}, 7, v{tmp}")
    else: p(f"v_bfe_u32 v{tmp+1}, v{vLANE}, 3, 1\nv_mul_u32_u24 v{tmp+1}, {halfstride-1024}, v{tmp+1}\nv_lshl_add_u32 v{vdst}, v{tmp}, 7, v{tmp+1}")
    p(f"v_lshrrev_b32 v{tmp}, 1, v{tmp}\nv_lshrrev_b32 v{tmp+1}, 4, v{vLANE}\nv_xor_b32 v{tmp}, v{tmp}, v{tmp+1}")
    p(f"v_lshl_add_u32 v{vdst}, v{tmp}, 4, v{vdst}\nv_xor_b32 v{vdst+1}, 64, v{vdst}")
NBAR = {}
def bar(p, name):
    L = NBAR.setdefault(id(p), []); L.append(name)
    if getattr(p, 'isx', False): xstamp(p, len(L))
    p("s_barrier")
def flag_store(p, base, local):
    p(f"s_lshl_b32 s{t}, s{sU}, 2\ns_add_u32 s{t}, s{t}, {base}\nv_mov_b32 v10, s{sEP}\nv_mov_b32 v11, 0\ns_mov_b64 exec, 1")
    if local:
        a, b = p.label("fs_slow"), p.label("fs_done")
        p(f"s_cmp_eq_u32 s{sFAST}, 0\ns_cbranch_scc1 {a}\n@cond_begin")
        p(f"buffer_store_dword v10, v11, {sr(SW,4)}, s{t} offen\ns_branch {b}")
        p(f"{a}:\nbuffer_wbl2 sc1\ns_waitcnt vmcnt(0)\nbuffer_store_dword v10, v11, {sr(SW,4)}, s{t} offen sc1\n{b}:\n@cond_end")
    else:
        p(f"buffer_store_dword v10, v11, {sr(SW,4)}, s{t} offen sc1")
    p("s_mov_b64 exec, -1")
def gflag_store(p, base):
    m = X.get('fm', 0)
    if m == 0: return flag_store(p, base, False)
    if m == 1:
        p(f"s_lshl_b32 s{t}, s{sU}, 7\ns_add_u32 s{t}, s{t}, {FL_BIG[base]}\nv_mov_b32 v10, s{sEP}\nv_mov_b32 v11, 0\ns_mov_b64 exec, 1\nbuffer_store_dword v10, v11, {sr(SW,4)}, s{t} offen sc1\ns_mov_b64 exec, -1")
    if m == 2:
        p(f"s_lshl_b32 s{t}, s{sU}, 2\ns_add_u32 s{t}, s{t}, {FL_BIG[base]}\nv_mov_b32 v10, s{sEP}\nv_lshlrev_b32 v11, 10, v{vLANE}\ns_mov_b64 exec, 0xff\nbuffer_store_dword v10, v11, {sr(SW,4)}, s{t} offen sc1\ns_mov_b64 exec, -1")
def gpoll(p, base, n):
    m = X.get('fm', 0)
    if m == 0: return poll(p, base, n)
    if m == 1: return poll(p, FL_BIG[base], n, sh=7)
    if m == 2:
        p(f"s_lshl_b32 s{t}, s{sC}, 8\ns_add_u32 s{sU}, s{sU}, s{t}"); return poll(p, FL_BIG[base], n)
def poll(p, base, n, sh=2):
    a, b = p.label("poll"), p.label("polled")
    p(f"s_lshl_b32 s{t}, s{sU}, {sh}\ns_add_u32 s{t}, s{t}, {base}\nv_min_u32 v11, {n-1}, v{vLANE}\nv_lshlrev_b32 v11, {sh}, v11\ns_mov_b32 s{sSPIN}, 0x100000")
    p(f"{a}:\nbuffer_load_dword v10, v11, {sr(SW,4)}, s{t} offen sc1\ns_waitcnt vmcnt(0)\nv_cmp_ne_u32 vcc, s{sEP}, v10")
    p(f"s_cbranch_vccz {b}\n" + (f"s_sleep {X['psl']}\n" if X.get('psl') else "") + f"s_sub_u32 s{sSPIN}, s{sSPIN}, 1\ns_cbranch_scc0 {a}\n{b}:")
class cond:
    def __init__(self, p, test): self.p = p; self.test = test
    def __enter__(self):
        self.lab = self.p.label("skip"); self.p(f"{self.test}\ns_cbranch_scc1 {self.lab}\n@cond_begin")
    def __exit__(self, *a): self.p(f"@cond_end\n{self.lab}:")
def only_wave(p, w): return cond(p, f"s_cmp_lg_u32 s{sWAVE}, {w}")
def epoch_fix(p): p(f"s_mul_i32 s{sEP}, s{sEP}, 0x2C9277B5\ns_add_u32 s{sEP}, s{sEP}, 0xAC564B05")

def map4(p):
    if not X.get('m84', 0):
        map5(p, sTT, sJ4, sRG4)
        p(f"s_sub_u32 s{sRB4}, s{sTT}, s{sWAVE}\ns_lshr_b32 s{sRB4}, s{sRB4}, 1\ns_lshl_b32 s{sRG4}, s{sRG4}, 1\ns_add_u32 s{sRG4}, s{sRG4}, s{sJ4}")
        return
    p(f"s_and_b32 s{t}, s{sC}, 6\ns_lshr_b32 s{t+1}, s{sL}, 4\ns_add_u32 s{t}, s{t}, s{t+1}\ns_lshl_b32 s{t}, s{t}, 2\ns_sub_u32 s{t+1}, 60, s{t}")
    p(f"s_bitcmp1_b32 s{sL}, 3\ns_cselect_b32 s{sRB4}, s{t+1}, s{t}\ns_bfe_u32 s{t}, s{sL}, 0x10002\ns_lshl_b32 s{t}, s{t}, 1\ns_add_u32 s{sRB4}, s{sRB4}, s{t}")
    p(f"s_and_b32 s{t}, s{sL}, 3\ns_and_b32 s{sJ4}, s{sC}, 1\ns_lshl_b32 s{sJ4}, s{sJ4}, 2\ns_add_u32 s{sJ4}, s{sJ4}, s{t}")
    p(f"s_lshl_b32 s{t}, s{t}, 1\ns_lshr_b32 s{sRG4}, s{sL}, 2\ns_add_u32 s{sRG4}, s{sRG4}, s{t}")
    p(f"s_lshl_b32 s{sTT}, s{sRB4}, 1\ns_add_u32 s{sTT}, s{sTT}, s{sWAVE}")
def map5(p, tt, j, rg):
    p(f"s_sub_u32 s{tt}, s{sRB3}, s{sWAVE}\ns_lshr_b32 s{rg}, s{sL}, 3\ns_and_b32 s{j}, s{rg}, 1\ns_lshl_b32 s{j}, s{j}, 1\ns_add_u32 s{tt}, s{tt}, s{j}")
    p(f"s_lshl_b32 s{tt}, s{tt}, 1\ns_add_u32 s{tt}, s{tt}, s{sWAVE}\ns_and_b32 s{j}, s{sL}, 7")
def prologue(p, kname):
    p(f".globl {kname}\n.p2align 8\n.type {kname},@function\n{kname}:")
    p(f"s_cmp_ge_u32 s2, 256\ns_cbranch_scc1 END")
    for (s, off, size) in SRDS: p(f"s_load_dwordx2 {sr(s,2)}, s[0:1], {off}")
    p(f"s_getpc_b64 {sr(ST,2)}\ns_mov_b32 s{ST+2}, CODE_BYTES\ns_mov_b32 s{ST+3}, 0x20000\ns_lshr_b32 s{sL}, s2, 3\ns_lshl_b32 s{t}, s{sL}, 7")
    p(f"v_xor_b32 v3, 0x100, v0\nv_lshlrev_b32 v3, 12, v3\ns_mov_b64 exec, 0xffff\nbuffer_load_dword v190, v3, {sr(ST,4)}, s{t} offen\ns_mov_b64 exec, -1")
    p(f"v_lshrrev_b32 v3, 6, v0\nv_and_b32 v{vLANE}, 63, v0\nv_readfirstlane_b32 s3, v3")
    for (s, off, size) in SRDS: p(f"s_mov_b32 s{s+2}, {size}\ns_mov_b32 s{s+3}, 0x20000")
    p(f"v_lshlrev_b32 v{vL16}, 4, v{vLANE}\ns_and_b32 s{sC}, s2, 7\ns_mov_b32 s{sMASKHI}, 0xffff0000\ns_and_b32 s{sWAVE}, s3, 3")
    p(f"s_lshl_b32 s{sI2}, s{sC}, 2\ns_lshr_b32 s{t}, s{sL}, 3\ns_add_u32 s{sI2}, s{sI2}, s{t}")
    p(f"s_bfe_u32 s{sP2}, s{sL}, 0x10002\ns_and_b32 s{sQ2}, s{sL}, 3")
    p(f"s_lshl_b32 s{t}, s{sC}, 2\ns_sub_u32 s{t+1}, 60, s{t}\ns_cmp_ge_u32 s{sL}, 16\ns_cselect_b32 s{sRB3}, s{t+1}, s{t}")
    p(f"s_add_u32 s{sRB3}, s{sRB3}, s{sWAVE}\ns_and_b32 s{sJ3}, s{sL}, 15")
    p(f"s_lshr_b32 s{sRG}, s{sL}, 2\ns_lshl_b32 s{t}, s{sC}, 3\ns_add_u32 s{sRG}, s{sRG}, s{t}\ns_and_b32 s{sQ}, s{sL}, 3")
    p(f"s_cmp_ge_u32 s3, 4\ns_cbranch_scc1 XPROG")

A_MF, A_MX = 0, 32
def P1(p):
    st = "sc1"
    sG0M, sJ0M, sJ31M, sXR = 80, 82, 84, 86
    if X.get('stamp'): p(f"v_mov_b32 v{vSTMP}, 0")
    if X.get('dbg'): p(f"s_load_dwordx2 s[2:3], s[0:1], 88\ns_memrealtime s[100:101]\ns_waitcnt lgkmcnt(0)\nv_writelane_b32 v{vSTMP}, s100, 31")
    p(f"s_lshl_b32 s{sG}, s{sRG}, 3\ns_lshl_b32 s{t}, s{sWAVE}, 1\ns_add_u32 s{sG}, s{sG}, s{t}")
    p(f"v_lshlrev_b32 v4, 2, v{vLANE}\ns_mul_i32 s{sXR}, s{sWAVE}, {P1_XR}")
    p(f"s_mul_i32 s88, s{sG}, 1280\ns_add_u32 s92, s88, 1280")
    for gb in range(2):
        b = 88+4*gb
        p(f"s_sub_u32 s{b+1}, {2048*1280}, s{b}\ns_sub_u32 s{b+2}, {1024*1280}, s{b}\ns_add_u32 s{b+3}, {1024*1280}, s{b}")
    p(f"s_cmp_eq_u32 s{sG}, 0\ns_cselect_b32 s89, {512*1280}, s89\ns_cselect_b32 s91, {1536*1280}, s91\ns_cselect_b32 s{sG0M}, -1, 0\ns_mov_b32 s{sG0M+1}, 0")
    p("s_waitcnt lgkmcnt(0)")
    stamp(p, 0)
    for k in range(8):
        p(f"s_add_u32 m0, s{sXR}, {k*1280}")
        p(f"buffer_load_dwordx4 v{vL16}, {sr(SX,4)}, s{88+k} offen lds")
        p(f"buffer_load_dword v4, {sr(SX,4)}, s{88+k} offen offset:1024 lds @@x")
    p(f"s_load_dword s{sEP}, {sr(SW,2)}, 0\nv_mov_b32 v5, {CNT}\nv_mov_b32 v6, 0\nds_write_b32 v5, v6")
    map4(p); swz_src(p, vWSS, 8192, 10)
    bulk = p.capture(lambda q: [xchunk_dma(q, c_, XBUF[c_]) for c_ in range(X.get('nc', 0))])
    cut = [i for i, l in enumerate(bulk) if l.startswith("buffer_load")]
    cut = cut[min(len(cut), X.get('cb0', 4))-1]+1 if (X.get('cb0', 4) and cut) else 0
    p("\n".join(bulk[:cut])); p(f"s_mov_b32 s87, s{t}"); bulk = [f"s_mov_b32 s{t}, s87"] + bulk[cut:]
    vJ, vD, vM, vFJ0, vAW, vTW = 9, 12, 16, 20, 21, 25
    p(f"v_and_b32 v{vJ}, 31, v{vLANE}")
    p(f"v_cmp_eq_u32 {sr(sJ0M,2)}, 0, v{vJ}\nv_cmp_eq_u32 {sr(sJ31M,2)}, 31, v{vJ}")
    p(f"v_lshrrev_b32 v10, 5, v{vLANE}\nv_mul_u32_u24 v11, 5120, v10\nv_add_u32 v11, s{sXR}, v11\nv_mul_u32_u24 v{vJ}, 20, v{vJ}")
    p(f"v_add_u32 v{vD}, v11, v{vJ}\nv_sub_u32 v{vM}, v11, v{vJ}\nv_add_u32 v{vM}, 1260, v{vM}")
    for kk in range(1, 4): p(f"v_add_u32 v{vD+kk}, {1280*kk}, v{vD}\nv_add_u32 v{vM+kk}, {1280*kk}, v{vM}")
    p(f"v_cndmask_b32 v{vFJ0}, 0, 1.0, {sr(sJ0M,2)}")
    p(f"v_mul_u32_u24 v11, 640, v10\nv_add3_u32 v{vAW}, v11, v{vJ}, s{sXR}")
    for cmb in range(1, 4): p(f"v_add_u32 v{vAW+cmb}, {1280*cmb}, v{vAW}")
    p(f"s_lshl_b32 s{t}, s{sWAVE}, 3\ns_add_u32 s{t}, s{t}, {P1_T}\nv_lshl_add_u32 v{vTW}, v10, 2, s{t}")
    p(f"s_mov_b32 s93, {fhex(1/640)}\ns_mov_b32 s94, {fhex(1/1280)}\ns_mov_b32 s95, {fhex(1e-5)}\ns_waitcnt lgkmcnt(0)")
    epoch_fix(p)
    if X.get('gs', 1) == 2: gen_seq(p)
    p("@wait vm=x")
    stamp(p, 20)
    RAW = 64
    for kk in range(4):
        r = RAW + 12*kk
        p(f"ds_read2_b32 {vr(r,2)}, v{vD+kk} offset0:0 offset1:1")
        p(f"ds_read2_b32 {vr(r+10,2)}, v{vM+kk} offset0:4 offset1:5")
        p(f"ds_read2_b32 {vr(r+8,2)}, v{vM+kk} offset0:2 offset1:3")
        p(f"ds_read2_b32 {vr(r+2,2)}, v{vD+kk} offset0:2 offset1:3")
        p(f"ds_read2_b32 {vr(r+6,2)}, v{vM+kk} offset0:0 offset1:1")
        p(f"ds_read_b32 v{r+4}, v{vD+kk} offset:16 @@xr{kk}")
    T, CA = 112, 152
    S2 = [48, 50, 52, 54]; Q2 = [56, 58, 60, 62]; Y = [26, 27, 28, 29]
    for kk in range(4):
        r = RAW + 12*kk
        p(f"@wait lg=xr{kk}")
        for k in range(5):
            a, b = 4, 6
            p(f"v_lshlrev_b32 v{a}, 16, v{r+k}\nv_and_b32 v{a+1}, s{sMASKHI}, v{r+k}")
            p(f"v_lshlrev_b32 v{b}, 16, v{r+6+5-k}\nv_and_b32 v{b+1}, s{sMASKHI}, v{r+6+4-k}")
            if k == 0: p(f"v_cndmask_b32 v{b}, v{b}, 0, {sr(sJ0M,2)}")
            tt, cc = T+10*kk+2*k, CA+10*kk+2*k
            p(f"v_pk_add_f32 {vr(tt,2)}, {vr(a,2)}, {vr(b,2)}")
            p(f"v_pk_add_f32 {vr(cc,2)}, {vr(a,2)}, {vr(b,2)} neg_lo:[0,1] neg_hi:[0,1]")
            if k == 0: p(f"v_pk_mul_f32 {vr(Q2[kk],2)}, {vr(tt,2)}, {vr(tt,2)}")
            else:
                p(f"v_pk_add_f32 {vr(S2[kk],2)}, {vr(tt,2)}, {vr(S2[kk] if k > 1 else tt-2,2)}")
                p(f"v_pk_fma_f32 {vr(Q2[kk],2)}, {vr(tt,2)}, {vr(tt,2)}, {vr(Q2[kk],2)}")
            p(f"v_pk_fma_f32 {vr(Q2[kk],2)}, {vr(cc,2)}, {vr(cc,2)}, {vr(Q2[kk],2)}")
        p(f"v_lshlrev_b32 v{Y[kk]}, 16, v{r+6}\nv_cndmask_b32 v{Y[kk]}, 0, v{Y[kk]}, {sr(sJ31M,2)}")
        p(f"v_add_f32 v{S2[kk]}, v{S2[kk]}, v{S2[kk]+1}\nv_add_f32 v{Q2[kk]}, v{Q2[kk]}, v{Q2[kk]+1}")
        p(f"v_add_f32 v{S2[kk]}, v{S2[kk]}, v{Y[kk]}\nv_add_f32 v4, v{Y[kk]}, v{Y[kk]}\nv_fmac_f32 v{Q2[kk]}, v4, v{Y[kk]}")
    red = S2 + Q2
    for mod in ("quad_perm:[1,0,3,2]", "quad_perm:[2,3,0,1]", "row_half_mirror", "row_mirror"):
        for x in red: p(f"v_add_f32_dpp v{x}, v{x}, v{x} {mod} {FULL}")
    for x in red: p(f"v_mov_b32 v{x+1}, v{x}")
    for x in red: p(f"v_permlane16_swap_b32 v{x}, v{x+1}")
    for x in red: p(f"v_add_f32 v{x}, v{x}, v{x+1}")
    M = lambda k: S2[k]
    R = lambda k: Q2[k]
    for k in range(4): p(f"v_mul_f32 v{M(k)}, s93, v{M(k)}")
    for k in range(4): p(f"v_mul_f32 v{M(k)+1}, v{M(k)}, v{M(k)}")
    for k in range(4): p(f"v_fma_f32 v{R(k)}, v{R(k)}, s94, -v{M(k)+1}")
    for k in range(4): p(f"v_add_f32 v{R(k)}, s95, v{R(k)}")
    for k in range(4): p(f"v_rsq_f32 v{R(k)}, v{R(k)}")
    for k in range(4): p(f"v_fmac_f32 v{T+10*k}, v{vFJ0}, v{M(k)}")
    for k in range(4): p(f"v_sub_f32 v{Y[k]}, v{Y[k]}, v{M(k)}")
    OUT = 64; A1, A3, B0, B2, B1, K1, K2 = 72, 74, 76, 78, 80, 82, 84; U, W, e = 86, 90, 94
    g0 = sr(sG0M, 2)
    p(f"v_cndmask_b32 v{A1}, v{R(1)}, 0, {g0}\nv_cndmask_b32 v{A3}, v{R(3)}, 0, {g0}")
    p(f"v_cndmask_b32 v{B0}, v{R(0)}, 0, {g0}\nv_cndmask_b32 v{B2}, v{R(2)}, 0, {g0}")
    p(f"v_cndmask_b32 v{B1}, -v{R(1)}, v{R(1)}, {g0}")
    p(f"v_mul_f32 v{K1}, v{R(0)}, v{M(0)}\nv_mul_f32 v{K2}, v{R(2)}, v{M(2)}")
    p(f"v_fmac_f32 v{K1}, v{A1}, v{M(1)}\nv_fmac_f32 v{K2}, v{A3}, v{M(3)}")
    p(f"v_mul_f32 v{K1}, -2.0, v{K1}\nv_mul_f32 v{K2}, -2.0, v{K2}")
    bc = "op_sel_hi:[0,1,0]"; bc1 = "op_sel_hi:[0,1,1]"
    for k in range(5):
        tt = lambda r_: vr(T+10*r_+2*k, 2)
        cc = lambda r_: vr(CA+10*r_+2*k, 2)
        u, w = U, U+2; u2, w2 = W, W+2
        p(f"v_pk_fma_f32 {vr(u,2)}, {vr(R(0),2)}, {tt(0)}, {vr(K1,2)} {bc}")
        p(f"v_pk_fma_f32 {vr(w,2)}, {vr(R(2),2)}, {tt(2)}, {vr(K2,2)} {bc}")
        p(f"v_pk_mul_f32 {vr(u2,2)}, {vr(B0,2)}, {cc(0)} op_sel_hi:[0,1]")
        p(f"v_pk_mul_f32 {vr(w2,2)}, {vr(B2,2)}, {cc(2)} op_sel_hi:[0,1]")
        p(f"v_pk_fma_f32 {vr(u,2)}, {vr(A1,2)}, {tt(1)}, {vr(u,2)} {bc1}")
        p(f"v_pk_fma_f32 {vr(w,2)}, {vr(A3,2)}, {tt(3)}, {vr(w,2)} {bc1}")
        p(f"v_pk_fma_f32 {vr(u2,2)}, {vr(B1,2)}, {cc(1)}, {vr(u2,2)} {bc1}")
        p(f"v_pk_fma_f32 {vr(w2,2)}, {vr(R(3),2)}, {cc(3)}, {vr(w2,2)} {bc1} neg_lo:[1,0,0] neg_hi:[1,0,0]")
        p(f"v_pk_add_f32 {vr(e,2)}, {vr(u,2)}, {vr(w,2)}")
        p(f"v_pk_add_f32 {vr(e+2,2)}, {vr(u,2)}, {vr(w,2)} neg_lo:[0,1] neg_hi:[0,1]")
        p(f"v_pk_add_f32 {vr(e+4,2)}, {vr(u2,2)}, {vr(w2,2)} neg_lo:[0,1] neg_hi:[0,1]")
        p(f"v_pk_add_f32 {vr(e+6,2)}, {vr(u2,2)}, {vr(w2,2)}")
        o = lambda cmb, kk_: (OUT+2*cmb+(kk_ & 1)) if kk_ < 4 else 102+cmb
        for cmb in range(4): p(f"v_cvt_pk_bf16_f32 v{o(cmb,k)}, v{e+2*cmb}, v{e+2*cmb+1}")
        if k in (1, 3):
            for cmb in range(4): p(f"ds_write2_b32 v{vAW+cmb}, v{OUT+2*cmb}, v{OUT+2*cmb+1} offset0:{k-1} offset1:{k}")
    for cmb in range(4): p(f"ds_write_b32 v{vAW+cmb}, v{102+cmb} offset:16")
    p(f"v_mul_f32 v{U}, v{R(0)}, v{Y[0]}\nv_mul_f32 v{U+1}, v{R(2)}, v{Y[2]}")
    p(f"v_fmac_f32 v{U}, v{A1}, v{Y[1]}\nv_fmac_f32 v{U+1}, v{A3}, v{Y[3]}")
    p(f"v_add_f32 v{U+2}, v{U}, v{U+1}\nv_sub_f32 v{U+3}, v{U}, v{U+1}")
    p(f"s_mov_b64 exec, {sr(sJ31M,2)}\nds_write2_b32 v{vTW}, v{U+2}, v{U+3} offset0:0 offset1:8\ns_mov_b64 exec, -1")
    with cond(p, f"s_cmp_lg_u32 s{sG}, 0"):
        p(f"v_mul_f32 v{K1}, v{R(1)}, v{M(1)}\nv_fmac_f32 v{K1}, v{R(3)}, v{M(3)}\nv_mul_f32 v{K1}, -2.0, v{K1}")
        for k in range(5):
            p(f"v_pk_fma_f32 {vr(W,2)}, {vr(R(1),2)}, {vr(T+10+2*k,2)}, {vr(K1,2)} {bc}")
            p(f"v_pk_fma_f32 {vr(W,2)}, {vr(R(3),2)}, {vr(T+30+2*k,2)}, {vr(W,2)} {bc1}")
            p(f"v_cvt_pk_bf16_f32 v{106+k}, v{W}, v{W+1}")
        p(f"v_mul_f32 v{W}, v{R(1)}, v{Y[1]}\nv_fmac_f32 v{W}, v{R(3)}, v{Y[3]}")
        p(f"v_add_u32 v11, {P1_XA}, v{vJ}\nv_mov_b32 v10, {P1_T+64}\ns_mov_b64 exec, {g0}")
        p(f"ds_write2_b32 v11, v106, v107 offset0:0 offset1:1\nds_write2_b32 v11, v108, v109 offset0:2 offset1:3\nds_write_b32 v11, v110 offset:16")
        p(f"s_mov_b64 exec, 0x80000000\nds_write_b32 v10, v{W}\ns_mov_b64 exec, -1")
    stamp(p, 21)
    p("s_waitcnt lgkmcnt(0)"); bar(p, "B1")
    stamp(p, 22)
    p("\n".join(bulk))

def recur(p, P, k2, n=2):
    for j in range(2, 8):
        for c in range(n):
            p(f"v_pk_fma_f32 {vr(P[c]+2*j,2)}, {k2}, {vr(P[c]+2*j-2,2)}, {vr(P[c]+2*j-4,2)} neg_lo:[0,0,1] neg_hi:[0,0,1]".replace("£", ""))
def gen_hid(p, vE, dC, dS, T):
    EF, X0, CT, SP, K2 = T+32, T+33, T+34, T+36, T+38
    p(f"v_mul_f32 v{EF}, {fhex(1/640)}, v{vE}\nv_lshrrev_b32 v{X0}, 4, v{vLANE}\nv_lshlrev_b32 v{X0}, 3, v{X0}\nv_cvt_f32_u32 v{X0}, v{X0}\nv_mul_f32 v{X0}, v{X0}, v{EF}")
    p(f"v_cos_f32 v{CT}, v{EF}\nv_sin_f32 v{SP}, v{EF}\nv_sin_f32_e64 v{SP+1}, -v{EF}\nv_add_f32 v{K2}, v{CT}, v{CT}")
    P = [T, T+16]
    for kp in range(5):
        for c in range(2):
            ks = 2*kp + c
            p(f"v_fmamk_f32 v{P[c]+2}, v{EF}, {fhex(32.0*ks)}, v{X0}" if ks else f"v_mov_b32 v{P[c]+2}, v{X0}")
        for c in range(2): p(f"v_cos_f32 v{P[c]}, v{P[c]+2}\nv_sin_f32_e64 v{P[c]+1}, -v{P[c]+2}")
        for c in range(2): p(f"v_pk_mul_f32 {vr(P[c]+2,2)}, {vr(P[c],2)}, {vr(CT,2)} op_sel_hi:[1,0]")
        for c in range(2): p(f"v_pk_fma_f32 {vr(P[c]+2,2)}, {vr(P[c],2)}, {vr(SP,2)}, {vr(P[c]+2,2)} op_sel:[1,0,0] op_sel_hi:[0,1,1]")
        for j in range(2, 8):
            for c in range(2): p(f"v_pk_fma_f32 {vr(P[c]+2*j,2)}, {vr(K2,2)}, {vr(P[c]+2*j-2,2)}, {vr(P[c]+2*j-4,2)} op_sel_hi:[0,1,1] neg_lo:[0,0,1] neg_hi:[0,0,1]")
        for c in range(2):
            for jj in range(4):
                if dC is not None: p(f"v_cvt_pk_bf16_f32 v{dC+4*(2*kp+c)+jj}, v{P[c]+4*jj}, v{P[c]+4*jj+2}")
                if dS is not None: p(f"v_cvt_pk_bf16_f32 v{dS+4*(2*kp+c)+jj}, v{P[c]+4*jj+1}, v{P[c]+4*jj+3}")
def gen_seq(p):
    T = 88; TF, BS, K2, O = T+32, T+34, T+36, T+40
    p(f"s_lshl_b32 s{t}, s{sI2}, 5\ns_add_u32 s{t+1}, s{t}, 32\ns_add_u32 s{t}, s{t}, s{sP2}\nv_and_b32 v{TF}, 15, v{vLANE}\nv_lshl_add_u32 v{TF}, v{TF}, 1, s{t}\nv_cvt_f32_u32 v{TF}, v{TF}\nv_cvt_f32_u32 v{TF+1}, s{t+1}")
    p(f"v_mul_f32 v{TF}, {fhex(1/2048)}, v{TF}\nv_mul_f32 v{TF+1}, {fhex(1/2048)}, v{TF+1}")
    p(f"s_and_b32 s{t}, s{sWAVE}, 1\ns_lshl_b32 s{t}, s{t}, 8\nv_lshrrev_b32 v{O}, 4, v{vLANE}\nv_lshl_add_u32 v{O}, v{O}, 3, s{t}\nv_cvt_f32_u32 v{O}, v{O}")
    p(f"s_cmp_ge_u32 s{sWAVE}, 2\ns_cselect_b32 s{t}, {fhex(0.25)}, 0\nv_fma_f32 v{BS}, v{TF}, v{O}, s{t}\nv_fma_f32 v{BS+1}, v{TF+1}, v{O}, s{t}")
    p(f"v_cos_f32 v{K2}, v{TF}\nv_cos_f32 v{K2+1}, v{TF+1}\ns_add_u32 s{t+1}, s{sI2}, s{sQ2}\ns_lshl_b32 s{t+1}, s{t+1}, 1\nv_pk_add_f32 {vr(K2,2)}, {vr(K2,2)}, {vr(K2,2)}")
    P = [T, T+16]
    for kp in range(4):
        for c in range(2):
            p(f"s_add_u32 s{t}, s{t+1}, {2*kp+c}\ns_and_b32 s{t}, s{t}, 7\ns_lshl_b32 s{t}, s{t}, 5\nv_cvt_f32_u32 v{O}, s{t}\nv_pk_fma_f32 {vr(P[c],2)}, {vr(TF,2)}, {vr(O,2)}, {vr(BS,2)} op_sel_hi:[1,0,1]")
            p(f"v_fract_f32 v{P[c]}, v{P[c]}\nv_fract_f32 v{P[c]+1}, v{P[c]+1}\nv_pk_add_f32 {vr(P[c]+2,2)}, {vr(P[c],2)}, {vr(TF,2)}")
        for c in range(2):
            for r in range(4): p(f"v_cos_f32 v{P[c]+r}, v{P[c]+r}")
        for j in range(2, 8):
            for c in range(2): p(f"v_pk_fma_f32 {vr(P[c]+2*j,2)}, {vr(K2,2)}, {vr(P[c]+2*j-2,2)}, {vr(P[c]+2*j-4,2)} neg_lo:[0,0,1] neg_hi:[0,0,1]")
        for c in range(2):
            for jj in range(4): p(f"v_cvt_pk_bf16_f32 v{O+2+jj}, v{P[c]+4*jj}, v{P[c]+4*jj+2}\nv_cvt_pk_bf16_f32 v{O+6+jj}, v{P[c]+4*jj+1}, v{P[c]+4*jj+3}")
            for jj in range(4): p(f"v_accvgpr_write_b32 a{A_MF+4*(2*kp+c)+jj}, v{O+2+jj}\nv_accvgpr_write_b32 a{A_MX+4*(2*kp+c)+jj}, v{O+6+jj}")
P2_XD, P2_RING, P2_ACC, P2_ACX, P2_XB = 32, 64, 144, 164, 184
vPW, vRA, vRB, vHA, vHB, vSA, vSB, vXBo, vSG2, vSP2 = 16, 17, 18, 19, 20, 21, 22, 23, 24, 26
def P2_xload(p):
    p(f"v_and_b32 v10, 3, v{vLANE}\ns_lshl_b32 s{t+3}, s{sWAVE}, 2\nv_add_u32 v10, s{t+3}, v10\nv_mul_u32_u24 v10, 2560, v10")
    p(f"v_lshrrev_b32 v11, 2, v{vLANE}\nv_lshlrev_b32 v11, 4, v11\ns_mul_i32 s{t+3}, s{sQ2}, 160\nv_add_u32 v11, s{t+3}, v11")
    p(f"v_sub_u32 v28, 1264, v11\nv_add_u32 v29, 16, v28\nv_cmp_eq_u32 vcc, 0, v11\nv_mov_b32 v30, 640\nv_cndmask_b32 v29, v29, v30, vcc")
    p(f"s_lshl_b32 s{t}, s{sI2}, 5\ns_add_u32 s{t+1}, s{t}, s{sP2}\ns_mul_i32 s{t+1}, s{t+1}, 1280")
    p(f"s_sub_u32 s{t}, s{sP2}, s{t}\ns_add_u32 s{t}, s{t}, 2046\ns_mul_i32 s{t}, s{t}, 1280")
    p(f"v_add_u32 v30, s{t+1}, v10\nv_sub_u32 v31, s{t}, v10")
    for sd in range(2):
        r = P2_RING + 12*sd
        p(f"v_add_u32 v10, v{30+sd}, v11\nbuffer_load_dwordx4 {vr(r,4)}, v10, {sr(SX,4)}, 0 offen")
        p(f"v_add_u32 v10, v{30+sd}, v28\nbuffer_load_dwordx4 {vr(r+4,4)}, v10, {sr(SX,4)}, 0 offen")
        p(f"v_add_u32 v10, v{30+sd}, v29\nbuffer_load_dword v{r+8}, v10, {sr(SX,4)}, 0 offen @@xp")
def P2_prepA(p):
    p(f"s_lshr_b32 s{t}, s{sWAVE}, 1\ns_lshl_b32 s{t}, s{t}, 1\ns_add_u32 s{t}, s{t}, s{sP2}\ns_lshl_b32 s{t}, s{t}, 2\ns_add_u32 s{t}, s{t}, s{sQ2}")
    p(f"s_lshl_b32 s{t}, s{t}, 1\ns_and_b32 s{t+1}, s{sWAVE}, 1\ns_add_u32 s{t}, s{t}, s{t+1}\ns_mul_i32 s{t}, s{t}, 40960\ns_add_u32 s{t}, s{t}, {WS_AB}")
    p(f"s_add_u32 s{t+1}, s{sI2}, s{sQ2}\ns_and_b32 s{t+1}, s{t+1}, 3\ns_lshl_b32 s{t+1}, s{t+1}, 1")
    for k in range(8):
        p(f"s_add_u32 s{t+2}, s{t+1}, {k}\ns_and_b32 s{t+2}, s{t+2}, 7\ns_mul_i32 s{t+2}, s{t+2}, 5120\ns_add_u32 s{80+k}, s{t+2}, s{t}")
    p(f"v_add_u32 v3, 4096, v{vL16}")
    p(f"v_lshrrev_b32 v10, 2, v{vLANE}\nv_lshlrev_b32 v{vXBo}, 5, v10\ns_mul_i32 s69, s{sQ2}, 320\ns_mul_i32 s{t+1}, s{sP2}, 1280\ns_add_u32 s69, s69, s{t+1}\ns_add_u32 s69, s69, {WS_XB}")
    p(f"s_mul_i32 s{t+2}, s{sWAVE}, {SCR_W}\ns_add_u32 s{t+2}, s{t+2}, {SCR+256}")
    p(f"v_and_b32 v12, 15, v{vLANE}\nv_mul_u32_u24 v12, 336, v12\nv_lshrrev_b32 v13, 4, v{vLANE}\nv_lshl_add_u32 v12, v13, 4, v12\nv_add_u32 v{vPW}, s{t+2}, v12")
    p(f"v_and_b32 v12, 3, v{vLANE}\ns_lshl_b32 s{t+3}, s{sWAVE}, 2\nv_add_u32 v12, s{t+3}, v12")
    p(f"v_mul_u32_u24 v13, 336, v12\nv_add_u32 v13, {SCR+256}, v13\nv_add_u32 v{vRA}, v13, v{vXBo}")
    p(f"s_cmp_eq_u32 s{sP2}, 0\ns_cselect_b32 s{t+3}, 336, 0\ns_cselect_b32 s{t+4}, 0, 0x80000000\nv_add_u32 v{vRB}, s{t+3}, v{vRA}")
    p(f"v_lshlrev_b32 v13, 8, v10\nv_lshl_add_u32 v{vHA}, v12, 4, v13\nv_sub_u32 v14, 15, v12\nv_lshl_add_u32 v{vHB}, v14, 4, v13")
    p(f"v_lshlrev_b32 v{vSG2}, 31, v{vLANE}\nv_or_b32 v{vSG2}, 1.0, v{vSG2}\nv_xor_b32 v{vSP2}, s{t+4}, v{vSG2}")
    p(f"v_lshlrev_b32 v{vSA}, 3, v12\nv_lshlrev_b32 v{vSB}, 3, v14")
    p(f"s_cmp_eq_u32 s{sQ2}, 0\ns_cselect_b32 s70, 15, 0\ns_mov_b32 s71, 0")
    p(f"s_lshl_b32 s{t}, s{sI2}, 1\ns_add_u32 s{t}, s{t}, s{sP2}\ns_sub_u32 s{t+1}, 126, s{t}\ns_lshl_b32 s{t+3}, s{sP2}, 1\ns_add_u32 s{t+1}, s{t+1}, s{t+3}")
    p(f"s_mul_i32 s{t+3}, s{sQ2}, 2560\ns_add_u32 s{t+3}, s{t+3}, {WS_H}\ns_lshl_b32 s{t+4}, s{sQ2}, 7\ns_add_u32 s{t+4}, s{t+4}, {WS_HS}")
    for (sh, ss, src) in ((88, 92, t), (90, 93, t+1)):
        p(f"s_mul_i32 s{sh}, s{src}, 20480\ns_add_u32 s{sh}, s{sh}, s{t+3}\ns_add_u32 s{sh+1}, s{sh}, 10240")
        p(f"s_lshl_b32 s{ss}, s{src}, 9\ns_add_u32 s{ss}, s{ss}, s{t+4}")
    p(f"v_cmp_gt_u32 vcc, 40, v{vLANE}\nv_mov_b32 v10, 0x40000000\nv_cndmask_b32 v{vHA}, v10, v{vHA}, vcc\nv_cndmask_b32 v{vHB}, v10, v{vHB}, vcc")
def P2_prepB(p):
    p("@wait vm=xp")
    for sd in range(2):
        r = P2_RING + 12*sd; x = P2_XD + 16*sd
        for k in range(4): p(f"v_lshlrev_b32 v{x+2*k}, 16, v{r+k}\nv_and_b32 v{x+2*k+1}, s{sMASKHI}, v{r+k}")
        p(f"v_lshlrev_b32 v{x+8}, 16, v{r+8}")
        for i in range(1, 8):
            wi = 8 - i
            if wi & 1: p(f"v_and_b32 v{x+8+i}, s{sMASKHI}, v{r+4+(wi>>1)}")
            else: p(f"v_lshlrev_b32 v{x+8+i}, 16, v{r+4+(wi>>1)}")
def P2_main(p):
    RING, ACC, ACX = P2_RING, P2_ACC, P2_ACX
    def ld(k):
        for nt in range(5):
            r = RING + ((k & 3)*5 + nt)*4
            p(f"buffer_load_dwordx4 {vr(r,4)}, v{vL16 if nt < 4 else 3}, {sr(SW,4)}, s{80+k} offen offset:{(nt&3)*1024} sc1 @@ab{k}_{nt}")
    for k in range(4): ld(k)
    p(f"buffer_load_dwordx4 {vr(P2_XB,4)}, v{vXBo}, {sr(SW,4)}, s69 offen sc1\nbuffer_load_dwordx4 {vr(P2_XB+4,4)}, v{vXBo}, {sr(SW,4)}, s69 offen offset:16 sc1")
    for k in range(8):
        for nt in range(5):
            r = RING + ((k & 3)*5 + nt)*4
            p(f"@wait vm=ab{k}_{nt}")
            p(f"{MF16} {vr(ACC+4*nt,4)}, {vr(r,4)}, {ar(A_MF+4*k,4)}, {vr(ACC+4*nt,4) if k else 0}")
            p(f"{MF16} {vr(ACX+4*nt,4)}, {vr(r,4)}, {ar(A_MX+4*k,4)}, {vr(ACX+4*nt,4) if k else 0}")
        if k < 4: ld(k+4)
        if k == X.get('b3b', 4): bar(p, "B3b")
    stamp(p, 23)
    for nt in range(5): p(f"ds_write_b128 v{vPW}, {vr(ACC+4*nt,4)} offset:{64*nt}")
    p("s_mov_b32 exec_lo, 0x00010001\ns_mov_b32 exec_hi, 0x00010001")
    for nt in range(5): p(f"ds_write_b128 v{vPW}, {vr(ACX+4*nt,4)} offset:{16*336+64*nt}")
    p("s_mov_b64 exec, -1\ns_waitcnt lgkmcnt(0)"); bar(p, "B4")
    STt = 160; L = P2_RING
    for sd in range(2):
        for hh in range(2):
            for wv in range(4):
                p(f"ds_read_b128 {vr(L+32*sd+8*wv+4*hh,4)}, v{vRA if sd == 0 else vRB} offset:{wv*SCR_W+16*hh} @@pq{sd}{hh}")
    for sd in range(2):
        b = L + 32*sd; x = P2_XD + 16*sd; o = 144 + 8*sd
        su = (vSG2, 0) if sd == 0 else (vSP2, 1)
        sw = (vSP2, 0) if sd == 0 else (vSG2, 1)
        for k in range(4):
            p(f"@wait lg=pq{sd}{k>>1}")
            P0, P1_, Q0, Q1 = b+2*k, b+8+2*k, b+16+2*k, b+24+2*k
            p(f"v_pk_add_f32 {vr(P0,2)}, {vr(P0,2)}, {vr(P1_,2)}\nv_pk_add_f32 {vr(Q0,2)}, {vr(Q0,2)}, {vr(Q1,2)}")
            p(f"v_pk_add_f32 {vr(P1_,2)}, {vr(P0,2)}, {vr(Q0,2)} neg_lo:[0,1] neg_hi:[0,1]")
            p(f"v_pk_add_f32 {vr(Q1,2)}, {vr(P0,2)}, {vr(Q0,2)}")
            for (dst, (sv, ng)) in ((P1_, su), (Q1, sw)):
                p(f"v_pk_fma_f32 {vr(dst,2)}, {vr(sv,2)}, {vr(P2_XB+2*k,2)}, {vr(dst,2)} op_sel_hi:[0,1,1]" + (" neg_lo:[1,0,0] neg_hi:[1,0,0]" if ng else ""))
            lo, hi = (P1_, Q1) if sd == 0 else (Q1, P1_)
            if k == 0: p(f"v_cndmask_b32 v{lo}, v{lo}, 0, s[70:71]")
            p(f"v_pk_add_f32 {vr(x+2*k,2)}, {vr(x+2*k,2)}, {vr(lo,2)}\nv_pk_add_f32 {vr(x+8+2*k,2)}, {vr(x+8+2*k,2)}, {vr(hi,2)}")
            p(f"v_cvt_pk_bf16_f32 v{o+k}, v{x+2*k}, v{x+2*k+1}\nv_cvt_pk_bf16_f32 v{o+4+k}, v{x+8+2*k}, v{x+8+2*k+1}")
        sh = 88 if sd == 0 else 90; vh = vHA if sd == 0 else vHB
        p(f"buffer_store_dwordx4 {vr(o,4)}, v{vh}, {sr(SW,4)}, s{sh} offen")
        p(f"buffer_store_dwordx4 {vr(o+4,4)}, v{vh}, {sr(SW,4)}, s{sh+1} offen")
    for k in range(8):
        for sd in range(2):
            x = P2_XD + 16*sd; s_, q_ = STt+4*sd, STt+4*sd+2
            if k == 0: p(f"v_pk_mul_f32 {vr(q_,2)}, {vr(x,2)}, {vr(x,2)}")
            else: p(f"v_pk_add_f32 {vr(s_,2)}, {vr(s_ if k > 1 else x,2)}, {vr(x+2*k,2)}\nv_pk_fma_f32 {vr(q_,2)}, {vr(x+2*k,2)}, {vr(x+2*k,2)}, {vr(q_,2)}")
    red = [STt, STt+2, STt+4, STt+6]
    p(f"v_cmp_gt_u32 vcc, 40, v{vLANE}")
    for x in red: p(f"v_add_f32 v{x}, v{x}, v{x+1}")
    for x in red: p(f"v_cndmask_b32 v{x}, 0, v{x}, vcc")
    for mod in ("row_ror:4", "row_ror:8"):
        for x in red: p(f"v_add_f32_dpp v{x}, v{x}, v{x} {mod} {FULL}")
    for sw in ("v_permlane16_swap_b32", "v_permlane32_swap_b32"):
        for x in red: p(f"v_mov_b32 v{x+1}, v{x}")
        for x in red: p(f"{sw} v{x}, v{x+1}")
        for x in red: p(f"v_add_f32 v{x}, v{x}, v{x+1}")
    p(f"v_mov_b32 v{STt+1}, v{STt+2}\nv_mov_b32 v{STt+5}, v{STt+6}\ns_mov_b64 exec, 15")
    p(f"buffer_store_dwordx2 {vr(STt,2)}, v{vSA}, {sr(SW,4)}, s92 offen\nbuffer_store_dwordx2 {vr(STt+4,2)}, v{vSB}, {sr(SW,4)}, s93 offen")
    p("s_mov_b64 exec, -1")

P3_AZ2, P3_AZ1, P3_BF = 16, 40, 160
vWB1 = 184; sGK1 = 90; vK0 = 14
def HF(ks, par):
    i = 2*ks + par
    return vr(64+4*i, 4) if i < 24 else ar(4*(i-24), 4)
def P3_prep(p):
    p(f"v_add_u32 v{vWB1}, {WZ}, v{vL16}\nv_mov_b32 v188, 0xffffff00")
    p(f"s_lshl_b32 s80, s{sRB3}, 10\ns_add_u32 s80, s80, {WS_HS}")
    p(f"s_mul_i32 s81, s{sRB3}, 40960\ns_add_u32 s81, s81, {WS_H}\ns_add_u32 s82, s81, 20480")
    p(f"s_mov_b32 s{sGK1}, {fhex(GK1)}\ns_mov_b32 s{sGK1+1}, {fhex(GK1)}\nv_mov_b32 v{vK0}, {fhex(GK0)}")
    p(f"s_lshl_b32 s83, s{sRB3}, 12\ns_add_u32 s83, s83, {WS_ZS}\ns_lshl_b32 s84, s{sJ3}, 4\ns_add_u32 s84, s84, s83")
    p(f"s_mul_i32 s85, s{sJ3}, 192\ns_add_u32 s85, s85, s{sRB3}\ns_lshl_b32 s85, s85, 10\ns_add_u32 s85, s85, {WS_Z2}\ns_add_u32 s92, s85, 65536\ns_add_u32 s93, s85, 131072")
    p(f"s_lshl_b32 s86, s{sWAVE}, 8\ns_add_u32 s86, s86, {TBL}\ns_mov_b32 s87, {fhex(1e-5)}\ns_mov_b32 s88, {fhex(1/640)}\ns_mov_b32 s89, {fhex(1/768)}")
    p(f"v_lshrrev_b32 v185, 5, v{vLANE}\nv_lshlrev_b32 v185, 6, v185\nv_and_b32 v10, 7, v{vLANE}\nv_lshl_add_u32 v185, v10, 3, v185\nv_add_u32 v185, s86, v185")
    p(f"v_lshrrev_b32 v12, 4, v{vLANE}\nv_lshl_add_u32 v12, v12, 4, s86")
    p(f"v_and_b32 v10, 15, v{vLANE}\nv_lshlrev_b32 v186, 2, v10\nv_add_u32 v186, {CST}, v186")
    p(f"v_lshrrev_b32 v187, 2, v{vLANE}\nv_lshlrev_b32 v187, 8, v187\nv_and_b32 v10, 3, v{vLANE}\nv_lshl_add_u32 v13, v10, 4, v187")
def gelu4(p, x, tmp):
    for step in range(6):
        for h in range(2):
            xx = x+2*h; a = tmp+4*h; b = a+2
            if step == 0: p(f"v_pk_mul_f32 {vr(a,2)}, {vr(xx,2)}, {vr(xx,2)}")
            if step == 1: p(f"v_pk_fma_f32 {vr(a,2)}, {vr(a,2)}, {sr(sGK1,2)}, {vr(vK0,2)} op_sel_hi:[1,1,0]")
            if step == 2: p(f"v_pk_mul_f32 {vr(a,2)}, {vr(a,2)}, {vr(xx,2)}")
            if step == 3: p(f"v_exp_f32 v{b}, v{a}\nv_exp_f32 v{b+1}, v{a+1}")
            if step == 4: p(f"v_pk_add_f32 {vr(b,2)}, {vr(b,2)}, 1.0 op_sel_hi:[1,0]")
            if step == 5: p(f"v_rcp_f32 v{a}, v{b}\nv_rcp_f32 v{a+1}, v{b+1}")
    for h in range(2): p(f"v_pk_mul_f32 {vr(x+2*h,2)}, {vr(x+2*h,2)}, {vr(tmp+4*h,2)}")
def hfrag(p, ks):
    if ks >= 20: return
    for par in range(2):
        p(f"buffer_load_dwordx4 {HF(ks,par)}, v{vL16}, {sr(SW,4)}, s{81+par} offen offset:{(ks&3)*1024} sc1 @@h{ks}")
    if (ks & 3) == 3 and ks < 19: p(f"s_add_u32 s81, s81, 4096\ns_add_u32 s82, s82, 4096")
def P3_pass(p, z1, k0=0, k1=20):
    acc = P3_AZ1 if z1 else P3_AZ2
    HA = X.get('ha', 6)
    seq = [(ks, nt) for ks in range(k0, k1) for nt in range(3)]
    def rd(i):
        if i < len(seq):
            ks, nt = seq[i]
            p(f"ds_read_b128 {vr(P3_BF+4*(i%6),4)}, v{vWB1 if z1 else vL16} offset:{nt*20480+ks*1024} @@wf{z1}_{ks}_{nt}")
    for i in range(5): rd(i)
    for i, (ks, nt) in enumerate(seq):
        p(f"@wait lg=wf{z1}_{ks}_{nt}" + (f" vm=h{ks}" if not z1 else ""))
        bf = vr(P3_BF+4*(i%6), 4)
        for par in range(2):
            a = vr(acc + (par*3+nt)*4, 4); c = a if ks else 0
            p(f"{MF16} {a}, {bf}, {HF(ks,par)}, {c}" if z1 else f"{MF16} {a}, {HF(ks,par)}, {bf}, {c}")
        rd(i+5)
        if not z1 and nt == 0: hfrag(p, ks+HA)
        if not z1 and (ks, nt) == (X.get('ln1k', 3), 2): P3_ln1(p)
        if not z1 and (ks, nt) == (X.get('b5a', 10), 2): bar(p, "B5a")
def P3_loads(p):
    for ks in range(X.get('ha', 6)):
        hfrag(p, ks)
        if ks == 1: p(f"buffer_load_dwordx4 v[4:7], v{vL16}, {sr(SW,4)}, s80 offen sc1 @@hs")
def P3_ln1(p):
    p("@wait vm=hs")
    for x in range(4, 8): p(f"v_add_f32_dpp v{x}, v{x}, v{x} row_ror:8 {FULL}")
    for x in range(4): p(f"v_mov_b32 v{8+x}, v{4+x}")
    for x in range(4): p(f"v_permlane16_swap_b32 v{4+x}, v{8+x}")
    for x in range(4): p(f"v_add_f32 v{4+x}, v{4+x}, v{8+x}")
    p(f"v_mul_f32 v8, s88, v4\nv_mul_f32 v9, s88, v6\nv_mul_f32 v4, v8, v8\nv_mul_f32 v6, v9, v9")
    p(f"v_fma_f32 v5, v5, s88, -v4\nv_fma_f32 v7, v7, s88, -v6\nv_add_f32 v5, s87, v5\nv_add_f32 v7, s87, v7")
    p(f"v_rsq_f32 v10, v5\nv_rsq_f32 v11, v7\nv_sub_f32 v8, 0, v8\nv_sub_f32 v9, 0, v9")
    p(f"ds_write_b64 v185, v[8:9]\nds_write_b64 v185, v[10:11] offset:128")
def P3_z2a(p):
    B = P3_BF; NM, RR, TMP = B, B+8, B+16
    CSr = [4, 6, 8]
    for nt in range(3): p(f"ds_read_b32 v{CSr[nt]}, v186 offset:{64*nt}")
    for par in range(2):
        p(f"ds_read_b128 {vr(NM+4*par,4)}, v12 offset:{64*par}\nds_read_b128 {vr(RR+4*par,4)}, v12 offset:{128+64*par} @@nr{par}")
    for par in range(2):
        p(f"@wait lg=nr{par}")
        for nt in range(3):
            a = P3_AZ2 + (par*3+nt)*4
            for h in range(2): p(f"v_pk_fma_f32 {vr(a+2*h,2)}, {vr(NM+4*par+2*h,2)}, {vr(CSr[nt],2)}, {vr(a+2*h,2)} op_sel_hi:[1,0,1]")
            for h in range(2): p(f"v_pk_mul_f32 {vr(a+2*h,2)}, {vr(a+2*h,2)}, {vr(RR+4*par+2*h,2)}")
            gelu4(p, a, TMP)
    for par in range(2):
        for h in range(2):
            a = lambda nt: vr(P3_AZ2 + (par*3+nt)*4 + 2*h, 2)
            S_, Q_ = vr(NM+4*par+2*h, 2), vr(RR+4*par+2*h, 2)
            p(f"v_pk_add_f32 {S_}, {a(0)}, {a(1)}\nv_pk_mul_f32 {Q_}, {a(0)}, {a(0)}")
            p(f"v_pk_add_f32 {S_}, {S_}, {a(2)}\nv_pk_fma_f32 {Q_}, {a(1)}, {a(1)}, {Q_}\nv_pk_fma_f32 {Q_}, {a(2)}, {a(2)}, {Q_}")
    for base in (NM, RR):
        for r in range(4): p(f"v_add_f32_dpp v{base+r}, v{base+r}, v{base+r} row_ror:8 {FULL}")
    for base in (NM, RR):
        for r in range(4): p(f"v_add_f32_dpp v{base+r}, v{base+4+r}, v{base+4+r} row_ror:8 row_mask:0xf bank_mask:0xc")
    for i, (base, r) in enumerate(((NM, 0), (RR, 0), (NM, 1), (RR, 1))):
        p(f"v_add_f32_dpp v{TMP+i}, v{base+r}, v{base+r} row_half_mirror {FULL}")
    for i, (base, r) in enumerate(((NM, 2), (RR, 2), (NM, 3), (RR, 3))):
        p(f"v_add_f32_dpp v{TMP+i}, v{base+r}, v{base+r} row_half_mirror row_mask:0xf bank_mask:0xa")
    for mod in ("quad_perm:[1,0,3,2]", "quad_perm:[2,3,0,1]"):
        for i in range(4): p(f"v_add_f32_dpp v{TMP+i}, v{TMP+i}, v{TMP+i} {mod} {FULL}")
    for i in range(4): p(f"s_bfe_u32 s{t}, s{sEP}, {hex(0x80000 + 8*i)}\nv_and_or_b32 v{TMP+i}, v{TMP+i}, v188, s{t}")
    a, b = p.label("zs_slow"), p.label("zs_done")
    p(f"s_mov_b32 exec_lo, 0x11111111\ns_mov_b32 exec_hi, 0x11111111\ns_cmp_eq_u32 s{sFAST}, 0\ns_cbranch_scc1 {a}\n@cond_begin")
    p(f"buffer_store_dwordx4 {vr(TMP,4)}, v187, {sr(SW,4)}, s84 offen\ns_branch {b}\n{a}:\nbuffer_store_dwordx4 {vr(TMP,4)}, v187, {sr(SW,4)}, s84 offen sc1\n{b}:\n@cond_end\ns_mov_b64 exec, -1")
def P3_z2b(p):
    B = P3_BF
    a, b = p.label("zl"), p.label("zlok")
    p(f"s_mov_b32 s{sSPIN}, 0x100000\ns_mov_b32 s{t}, 0x0c0c0400\ns_mov_b32 s{t+1}, 0x05040100\n{a}:")
    for i in range(4): p(f"buffer_load_dwordx4 {vr(B+4*i,4)}, v13, {sr(SW,4)}, s83 offen offset:{64*i} sc1")
    for i in range(4):
        p(f"s_waitcnt vmcnt({3-i})\nv_perm_b32 v4, v{B+4*i+1}, v{B+4*i}, s{t}\nv_perm_b32 v5, v{B+4*i+3}, v{B+4*i+2}, s{t}\nv_perm_b32 v{6+i}, v5, v4, s{t+1}")
    p(f"v_xor_b32 v6, s{sEP}, v6\nv_xor_b32 v7, s{sEP}, v7\nv_xor_b32 v8, s{sEP}, v8\nv_xor_b32 v9, s{sEP}, v9\nv_or3_b32 v6, v6, v7, v8\nv_or_b32 v6, v6, v9\nv_cmp_ne_u32 vcc, 0, v6")
    p(f"s_cbranch_vccz {b}\ns_sub_u32 s{sSPIN}, s{sSPIN}, 1\ns_cbranch_scc0 {a}\n{b}:")
    for h in range(2):
        p(f"v_pk_add_f32 {vr(B+2*h,2)}, {vr(B+2*h,2)}, {vr(B+4+2*h,2)}\nv_pk_add_f32 {vr(B+8+2*h,2)}, {vr(B+8+2*h,2)}, {vr(B+12+2*h,2)}")
    for h in range(2): p(f"v_pk_add_f32 {vr(B+2*h,2)}, {vr(B+2*h,2)}, {vr(B+8+2*h,2)}")
    for mod in ("quad_perm:[1,0,3,2]", "quad_perm:[2,3,0,1]"):
        for i in range(4): p(f"v_add_f32_dpp v{B+i}, v{B+i}, v{B+i} {mod} {FULL}")
    p(f"v_mul_f32 v{B}, s89, v{B}\nv_mul_f32 v{B+2}, s89, v{B+2}\nv_mul_f32 v{B+4}, v{B}, v{B}\nv_mul_f32 v{B+5}, v{B+2}, v{B+2}")
    p(f"v_fma_f32 v{B+1}, v{B+1}, s89, -v{B+4}\nv_fma_f32 v{B+3}, v{B+3}, s89, -v{B+5}\nv_add_f32 v{B+1}, s87, v{B+1}\nv_add_f32 v{B+3}, s87, v{B+3}")
    p(f"v_rsq_f32 v{B+1}, v{B+1}\nv_rsq_f32 v{B+3}, v{B+3}")
    p(f"v_mul_f32 v{B}, -v{B}, v{B+1}\nv_mul_f32 v{B+2}, -v{B+2}, v{B+3}")
    NM, RR = B+8, B+16
    for bk in range(4):
        for i in range(2):
            p(f"v_mov_b32_dpp v{NM+2*bk+i}, v{B+2*i} row_newbcast:{4*bk} {FULL}")
            p(f"v_mov_b32_dpp v{RR+2*bk+i}, v{B+2*i+1} row_newbcast:{4*bk} {FULL}")
    for nt in range(3):
        for par in range(2):
            a = P3_AZ2 + (par*3+nt)*4
            for h in range(2): p(f"v_pk_fma_f32 {vr(a+2*h,2)}, {vr(a+2*h,2)}, {vr(RR+4*par+2*h,2)}, {vr(NM+4*par+2*h,2)}")
        o = [B, B+4, 4][nt]
        for r in range(4): p(f"v_cvt_pk_bf16_f32 v{o+r}, v{P3_AZ2+nt*4+r}, v{P3_AZ2+(3+nt)*4+r}")
        p(f"buffer_store_dwordx4 {vr(o,4)}, v{vL16}, {sr(SW,4)}, s{[85,92,93][nt]} offen {['sc1', 'sc0 sc1', 'sc1 nt', 'nt', ''][X.get('z2m', 0)]} @@z2s")
def P3_z1e(p):
    CS, NR, TMP = P3_BF, 16, 24
    p(f"v_and_b32 v12, 15, v{vLANE}\nv_lshl_add_u32 v12, v12, 2, s86\nv_lshrrev_b32 v13, 4, v{vLANE}\nv_lshlrev_b32 v13, 4, v13\nv_add_u32 v13, {CST+192}, v13")
    for par in range(2): p(f"ds_read_b32 v{NR+4*par}, v12 offset:{64*par}\nds_read_b32 v{NR+4*par+2}, v12 offset:{128+64*par}")
    for nt in range(3): p(f"ds_read_b128 {vr(CS+4*nt,4)}, v13 offset:{64*nt} @@z1c{nt}")
    p(f"s_mul_i32 s{SSD}, s{sRB3}, {2*48*512}\ns_mul_i32 s{t+1}, s{sJ3}, 1536\ns_add_u32 s{SSD}, s{SSD}, s{t+1}\ns_add_u32 s{SSD}, s{SSD}, {WS_Z1}\ns_add_u32 s{SSD+1}, s{SSD}, {48*512}")
    p(f"v_lshlrev_b32 v8, 3, v{vLANE}")
    for par in range(2):
        for nt in range(3):
            a = P3_AZ1 + (par*3+nt)*4
            p(f"@wait lg=z1c{nt}")
            for h in range(2): p(f"v_pk_fma_f32 {vr(a+2*h,2)}, {vr(CS+4*nt+2*h,2)}, {vr(NR+4*par,2)}, {vr(a+2*h,2)} op_sel_hi:[1,0,1]")
            for h in range(2): p(f"v_pk_mul_f32 {vr(a+2*h,2)}, {vr(a+2*h,2)}, {vr(NR+4*par+2,2)} op_sel_hi:[1,0]")
            gelu4(p, a, TMP)
            p(f"v_cvt_pk_bf16_f32 v{a}, v{a}, v{a+1}\nv_cvt_pk_bf16_f32 v{a+1}, v{a+2}, v{a+3}")
            p(f"buffer_store_dwordx2 {vr(a,2)}, v8, {sr(SW,4)}, s{SSD+par} offen offset:{512*nt} {'sc1' if X.get('m84', 0) else ''} @@z1s")

Z_CS, Z_NR, Z_T = 16, 28, 32
def z1e_prep(p):
    p(f"v_and_b32 v12, 15, v{vLANE}\nv_lshl_add_u32 v12, v12, 2, s86\nv_lshrrev_b32 v13, 4, v{vLANE}\nv_lshlrev_b32 v13, 4, v13\nv_add_u32 v13, {CST+192}, v13")
    for par in range(2): p(f"ds_read_b32 v{Z_NR+2*par}, v12 offset:{64*par}\nds_read_b32 v{Z_NR+2*par+1}, v12 offset:{128+64*par}")
    for nt in range(3): p(f"ds_read_b128 {vr(Z_CS+4*nt,4)}, v13 offset:{64*nt}")
    p(f"s_mul_i32 s{SSD}, s{sRB3}, {2*48*512}\ns_mul_i32 s{t+1}, s{sJ3}, 1536\ns_add_u32 s{SSD}, s{SSD}, s{t+1}\ns_add_u32 s{SSD}, s{SSD}, {WS_Z1}\ns_add_u32 s{SSD+1}, s{SSD}, {48*512}")
    p(f"s_lshl_b32 s{SSD+2}, s{sRB3}, 4\ns_add_u32 s{SSD+2}, s{SSD+2}, s{sJ3}")
def z1e_lines():
    L = []
    for par in range(2):
        for nt in range(3):
            a = P3_AZ1 + (par*3+nt)*4; T = Z_T
            for r in range(4): L.append(f"v_fmac_f32 v{a+r}, v{Z_CS+4*nt+r}, v{Z_NR+2*par}")
            for r in range(4): L.append(f"v_mul_f32 v{a+r}, v{a+r}, v{Z_NR+2*par+1}")
            for r in range(4): L.append(f"v_mul_f32 v{T+r}, v{a+r}, v{a+r}")
            for r in range(4): L.append(f"v_fmamk_f32 v{T+r}, v{T+r}, {fhex(GK1)}, v{vK0}")
            for r in range(4): L.append(f"v_mul_f32 v{T+r}, v{T+r}, v{a+r}")
            for r in range(4): L.append(f"v_exp_f32 v{T+r}, v{T+r}")
            for r in range(4): L.append(f"v_add_f32 v{T+r}, 1.0, v{T+r}")
            for r in range(4): L.append(f"v_rcp_f32 v{T+r}, v{T+r}")
            for r in range(4): L.append(f"v_mul_f32 v{a+r}, v{a+r}, v{T+r}")
            L.append(f"v_cvt_pk_bf16_f32 v{a}, v{a}, v{a+1}"); L.append(f"v_cvt_pk_bf16_f32 v{a+1}, v{a+2}, v{a+3}")
    L.append("\n".join(f"buffer_store_dwordx2 {vr(P3_AZ1+(par*3+nt)*4,2)}, v8, {sr(SW,4)}, s{SSD+par} offen offset:{512*nt} {'sc1' if X.get('m84', 0) else ''} @@z1s" for par in range(2) for nt in range(3)))
    return L
KC = 6
MB_FT = 28672
MB_BASE = [0, MB_FT, 2*MB_FT, 3*MB_FT, 0, SCR]
def unit_bases(p, d):
    p(f"s_mul_i32 s{d}, s{sWAVE}, 14336\ns_lshl_b32 s{d+1}, s{sWAVE}, 13\ns_add_u32 s{d+1}, s{d+1}, {SCR}")
    p(f"s_lshl_b32 s{d+2}, s{sWAVE}, 11\ns_cmp_lt_u32 s{sWAVE}, 2\ns_cselect_b32 s{t+5}, 0, {155648-4096-57344}\ns_add_u32 s{d+2}, s{d+2}, s{t+5}\ns_add_u32 s{d+2}, s{d+2}, 57344")
def unit_loc(u): return (0, u*2048) if u < 7 else ((1, (u-7)*2048) if u < 11 else (2, 0))
def WA(s_, k):
    i = s_*KC + k
    return ar(4*i, 4) if i < 16 else vr(160+4*(i-16), 4)
def WXr(s_, k):
    i = s_*(16-KC) + k
    return ar(4*i, 4) if i < 16 else vr(96+4*(i-16), 4)
def z2_offsets(p, k0, n):
    p(f"s_mul_i32 s{t}, s{sJ4}, 384\ns_lshl_b32 s{t+1}, s{sWAVE}, 4\ns_add_u32 s{t}, s{t}, s{t+1}\ns_lshl_b32 s{t}, s{t}, 10\ns_add_u32 s{t}, s{t}, {WS_Z2}")
    p(f"s_lshl_b32 s{t+1}, s{sRG4}, 1")
    for k in range(n):
        p(f"s_add_u32 s{t+2}, s{t+1}, {k0+k}\ns_and_b32 s{t+2}, s{t+2}, 15\ns_lshl_b32 s{t+2}, s{t+2}, 10\ns_add_u32 s{80+k}, s{t+2}, s{t}")
    p(f"v_mov_b32 v3, v{vL16}")
def mb_waddr(p, role):
    for s_ in range(0 if role else 1, 4):
        e = 3+s_ if role else s_-1
        p(f"s_add_u32 s{t}, s{sWAVE}, {s_}\ns_and_b32 s{t}, s{t}, 3\ns_mul_i32 s{t}, s{t}, 7168\ns_add_u32 s{t}, s{t}, {e*1024}\nv_add_u32 v{4+s_}, s{t}, v{vL16}")
C_RING, C_ACC, C_OWN, C_Z1 = 64, 112, 136, 52
C_MBR = [16, 20, 24, 28, 32, 40, 44]
WAD = [185, 187, 189]
def P4_prepA(p):
    map4(p); hload(p)
    unit_bases(p, sB0); swz_rd(p, 12, 10)
    for b in range(3): p(f"v_add_u32 v{WAD[b]}, s{sB0+b}, v12\nv_add_u32 v{WAD[b]+1}, s{sB0+b}, v13")
    p(f"v_and_b32 v10, 15, v{vLANE}\nv_lshlrev_b32 v10, 2, v10\ns_lshr_b32 s{t}, s{sTT}, 1\ns_lshl_b32 s{t}, s{t}, 5\ns_and_b32 s{t+1}, s{sTT}, 1\ns_add_u32 s{t}, s{t}, s{t+1}\ns_lshl_b32 s{t}, s{t}, 1")
    p(f"v_mov_b32 v191, 0\nbuffer_load_short_d16_hi v191, v10, {sr(SBS,4)}, s{t} offen @@bias")
    z2_offsets(p, 0, KC)
    p(f"v_lshlrev_b32 v8, 3, v{vLANE}\ns_mul_i32 s70, s{sTT}, 24576\ns_mul_i32 s{t+1}, s{sJ4}, 3072\ns_add_u32 s70, s70, {WS_V}\ns_add_u32 s70, s70, s{t+1}")
    p(f"s_lshr_b32 s{t+2}, s{sTT}, 1\ns_lshl_b32 s{t+2}, s{t+2}, 6\ns_lshl_b32 s{t+3}, s{sJ4}, 3\ns_add_u32 s{t+2}, s{t+2}, s{t+3}\ns_add_u32 s{t+2}, s{t+2}, {FL_F3B}")
    p(f"v_and_b32 v9, 1, v{vLANE}\nv_lshl_add_u32 v9, v9, 2, s{t+2}")
def P4_prepA2(p):
    mb_waddr(p, 0)
    p(f"s_mul_i32 s{t}, s{sWAVE}, 7168\nv_add_u32 v4, s{t}, v{vL16}")
def P4_prepB(p):
    hpack(p)
    p("@wait vm=bias")
    for r in range(24): p(f"v_mov_b32 v{C_OWN+r}, v191")
def P4_prepC(p):
    z1e_prep(p)
    for s_ in range(4):
        for k in range(KC):
            b, off = unit_loc(s_*3 + (k >> 1))
            p(f"ds_read_b128 {WA(s_,k)}, v{WAD[b]+(k&1)} offset:{off}")
def P4(p, role):
    NK = (16-KC) if role else KC
    N = 6*NK; R = 12 if role else 10
    RING = 16 if role else C_RING
    W = WXr if role else WA
    def accreg(ft, s_):
        if role: return vr(64 + ((ft&1)*4+s_)*4, 4)
        return vr(C_OWN+ft*4, 4) if s_ == 0 else vr(C_ACC+((ft&1)*3+s_-1)*4, 4)
    def ld(n):
        ft, k = n // NK, n % NK
        if X.get('p4nold') and n > 0: return
        if k == 0 and ft: p(f"v_add_u32 v3, 65536, v3")
        p(f"buffer_load_dwordx4 {vr(RING+(n%R)*4,4)}, v3, {sr(SW,4)}, s{80+k} offen sc1 @@z{n}")
    R0 = X.get('R0', 6)
    if X.get('p4sleep'): p(f"s_sleep {X['p4sleep']}")
    if role: xstamp(p, 25)
    for n in range(R0): ld(n)
    if role and X.get('xst') and not X.get('p4nold'): p("@wait vm=z0"); xstamp(p, 26)
    def wr(ft):
        if ft:
            for s_ in range(0 if role else 1, 4): p(f"v_add_u32 v{4+s_}, {MB_BASE[ft]-MB_BASE[ft-1]}, v{4+s_}")
        if X.get('nowr'): return
        for s_ in range(0 if role else 1, 4): p(f"ds_write_b128 v{4+s_}, {accreg(ft,s_)}")
    def mb(ft, pk=False):
        L = []
        if ft: L.append(f"v_add_u32 v4, {MB_BASE[ft]-MB_BASE[ft-1]}, v4")
        L.append("\n".join(f"ds_read_b128 {vr(C_MBR[e],4)}, v4 offset:{e*1024} @@mb{ft}_{e}" for e in range(7)))
        o = C_OWN+4*ft
        if pk:
            for e in range(7):
                L.append(f"@wait lg=mb{ft}_{e}")
                for h in range(2): L.append(f"v_pk_add_f32 {vr(o+2*h,2)}, {vr(o+2*h,2)}, {vr(C_MBR[e]+2*h,2)}")
        else:
            L += ["s_nop 0"]*X.get('mbgap', 10)
            for e in range(7):
                for r in range(4): L.append((f"@wait lg=mb{ft}_{e}\n" if r == 0 else "") + f"v_add_f32 v{o+r}, v{o+r}, v{C_MBR[e]+r}")
        return L
    fill = z1e_lines() if (X.get('z1p4', 1) and not role) else []
    if X.get('nofill') and not role: fill = fill[-1:]
    PER = X.get('p4v', 4)
    LEAD = X.get('lead', 0)
    nl = R0; mbq = []; nq = [0]
    def T(j):
        if (X.get('p4nobar', 10) >> j) & 1: return
        p("s_waitcnt lgkmcnt(0)"); bar(p, f"T{j}")
        while nq[0] < j:
            if not role: mbq.append(nq[0])
            nq[0] += 1
    def pump(cnt):
        for _ in range(cnt):
            if not fill and mbq: fill.extend(mb(mbq.pop(0))[:2 if X.get('nofill') else None])
            if fill:
                l = fill.pop(0)
                if l == "@FLAG": p(f"@wait vm=z1s\ns_mov_b32 s{sU}, s{SSD+2}"); flag_store(p, FL_F3B, not X.get('m84', 0))
                elif l != "s_nop 0": p(l)
    consumed = lambda j: nq[0] > j and j not in mbq and not any(f"mb{j}_" in l for l in fill)
    safe0 = [False]
    for n in range(N):
        ft, k = n // NK, n % NK
        if not (X.get('p4nold') and n > 0): p(f"@wait vm=z{n}")
        z = vr(RING+(n%R)*4, 4)
        if X.get('p4st') and k == 0 and not role: stamp(p, 25+ft)
        for s_ in range(4):
            d = accreg(ft, s_)
            c = d if (k or (s_ == 0 and not role)) else "0"
            if not (X.get('p4nomf') and k): p(f"{MF16} {d}, {z}, {W(s_,k)}, {c}")
            if X.get('ldpos', 0) == s_ and s_ < 3:
                while nl < min(N, n + R) and nl < n + 1 + R0 + 2*(n+1): ld(nl); nl += 1
            pump(PER)
        if X.get('ldpos', 0) == 3:
            while nl < min(N, n + 1 + R) and nl < n + 1 + R0 + 2*(n+1): ld(nl); nl += 1
        if k == 1 and ft >= 1:
            if ft == 5 and not role: assert safe0[0], "slot 0 reuse unsafe"
            wr(ft-1)
        if k == (X.get('tkx', 3) if role else X.get('tkc', 4)) and ft >= 1:
            j = ft
            if not role and consumed(0) and not (X.get('p4nobar', 10) >> j) & 1: safe0[0] = True
            T(j)
        if not role and n == X.get('z1fn', 21):
            assert not any("z1s" in l for l in fill)
            p(f"@wait vm=z1s\ns_mov_b32 s{sU}, s{SSD+2}"); flag_store(p, FL_F3B, not X.get('m84', 0))
        if not role and ft == 4 and k == 2: p(f"buffer_load_dword v15, v9, {sr(SW,4)}, 0 offen sc1 @@f3b")
        if not role and ft == 5 and k == 0:
            assert '@FLAG' not in fill
            a, b = p.label("f3b"), p.label("f3bok")
            p(f"@wait vm=f3b\ns_mov_b32 s{sSPIN}, 0x100000\n{a}:\nv_cmp_ne_u32 vcc, s{sEP}, v15\ns_cbranch_vccz {b}\n@cond_begin")
            p(f"buffer_load_dword v15, v9, {sr(SW,4)}, 0 offen sc1\ns_waitcnt vmcnt(0)\ns_sub_u32 s{sSPIN}, s{sSPIN}, 1\ns_cbranch_scc0 {a}\n@cond_end\n{b}:")
            for f in range(6): p(f"buffer_load_dwordx2 {vr(C_Z1+2*f,2)}, v8, {sr(SW,4)}, s70 offen offset:{512*f} sc1 @@z1l")
    def vout(u):
        o = RING + 4*u
        for ff in range(2):
            ft = 2*u+ff; z = RING+16+4*ff; g = C_OWN+4*ft
            for h in range(2): p(f"v_lshlrev_b32 v{z+2*h}, 16, v{C_Z1+2*ft+h}\nv_and_b32 v{z+2*h+1}, s{sMASKHI}, v{C_Z1+2*ft+h}")
            if u == 2 and ff == 0: p("\n".join(m5[2:]))
            for h in range(2): p(f"v_pk_mul_f32 {vr(z+2*h,2)}, {vr(z+2*h,2)}, {vr(g+2*h,2)}")
            for h in range(2): p(f"v_cvt_pk_bf16_f32 v{o+2*ff+h}, v{z+2*h}, v{z+2*h+1}")
        p(f"buffer_store_dwordx4 {vr(o,4)}, v{vL16}, {sr(SW,4)}, s70 offen offset:{1024*u} @@vs")
    wr(5)
    if not role:
        pump(1000)
        p("@wait vm=z1l")
        vout(0); vout(1)
    p("s_waitcnt lgkmcnt(0)"); bar(p, "Bf")
    if role: return
    m5 = mb(5, True)
    p(m5[0]); p(m5[1])
    vout(2)

HRES = 16
HP = [36, 37, 38, 39, 104, 105, 106, 107, 108, 109]
sT5, sJ5, sR5 = SCS, SCS+1, SCS+2
def hload(p):
    A, B = 16, 26
    map5(p, sT5, sJ5, sR5)
    p(f"s_cmp_ge_u32 s{sJ5}, 4\ns_cselect_b32 s{t}, -1, 1\ns_cselect_b32 s{t+1}, 956, 0\ns_cselect_b64 vcc, -1, 0")
    p(f"s_mov_b64 s[94:95], vcc")
    p(f"s_mul_i32 s{t+2}, s{sJ5}, 80\nv_lshrrev_b32 v36, 4, v{vLANE}\nv_lshl_add_u32 v36, v36, 2, s{t+2}\nv_mul_lo_u32 v36, v36, s{t}\nv_add_u32 v36, s{t+1}, v36")
    p(f"v_and_b32 v37, 15, v{vLANE}\nv_lshlrev_b32 v37, 4, v37\ns_lshl_b32 s{t}, s{t}, 4")
    p(f"s_mul_i32 s{t+3}, s{sT5}, 20480\ns_add_u32 s{t+3}, s{t+3}, {WS_H}")
    for et in range(5):
        for (dst, add) in ((A+2*et, 0), (B+2*et, 4)):
            p(f"v_add_u32 v10, {add}, v36")
            if et == 0 and add: p(f"v_cmp_eq_u32 vcc, 640, v10\nv_mov_b32 v11, 320\nv_cndmask_b32 v10, v10, v11, vcc")
            p(f"v_lshrrev_b32 v11, 3, v10\nv_lshl_add_u32 v11, v11, 8, v37\nv_and_b32 v10, 7, v10\nv_lshl_add_u32 v10, v10, 1, v11")
            p(f"buffer_load_dword{'x2' if not add else ''} {vr(dst, 1 if add else 2)}, v10, {sr(SW,4)}, s{t+3} offen sc1 @@hres")
        if et < 4: p(f"v_add_u32 v36, s{t}, v36")
def hpack(p):
    A, B = 16, 26
    p(f"s_mov_b32 s{t}, 0x07060100\n@wait vm=hres")
    for et in range(5):
        a, b = A+2*et, B+2*et
        p(f"v_perm_b32 v10, v{a+1}, v{b}, s{t}\nv_perm_b32 v11, v{a}, v{a+1}, s{t}")
        p(f"v_cndmask_b32 v{HP[2*et]}, v{a}, v10, s[94:95]\nv_cndmask_b32 v{HP[2*et+1]}, v{a+1}, v11, s[94:95]")
def P5_prep(p):
    for i in range(10): p(f"v_lshlrev_b32 v{HRES+2*i}, 16, v{HP[i]}\nv_and_b32 v{HRES+2*i+1}, s{sMASKHI}, v{HP[i]}")
    p(f"v_add_u32 v5, {WZ}, v{vL16}")
    p(f"v_and_b32 v10, 15, v{vLANE}\nv_mul_u32_u24 v10, 2560, v10\nv_lshrrev_b32 v11, 4, v{vLANE}\nv_lshl_add_u32 v6, v11, 3, v10")
    p(f"s_lshr_b32 s86, s{sT5}, 1\ns_lshl_b32 s86, s86, 5\ns_and_b32 s{t+1}, s{sT5}, 1\ns_add_u32 s86, s86, s{t+1}\ns_mul_i32 s86, s86, 1280\ns_mul_i32 s{t+1}, s{sJ5}, 160\ns_add_u32 s86, s86, s{t+1}")
    p(f"s_mul_i32 s80, s{sT5}, 24576\ns_add_u32 s80, s80, {WS_V}")
    for i in range(1, 6): p(f"s_add_u32 s{80+i}, s80, {4096*i}")
def P5_main(p):
    NB = 24
    breg = lambda i: ar(4*(i % NB), 4) if (i % NB) < 16 else vr(160+4*((i % NB)-16), 4)
    def vl(ks):
        if ks < 24: p(f"buffer_load_dwordx4 {vr(64+4*ks,4)}, v{vL16}, {sr(SW,4)}, s{80+(ks>>2)} offen offset:{(ks&3)*1024} sc1 @@v{ks}")
    def bl(i):
        if i < 120:
            o = i*1024
            p(f"ds_read_b128 {breg(i)}, v{vL16 if o < WZ else 5} offset:{o % WZ} @@wb{i}")
    VA = X.get('va', 8); BA = X.get('ba', 12)
    for ks in range(VA): vl(ks)
    bar(p, "B10")
    for i in range(BA): bl(i)
    for i in range(120):
        ks, et = i // 5, i % 5
        a = vr(HRES+4*et, 4)
        p(f"@wait vm=v{ks} lg=wb{i}")
        p(f"{MF16} {a}, {breg(i)}, {vr(64+4*ks,4)}, {a}")
        if i + BA == 60: bar(p, "B11")
        bl(i+BA)
        if et == 0: vl(ks+VA)
    for et in range(5):
        a = HRES+4*et; o = 36+2*et
        p(f"v_cvt_pk_bf16_f32 v{o}, v{a}, v{a+1}\nv_cvt_pk_bf16_f32 v{o+1}, v{a+2}, v{a+3}")
        p(f"buffer_store_dwordx2 {vr(o,2)}, v6, {sr(SOUT,4)}, s86 offen offset:{32*et} {['', 'sc1', 'nt', 'sc0 sc1'][X.get('osc', 0)]}")

def thr(p, n=None):
    n = X.get('xthr', 0) if n is None else n
    if n: p(f"s_waitcnt vmcnt({n})")
def LIN(p, tag, which, part=(0, 15), th=None):
    if part[0] == 0:
        if tag == 'wz': p(f"s_mul_i32 s{sB0}, s{sJ3}, 61440\ns_add_u32 s{sB0}, s{sB0}, {WS_WI + (48*20480 if which == 0 else 0)}\ns_lshr_b32 s{sB2}, s{sL}, 4\ns_lshl_b32 s{sB2}, s{sB2}, 13")
        else: p(f"s_mul_i32 s{sB0}, s{sJ4}, 122880\ns_add_u32 s{sB0}, s{sB0}, {WS_WO + which*61440}\ns_lshl_b32 s{sB2}, s{sRG4}, 12")
        p(f"s_mul_i32 s{sB1}, s{sWAVE}, 15360\ns_add_u32 s{sB0}, s{sB0}, s{sB1}")
        if which: p(f"s_add_u32 s{sB1}, s{sB1}, {WZ}")
    for i in range(*part):
        p(f"s_add_u32 m0, s{sB1}, s{sB2}\ns_add_u32 s{sB3}, s{sB0}, s{sB2}\nbuffer_load_dwordx4 v{vL16}, {sr(SW,4)}, s{sB3} offen sc1 lds @@{tag}{which}")
        thr(p, th)
        if i < 14: p(f"s_add_u32 s{sB2}, s{sB2}, 1024\ns_cmp_eq_u32 s{sB2}, 15360\ns_cselect_b32 s{sB2}, 0, s{sB2}")
def ws_tile(p, slot):
    p(f"s_add_u32 s{sB0}, s{sWAVE}, {slot}\ns_and_b32 s{sB0}, s{sB0}, 3\ns_lshr_b32 s{sB1}, s{sB0}, 1\ns_add_u32 s{sB1}, s{sB1}, s{sRB4}\ns_lshl_b32 s{sB1}, s{sB1}, 5")
    p(f"s_and_b32 s{sB0}, s{sB0}, 1\ns_add_u32 s{sB0}, s{sB0}, s{sB1}\ns_lshl_b32 s{sB0}, s{sB0}, 12\ns_lshl_b32 s{sB1}, s{sWAVE}, 10\ns_add_u32 s{sB0}, s{sB0}, s{sB1}")
    p(f"s_mov_b32 s{sB2}, s{sRG4}")
def ws_piece(p, pc, sbase, off, tag, vs=12):
    p(f"s_add_u32 s{sB3}, s{sB2}, {pc}\ns_and_b32 s{sB3}, s{sB3}, 7\ns_lshl_b32 s{sB3}, s{sB3}, 7\ns_add_u32 s{sB3}, s{sB3}, s{sB0}")
    for hf in range(2): p(f"s_add_u32 m0, s{sbase}, {off+hf*1024}\nbuffer_load_dwordx4 v{vs+hf}, {sr(SWS,4)}, s{sB3} offen lds @@{tag}"); thr(p)
def xchunk_dma(p, slot, expr, vs=None):
    p(expr)
    ws_tile(p, slot)
    for i in range(5): ws_piece(p, KC//2 + i, t, i*2048, f"xc{slot}", vWSS if vs is None else vs)
def xchunk_read(p, slot, expr, wait=True):
    p(expr)
    p(f"v_add_u32 v8, s{t}, v{vWSR}\nv_add_u32 v9, s{t}, v{vWSR+1}" + (f"\n@wait vm=xc{slot}" if wait else ""))
    for k in range(10): p(f"ds_read_b128 {WXr(slot,k)}, v{8+(k&1)} offset:{2048*(k>>1)} @@xr{slot}")
def colsum(p, z1):
    with cond(p, f"s_cmp_eq_u32 s{sWAVE}, 3"):
        p(f"s_mul_i32 s{t}, s{sWAVE}, 20480\ns_add_u32 s{t}, s{t}, {WZ if z1 else 0}\nv_add_u32 v8, s{t}, v{vL16}")
        for r in range(4): p(f"v_mov_b32 v{88+r}, 0x3f803f80")
        for hb in range(2):
            for k in range(10): p(f"ds_read_b128 {vr(16+4*k,4)}, v8 offset:{(hb*10+k)*1024}")
            for k in range(10):
                p(f"s_waitcnt lgkmcnt({9-k})")
                p(f"{MF16} v[92:95], {vr(16+4*k,4)}, v[88:91], {'v[92:95]' if (k or hb) else 0}")
        p(f"s_lshl_b32 s{t}, s{sWAVE}, 6\ns_add_u32 s{t}, s{t}, {CST + (192 if z1 else 0)}\nv_add_u32 v8, s{t}, v{vLANE}")
        p("s_mov_b32 exec_lo, 0x00010001\ns_mov_b32 exec_hi, 0x00010001\nds_write_b128 v8, v[92:95]\ns_mov_b64 exec, -1\ns_waitcnt lgkmcnt(0)")
def touch_h(p, dst):
    a, b = 10, 11
    p(f"s_and_b32 s{t}, s{sL}, 15\ns_lshl_b32 s{t}, s{t}, 2\ns_add_u32 s{t}, s{t}, s{sWAVE}\ns_mul_i32 s{t}, s{t}, 2560\ns_sub_u32 s{t+1}, s{sRB3}, s{sWAVE}\ns_mul_i32 s{t+1}, s{t+1}, 40960\ns_add_u32 s{t}, s{t}, s{t+1}\ns_add_u32 s{t}, s{t}, {WS_H}")
    p(f"s_lshl_b32 s{t+1}, s{sRB3}, 12\ns_lshl_b32 s{t+2}, s{sJ3}, 8\ns_add_u32 s{t+1}, s{t+1}, s{t+2}\ns_add_u32 s{t+1}, s{t+1}, {WS_ZS-20*128}")
    p(f"s_lshl_b32 s{t+2}, s{sRB3}, 10\ns_add_u32 s{t+2}, s{t+2}, {WS_HS-22*128}")
    p(f"v_mov_b32 v{a}, s{t}\nv_mov_b32 v{b}, s{t+1}\nv_cmp_lt_u32 vcc, 19, v{vLANE}\nv_cndmask_b32 v{a}, v{a}, v{b}, vcc\nv_mov_b32 v{b}, s{t+2}\nv_cmp_lt_u32 vcc, 21, v{vLANE}\nv_cndmask_b32 v{a}, v{a}, v{b}, vcc")
    p(f"v_lshl_add_u32 v{a}, v{vLANE}, 7, v{a}\ns_mov_b64 exec, 0x3fffffff\nbuffer_load_dword v{dst}, v{a}, {sr(SW,4)}, 0 offen\ns_mov_b64 exec, -1")
def touch_z1(p, dst):
    p(f"s_mul_i32 s{t}, s{sTT}, 24576\ns_mul_i32 s{t+1}, s{sJ4}, 3072\ns_add_u32 s{t}, s{t}, s{t+1}\ns_add_u32 s{t}, s{t}, {WS_Z1}\nv_lshlrev_b32 v10, 7, v{vLANE}")
    p(f"s_mov_b64 exec, 0xffffff\nbuffer_load_dword v{dst}, v10, {sr(SW,4)}, s{t} offen\ns_mov_b64 exec, -1")
def code_touch(p, dst):
    if not X.get('ct', 1): return
    with only_wave(p, 0):
        p(f"s_lshl_b32 s{t}, s{sL}, 7\nv_lshlrev_b32 v10, 12, v{vLANE}\ns_mov_b64 exec, 0xffff\nbuffer_load_dword v{dst}, v10, {sr(SX,4)}, s{t} offen\ns_mov_b64 exec, -1")

def xprog(p):
    sPHI, sPL, sRLa, sRLb = 87, 86, 84, 85
    p(f"s_mov_b32 s{SX}, s{ST}\ns_mov_b32 s{SX+1}, s{ST+1}".replace("s_mov_b32", "s_mov_b32") if False else "")
    if X.get('xst'): p(f"v_mov_b32 v{vSTMP}, 0")
    p(f"s_mov_b64 s[94:95], {sr(ST,2)}")
    p(f"s_mul_i32 s{sPL}, s{sWAVE}, {P2S_W}\ns_add_u32 s{sPL}, s{sPL}, {P2S}")
    p(f"s_lshl_b32 s{sPHI}, s{sQ}, 6\ns_add_u32 s{sPHI}, s{sPHI}, s{sRG}")
    p(f"s_lshl_b32 s{t}, s{sPHI}, 2\ns_add_u32 s{t}, s{t}, s{sWAVE}\ns_mul_i32 s{t+1}, s{t}, 3277\ns_lshr_b32 s{t+1}, s{t+1}, 16\ns_mul_i32 s{t+2}, s{t+1}, 20\ns_sub_u32 s{t+2}, s{t}, s{t+2}")
    p(f"s_mul_i32 s{sRLa}, s{t+1}, 40\ns_add_u32 s{sRLa}, s{sRLa}, s{t+2}\ns_lshl_b32 s{sRLa}, s{sRLa}, 10\ns_add_u32 s{sRLa}, s{sRLa}, {WS_WI}")
    p(f"s_lshl_b32 s{t+3}, s{t+2}, 5\ns_sub_u32 s{t+4}, 960, s{t+3}\ns_cmp_ge_u32 s{t+2}, 10\ns_cselect_b32 s{t+3}, s{t+4}, s{t+3}\ns_cselect_b32 s{t+4}, -1, 1")
    p(f"v_lshrrev_b32 v10, 2, v{vLANE}\nv_mul_lo_u32 v11, v10, s{t+4}\nv_add_u32 v11, s{t+3}, v11\ns_lshl_b32 s{t+4}, s{t+4}, 4\nv_add_u32 v12, s{t+4}, v11")
    p(f"v_cmp_eq_u32 vcc, 640, v11\nv_mov_b32 v13, 320\nv_cndmask_b32 v11, v11, v13, vcc")
    p(f"v_and_b32 v13, 3, v{vLANE}\nv_lshlrev_b32 v13, 4, v13\ns_lshl_b32 s{t+1}, s{t+1}, 6\ns_movk_i32 s{t+5}, 3072")
    p(f"v_mad_u32_u24 v4, v11, s{t+5}, v13\nv_mad_u32_u24 v5, v12, s{t+5}, v13\nv_add_u32 v4, s{t+1}, v4\nv_add_u32 v5, s{t+1}, v5")
    p(f"s_lshl_b32 s{t}, s{sPHI}, 1\ns_and_b32 s{t+1}, s{sWAVE}, 1\ns_add_u32 s{t}, s{t}, s{t+1}\ns_mul_i32 s{t+1}, s{t}, 2731\ns_lshr_b32 s{t+1}, s{t+1}, 16\ns_mul_i32 s{t+2}, s{t+1}, 24\ns_sub_u32 s{t+2}, s{t}, s{t+2}")
    for c_, d in ((0, sRLb), (1, 83)):
        p(f"s_lshl_b32 s{t+3}, s{t+1}, 1\ns_add_u32 s{t+3}, s{t+3}, {c_}\ns_mul_i32 s{t+4}, s{t+3}, 52\ns_lshr_b32 s{t+4}, s{t+4}, 8\ns_mul_i32 s{t+4}, s{t+4}, 115\ns_add_u32 s{t+3}, s{t+3}, s{t+4}")
        p(f"s_mul_i32 s{t+4}, s{t+2}, 5\ns_add_u32 s{t+3}, s{t+3}, s{t+4}\ns_lshl_b32 s{d}, s{t+3}, 10\ns_add_u32 s{d}, s{d}, {WS_WO}")
    p(f"s_mul_i32 s{t+2}, s{t+2}, {32*1280}\ns_lshl_b32 s{t+1}, s{t+1}, 6\ns_add_u32 s{t+2}, s{t+2}, s{t+1}\nv_mul_u32_u24 v6, 1280, v10\nv_add3_u32 v6, v6, v13, s{t+2}\nv_add_u32 v7, {16*1280}, v6")
    p(f"s_cmp_ge_u32 s{sPHI}, 240\ns_cselect_b32 s{t}, 0x40000000, 0\ns_cmp_lt_u32 s{sWAVE}, 2\ns_cselect_b32 s{t+1}, 0x40000000, s{t}")
    p(f"s_add_u32 s{sRLa}, s{sRLa}, s{t}\ns_add_u32 s{sRLb}, s{sRLb}, s{t+1}\ns_add_u32 s83, s83, s{t+1}")
    p("s_waitcnt lgkmcnt(0)")
    xstamp(p, 0)
    p(f"s_load_dword s{sEP}, {sr(SW,2)}, 0\ns_getreg_b32 s{sU}, hwreg(HW_REG_XCC_ID, 0, 4)")
    p(f"s_mov_b64 {sr(SX,2)}, s[94:95]\ns_mov_b32 s{SX+2}, CODE_BYTES")
    for k in range(2): p(f"s_add_u32 m0, s{sPL}, {1024*k}\nbuffer_load_dwordx4 v{4+k}, {sr(SWI,4)}, s{t} offen lds @@rl")
    for k in range(2): p(f"s_add_u32 m0, s{sPL}, {2048+1024*k}\nbuffer_load_dwordx4 v{6+k}, {sr(SWO,4)}, s{t+1} offen lds @@rl")
    BC, BS_, BX, FC, TMP = 16, 56, 96, 136, 136
    p(f"s_mul_i32 s{t}, s{sQ}, 80\ns_lshl_b32 s{t+1}, s{sWAVE}, 4\ns_add_u32 s{t+1}, s{t+1}, s{t}\nv_and_b32 v8, 15, v{vLANE}\nv_add_u32 v9, s{t+1}, v8\nv_cmp_eq_u32 vcc, 0, v9\nv_mov_b32 v10, 320\nv_cndmask_b32 v9, v9, v10, vcc\nv_cvt_f32_u32 v9, v9")
    p(f"s_add_u32 s{t}, s{t}, 64\nv_add_u32 v8, s{t}, v8\nv_cvt_f32_u32 v8, v8")
    if X.get('xprio', 1): p(f"s_setprio {X.get('xprio', 1)}")
    gen_hid(p, 9, BC, BS_, TMP)
    xstamp(p, 22)
    with only_wave(p, 0): gen_hid(p, 8, BX, None, TMP)
    with only_wave(p, 1): gen_hid(p, 8, None, BX, TMP)
    xstamp(p, 23)
    p("s_waitcnt lgkmcnt(0)"); epoch_fix(p)
    with only_wave(p, 3):
        p(f"s_lshl_b32 s{t}, s{sC}, 5\ns_add_u32 s{t}, s{t}, s{sL}\ns_lshl_b32 s{t}, s{t}, 2\ns_add_u32 s{t}, s{t}, {FL_X}\ns_add_u32 s{sU}, s{sU}, s{sEP}")
        p(f"v_mov_b32 v10, s{sU}\nv_mov_b32 v11, 0\ns_mov_b64 exec, 1\nbuffer_store_dword v10, v11, {sr(SW,4)}, s{t} offen sc1\ns_mov_b64 exec, -1")
    p(f"v_lshrrev_b32 v10, 4, v{vLANE}\nv_bfe_u32 v11, v{vLANE}, 2, 2\nv_lshl_add_u32 v12, v10, 3, v11\nv_lshl_add_u32 v13, v10, 2, v11\nv_and_b32 v10, 3, v{vLANE}\nv_lshlrev_b32 v10, 3, v10\nv_add_u32 v10, s{sPL}, v10")
    p(f"v_lshl_add_u32 v12, v12, 6, v10\nv_lshl_add_u32 v13, v13, 6, v10\n@wait vm=rl")
    for c_ in range(2):
        for h in range(2):
            p(f"ds_read_b64_tr_b16 {vr(176+4*c_+2*h,2)}, v12 offset:{256*h+32*c_}\nds_read_b64_tr_b16 {vr(184+4*c_+2*h,2)}, v13 offset:{2048+1024*h+32*c_}")
    p("s_waitcnt lgkmcnt(0)")
    p(f"s_add_u32 s{t}, s{sRLa}, 20480\ns_mov_b32 s{t+1}, s83")
    p(f"buffer_store_dwordx4 v[176:179], v{vL16}, {sr(SW,4)}, s{sRLa} offen sc1\nbuffer_store_dwordx4 v[180:183], v{vL16}, {sr(SW,4)}, s{t} offen sc1")
    p(f"buffer_store_dwordx4 v[184:187], v{vL16}, {sr(SW,4)}, s{sRLb} offen sc1\nbuffer_store_dwordx4 v[188:191], v{vL16}, {sr(SW,4)}, s{t+1} offen sc1 @@rls")
    xstamp(p, 20)
    vA, vSG, vT, vST, vST2, vXS, vCX = 4, 5, 6, 7, 8, 9, 3
    p(f"v_and_b32 v10, 7, v{vLANE}\nv_lshrrev_b32 v11, 1, v10\nv_mul_u32_u24 v{vA}, {P1_XR}, v11\nv_and_b32 v10, 1, v{vLANE}\nv_mul_u32_u24 v11, 640, v10\nv_add_u32 v{vA}, v{vA}, v11")
    p(f"v_lshlrev_b32 v{vSG}, 31, v10\nv_or_b32 v{vSG}, 1.0, v{vSG}\nv_bfe_u32 v10, v{vLANE}, 3, 1\nv_mul_u32_u24 v11, 1280, v10\nv_add_u32 v{vA}, v{vA}, v11")
    p(f"v_lshrrev_b32 v10, 4, v{vLANE}\nv_lshl_add_u32 v{vA}, v10, 4, v{vA}\nv_lshlrev_b32 v{vT}, 4, v10")
    p(f"s_mul_i32 s{t+4}, s{sQ}, 81920\ns_lshr_b32 s{t}, s{sRG}, 2\ns_mul_i32 s{t}, s{t}, 5120\ns_add_u32 s{t+4}, s{t+4}, s{t}\ns_and_b32 s{t}, s{sRG}, 3\ns_lshl_b32 s{t}, s{t}, 8\ns_add_u32 s{t+4}, s{t+4}, s{t}\ns_add_u32 s{t+4}, s{t+4}, {WS_AB}")
    p(f"s_lshl_b32 s88, s{sWAVE}, 10\ns_add_u32 s88, s88, s{t+4}\ns_mul_i32 s89, s{sWAVE}, 655360\ns_add_u32 s89, s89, s{t+4}\ns_add_u32 s89, s89, 4096")
    p(f"v_lshrrev_b32 v10, 5, v{vLANE}\nv_mul_u32_u24 v{vST}, 327680, v10\nv_and_b32 v10, 15, v{vLANE}\nv_lshlrev_b32 v{vXS}, 2, v10\nv_lshl_add_u32 v{vST}, v10, 4, v{vST}")
    p(f"v_bfe_u32 v10, v{vLANE}, 4, 1\nv_lshl_add_u32 v{vST2}, v10, 3, v{vST}\nv_mul_u32_u24 v10, 655360, v10\nv_add_u32 v{vST}, v{vST}, v10")
    p(f"s_cmp_eq_u32 s{sWAVE}, 0\ns_cselect_b32 s{t}, 1.0, 0\nv_mul_f32 v{vCX}, s{t}, v{vSG}")
    bar(p, "B1")
    AC, TI = 176, 188
    p(f"ds_read_b128 {vr(TI,4)}, v{vT} offset:{P1_T-131072} @@ti".replace(f"v{vT} offset:{P1_T-131072}", "v10") if False else "")
    p(f"v_add_u32 v10, {P1_T}, v{vT}\nds_read_b128 {vr(TI,4)}, v10 @@ti")
    for ks in range(10): p(f"ds_read_b128 {vr(FC+4*ks,4)}, v{vA} offset:{64*ks} @@fc{ks}\nds_read_b128 {ar(4*ks,4)}, v{vA} offset:{2560+64*ks} @@fs{ks}")
    p("@wait vm=rls lg=ti")
    for r_ in range(4): p(f"v_mul_f32 v{AC+r_}, v{vSG}, v{TI+r_}\nv_mul_f32 v{AC+8+r_}, v{vCX}, v{TI+r_}")
    for ks in range(10):
        p(f"@wait lg=fc{ks}\n{MF16} {vr(AC,4)}, {vr(FC+4*ks,4)}, {vr(BC+4*ks,4)}, {vr(AC,4)}")
        p(f"@wait lg=fs{ks}\n{MF16} {vr(AC+4,4)}, {ar(4*ks,4)}, {vr(BS_+4*ks,4)}, {vr(AC+4,4) if ks else 0}")
    with only_wave(p, 0):
        for ks in range(10): p(f"{MF16} {vr(AC+8,4)}, {vr(FC+4*ks,4)}, {vr(BX+4*ks,4)}, {vr(AC+8,4)}")
    with only_wave(p, 1):
        for ks in range(10): p(f"{MF16} {vr(AC+8,4)}, {ar(4*ks,4)}, {vr(BX+4*ks,4)}, {vr(AC+8,4)}")
    p(f"v_cvt_pk_bf16_f32 v12, v{AC}, v{AC+1}\nv_cvt_pk_bf16_f32 v13, v{AC+2}, v{AC+3}\nv_cvt_pk_bf16_f32 v14, v{AC+4}, v{AC+5}\nv_cvt_pk_bf16_f32 v15, v{AC+6}, v{AC+7}")
    p(f"v_permlane16_swap_b32 v12, v14\nv_permlane16_swap_b32 v13, v15\nbuffer_store_dwordx4 v[12:15], v{vST}, {sr(SW,4)}, s88 offen sc1")
    with cond(p, f"s_cmp_ge_u32 s{sWAVE}, 2"):
        p(f"s_nop 4\nv_cvt_pk_bf16_f32 v10, v{AC+8}, v{AC+9}\nv_cvt_pk_bf16_f32 v11, v{AC+10}, v{AC+11}\nbuffer_store_dwordx2 v[10:11], v{vST2}, {sr(SW,4)}, s89 offen sc1")
    with cond(p, f"s_cmp_lg_u32 s{sRG}, 0"):
        p(f"s_mul_i32 s{t+2}, s{sQ}, 320\ns_add_u32 s{t+3}, s{t+2}, {WS_XB}\ns_lshl_b32 s{t+2}, s{sWAVE}, 6\ns_add_u32 s{t+2}, s{t+2}, s{t+3}")
        p(f"s_mov_b32 exec_lo, 0\ns_mov_b32 exec_hi, 0xffff\nbuffer_store_dword v{AC+4}, v{vXS}, {sr(SW,4)}, s{t+2} offen offset:1280 sc1")
        with only_wave(p, 1): p(f"buffer_store_dword v{AC+8}, v{vXS}, {sr(SW,4)}, s{t+3} offen offset:{1280+256} sc1")
        p(f"s_mov_b64 exec, -1\nv_add_u32 v{vT}, {P1_XA}, v{vT}\nv_mov_b32 v{vA}, {P1_T+64}\nds_read_b32 v{TI}, v{vA}")
        for ks in range(10): p(f"ds_read_b128 {ar(4*ks,4)}, v{vT} offset:{64*ks}")
        p("s_waitcnt lgkmcnt(0)")
        for r_ in range(4): p(f"v_mul_f32 v{FC+r_}, v{vSG}, v{TI}\nv_mul_f32 v{FC+4+r_}, v{vSG}, v{TI}")
        for ks in range(10): p(f"{MF16} {vr(FC,4)}, {ar(4*ks,4)}, {vr(BC+4*ks,4)}, {vr(FC,4)}\n{MF16} {vr(FC+4,4)}, {ar(4*ks,4)}, {vr(BX+4*ks,4)}, {vr(FC+4,4)}")
        p(f"s_mov_b64 exec, 0xffff\nbuffer_store_dword v{FC}, v{vXS}, {sr(SW,4)}, s{t+2} offen sc1")
        with only_wave(p, 0): p(f"buffer_store_dword v{FC+4}, v{vXS}, {sr(SW,4)}, s{t+3} offen offset:256 sc1")
        p("s_mov_b64 exec, -1")
    if X.get('xprio', 1): p("s_setprio 0")
    xstamp(p, 21)
    map4(p)
    p(f"v_mov_b32 v4, {CNT}\nv_mov_b32 v5, 1\ns_mov_b32 s{sU}, s{sPHI}\ns_waitcnt vmcnt(0)\ns_mov_b64 exec, 1\nds_add_rtn_u32 v5, v4, v5\ns_mov_b64 exec, -1\ns_waitcnt lgkmcnt(0)\nv_readfirstlane_b32 s{t+1}, v5")
    with cond(p, f"s_cmp_lg_u32 s{t+1}, 3"): gflag_store(p, FL_F1)
    xstamp(p, 24)
    swz_src(p, vWSX, 8192, 10); swz_rd(p, vWSR, 10)
    bar(p, "B2")
    nC = X.get('nc', 0); nX = X.get('nx', 2)
    for s_ in range(nC): xchunk_read(p, s_, XBUF[s_], wait=False)
    p("s_waitcnt lgkmcnt(0)")
    for s_ in range(nC, nX): xchunk_dma(p, s_, XBUF[(s_-nC) % 2], vWSX)
    touch_h(p, 4); code_touch(p, 4)
    bar(p, "B3")
    for s_ in range(nC, nX): xchunk_read(p, s_, XBUF[(s_-nC) % 2])
    p("s_waitcnt lgkmcnt(0)")
    if X.get('b3b', 4) < 8: bar(p, "B3b"); LIN(p, 'wz', 0, th=0); bar(p, "B4")
    else: bar(p, "B4"); LIN(p, 'wz', 0, th=0)
    p("@wait vm=wz0"); bar(p, "B5")
    colsum(p, 0)
    def adma(us):
        last = -1
        for u in us:
            if u // 3 != last: ws_tile(p, u // 3); last = u // 3
            b, off = unit_loc(u)
            ws_piece(p, u % 3, 88+b, off, "wa")
    unit_bases(p, 88)
    if X.get('xs5'): p(f"s_sleep {X['xs5']}")
    n1 = X.get('wz1a', 15)
    W2E = f"s_mul_i32 s{t}, s{sWAVE}, 14336"
    if X.get('b5a', 10) < 20: bar(p, "B5a")
    LIN(p, 'wz', 1, (0, n1), th=X.get('thz1', 0)) if n1 else None
    if X.get('z1t', 1) and not X.get('m84', 0): touch_z1(p, 4)
    code_touch(p, 4)
    early = [7, 8, 9, 10]
    if X.get('ea', 0): adma(early)
    bar(p, "B5b")
    if n1 < 15:
        if X.get('ea', 0): assert n1 == 0
        LIN(p, 'wz', 1, (n1, 15), th=0)
    if nX < 4: xchunk_dma(p, nX, W2E, vWSX)
    if not X.get('ea', 0): adma(early)
    adma([11])
    if X.get('k1', 8): p("@wait vm=wz1"); bar(p, "B6"); colsum(p, 1)
    b7 = False
    for s_ in range(nX, 4):
        if s_ > nX: xchunk_dma(p, s_, W2E, vWSX)
        if s_ == X.get('b7at', 3): p("@wait vm=wz1"); bar(p, "B7"); b7 = True; (colsum(p, 1) if not X.get('k1', 8) else None)
        xchunk_read(p, s_, W2E); p(f"@wait lg=xr{s_}")
    if not b7: p("@wait vm=wz1"); bar(p, "B7"); (colsum(p, 1) if not X.get('k1', 8) else None)
    adma(range(7))
    if X.get('wot'):
        p(f"s_lshl_b32 s{t}, s{sL}, 2\ns_add_u32 s{t}, s{t}, s{sWAVE}\ns_mul_i32 s{t}, s{t}, 7680\ns_add_u32 s{t}, s{t}, {WS_WO}\nv_lshlrev_b32 v9, 7, v{vLANE}")
        p(f"s_mov_b32 exec_hi, 0x0fffffff\nbuffer_load_dword v8, v9, {sr(SW,4)}, s{t} offen sc1\ns_mov_b32 exec_hi, -1")
    z2_offsets(p, KC, 16-KC); mb_waddr(p, 1); code_touch(p, 8)
    if X.get('ztouch'):
        p(f"v_lshlrev_b32 v9, 16, v{vLANE}\ns_mov_b64 exec, 0x3f\nbuffer_load_dword v8, v9, {sr(SW,4)}, s80 offen sc1\ns_mov_b64 exec, -1")
    p("s_waitcnt vmcnt(0)"); bar(p, "B8")
    with only_wave(p, 0):
        p(f"s_lshl_b32 s{sU}, s{sJ4}, 5"); gpoll(p, FL_F3, 32)
    bar(p, "B9")
    if X.get('p4prio', 0): p(f"s_setprio {X.get('p4prio', 0)}")
    P4(p, 1)
    p("s_setprio 0")
    map5(p, t+4, sJ4, sRG4)
    if X.get('bv'):
        LIN(p, 'wo', 0, (0, X['bv']), th=0); bar(p, "Bv"); LIN(p, 'wo', 0, (X['bv'], 15), th=0)
    else: LIN(p, 'wo', 0, th=0)
    LIN(p, 'wo', 1, th=0)
    p("@wait vm=wo0"); bar(p, "B10")
    p("s_waitcnt vmcnt(0)"); bar(p, "B11")
    if X.get('wb') == 1:
        with only_wave(p, 0): p("buffer_wbl2 sc1\ns_waitcnt vmcnt(0)")
    if X.get('wb') == 2:
        with cond(p, f"s_or_b32 s{t}, s{sWAVE}, s{sL}\ns_cmp_lg_u32 s{t}, 0"): p("buffer_wbl2 sc1\ns_waitcnt vmcnt(0)")
    if X.get('xst'):
        p(f"s_lshl_b32 s{t}, s{sL}, 3\ns_add_u32 s{t}, s{t}, s{sC}\ns_lshl_b32 s{t}, s{t}, 2\ns_add_u32 s{t}, s{t}, s{sWAVE}\ns_lshl_b32 s{t+1}, s{t}, 8\ns_add_u32 s{t+1}, s{t+1}, {WS_STAMP+0x40000}\nv_lshlrev_b32 v10, 2, v{vLANE}")
        p(f"buffer_store_dword v{vSTMP}, v10, {sr(SW,4)}, s{t+1} offen")

def cprog(p):
    P1(p)
    p(f"s_lshl_b32 s{sU}, s{sQ}, 6\ns_add_u32 s{sU}, s{sU}, s{sRG}")
    P2_xload(p)
    p(f"s_lshl_b32 s95, s{sC}, 7\ns_add_u32 s95, s95, {FL_X}\nv_and_b32 v28, 31, v{vLANE}\nv_lshlrev_b32 v28, 2, v28\nbuffer_load_dword v29, v28, {sr(SW,4)}, s95 offen sc1 @@xc")
    P2_prepA(p)
    if X.get('gs', 1) == 1: gen_seq(p)
    p("s_waitcnt vmcnt(7)"); bar(p, "B2")
    stamp(p, 2)
    if not X.get('gs', 1): gen_seq(p)
    a, b = p.label("xp"), p.label("xpd")
    p(f"@wait vm=xc\ns_mov_b32 s{sSPIN}, 0x100000\n{a}:\nv_subrev_u32 v30, s{sEP}, v29\nv_cmp_lt_u32 vcc, 15, v30\ns_cbranch_vccz {b}\n@cond_begin")
    p(f"buffer_load_dword v29, v28, {sr(SW,4)}, s95 offen sc1\ns_waitcnt vmcnt(0)\ns_sub_u32 s{sSPIN}, s{sSPIN}, 1\ns_cbranch_scc0 {a}\n@cond_end\n{b}:")
    p(f"v_readfirstlane_b32 s{t}, v30\nv_cmp_ne_u32 vcc, s{t}, v30\ns_cmp_eq_u64 vcc, 0\ns_cselect_b32 s{sFAST}, 1, 0")
    if X.get('slow'): p(f"s_mov_b32 s{sFAST}, 0")
    P2_prepB(p)
    stamp(p, 3)
    with only_wave(p, 1):
        p(f"s_lshl_b32 s{sU}, s{sQ2}, 6"); gpoll(p, FL_F1, 64)
    with only_wave(p, 2):
        p(f"s_mul_i32 s{sU}, s{sJ3}, 3\ns_add_u32 s{sU}, s{sU}, 48\ns_lshr_b32 s{sU}, s{sU}, 1\ns_mul_i32 s{sU}, s{sU}, 5"); gpoll(p, FL_F1, 10)
    stamp(p, 4)
    p("s_waitcnt lgkmcnt(0)"); bar(p, "B3")
    stamp(p, 5)
    P2_main(p)
    stamp(p, 6)
    P3_prep(p)
    p("s_waitcnt vmcnt(0)"); bar(p, "B5")
    with only_wave(p, 0):
        p(f"s_lshl_b32 s{sU}, s{sC}, 5\ns_add_u32 s{sU}, s{sU}, s{sL}"); flag_store(p, FL_F2, True)
    stamp(p, 7)
    p(f"s_sub_u32 s{t}, 63, s{sRB3}\ns_min_u32 s{sU}, s{t}, s{sRB3}\ns_lshl_b32 s{sU}, s{sU}, 3"); poll(p, FL_F2, 8)
    stamp(p, 8)
    P3_loads(p); P3_pass(p, 0)
    bar(p, "B5b")
    stamp(p, 9)
    P3_z2a(p)
    K1 = X.get('k1', 8)
    if K1: bar(p, "B6")
    stamp(p, 10)
    if K1: P3_pass(p, 1, 0, K1)
    stamp(p, 11)
    P3_z2b(p)
    P4_prepA(p)
    p("@wait vm=z2s")
    P4_prepA2(p)
    if X.get('rer'):
        for nt in range(3): p(f"buffer_load_dwordx4 v[4:7], v{vL16}, {sr(SW,4)}, s{[85,92,93][nt]} offen sc1")
    bar(p, "B7")
    with only_wave(p, 0):
        p(f"s_lshr_b32 s{sU}, s{sJ3}, 1\ns_lshl_b32 s{sU}, s{sU}, 5\ns_lshr_b32 s{t}, s{sRB3}, 2\ns_lshl_b32 s{t}, s{t}, 1\ns_add_u32 s{sU}, s{sU}, s{t}\ns_and_b32 s{t}, s{sJ3}, 1\ns_add_u32 s{sU}, s{sU}, s{t}")
        if X.get('z2m', 0) >= 3: p("buffer_wbl2 sc1\ns_waitcnt vmcnt(0)")
        gflag_store(p, FL_F3)
    stamp(p, 12)
    P3_pass(p, 1, K1, 20)
    P4_prepB(p)
    stamp(p, 13)
    bar(p, "B8")
    stamp(p, 14)
    P4_prepC(p)
    stamp(p, 15)
    if not X.get('z1p4', 1):
        p(f"s_lshl_b32 s{sU}, s{sRB3}, 4\ns_add_u32 s{sU}, s{sU}, s{sJ3}\n@wait vm=z1s"); flag_store(p, FL_F3B, not X.get('m84', 0))
    p("s_waitcnt lgkmcnt(0)"); bar(p, "B9")
    stamp(p, 16)
    P4(p, 0)
    stamp(p, 17)
    p(f"s_lshl_b32 s{sU}, s{sTT}, 3\ns_add_u32 s{sU}, s{sU}, s{sJ4}\n@wait vm=vs"); flag_store(p, FL_F4, not X.get('m84', 0))
    if X.get('bv'): bar(p, "Bv")
    P5_prep(p)
    p(f"s_lshl_b32 s{sU}, s{sT5}, 3"); poll(p, FL_F4, 8)
    stamp(p, 18)
    P5_main(p)
    stamp(p, 19)
    with cond(p, f"s_or_b32 s{t}, s{sC}, s{sWAVE}\ns_or_b32 s{t}, s{t}, s{sL}\ns_cmp_lg_u32 s{t}, 0"):
        p(f"v_mov_b32 v10, s{sEP}\nv_mov_b32 v11, 0\ns_mov_b64 exec, 1\nbuffer_store_dword v10, v11, {sr(SW,4)}, 0 offen\ns_mov_b64 exec, -1")
    if X.get('stamp'):
        p("s_waitcnt vmcnt(0)")
        stamp(p, 24)
        p(f"s_lshl_b32 s{t}, s{sL}, 3\ns_add_u32 s{t}, s{t}, s{sC}\ns_lshl_b32 s{t}, s{t}, 2\ns_add_u32 s{t}, s{t}, s{sWAVE}\ns_lshl_b32 s{t+1}, s{t}, 8\ns_add_u32 s{t+1}, s{t+1}, {WS_STAMP}\nv_lshlrev_b32 v10, 2, v{vLANE}")
        p(f"buffer_store_dword v{vSTMP}, v10, {sr(SW,4)}, s{t+1} offen")
        if X.get('dbg'):
            lab = p.label("dbg")
            order = [0, 20, 21, 22, 1, 2, 3, 4, 5, 23, 6, 7, 8, 9, 10, 11, 12, 13, 14, 15, 16, 17, 18, 19, 24]
            idx = [i for i in order if (X['stamp'] >> i) & 1 or i in (0, 24)][:16]
            p(f"s_cmp_lg_u32 s{t}, {X['dbg']-1}\ns_cbranch_scc1 {lab}\ns_mov_b32 s{ST}, s2\ns_mov_b32 s{ST+1}, s3\ns_mov_b32 s{ST+2}, 256\nv_readlane_b32 s{t+2}, v{vSTMP}, 31\nv_mov_b32 v11, 0")
            for n_, i in enumerate(idx):
                p(f"v_readlane_b32 s{t+3}, v{vSTMP}, {i}\ns_nop 1\ns_sub_u32 s{t+3}, s{t+3}, s{t+2}\nv_writelane_b32 v11, s{t+3}, {n_}")
            p(f"buffer_store_dword v11, v10, {sr(ST,4)}, 0 offen\n{lab}:")

def build():
    kn = NAME + "_kernel"
    p = Prog(); prologue(p, kn); cprog(p); p("END:\ns_endpgm")
    q = Prog(); q.nlabel = 5000; q.isx = True; q("XPROG:\ns_nop 4"); xprog(q); q("s_endpgm\nCODE_END:\n.set CODE_BYTES, CODE_END - " + kn + " - 128")
    assert NBAR[id(p)] == NBAR[id(q)], (NBAR[id(p)], NBAR[id(q)])
    return ("; @launch grid=(256,1,1) block=(512,1,1) lds=163840\n" + '.amdgcn_target "amdgcn-amd-amdhsa--gfx950"\n.text\n' + p.finish() + q.finish() +
f""".section .rodata,"a"
.p2align 6
.amdhsa_kernel {kn}
  .amdhsa_next_free_vgpr 256
  .amdhsa_next_free_sgpr 102
  .amdhsa_accum_offset 192
  .amdhsa_group_segment_fixed_size 0
  .amdhsa_kernarg_size 104
  .amdhsa_user_sgpr_count 2
  .amdhsa_user_sgpr_kernarg_segment_ptr 1
  .amdhsa_system_sgpr_workgroup_id_x 1
.end_amdhsa_kernel
""")
if __name__ == "__main__":
    for a in sys.argv[2:]:
        k, v = a.split("="); X[k] = int(v)
    open(sys.argv[1], "w").write(build())
```

```python
import sys, struct
from asmlib import Prog, vr, ar, sr
NAME = "sequential_preLN__spectral_fnet__mixer_gmlp__prompt"
X = {}
def fhex(x): return hex(struct.unpack("<I", struct.pack("<f", x))[0])
FL_F1, FL_F2, FL_FS, FL_F3, FL_F3B, FL_F4, FL_X = 0x1000, 0x2000, 0x3000, 0x5000, 0x6000, 0x7000, 0x8000
WS_AB, WS_XB, WS_H, WS_HS, WS_Z2, WS_Z1, WS_ZS = 0x010000, 0x158000, 0x180000, 0x400000, 0x480000, 0x800000, 0xB00000
WS_V = WS_Z1
FL_BIG = {FL_F1: 0x160000, FL_F3: 0x168000}
WS_WI, WS_WO, WS_STAMP, WS_SIZE = 0xC00000, 0xE00000, 0xF00000, 0x1000000
SX, SCS, SSS, SCD, SSD, SWI, SWS, SBS, SWO, SOUT, SW, ST = 4, 8, 12, 16, 20, 24, 28, 32, 36, 40, 44, 48
sWAVE, sC, sL, sMASKHI = 52, 53, 54, 55
sI2, sP2, sQ2 = 56, 57, 58
sRB3, sJ3 = 59, 60
sRB4, sJ4, sRG4, sTT = 61, 62, 63, 64
sB0, sB1, sB2, sB3 = 65, 66, 67, 68
sRG, sQ, sG = 69, 70, 71
t = 72
sEP, sFAST, sSPIN, sU = 96, 97, 98, 99
SRDS = [(SX, 0, 2621440), (SW, 96, WS_SIZE), (SWI, 48, 1966080), (SWS, 56, 8388608), (SBS, 64, 4096), (SWO, 72, 983040), (SOUT, 80, 2621440)]
vLANE, vL16, vSTMP = 1, 2, 0
vWSS, vWSX, vWSR = 30, 12, 14
P1_XR = 10272; P1_B = 41216; P1_XA = P1_B + 102400; P1_T = P1_XA + 640
P2S = 145408; P2S_W = 4608
WZ = 61440; SCR = 122880; SCR_W = 9216; TBL = SCR + 4*SCR_W; CST = TBL + 1024; CNT = P1_T + 96
XBUF = [f"s_mul_i32 s{t}, s{sWAVE}, 10240\ns_add_u32 s{t}, s{t}, {WZ+256}",
        f"s_mul_i32 s{t}, s{sWAVE}, 10240\ns_cmp_lt_u32 s{sWAVE}, 2\ns_cselect_b32 s{t+1}, {102656-(41216-20480)}, 0\ns_add_u32 s{t}, s{t}, s{t+1}\ns_add_u32 s{t}, s{t}, {41216-20480}"]
FULL = "row_mask:0xf bank_mask:0xf"
MF16 = "v_mfma_f32_16x16x32_bf16"
LOG2E = 1.4426950408889634
GK0, GK1 = -LOG2E*1.5957691216057308, -LOG2E*0.07135481282

def stamp(p, i):
    if not X.get('stamp'): return
    if X['stamp'] > 1 and not (X['stamp'] >> i) & 1 and i not in (0, 24): return
    p(f"s_memrealtime s[100:101]\ns_waitcnt lgkmcnt(0)\nv_writelane_b32 v{vSTMP}, s100, {i}")
    if i in (0, 24) or X.get('cyc'): p(f"s_memtime s[100:101]\ns_waitcnt lgkmcnt(0)\nv_writelane_b32 v{vSTMP}, s100, {32+i}")
def xstamp(p, i):
    if not X.get('xst'): return
    p(f"s_memrealtime s[100:101]\ns_waitcnt lgkmcnt(0)\nv_writelane_b32 v{vSTMP}, s100, {i}")
def G(*lines):
    out = []
    for l in lines: out += [x.strip() for x in l.split("\n") if x.strip()]
    return out
def emit(p, gs):
    for g in gs: p("\n".join(g))
def swz_src(p, vdst, row_bytes, tmp, both=True):
    p(f"v_lshrrev_b32 v{tmp}, 3, v{vLANE}\nv_mul_u32_u24 v{vdst}, {row_bytes}, v{tmp}")
    p(f"v_lshrrev_b32 v{tmp}, 4, v{vLANE}\nv_and_b32 v{tmp+1}, 7, v{vLANE}\nv_xor_b32 v{tmp}, v{tmp}, v{tmp+1}\nv_lshl_add_u32 v{vdst}, v{tmp}, 4, v{vdst}")
    if both: p(f"v_xor_b32 v{vdst+1}, 64, v{vdst}\nv_add_u32 v{vdst+1}, {8*row_bytes}, v{vdst+1}")
def swz_rd(p, vdst, tmp, halfstride=1024):
    p(f"v_and_b32 v{tmp}, 15, v{vLANE}")
    if halfstride == 1024: p(f"v_lshlrev_b32 v{vdst}, 7, v{tmp}")
    else: p(f"v_bfe_u32 v{tmp+1}, v{vLANE}, 3, 1\nv_mul_u32_u24 v{tmp+1}, {halfstride-1024}, v{tmp+1}\nv_lshl_add_u32 v{vdst}, v{tmp}, 7, v{tmp+1}")
    p(f"v_lshrrev_b32 v{tmp}, 1, v{tmp}\nv_lshrrev_b32 v{tmp+1}, 4, v{vLANE}\nv_xor_b32 v{tmp}, v{tmp}, v{tmp+1}")
    p(f"v_lshl_add_u32 v{vdst}, v{tmp}, 4, v{vdst}\nv_xor_b32 v{vdst+1}, 64, v{vdst}")
NBAR = {}
def bar(p, name):
    L = NBAR.setdefault(id(p), []); L.append(name)
    if getattr(p, 'isx', False): xstamp(p, len(L))
    p("s_barrier")
def flag_store(p, base, local):
    p(f"s_lshl_b32 s{t}, s{sU}, 2\ns_add_u32 s{t}, s{t}, {base}\nv_mov_b32 v10, s{sEP}\nv_mov_b32 v11, 0\ns_mov_b64 exec, 1")
    if local:
        a, b = p.label("fs_slow"), p.label("fs_done")
        p(f"s_cmp_eq_u32 s{sFAST}, 0\ns_cbranch_scc1 {a}\n@cond_begin")
        p(f"buffer_store_dword v10, v11, {sr(SW,4)}, s{t} offen\ns_branch {b}")
        p(f"{a}:\nbuffer_wbl2 sc1\ns_waitcnt vmcnt(0)\nbuffer_store_dword v10, v11, {sr(SW,4)}, s{t} offen sc1\n{b}:\n@cond_end")
    else:
        p(f"buffer_store_dword v10, v11, {sr(SW,4)}, s{t} offen sc1")
    p("s_mov_b64 exec, -1")
def gflag_store(p, base):
    m = X.get('fm', 0)
    if m == 0: return flag_store(p, base, False)
    if m == 1:
        p(f"s_lshl_b32 s{t}, s{sU}, 7\ns_add_u32 s{t}, s{t}, {FL_BIG[base]}\nv_mov_b32 v10, s{sEP}\nv_mov_b32 v11, 0\ns_mov_b64 exec, 1\nbuffer_store_dword v10, v11, {sr(SW,4)}, s{t} offen sc1\ns_mov_b64 exec, -1")
    if m == 2:
        p(f"s_lshl_b32 s{t}, s{sU}, 2\ns_add_u32 s{t}, s{t}, {FL_BIG[base]}\nv_mov_b32 v10, s{sEP}\nv_lshlrev_b32 v11, 10, v{vLANE}\ns_mov_b64 exec, 0xff\nbuffer_store_dword v10, v11, {sr(SW,4)}, s{t} offen sc1\ns_mov_b64 exec, -1")
def gpoll(p, base, n):
    m = X.get('fm', 0)
    if m == 0: return poll(p, base, n)
    if m == 1: return poll(p, FL_BIG[base], n, sh=7)
    if m == 2:
        p(f"s_lshl_b32 s{t}, s{sC}, 8\ns_add_u32 s{sU}, s{sU}, s{t}"); return poll(p, FL_BIG[base], n)
def poll(p, base, n, sh=2):
    a, b = p.label("poll"), p.label("polled")
    p(f"s_lshl_b32 s{t}, s{sU}, {sh}\ns_add_u32 s{t}, s{t}, {base}\nv_min_u32 v11, {n-1}, v{vLANE}\nv_lshlrev_b32 v11, {sh}, v11\ns_mov_b32 s{sSPIN}, 0x100000")
    p(f"{a}:\nbuffer_load_dword v10, v11, {sr(SW,4)}, s{t} offen sc1\ns_waitcnt vmcnt(0)\nv_cmp_ne_u32 vcc, s{sEP}, v10")
    p(f"s_cbranch_vccz {b}\n" + (f"s_sleep {X['psl']}\n" if X.get('psl') else "") + f"s_sub_u32 s{sSPIN}, s{sSPIN}, 1\ns_cbranch_scc0 {a}\n{b}:")
class cond:
    def __init__(self, p, test): self.p = p; self.test = test
    def __enter__(self):
        self.lab = self.p.label("skip"); self.p(f"{self.test}\ns_cbranch_scc1 {self.lab}\n@cond_begin")
    def __exit__(self, *a): self.p(f"@cond_end\n{self.lab}:")
def only_wave(p, w): return cond(p, f"s_cmp_lg_u32 s{sWAVE}, {w}")
def epoch_fix(p): p(f"s_mul_i32 s{sEP}, s{sEP}, 0x2C9277B5\ns_add_u32 s{sEP}, s{sEP}, 0xAC564B05")

def map4(p):
    if not X.get('m84', 0):
        map5(p, sTT, sJ4, sRG4)
        p(f"s_sub_u32 s{sRB4}, s{sTT}, s{sWAVE}\ns_lshr_b32 s{sRB4}, s{sRB4}, 1\ns_lshl_b32 s{sRG4}, s{sRG4}, 1\ns_add_u32 s{sRG4}, s{sRG4}, s{sJ4}")
        return
    p(f"s_and_b32 s{t}, s{sC}, 6\ns_lshr_b32 s{t+1}, s{sL}, 4\ns_add_u32 s{t}, s{t}, s{t+1}\ns_lshl_b32 s{t}, s{t}, 2\ns_sub_u32 s{t+1}, 60, s{t}")
    p(f"s_bitcmp1_b32 s{sL}, 3\ns_cselect_b32 s{sRB4}, s{t+1}, s{t}\ns_bfe_u32 s{t}, s{sL}, 0x10002\ns_lshl_b32 s{t}, s{t}, 1\ns_add_u32 s{sRB4}, s{sRB4}, s{t}")
    p(f"s_and_b32 s{t}, s{sL}, 3\ns_and_b32 s{sJ4}, s{sC}, 1\ns_lshl_b32 s{sJ4}, s{sJ4}, 2\ns_add_u32 s{sJ4}, s{sJ4}, s{t}")
    p(f"s_lshl_b32 s{t}, s{t}, 1\ns_lshr_b32 s{sRG4}, s{sL}, 2\ns_add_u32 s{sRG4}, s{sRG4}, s{t}")
    p(f"s_lshl_b32 s{sTT}, s{sRB4}, 1\ns_add_u32 s{sTT}, s{sTT}, s{sWAVE}")
def map5(p, tt, j, rg):
    p(f"s_sub_u32 s{tt}, s{sRB3}, s{sWAVE}\ns_lshr_b32 s{rg}, s{sL}, 3\ns_and_b32 s{j}, s{rg}, 1\ns_lshl_b32 s{j}, s{j}, 1\ns_add_u32 s{tt}, s{tt}, s{j}")
    p(f"s_lshl_b32 s{tt}, s{tt}, 1\ns_add_u32 s{tt}, s{tt}, s{sWAVE}\ns_and_b32 s{j}, s{sL}, 7")
def prologue(p, kname):
    p(f".globl {kname}\n.p2align 8\n.type {kname},@function\n{kname}:")
    p(f"s_cmp_ge_u32 s2, 256\ns_cbranch_scc1 END")
    for (s, off, size) in SRDS: p(f"s_load_dwordx2 {sr(s,2)}, s[0:1], {off}")
    p(f"s_getpc_b64 {sr(ST,2)}\ns_mov_b32 s{ST+2}, CODE_BYTES\ns_mov_b32 s{ST+3}, 0x20000\ns_lshr_b32 s{sL}, s2, 3\ns_lshl_b32 s{t}, s{sL}, 7")
    p(f"v_xor_b32 v3, 0x100, v0\nv_lshlrev_b32 v3, 12, v3\ns_mov_b64 exec, 0xffff\nbuffer_load_dword v190, v3, {sr(ST,4)}, s{t} offen\ns_mov_b64 exec, -1")
    p(f"v_lshrrev_b32 v3, 6, v0\nv_and_b32 v{vLANE}, 63, v0\nv_readfirstlane_b32 s3, v3")
    for (s, off, size) in SRDS: p(f"s_mov_b32 s{s+2}, {size}\ns_mov_b32 s{s+3}, 0x20000")
    p(f"v_lshlrev_b32 v{vL16}, 4, v{vLANE}\ns_and_b32 s{sC}, s2, 7\ns_mov_b32 s{sMASKHI}, 0xffff0000\ns_and_b32 s{sWAVE}, s3, 3")
    p(f"s_lshl_b32 s{sI2}, s{sC}, 2\ns_lshr_b32 s{t}, s{sL}, 3\ns_add_u32 s{sI2}, s{sI2}, s{t}")
    p(f"s_bfe_u32 s{sP2}, s{sL}, 0x10002\ns_and_b32 s{sQ2}, s{sL}, 3")
    p(f"s_lshl_b32 s{t}, s{sC}, 2\ns_sub_u32 s{t+1}, 60, s{t}\ns_cmp_ge_u32 s{sL}, 16\ns_cselect_b32 s{sRB3}, s{t+1}, s{t}")
    p(f"s_add_u32 s{sRB3}, s{sRB3}, s{sWAVE}\ns_and_b32 s{sJ3}, s{sL}, 15")
    p(f"s_lshr_b32 s{sRG}, s{sL}, 2\ns_lshl_b32 s{t}, s{sC}, 3\ns_add_u32 s{sRG}, s{sRG}, s{t}\ns_and_b32 s{sQ}, s{sL}, 3")
    p(f"s_cmp_ge_u32 s3, 4\ns_cbranch_scc1 XPROG")

A_MF, A_MX = 0, 32
def P1(p):
    st = "sc1"
    sG0M, sJ0M, sJ31M, sXR = 80, 82, 84, 86
    if X.get('stamp'): p(f"v_mov_b32 v{vSTMP}, 0")
    if X.get('dbg'): p(f"s_load_dwordx2 s[2:3], s[0:1], 88\ns_memrealtime s[100:101]\ns_waitcnt lgkmcnt(0)\nv_writelane_b32 v{vSTMP}, s100, 31")
    p(f"s_lshl_b32 s{sG}, s{sRG}, 3\ns_lshl_b32 s{t}, s{sWAVE}, 1\ns_add_u32 s{sG}, s{sG}, s{t}")
    p(f"v_lshlrev_b32 v4, 2, v{vLANE}\ns_mul_i32 s{sXR}, s{sWAVE}, {P1_XR}")
    p(f"s_mul_i32 s88, s{sG}, 1280\ns_add_u32 s92, s88, 1280")
    for gb in range(2):
        b = 88+4*gb
        p(f"s_sub_u32 s{b+1}, {2048*1280}, s{b}\ns_sub_u32 s{b+2}, {1024*1280}, s{b}\ns_add_u32 s{b+3}, {1024*1280}, s{b}")
    p(f"s_cmp_eq_u32 s{sG}, 0\ns_cselect_b32 s89, {512*1280}, s89\ns_cselect_b32 s91, {1536*1280}, s91\ns_cselect_b32 s{sG0M}, -1, 0\ns_mov_b32 s{sG0M+1}, 0")
    p("s_waitcnt lgkmcnt(0)")
    stamp(p, 0)
    for k in range(8):
        p(f"s_add_u32 m0, s{sXR}, {k*1280}")
        p(f"buffer_load_dwordx4 v{vL16}, {sr(SX,4)}, s{88+k} offen lds")
        p(f"buffer_load_dword v4, {sr(SX,4)}, s{88+k} offen offset:1024 lds @@x")
    p(f"s_load_dword s{sEP}, {sr(SW,2)}, 0\nv_mov_b32 v5, {CNT}\nv_mov_b32 v6, 0\nds_write_b32 v5, v6")
    map4(p); swz_src(p, vWSS, 8192, 10)
    bulk = p.capture(lambda q: [xchunk_dma(q, c_, XBUF[c_]) for c_ in range(X.get('nc', 0))])
    cut = [i for i, l in enumerate(bulk) if l.startswith("buffer_load")]
    cut = cut[min(len(cut), X.get('cb0', 4))-1]+1 if (X.get('cb0', 4) and cut) else 0
    p("\n".join(bulk[:cut])); p(f"s_mov_b32 s87, s{t}"); bulk = [f"s_mov_b32 s{t}, s87"] + bulk[cut:]
    vJ, vD, vM, vFJ0, vAW, vTW = 9, 12, 16, 20, 21, 25
    p(f"v_and_b32 v{vJ}, 31, v{vLANE}")
    p(f"v_cmp_eq_u32 {sr(sJ0M,2)}, 0, v{vJ}\nv_cmp_eq_u32 {sr(sJ31M,2)}, 31, v{vJ}")
    p(f"v_lshrrev_b32 v10, 5, v{vLANE}\nv_mul_u32_u24 v11, 5120, v10\nv_add_u32 v11, s{sXR}, v11\nv_mul_u32_u24 v{vJ}, 20, v{vJ}")
    p(f"v_add_u32 v{vD}, v11, v{vJ}\nv_sub_u32 v{vM}, v11, v{vJ}\nv_add_u32 v{vM}, 1260, v{vM}")
    for kk in range(1, 4): p(f"v_add_u32 v{vD+kk}, {1280*kk}, v{vD}\nv_add_u32 v{vM+kk}, {1280*kk}, v{vM}")
    p(f"v_cndmask_b32 v{vFJ0}, 0, 1.0, {sr(sJ0M,2)}")
    p(f"v_mul_u32_u24 v11, 640, v10\nv_add3_u32 v{vAW}, v11, v{vJ}, s{sXR}")
    for cmb in range(1, 4): p(f"v_add_u32 v{vAW+cmb}, {1280*cmb}, v{vAW}")
    p(f"s_lshl_b32 s{t}, s{sWAVE}, 3\ns_add_u32 s{t}, s{t}, {P1_T}\nv_lshl_add_u32 v{vTW}, v10, 2, s{t}")
    p(f"s_mov_b32 s93, {fhex(1/640)}\ns_mov_b32 s94, {fhex(1/1280)}\ns_mov_b32 s95, {fhex(1e-5)}\ns_waitcnt lgkmcnt(0)")
    epoch_fix(p)
    if X.get('gs', 1) == 2: gen_seq(p)
    p("@wait vm=x")
    stamp(p, 20)
    RAW = 64
    for kk in range(4):
        r = RAW + 12*kk
        p(f"ds_read2_b32 {vr(r,2)}, v{vD+kk} offset0:0 offset1:1")
        p(f"ds_read2_b32 {vr(r+10,2)}, v{vM+kk} offset0:4 offset1:5")
        p(f"ds_read2_b32 {vr(r+8,2)}, v{vM+kk} offset0:2 offset1:3")
        p(f"ds_read2_b32 {vr(r+2,2)}, v{vD+kk} offset0:2 offset1:3")
        p(f"ds_read2_b32 {vr(r+6,2)}, v{vM+kk} offset0:0 offset1:1")
        p(f"ds_read_b32 v{r+4}, v{vD+kk} offset:16 @@xr{kk}")
    T, CA = 112, 152
    S2 = [48, 50, 52, 54]; Q2 = [56, 58, 60, 62]; Y = [26, 27, 28, 29]
    for kk in range(4):
        r = RAW + 12*kk
        p(f"@wait lg=xr{kk}")
        for k in range(5):
            a, b = 4, 6
            p(f"v_lshlrev_b32 v{a}, 16, v{r+k}\nv_and_b32 v{a+1}, s{sMASKHI}, v{r+k}")
            p(f"v_lshlrev_b32 v{b}, 16, v{r+6+5-k}\nv_and_b32 v{b+1}, s{sMASKHI}, v{r+6+4-k}")
            if k == 0: p(f"v_cndmask_b32 v{b}, v{b}, 0, {sr(sJ0M,2)}")
            tt, cc = T+10*kk+2*k, CA+10*kk+2*k
            p(f"v_pk_add_f32 {vr(tt,2)}, {vr(a,2)}, {vr(b,2)}")
            p(f"v_pk_add_f32 {vr(cc,2)}, {vr(a,2)}, {vr(b,2)} neg_lo:[0,1] neg_hi:[0,1]")
            if k == 0: p(f"v_pk_mul_f32 {vr(Q2[kk],2)}, {vr(tt,2)}, {vr(tt,2)}")
            else:
                p(f"v_pk_add_f32 {vr(S2[kk],2)}, {vr(tt,2)}, {vr(S2[kk] if k > 1 else tt-2,2)}")
                p(f"v_pk_fma_f32 {vr(Q2[kk],2)}, {vr(tt,2)}, {vr(tt,2)}, {vr(Q2[kk],2)}")
            p(f"v_pk_fma_f32 {vr(Q2[kk],2)}, {vr(cc,2)}, {vr(cc,2)}, {vr(Q2[kk],2)}")
        p(f"v_lshlrev_b32 v{Y[kk]}, 16, v{r+6}\nv_cndmask_b32 v{Y[kk]}, 0, v{Y[kk]}, {sr(sJ31M,2)}")
        p(f"v_add_f32 v{S2[kk]}, v{S2[kk]}, v{S2[kk]+1}\nv_add_f32 v{Q2[kk]}, v{Q2[kk]}, v{Q2[kk]+1}")
        p(f"v_add_f32 v{S2[kk]}, v{S2[kk]}, v{Y[kk]}\nv_add_f32 v4, v{Y[kk]}, v{Y[kk]}\nv_fmac_f32 v{Q2[kk]}, v4, v{Y[kk]}")
    red = S2 + Q2
    for mod in ("quad_perm:[1,0,3,2]", "quad_perm:[2,3,0,1]", "row_half_mirror", "row_mirror"):
        for x in red: p(f"v_add_f32_dpp v{x}, v{x}, v{x} {mod} {FULL}")
    for x in red: p(f"v_mov_b32 v{x+1}, v{x}")
    for x in red: p(f"v_permlane16_swap_b32 v{x}, v{x+1}")
    for x in red: p(f"v_add_f32 v{x}, v{x}, v{x+1}")
    M = lambda k: S2[k]
    R = lambda k: Q2[k]
    for k in range(4): p(f"v_mul_f32 v{M(k)}, s93, v{M(k)}")
    for k in range(4): p(f"v_mul_f32 v{M(k)+1}, v{M(k)}, v{M(k)}")
    for k in range(4): p(f"v_fma_f32 v{R(k)}, v{R(k)}, s94, -v{M(k)+1}")
    for k in range(4): p(f"v_add_f32 v{R(k)}, s95, v{R(k)}")
    for k in range(4): p(f"v_rsq_f32 v{R(k)}, v{R(k)}")
    for k in range(4): p(f"v_fmac_f32 v{T+10*k}, v{vFJ0}, v{M(k)}")
    for k in range(4): p(f"v_sub_f32 v{Y[k]}, v{Y[k]}, v{M(k)}")
    OUT = 64; A1, A3, B0, B2, B1, K1, K2 = 72, 74, 76, 78, 80, 82, 84; U, W, e = 86, 90, 94
    g0 = sr(sG0M, 2)
    p(f"v_cndmask_b32 v{A1}, v{R(1)}, 0, {g0}\nv_cndmask_b32 v{A3}, v{R(3)}, 0, {g0}")
    p(f"v_cndmask_b32 v{B0}, v{R(0)}, 0, {g0}\nv_cndmask_b32 v{B2}, v{R(2)}, 0, {g0}")
    p(f"v_cndmask_b32 v{B1}, -v{R(1)}, v{R(1)}, {g0}")
    p(f"v_mul_f32 v{K1}, v{R(0)}, v{M(0)}\nv_mul_f32 v{K2}, v{R(2)}, v{M(2)}")
    p(f"v_fmac_f32 v{K1}, v{A1}, v{M(1)}\nv_fmac_f32 v{K2}, v{A3}, v{M(3)}")
    p(f"v_mul_f32 v{K1}, -2.0, v{K1}\nv_mul_f32 v{K2}, -2.0, v{K2}")
    bc = "op_sel_hi:[0,1,0]"; bc1 = "op_sel_hi:[0,1,1]"
    for k in range(5):
        tt = lambda r_: vr(T+10*r_+2*k, 2)
        cc = lambda r_: vr(CA+10*r_+2*k, 2)
        u, w = U, U+2; u2, w2 = W, W+2
        p(f"v_pk_fma_f32 {vr(u,2)}, {vr(R(0),2)}, {tt(0)}, {vr(K1,2)} {bc}")
        p(f"v_pk_fma_f32 {vr(w,2)}, {vr(R(2),2)}, {tt(2)}, {vr(K2,2)} {bc}")
        p(f"v_pk_mul_f32 {vr(u2,2)}, {vr(B0,2)}, {cc(0)} op_sel_hi:[0,1]")
        p(f"v_pk_mul_f32 {vr(w2,2)}, {vr(B2,2)}, {cc(2)} op_sel_hi:[0,1]")
        p(f"v_pk_fma_f32 {vr(u,2)}, {vr(A1,2)}, {tt(1)}, {vr(u,2)} {bc1}")
        p(f"v_pk_fma_f32 {vr(w,2)}, {vr(A3,2)}, {tt(3)}, {vr(w,2)} {bc1}")
        p(f"v_pk_fma_f32 {vr(u2,2)}, {vr(B1,2)}, {cc(1)}, {vr(u2,2)} {bc1}")
        p(f"v_pk_fma_f32 {vr(w2,2)}, {vr(R(3),2)}, {cc(3)}, {vr(w2,2)} {bc1} neg_lo:[1,0,0] neg_hi:[1,0,0]")
        p(f"v_pk_add_f32 {vr(e,2)}, {vr(u,2)}, {vr(w,2)}")
        p(f"v_pk_add_f32 {vr(e+2,2)}, {vr(u,2)}, {vr(w,2)} neg_lo:[0,1] neg_hi:[0,1]")
        p(f"v_pk_add_f32 {vr(e+4,2)}, {vr(u2,2)}, {vr(w2,2)} neg_lo:[0,1] neg_hi:[0,1]")
        p(f"v_pk_add_f32 {vr(e+6,2)}, {vr(u2,2)}, {vr(w2,2)}")
        o = lambda cmb, kk_: (OUT+2*cmb+(kk_ & 1)) if kk_ < 4 else 102+cmb
        for cmb in range(4): p(f"v_cvt_pk_bf16_f32 v{o(cmb,k)}, v{e+2*cmb}, v{e+2*cmb+1}")
        if k in (1, 3):
            for cmb in range(4): p(f"ds_write2_b32 v{vAW+cmb}, v{OUT+2*cmb}, v{OUT+2*cmb+1} offset0:{k-1} offset1:{k}")
    for cmb in range(4): p(f"ds_write_b32 v{vAW+cmb}, v{102+cmb} offset:16")
    p(f"v_mul_f32 v{U}, v{R(0)}, v{Y[0]}\nv_mul_f32 v{U+1}, v{R(2)}, v{Y[2]}")
    p(f"v_fmac_f32 v{U}, v{A1}, v{Y[1]}\nv_fmac_f32 v{U+1}, v{A3}, v{Y[3]}")
    p(f"v_add_f32 v{U+2}, v{U}, v{U+1}\nv_sub_f32 v{U+3}, v{U}, v{U+1}")
    p(f"s_mov_b64 exec, {sr(sJ31M,2)}\nds_write2_b32 v{vTW}, v{U+2}, v{U+3} offset0:0 offset1:8\ns_mov_b64 exec, -1")
    with cond(p, f"s_cmp_lg_u32 s{sG}, 0"):
        p(f"v_mul_f32 v{K1}, v{R(1)}, v{M(1)}\nv_fmac_f32 v{K1}, v{R(3)}, v{M(3)}\nv_mul_f32 v{K1}, -2.0, v{K1}")
        for k in range(5):
            p(f"v_pk_fma_f32 {vr(W,2)}, {vr(R(1),2)}, {vr(T+10+2*k,2)}, {vr(K1,2)} {bc}")
            p(f"v_pk_fma_f32 {vr(W,2)}, {vr(R(3),2)}, {vr(T+30+2*k,2)}, {vr(W,2)} {bc1}")
            p(f"v_cvt_pk_bf16_f32 v{106+k}, v{W}, v{W+1}")
        p(f"v_mul_f32 v{W}, v{R(1)}, v{Y[1]}\nv_fmac_f32 v{W}, v{R(3)}, v{Y[3]}")
        p(f"v_add_u32 v11, {P1_XA}, v{vJ}\nv_mov_b32 v10, {P1_T+64}\ns_mov_b64 exec, {g0}")
        p(f"ds_write2_b32 v11, v106, v107 offset0:0 offset1:1\nds_write2_b32 v11, v108, v109 offset0:2 offset1:3\nds_write_b32 v11, v110 offset:16")
        p(f"s_mov_b64 exec, 0x80000000\nds_write_b32 v10, v{W}\ns_mov_b64 exec, -1")
    stamp(p, 21)
    p("s_waitcnt lgkmcnt(0)"); bar(p, "B1")
    stamp(p, 22)
    p("\n".join(bulk))

def recur(p, P, k2, n=2):
    for j in range(2, 8):
        for c in range(n):
            p(f"v_pk_fma_f32 {vr(P[c]+2*j,2)}, {k2}, {vr(P[c]+2*j-2,2)}, {vr(P[c]+2*j-4,2)} neg_lo:[0,0,1] neg_hi:[0,0,1]".replace("£", ""))
def gen_hid(p, vE, dC, dS, T):
    EF, X0, CT, SP, K2 = T+32, T+33, T+34, T+36, T+38
    p(f"v_mul_f32 v{EF}, {fhex(1/640)}, v{vE}\nv_lshrrev_b32 v{X0}, 4, v{vLANE}\nv_lshlrev_b32 v{X0}, 3, v{X0}\nv_cvt_f32_u32 v{X0}, v{X0}\nv_mul_f32 v{X0}, v{X0}, v{EF}")
    p(f"v_cos_f32 v{CT}, v{EF}\nv_sin_f32 v{SP}, v{EF}\nv_sin_f32_e64 v{SP+1}, -v{EF}\nv_add_f32 v{K2}, v{CT}, v{CT}")
    P = [T, T+16]
    for kp in range(5):
        for c in range(2):
            ks = 2*kp + c
            p(f"v_fmamk_f32 v{P[c]+2}, v{EF}, {fhex(32.0*ks)}, v{X0}" if ks else f"v_mov_b32 v{P[c]+2}, v{X0}")
        for c in range(2): p(f"v_cos_f32 v{P[c]}, v{P[c]+2}\nv_sin_f32_e64 v{P[c]+1}, -v{P[c]+2}")
        for c in range(2): p(f"v_pk_mul_f32 {vr(P[c]+2,2)}, {vr(P[c],2)}, {vr(CT,2)} op_sel_hi:[1,0]")
        for c in range(2): p(f"v_pk_fma_f32 {vr(P[c]+2,2)}, {vr(P[c],2)}, {vr(SP,2)}, {vr(P[c]+2,2)} op_sel:[1,0,0] op_sel_hi:[0,1,1]")
        for j in range(2, 8):
            for c in range(2): p(f"v_pk_fma_f32 {vr(P[c]+2*j,2)}, {vr(K2,2)}, {vr(P[c]+2*j-2,2)}, {vr(P[c]+2*j-4,2)} op_sel_hi:[0,1,1] neg_lo:[0,0,1] neg_hi:[0,0,1]")
        for c in range(2):
            for jj in range(4):
                if dC is not None: p(f"v_cvt_pk_bf16_f32 v{dC+4*(2*kp+c)+jj}, v{P[c]+4*jj}, v{P[c]+4*jj+2}")
                if dS is not None: p(f"v_cvt_pk_bf16_f32 v{dS+4*(2*kp+c)+jj}, v{P[c]+4*jj+1}, v{P[c]+4*jj+3}")
def gen_seq(p):
    T = 88; TF, BS, K2, O = T+32, T+34, T+36, T+40
    p(f"s_lshl_b32 s{t}, s{sI2}, 5\ns_add_u32 s{t+1}, s{t}, 32\ns_add_u32 s{t}, s{t}, s{sP2}\nv_and_b32 v{TF}, 15, v{vLANE}\nv_lshl_add_u32 v{TF}, v{TF}, 1, s{t}\nv_cvt_f32_u32 v{TF}, v{TF}\nv_cvt_f32_u32 v{TF+1}, s{t+1}")
    p(f"v_mul_f32 v{TF}, {fhex(1/2048)}, v{TF}\nv_mul_f32 v{TF+1}, {fhex(1/2048)}, v{TF+1}")
    p(f"s_and_b32 s{t}, s{sWAVE}, 1\ns_lshl_b32 s{t}, s{t}, 8\nv_lshrrev_b32 v{O}, 4, v{vLANE}\nv_lshl_add_u32 v{O}, v{O}, 3, s{t}\nv_cvt_f32_u32 v{O}, v{O}")
    p(f"s_cmp_ge_u32 s{sWAVE}, 2\ns_cselect_b32 s{t}, {fhex(0.25)}, 0\nv_fma_f32 v{BS}, v{TF}, v{O}, s{t}\nv_fma_f32 v{BS+1}, v{TF+1}, v{O}, s{t}")
    p(f"v_cos_f32 v{K2}, v{TF}\nv_cos_f32 v{K2+1}, v{TF+1}\ns_add_u32 s{t+1}, s{sI2}, s{sQ2}\ns_lshl_b32 s{t+1}, s{t+1}, 1\nv_pk_add_f32 {vr(K2,2)}, {vr(K2,2)}, {vr(K2,2)}")
    P = [T, T+16]
    for kp in range(4):
        for c in range(2):
            p(f"s_add_u32 s{t}, s{t+1}, {2*kp+c}\ns_and_b32 s{t}, s{t}, 7\ns_lshl_b32 s{t}, s{t}, 5\nv_cvt_f32_u32 v{O}, s{t}\nv_pk_fma_f32 {vr(P[c],2)}, {vr(TF,2)}, {vr(O,2)}, {vr(BS,2)} op_sel_hi:[1,0,1]")
            p(f"v_fract_f32 v{P[c]}, v{P[c]}\nv_fract_f32 v{P[c]+1}, v{P[c]+1}\nv_pk_add_f32 {vr(P[c]+2,2)}, {vr(P[c],2)}, {vr(TF,2)}")
        for c in range(2):
            for r in range(4): p(f"v_cos_f32 v{P[c]+r}, v{P[c]+r}")
        for j in range(2, 8):
            for c in range(2): p(f"v_pk_fma_f32 {vr(P[c]+2*j,2)}, {vr(K2,2)}, {vr(P[c]+2*j-2,2)}, {vr(P[c]+2*j-4,2)} neg_lo:[0,0,1] neg_hi:[0,0,1]")
        for c in range(2):
            for jj in range(4): p(f"v_cvt_pk_bf16_f32 v{O+2+jj}, v{P[c]+4*jj}, v{P[c]+4*jj+2}\nv_cvt_pk_bf16_f32 v{O+6+jj}, v{P[c]+4*jj+1}, v{P[c]+4*jj+3}")
            for jj in range(4): p(f"v_accvgpr_write_b32 a{A_MF+4*(2*kp+c)+jj}, v{O+2+jj}\nv_accvgpr_write_b32 a{A_MX+4*(2*kp+c)+jj}, v{O+6+jj}")
P2_XD, P2_RING, P2_ACC, P2_ACX, P2_XB = 32, 64, 144, 164, 184
vPW, vRA, vRB, vHA, vHB, vSA, vSB, vXBo, vSG2, vSP2 = 16, 17, 18, 19, 20, 21, 22, 23, 24, 26
def P2_xload(p):
    p(f"v_and_b32 v10, 3, v{vLANE}\ns_lshl_b32 s{t+3}, s{sWAVE}, 2\nv_add_u32 v10, s{t+3}, v10\nv_mul_u32_u24 v10, 2560, v10")
    p(f"v_lshrrev_b32 v11, 2, v{vLANE}\nv_lshlrev_b32 v11, 4, v11\ns_mul_i32 s{t+3}, s{sQ2}, 160\nv_add_u32 v11, s{t+3}, v11")
    p(f"v_sub_u32 v28, 1264, v11\nv_add_u32 v29, 16, v28\nv_cmp_eq_u32 vcc, 0, v11\nv_mov_b32 v30, 640\nv_cndmask_b32 v29, v29, v30, vcc")
    p(f"s_lshl_b32 s{t}, s{sI2}, 5\ns_add_u32 s{t+1}, s{t}, s{sP2}\ns_mul_i32 s{t+1}, s{t+1}, 1280")
    p(f"s_sub_u32 s{t}, s{sP2}, s{t}\ns_add_u32 s{t}, s{t}, 2046\ns_mul_i32 s{t}, s{t}, 1280")
    p(f"v_add_u32 v30, s{t+1}, v10\nv_sub_u32 v31, s{t}, v10")
    for sd in range(2):
        r = P2_RING + 12*sd
        p(f"v_add_u32 v10, v{30+sd}, v11\nbuffer_load_dwordx4 {vr(r,4)}, v10, {sr(SX,4)}, 0 offen")
        p(f"v_add_u32 v10, v{30+sd}, v28\nbuffer_load_dwordx4 {vr(r+4,4)}, v10, {sr(SX,4)}, 0 offen")
        p(f"v_add_u32 v10, v{30+sd}, v29\nbuffer_load_dword v{r+8}, v10, {sr(SX,4)}, 0 offen @@xp")
def P2_prepA(p):
    p(f"s_lshr_b32 s{t}, s{sWAVE}, 1\ns_lshl_b32 s{t}, s{t}, 1\ns_add_u32 s{t}, s{t}, s{sP2}\ns_lshl_b32 s{t}, s{t}, 2\ns_add_u32 s{t}, s{t}, s{sQ2}")
    p(f"s_lshl_b32 s{t}, s{t}, 1\ns_and_b32 s{t+1}, s{sWAVE}, 1\ns_add_u32 s{t}, s{t}, s{t+1}\ns_mul_i32 s{t}, s{t}, 40960\ns_add_u32 s{t}, s{t}, {WS_AB}")
    p(f"s_add_u32 s{t+1}, s{sI2}, s{sQ2}\ns_and_b32 s{t+1}, s{t+1}, 3\ns_lshl_b32 s{t+1}, s{t+1}, 1")
    for k in range(8):
        p(f"s_add_u32 s{t+2}, s{t+1}, {k}\ns_and_b32 s{t+2}, s{t+2}, 7\ns_mul_i32 s{t+2}, s{t+2}, 5120\ns_add_u32 s{80+k}, s{t+2}, s{t}")
    p(f"v_add_u32 v3, 4096, v{vL16}")
    p(f"v_lshrrev_b32 v10, 2, v{vLANE}\nv_lshlrev_b32 v{vXBo}, 5, v10\ns_mul_i32 s69, s{sQ2}, 320\ns_mul_i32 s{t+1}, s{sP2}, 1280\ns_add_u32 s69, s69, s{t+1}\ns_add_u32 s69, s69, {WS_XB}")
    p(f"s_mul_i32 s{t+2}, s{sWAVE}, {SCR_W}\ns_add_u32 s{t+2}, s{t+2}, {SCR+256}")
    p(f"v_and_b32 v12, 15, v{vLANE}\nv_mul_u32_u24 v12, 336, v12\nv_lshrrev_b32 v13, 4, v{vLANE}\nv_lshl_add_u32 v12, v13, 4, v12\nv_add_u32 v{vPW}, s{t+2}, v12")
    p(f"v_and_b32 v12, 3, v{vLANE}\ns_lshl_b32 s{t+3}, s{sWAVE}, 2\nv_add_u32 v12, s{t+3}, v12")
    p(f"v_mul_u32_u24 v13, 336, v12\nv_add_u32 v13, {SCR+256}, v13\nv_add_u32 v{vRA}, v13, v{vXBo}")
    p(f"s_cmp_eq_u32 s{sP2}, 0\ns_cselect_b32 s{t+3}, 336, 0\ns_cselect_b32 s{t+4}, 0, 0x80000000\nv_add_u32 v{vRB}, s{t+3}, v{vRA}")
    p(f"v_lshlrev_b32 v13, 8, v10\nv_lshl_add_u32 v{vHA}, v12, 4, v13\nv_sub_u32 v14, 15, v12\nv_lshl_add_u32 v{vHB}, v14, 4, v13")
    p(f"v_lshlrev_b32 v{vSG2}, 31, v{vLANE}\nv_or_b32 v{vSG2}, 1.0, v{vSG2}\nv_xor_b32 v{vSP2}, s{t+4}, v{vSG2}")
    p(f"v_lshlrev_b32 v{vSA}, 3, v12\nv_lshlrev_b32 v{vSB}, 3, v14")
    p(f"s_cmp_eq_u32 s{sQ2}, 0\ns_cselect_b32 s70, 15, 0\ns_mov_b32 s71, 0")
    p(f"s_lshl_b32 s{t}, s{sI2}, 1\ns_add_u32 s{t}, s{t}, s{sP2}\ns_sub_u32 s{t+1}, 126, s{t}\ns_lshl_b32 s{t+3}, s{sP2}, 1\ns_add_u32 s{t+1}, s{t+1}, s{t+3}")
    p(f"s_mul_i32 s{t+3}, s{sQ2}, 2560\ns_add_u32 s{t+3}, s{t+3}, {WS_H}\ns_lshl_b32 s{t+4}, s{sQ2}, 7\ns_add_u32 s{t+4}, s{t+4}, {WS_HS}")
    for (sh, ss, src) in ((88, 92, t), (90, 93, t+1)):
        p(f"s_mul_i32 s{sh}, s{src}, 20480\ns_add_u32 s{sh}, s{sh}, s{t+3}\ns_add_u32 s{sh+1}, s{sh}, 10240")
        p(f"s_lshl_b32 s{ss}, s{src}, 9\ns_add_u32 s{ss}, s{ss}, s{t+4}")
    p(f"v_cmp_gt_u32 vcc, 40, v{vLANE}\nv_mov_b32 v10, 0x40000000\nv_cndmask_b32 v{vHA}, v10, v{vHA}, vcc\nv_cndmask_b32 v{vHB}, v10, v{vHB}, vcc")
def P2_prepB(p):
    p("@wait vm=xp")
    for sd in range(2):
        r = P2_RING + 12*sd; x = P2_XD + 16*sd
        for k in range(4): p(f"v_lshlrev_b32 v{x+2*k}, 16, v{r+k}\nv_and_b32 v{x+2*k+1}, s{sMASKHI}, v{r+k}")
        p(f"v_lshlrev_b32 v{x+8}, 16, v{r+8}")
        for i in range(1, 8):
            wi = 8 - i
            if wi & 1: p(f"v_and_b32 v{x+8+i}, s{sMASKHI}, v{r+4+(wi>>1)}")
            else: p(f"v_lshlrev_b32 v{x+8+i}, 16, v{r+4+(wi>>1)}")
def P2_main(p):
    RING, ACC, ACX = P2_RING, P2_ACC, P2_ACX
    def ld(k):
        for nt in range(5):
            r = RING + ((k & 3)*5 + nt)*4
            p(f"buffer_load_dwordx4 {vr(r,4)}, v{vL16 if nt < 4 else 3}, {sr(SW,4)}, s{80+k} offen offset:{(nt&3)*1024} sc1 @@ab{k}_{nt}")
    for k in range(4): ld(k)
    p(f"buffer_load_dwordx4 {vr(P2_XB,4)}, v{vXBo}, {sr(SW,4)}, s69 offen sc1\nbuffer_load_dwordx4 {vr(P2_XB+4,4)}, v{vXBo}, {sr(SW,4)}, s69 offen offset:16 sc1")
    for k in range(8):
        for nt in range(5):
            r = RING + ((k & 3)*5 + nt)*4
            p(f"@wait vm=ab{k}_{nt}")
            p(f"{MF16} {vr(ACC+4*nt,4)}, {vr(r,4)}, {ar(A_MF+4*k,4)}, {vr(ACC+4*nt,4) if k else 0}")
            p(f"{MF16} {vr(ACX+4*nt,4)}, {vr(r,4)}, {ar(A_MX+4*k,4)}, {vr(ACX+4*nt,4) if k else 0}")
        if k < 4: ld(k+4)
        if k == X.get('b3b', 4): bar(p, "B3b")
    stamp(p, 23)
    for nt in range(5): p(f"ds_write_b128 v{vPW}, {vr(ACC+4*nt,4)} offset:{64*nt}")
    p("s_mov_b32 exec_lo, 0x00010001\ns_mov_b32 exec_hi, 0x00010001")
    for nt in range(5): p(f"ds_write_b128 v{vPW}, {vr(ACX+4*nt,4)} offset:{16*336+64*nt}")
    p("s_mov_b64 exec, -1\ns_waitcnt lgkmcnt(0)"); bar(p, "B4")
    STt = 160; L = P2_RING
    for sd in range(2):
        for hh in range(2):
            for wv in range(4):
                p(f"ds_read_b128 {vr(L+32*sd+8*wv+4*hh,4)}, v{vRA if sd == 0 else vRB} offset:{wv*SCR_W+16*hh} @@pq{sd}{hh}")
    for sd in range(2):
        b = L + 32*sd; x = P2_XD + 16*sd; o = 144 + 8*sd
        su = (vSG2, 0) if sd == 0 else (vSP2, 1)
        sw = (vSP2, 0) if sd == 0 else (vSG2, 1)
        for k in range(4):
            p(f"@wait lg=pq{sd}{k>>1}")
            P0, P1_, Q0, Q1 = b+2*k, b+8+2*k, b+16+2*k, b+24+2*k
            p(f"v_pk_add_f32 {vr(P0,2)}, {vr(P0,2)}, {vr(P1_,2)}\nv_pk_add_f32 {vr(Q0,2)}, {vr(Q0,2)}, {vr(Q1,2)}")
            p(f"v_pk_add_f32 {vr(P1_,2)}, {vr(P0,2)}, {vr(Q0,2)} neg_lo:[0,1] neg_hi:[0,1]")
            p(f"v_pk_add_f32 {vr(Q1,2)}, {vr(P0,2)}, {vr(Q0,2)}")
            for (dst, (sv, ng)) in ((P1_, su), (Q1, sw)):
                p(f"v_pk_fma_f32 {vr(dst,2)}, {vr(sv,2)}, {vr(P2_XB+2*k,2)}, {vr(dst,2)} op_sel_hi:[0,1,1]" + (" neg_lo:[1,0,0] neg_hi:[1,0,0]" if ng else ""))
            lo, hi = (P1_, Q1) if sd == 0 else (Q1, P1_)
            if k == 0: p(f"v_cndmask_b32 v{lo}, v{lo}, 0, s[70:71]")
            p(f"v_pk_add_f32 {vr(x+2*k,2)}, {vr(x+2*k,2)}, {vr(lo,2)}\nv_pk_add_f32 {vr(x+8+2*k,2)}, {vr(x+8+2*k,2)}, {vr(hi,2)}")
            p(f"v_cvt_pk_bf16_f32 v{o+k}, v{x+2*k}, v{x+2*k+1}\nv_cvt_pk_bf16_f32 v{o+4+k}, v{x+8+2*k}, v{x+8+2*k+1}")
        sh = 88 if sd == 0 else 90; vh = vHA if sd == 0 else vHB
        p(f"buffer_store_dwordx4 {vr(o,4)}, v{vh}, {sr(SW,4)}, s{sh} offen")
        p(f"buffer_store_dwordx4 {vr(o+4,4)}, v{vh}, {sr(SW,4)}, s{sh+1} offen")
    for k in range(8):
        for sd in range(2):
            x = P2_XD + 16*sd; s_, q_ = STt+4*sd, STt+4*sd+2
            if k == 0: p(f"v_pk_mul_f32 {vr(q_,2)}, {vr(x,2)}, {vr(x,2)}")
            else: p(f"v_pk_add_f32 {vr(s_,2)}, {vr(s_ if k > 1 else x,2)}, {vr(x+2*k,2)}\nv_pk_fma_f32 {vr(q_,2)}, {vr(x+2*k,2)}, {vr(x+2*k,2)}, {vr(q_,2)}")
    red = [STt, STt+2, STt+4, STt+6]
    p(f"v_cmp_gt_u32 vcc, 40, v{vLANE}")
    for x in red: p(f"v_add_f32 v{x}, v{x}, v{x+1}")
    for x in red: p(f"v_cndmask_b32 v{x}, 0, v{x}, vcc")
    for mod in ("row_ror:4", "row_ror:8"):
        for x in red: p(f"v_add_f32_dpp v{x}, v{x}, v{x} {mod} {FULL}")
    for sw in ("v_permlane16_swap_b32", "v_permlane32_swap_b32"):
        for x in red: p(f"v_mov_b32 v{x+1}, v{x}")
        for x in red: p(f"{sw} v{x}, v{x+1}")
        for x in red: p(f"v_add_f32 v{x}, v{x}, v{x+1}")
    p(f"v_mov_b32 v{STt+1}, v{STt+2}\nv_mov_b32 v{STt+5}, v{STt+6}\ns_mov_b64 exec, 15")
    p(f"buffer_store_dwordx2 {vr(STt,2)}, v{vSA}, {sr(SW,4)}, s92 offen\nbuffer_store_dwordx2 {vr(STt+4,2)}, v{vSB}, {sr(SW,4)}, s93 offen")
    p("s_mov_b64 exec, -1")

P3_AZ2, P3_AZ1, P3_BF = 16, 40, 160
vWB1 = 184; sGK1 = 90; vK0 = 14
def HF(ks, par):
    i = 2*ks + par
    return vr(64+4*i, 4) if i < 24 else ar(4*(i-24), 4)
def P3_prep(p):
    p(f"v_add_u32 v{vWB1}, {WZ}, v{vL16}\nv_mov_b32 v188, 0xffffff00")
    p(f"s_lshl_b32 s80, s{sRB3}, 10\ns_add_u32 s80, s80, {WS_HS}")
    p(f"s_mul_i32 s81, s{sRB3}, 40960\ns_add_u32 s81, s81, {WS_H}\ns_add_u32 s82, s81, 20480")
    p(f"s_mov_b32 s{sGK1}, {fhex(GK1)}\ns_mov_b32 s{sGK1+1}, {fhex(GK1)}\nv_mov_b32 v{vK0}, {fhex(GK0)}")
    p(f"s_lshl_b32 s83, s{sRB3}, 12\ns_add_u32 s83, s83, {WS_ZS}\ns_lshl_b32 s84, s{sJ3}, 4\ns_add_u32 s84, s84, s83")
    p(f"s_mul_i32 s85, s{sJ3}, 192\ns_add_u32 s85, s85, s{sRB3}\ns_lshl_b32 s85, s85, 10\ns_add_u32 s85, s85, {WS_Z2}\ns_add_u32 s92, s85, 65536\ns_add_u32 s93, s85, 131072")
    p(f"s_lshl_b32 s86, s{sWAVE}, 8\ns_add_u32 s86, s86, {TBL}\ns_mov_b32 s87, {fhex(1e-5)}\ns_mov_b32 s88, {fhex(1/640)}\ns_mov_b32 s89, {fhex(1/768)}")
    p(f"v_lshrrev_b32 v185, 5, v{vLANE}\nv_lshlrev_b32 v185, 6, v185\nv_and_b32 v10, 7, v{vLANE}\nv_lshl_add_u32 v185, v10, 3, v185\nv_add_u32 v185, s86, v185")
    p(f"v_lshrrev_b32 v12, 4, v{vLANE}\nv_lshl_add_u32 v12, v12, 4, s86")
    p(f"v_and_b32 v10, 15, v{vLANE}\nv_lshlrev_b32 v186, 2, v10\nv_add_u32 v186, {CST}, v186")
    p(f"v_lshrrev_b32 v187, 2, v{vLANE}\nv_lshlrev_b32 v187, 8, v187\nv_and_b32 v10, 3, v{vLANE}\nv_lshl_add_u32 v13, v10, 4, v187")
def gelu4(p, x, tmp):
    for step in range(6):
        for h in range(2):
            xx = x+2*h; a = tmp+4*h; b = a+2
            if step == 0: p(f"v_pk_mul_f32 {vr(a,2)}, {vr(xx,2)}, {vr(xx,2)}")
            if step == 1: p(f"v_pk_fma_f32 {vr(a,2)}, {vr(a,2)}, {sr(sGK1,2)}, {vr(vK0,2)} op_sel_hi:[1,1,0]")
            if step == 2: p(f"v_pk_mul_f32 {vr(a,2)}, {vr(a,2)}, {vr(xx,2)}")
            if step == 3: p(f"v_exp_f32 v{b}, v{a}\nv_exp_f32 v{b+1}, v{a+1}")
            if step == 4: p(f"v_pk_add_f32 {vr(b,2)}, {vr(b,2)}, 1.0 op_sel_hi:[1,0]")
            if step == 5: p(f"v_rcp_f32 v{a}, v{b}\nv_rcp_f32 v{a+1}, v{b+1}")
    for h in range(2): p(f"v_pk_mul_f32 {vr(x+2*h,2)}, {vr(x+2*h,2)}, {vr(tmp+4*h,2)}")
def hfrag(p, ks):
    if ks >= 20: return
    for par in range(2):
        p(f"buffer_load_dwordx4 {HF(ks,par)}, v{vL16}, {sr(SW,4)}, s{81+par} offen offset:{(ks&3)*1024} sc1 @@h{ks}")
    if (ks & 3) == 3 and ks < 19: p(f"s_add_u32 s81, s81, 4096\ns_add_u32 s82, s82, 4096")
def P3_pass(p, z1, k0=0, k1=20):
    acc = P3_AZ1 if z1 else P3_AZ2
    HA = X.get('ha', 6)
    seq = [(ks, nt) for ks in range(k0, k1) for nt in range(3)]
    def rd(i):
        if i < len(seq):
            ks, nt = seq[i]
            p(f"ds_read_b128 {vr(P3_BF+4*(i%6),4)}, v{vWB1 if z1 else vL16} offset:{nt*20480+ks*1024} @@wf{z1}_{ks}_{nt}")
    for i in range(5): rd(i)
    for i, (ks, nt) in enumerate(seq):
        p(f"@wait lg=wf{z1}_{ks}_{nt}" + (f" vm=h{ks}" if not z1 else ""))
        bf = vr(P3_BF+4*(i%6), 4)
        for par in range(2):
            a = vr(acc + (par*3+nt)*4, 4); c = a if ks else 0
            p(f"{MF16} {a}, {bf}, {HF(ks,par)}, {c}" if z1 else f"{MF16} {a}, {HF(ks,par)}, {bf}, {c}")
        rd(i+5)
        if not z1 and nt == 0: hfrag(p, ks+HA)
        if not z1 and (ks, nt) == (X.get('ln1k', 3), 2): P3_ln1(p)
        if not z1 and (ks, nt) == (X.get('b5a', 4), 2): bar(p, "B5a")
def P3_loads(p):
    for ks in range(X.get('ha', 6)):
        hfrag(p, ks)
        if ks == 1: p(f"buffer_load_dwordx4 v[4:7], v{vL16}, {sr(SW,4)}, s80 offen sc1 @@hs")
def P3_ln1(p):
    p("@wait vm=hs")
    for x in range(4, 8): p(f"v_add_f32_dpp v{x}, v{x}, v{x} row_ror:8 {FULL}")
    for x in range(4): p(f"v_mov_b32 v{8+x}, v{4+x}")
    for x in range(4): p(f"v_permlane16_swap_b32 v{4+x}, v{8+x}")
    for x in range(4): p(f"v_add_f32 v{4+x}, v{4+x}, v{8+x}")
    p(f"v_mul_f32 v8, s88, v4\nv_mul_f32 v9, s88, v6\nv_mul_f32 v4, v8, v8\nv_mul_f32 v6, v9, v9")
    p(f"v_fma_f32 v5, v5, s88, -v4\nv_fma_f32 v7, v7, s88, -v6\nv_add_f32 v5, s87, v5\nv_add_f32 v7, s87, v7")
    p(f"v_rsq_f32 v10, v5\nv_rsq_f32 v11, v7\nv_sub_f32 v8, 0, v8\nv_sub_f32 v9, 0, v9")
    p(f"ds_write_b64 v185, v[8:9]\nds_write_b64 v185, v[10:11] offset:128")
def P3_z2a(p):
    B = P3_BF; NM, RR, TMP = B, B+8, B+16
    CSr = [4, 6, 8]
    for nt in range(3): p(f"ds_read_b32 v{CSr[nt]}, v186 offset:{64*nt}")
    for par in range(2):
        p(f"ds_read_b128 {vr(NM+4*par,4)}, v12 offset:{64*par}\nds_read_b128 {vr(RR+4*par,4)}, v12 offset:{128+64*par} @@nr{par}")
    for par in range(2):
        p(f"@wait lg=nr{par}")
        for nt in range(3):
            a = P3_AZ2 + (par*3+nt)*4
            for h in range(2): p(f"v_pk_fma_f32 {vr(a+2*h,2)}, {vr(NM+4*par+2*h,2)}, {vr(CSr[nt],2)}, {vr(a+2*h,2)} op_sel_hi:[1,0,1]")
            for h in range(2): p(f"v_pk_mul_f32 {vr(a+2*h,2)}, {vr(a+2*h,2)}, {vr(RR+4*par+2*h,2)}")
            gelu4(p, a, TMP)
    for par in range(2):
        for h in range(2):
            a = lambda nt: vr(P3_AZ2 + (par*3+nt)*4 + 2*h, 2)
            S_, Q_ = vr(NM+4*par+2*h, 2), vr(RR+4*par+2*h, 2)
            p(f"v_pk_add_f32 {S_}, {a(0)}, {a(1)}\nv_pk_mul_f32 {Q_}, {a(0)}, {a(0)}")
            p(f"v_pk_add_f32 {S_}, {S_}, {a(2)}\nv_pk_fma_f32 {Q_}, {a(1)}, {a(1)}, {Q_}\nv_pk_fma_f32 {Q_}, {a(2)}, {a(2)}, {Q_}")
    for base in (NM, RR):
        for r in range(4): p(f"v_add_f32_dpp v{base+r}, v{base+r}, v{base+r} row_ror:8 {FULL}")
    for base in (NM, RR):
        for r in range(4): p(f"v_add_f32_dpp v{base+r}, v{base+4+r}, v{base+4+r} row_ror:8 row_mask:0xf bank_mask:0xc")
    for i, (base, r) in enumerate(((NM, 0), (RR, 0), (NM, 1), (RR, 1))):
        p(f"v_add_f32_dpp v{TMP+i}, v{base+r}, v{base+r} row_half_mirror {FULL}")
    for i, (base, r) in enumerate(((NM, 2), (RR, 2), (NM, 3), (RR, 3))):
        p(f"v_add_f32_dpp v{TMP+i}, v{base+r}, v{base+r} row_half_mirror row_mask:0xf bank_mask:0xa")
    for mod in ("quad_perm:[1,0,3,2]", "quad_perm:[2,3,0,1]"):
        for i in range(4): p(f"v_add_f32_dpp v{TMP+i}, v{TMP+i}, v{TMP+i} {mod} {FULL}")
    for i in range(4): p(f"s_bfe_u32 s{t}, s{sEP}, {hex(0x80000 + 8*i)}\nv_and_or_b32 v{TMP+i}, v{TMP+i}, v188, s{t}")
    a, b = p.label("zs_slow"), p.label("zs_done")
    p(f"s_mov_b32 exec_lo, 0x11111111\ns_mov_b32 exec_hi, 0x11111111\ns_cmp_eq_u32 s{sFAST}, 0\ns_cbranch_scc1 {a}\n@cond_begin")
    p(f"buffer_store_dwordx4 {vr(TMP,4)}, v187, {sr(SW,4)}, s84 offen\ns_branch {b}\n{a}:\nbuffer_store_dwordx4 {vr(TMP,4)}, v187, {sr(SW,4)}, s84 offen sc1\n{b}:\n@cond_end\ns_mov_b64 exec, -1")
def P3_z2b(p):
    B = P3_BF
    a, b = p.label("zl"), p.label("zlok")
    p(f"s_mov_b32 s{sSPIN}, 0x100000\ns_mov_b32 s{t}, 0x0c0c0400\ns_mov_b32 s{t+1}, 0x05040100\n{a}:")
    for i in range(4): p(f"buffer_load_dwordx4 {vr(B+4*i,4)}, v13, {sr(SW,4)}, s83 offen offset:{64*i} sc1")
    for i in range(4):
        p(f"s_waitcnt vmcnt({3-i})\nv_perm_b32 v4, v{B+4*i+1}, v{B+4*i}, s{t}\nv_perm_b32 v5, v{B+4*i+3}, v{B+4*i+2}, s{t}\nv_perm_b32 v{6+i}, v5, v4, s{t+1}")
    p(f"v_xor_b32 v6, s{sEP}, v6\nv_xor_b32 v7, s{sEP}, v7\nv_xor_b32 v8, s{sEP}, v8\nv_xor_b32 v9, s{sEP}, v9\nv_or3_b32 v6, v6, v7, v8\nv_or_b32 v6, v6, v9\nv_cmp_ne_u32 vcc, 0, v6")
    p(f"s_cbranch_vccz {b}\ns_sub_u32 s{sSPIN}, s{sSPIN}, 1\ns_cbranch_scc0 {a}\n{b}:")
    for h in range(2):
        p(f"v_pk_add_f32 {vr(B+2*h,2)}, {vr(B+2*h,2)}, {vr(B+4+2*h,2)}\nv_pk_add_f32 {vr(B+8+2*h,2)}, {vr(B+8+2*h,2)}, {vr(B+12+2*h,2)}")
    for h in range(2): p(f"v_pk_add_f32 {vr(B+2*h,2)}, {vr(B+2*h,2)}, {vr(B+8+2*h,2)}")
    for mod in ("quad_perm:[1,0,3,2]", "quad_perm:[2,3,0,1]"):
        for i in range(4): p(f"v_add_f32_dpp v{B+i}, v{B+i}, v{B+i} {mod} {FULL}")
    p(f"v_mul_f32 v{B}, s89, v{B}\nv_mul_f32 v{B+2}, s89, v{B+2}\nv_mul_f32 v{B+4}, v{B}, v{B}\nv_mul_f32 v{B+5}, v{B+2}, v{B+2}")
    p(f"v_fma_f32 v{B+1}, v{B+1}, s89, -v{B+4}\nv_fma_f32 v{B+3}, v{B+3}, s89, -v{B+5}\nv_add_f32 v{B+1}, s87, v{B+1}\nv_add_f32 v{B+3}, s87, v{B+3}")
    p(f"v_rsq_f32 v{B+1}, v{B+1}\nv_rsq_f32 v{B+3}, v{B+3}")
    p(f"v_mul_f32 v{B}, -v{B}, v{B+1}\nv_mul_f32 v{B+2}, -v{B+2}, v{B+3}")
    NM, RR = B+8, B+16
    for bk in range(4):
        for i in range(2):
            p(f"v_mov_b32_dpp v{NM+2*bk+i}, v{B+2*i} row_newbcast:{4*bk} {FULL}")
            p(f"v_mov_b32_dpp v{RR+2*bk+i}, v{B+2*i+1} row_newbcast:{4*bk} {FULL}")
    for nt in range(3):
        for par in range(2):
            a = P3_AZ2 + (par*3+nt)*4
            for h in range(2): p(f"v_pk_fma_f32 {vr(a+2*h,2)}, {vr(a+2*h,2)}, {vr(RR+4*par+2*h,2)}, {vr(NM+4*par+2*h,2)}")
        o = [B, B+4, 4][nt]
        for r in range(4): p(f"v_cvt_pk_bf16_f32 v{o+r}, v{P3_AZ2+nt*4+r}, v{P3_AZ2+(3+nt)*4+r}")
        p(f"buffer_store_dwordx4 {vr(o,4)}, v{vL16}, {sr(SW,4)}, s{[85,92,93][nt]} offen {['sc1', 'sc0 sc1', 'sc1 nt', 'nt', ''][X.get('z2m', 0)]} @@z2s")
def P3_z1e(p):
    CS, NR, TMP = P3_BF, 16, 24
    p(f"v_and_b32 v12, 15, v{vLANE}\nv_lshl_add_u32 v12, v12, 2, s86\nv_lshrrev_b32 v13, 4, v{vLANE}\nv_lshlrev_b32 v13, 4, v13\nv_add_u32 v13, {CST+192}, v13")
    for par in range(2): p(f"ds_read_b32 v{NR+4*par}, v12 offset:{64*par}\nds_read_b32 v{NR+4*par+2}, v12 offset:{128+64*par}")
    for nt in range(3): p(f"ds_read_b128 {vr(CS+4*nt,4)}, v13 offset:{64*nt} @@z1c{nt}")
    p(f"s_mul_i32 s{SSD}, s{sRB3}, {2*48*512}\ns_mul_i32 s{t+1}, s{sJ3}, 1536\ns_add_u32 s{SSD}, s{SSD}, s{t+1}\ns_add_u32 s{SSD}, s{SSD}, {WS_Z1}\ns_add_u32 s{SSD+1}, s{SSD}, {48*512}")
    p(f"v_lshlrev_b32 v8, 3, v{vLANE}")
    for par in range(2):
        for nt in range(3):
            a = P3_AZ1 + (par*3+nt)*4
            p(f"@wait lg=z1c{nt}")
            for h in range(2): p(f"v_pk_fma_f32 {vr(a+2*h,2)}, {vr(CS+4*nt+2*h,2)}, {vr(NR+4*par,2)}, {vr(a+2*h,2)} op_sel_hi:[1,0,1]")
            for h in range(2): p(f"v_pk_mul_f32 {vr(a+2*h,2)}, {vr(a+2*h,2)}, {vr(NR+4*par+2,2)} op_sel_hi:[1,0]")
            gelu4(p, a, TMP)
            p(f"v_cvt_pk_bf16_f32 v{a}, v{a}, v{a+1}\nv_cvt_pk_bf16_f32 v{a+1}, v{a+2}, v{a+3}")
            p(f"buffer_store_dwordx2 {vr(a,2)}, v8, {sr(SW,4)}, s{SSD+par} offen offset:{512*nt} {'sc1' if X.get('m84', 0) else ''} @@z1s")

Z_CS, Z_NR, Z_T = 16, 28, 32
def z1e_prep(p):
    p(f"v_and_b32 v12, 15, v{vLANE}\nv_lshl_add_u32 v12, v12, 2, s86\nv_lshrrev_b32 v13, 4, v{vLANE}\nv_lshlrev_b32 v13, 4, v13\nv_add_u32 v13, {CST+192}, v13")
    for par in range(2): p(f"ds_read_b32 v{Z_NR+2*par}, v12 offset:{64*par}\nds_read_b32 v{Z_NR+2*par+1}, v12 offset:{128+64*par}")
    for nt in range(3): p(f"ds_read_b128 {vr(Z_CS+4*nt,4)}, v13 offset:{64*nt}")
    p(f"s_mul_i32 s{SSD}, s{sRB3}, {2*48*512}\ns_mul_i32 s{t+1}, s{sJ3}, 1536\ns_add_u32 s{SSD}, s{SSD}, s{t+1}\ns_add_u32 s{SSD}, s{SSD}, {WS_Z1}\ns_add_u32 s{SSD+1}, s{SSD}, {48*512}")
    p(f"s_lshl_b32 s{SSD+2}, s{sRB3}, 4\ns_add_u32 s{SSD+2}, s{SSD+2}, s{sJ3}")
def z1e_lines():
    L = []
    for par in range(2):
        for nt in range(3):
            a = P3_AZ1 + (par*3+nt)*4; T = Z_T
            for r in range(4): L.append(f"v_fmac_f32 v{a+r}, v{Z_CS+4*nt+r}, v{Z_NR+2*par}")
            for r in range(4): L.append(f"v_mul_f32 v{a+r}, v{a+r}, v{Z_NR+2*par+1}")
            for r in range(4): L.append(f"v_mul_f32 v{T+r}, v{a+r}, v{a+r}")
            for r in range(4): L.append(f"v_fmamk_f32 v{T+r}, v{T+r}, {fhex(GK1)}, v{vK0}")
            for r in range(4): L.append(f"v_mul_f32 v{T+r}, v{T+r}, v{a+r}")
            for r in range(4): L.append(f"v_exp_f32 v{T+r}, v{T+r}")
            for r in range(4): L.append(f"v_add_f32 v{T+r}, 1.0, v{T+r}")
            for r in range(4): L.append(f"v_rcp_f32 v{T+r}, v{T+r}")
            for r in range(4): L.append(f"v_mul_f32 v{a+r}, v{a+r}, v{T+r}")
            L.append(f"v_cvt_pk_bf16_f32 v{a}, v{a}, v{a+1}"); L.append(f"v_cvt_pk_bf16_f32 v{a+1}, v{a+2}, v{a+3}")
    L.append("\n".join(f"buffer_store_dwordx2 {vr(P3_AZ1+(par*3+nt)*4,2)}, v8, {sr(SW,4)}, s{SSD+par} offen offset:{512*nt} {'sc1' if X.get('m84', 0) else ''} @@z1s" for par in range(2) for nt in range(3)))
    return L
KC = 6
MB_FT = 28672
MB_BASE = [0, MB_FT, 2*MB_FT, 3*MB_FT, 0, SCR]
def unit_bases(p, d):
    p(f"s_mul_i32 s{d}, s{sWAVE}, 14336\ns_lshl_b32 s{d+1}, s{sWAVE}, 13\ns_add_u32 s{d+1}, s{d+1}, {SCR}")
    p(f"s_lshl_b32 s{d+2}, s{sWAVE}, 11\ns_cmp_lt_u32 s{sWAVE}, 2\ns_cselect_b32 s{t+5}, 0, {155648-4096-57344}\ns_add_u32 s{d+2}, s{d+2}, s{t+5}\ns_add_u32 s{d+2}, s{d+2}, 57344")
def unit_loc(u): return (0, u*2048) if u < 7 else ((1, (u-7)*2048) if u < 11 else (2, 0))
def WA(s_, k):
    i = s_*KC + k
    return ar(4*i, 4) if i < 16 else vr(160+4*(i-16), 4)
def WXr(s_, k):
    i = s_*(16-KC) + k
    return ar(4*i, 4) if i < 16 else vr(96+4*(i-16), 4)
def z2_offsets(p, k0, n):
    p(f"s_mul_i32 s{t}, s{sJ4}, 384\ns_lshl_b32 s{t+1}, s{sWAVE}, 4\ns_add_u32 s{t}, s{t}, s{t+1}\ns_lshl_b32 s{t}, s{t}, 10\ns_add_u32 s{t}, s{t}, {WS_Z2}")
    p(f"s_lshl_b32 s{t+1}, s{sRG4}, 1")
    for k in range(n):
        p(f"s_add_u32 s{t+2}, s{t+1}, {k0+k}\ns_and_b32 s{t+2}, s{t+2}, 15\ns_lshl_b32 s{t+2}, s{t+2}, 10\ns_add_u32 s{80+k}, s{t+2}, s{t}")
    p(f"v_mov_b32 v3, v{vL16}")
def mb_waddr(p, role):
    for s_ in range(0 if role else 1, 4):
        e = 3+s_ if role else s_-1
        p(f"s_add_u32 s{t}, s{sWAVE}, {s_}\ns_and_b32 s{t}, s{t}, 3\ns_mul_i32 s{t}, s{t}, 7168\ns_add_u32 s{t}, s{t}, {e*1024}\nv_add_u32 v{4+s_}, s{t}, v{vL16}")
C_RING, C_ACC, C_OWN, C_Z1 = 64, 112, 136, 52
C_MBR = [16, 20, 24, 28, 32, 40, 44]
WAD = [185, 187, 189]
def P4_prepA(p):
    map4(p); hload(p)
    unit_bases(p, sB0); swz_rd(p, 12, 10)
    for b in range(3): p(f"v_add_u32 v{WAD[b]}, s{sB0+b}, v12\nv_add_u32 v{WAD[b]+1}, s{sB0+b}, v13")
    p(f"v_and_b32 v10, 15, v{vLANE}\nv_lshlrev_b32 v10, 2, v10\ns_lshr_b32 s{t}, s{sTT}, 1\ns_lshl_b32 s{t}, s{t}, 5\ns_and_b32 s{t+1}, s{sTT}, 1\ns_add_u32 s{t}, s{t}, s{t+1}\ns_lshl_b32 s{t}, s{t}, 1")
    p(f"v_mov_b32 v191, 0\nbuffer_load_short_d16_hi v191, v10, {sr(SBS,4)}, s{t} offen @@bias")
    z2_offsets(p, 0, KC)
    p(f"v_lshlrev_b32 v8, 3, v{vLANE}\ns_mul_i32 s70, s{sTT}, 24576\ns_mul_i32 s{t+1}, s{sJ4}, 3072\ns_add_u32 s70, s70, {WS_V}\ns_add_u32 s70, s70, s{t+1}")
    p(f"s_lshr_b32 s{t+2}, s{sTT}, 1\ns_lshl_b32 s{t+2}, s{t+2}, 6\ns_lshl_b32 s{t+3}, s{sJ4}, 3\ns_add_u32 s{t+2}, s{t+2}, s{t+3}\ns_add_u32 s{t+2}, s{t+2}, {FL_F3B}")
    p(f"v_and_b32 v9, 1, v{vLANE}\nv_lshl_add_u32 v9, v9, 2, s{t+2}")
def P4_prepA2(p):
    mb_waddr(p, 0)
    p(f"s_mul_i32 s{t}, s{sWAVE}, 7168\nv_add_u32 v4, s{t}, v{vL16}")
def P4_prepB(p):
    hpack(p)
    p("@wait vm=bias")
    for r in range(24): p(f"v_mov_b32 v{C_OWN+r}, v191")
def P4_prepC(p):
    z1e_prep(p)
    for s_ in range(4):
        for k in range(KC):
            b, off = unit_loc(s_*3 + (k >> 1))
            p(f"ds_read_b128 {WA(s_,k)}, v{WAD[b]+(k&1)} offset:{off}")
def P4(p, role):
    NK = (16-KC) if role else KC
    N = 6*NK; R = 12 if role else 10
    RING = 16 if role else C_RING
    W = WXr if role else WA
    def accreg(ft, s_):
        if role: return vr(64 + ((ft&1)*4+s_)*4, 4)
        return vr(C_OWN+ft*4, 4) if s_ == 0 else vr(C_ACC+((ft&1)*3+s_-1)*4, 4)
    def ld(n):
        ft, k = n // NK, n % NK
        if X.get('p4nold') and n > 0: return
        if k == 0 and ft: p(f"v_add_u32 v3, 65536, v3")
        p(f"buffer_load_dwordx4 {vr(RING+(n%R)*4,4)}, v3, {sr(SW,4)}, s{80+k} offen sc1 @@z{n}")
    R0 = X.get('R0', 6)
    if X.get('p4sleep'): p(f"s_sleep {X['p4sleep']}")
    if role: xstamp(p, 25)
    for n in range(R0): ld(n)
    if role and X.get('xst') and not X.get('p4nold'): p("@wait vm=z0"); xstamp(p, 26)
    def wr(ft):
        if ft:
            for s_ in range(0 if role else 1, 4): p(f"v_add_u32 v{4+s_}, {MB_BASE[ft]-MB_BASE[ft-1]}, v{4+s_}")
        if X.get('nowr'): return
        for s_ in range(0 if role else 1, 4): p(f"ds_write_b128 v{4+s_}, {accreg(ft,s_)}")
    def mb(ft, pk=False):
        L = []
        if ft: L.append(f"v_add_u32 v4, {MB_BASE[ft]-MB_BASE[ft-1]}, v4")
        L.append("\n".join(f"ds_read_b128 {vr(C_MBR[e],4)}, v4 offset:{e*1024} @@mb{ft}_{e}" for e in range(7)))
        o = C_OWN+4*ft
        if pk:
            for e in range(7):
                L.append(f"@wait lg=mb{ft}_{e}")
                for h in range(2): L.append(f"v_pk_add_f32 {vr(o+2*h,2)}, {vr(o+2*h,2)}, {vr(C_MBR[e]+2*h,2)}")
        else:
            L += ["s_nop 0"]*X.get('mbgap', 10)
            for e in range(7):
                for r in range(4): L.append((f"@wait lg=mb{ft}_{e}\n" if r == 0 else "") + f"v_add_f32 v{o+r}, v{o+r}, v{C_MBR[e]+r}")
        return L
    fill = z1e_lines() if (X.get('z1p4', 1) and not role) else []
    if X.get('nofill') and not role: fill = fill[-1:]
    PER = X.get('p4v', 4)
    LEAD = X.get('lead', 0)
    nl = R0; mbq = []; nq = [0]
    def T(j):
        if (X.get('p4nobar', 10) >> j) & 1: return
        p("s_waitcnt lgkmcnt(0)"); bar(p, f"T{j}")
        while nq[0] < j:
            if not role: mbq.append(nq[0])
            nq[0] += 1
    def pump(cnt):
        for _ in range(cnt):
            if not fill and mbq: fill.extend(mb(mbq.pop(0))[:2 if X.get('nofill') else None])
            if fill:
                l = fill.pop(0)
                if l == "@FLAG": p(f"@wait vm=z1s\ns_mov_b32 s{sU}, s{SSD+2}"); flag_store(p, FL_F3B, not X.get('m84', 0))
                elif l != "s_nop 0": p(l)
    consumed = lambda j: nq[0] > j and j not in mbq and not any(f"mb{j}_" in l for l in fill)
    safe0 = [False]
    for n in range(N):
        ft, k = n // NK, n % NK
        if not (X.get('p4nold') and n > 0): p(f"@wait vm=z{n}")
        z = vr(RING+(n%R)*4, 4)
        if X.get('p4st') and k == 0 and not role: stamp(p, 25+ft)
        for s_ in range(4):
            d = accreg(ft, s_)
            c = d if (k or (s_ == 0 and not role)) else "0"
            if not (X.get('p4nomf') and k): p(f"{MF16} {d}, {z}, {W(s_,k)}, {c}")
            if X.get('ldpos', 0) == s_ and s_ < 3:
                while nl < min(N, n + R) and nl < n + 1 + R0 + 2*(n+1): ld(nl); nl += 1
            pump(PER)
        if X.get('ldpos', 0) == 3:
            while nl < min(N, n + 1 + R) and nl < n + 1 + R0 + 2*(n+1): ld(nl); nl += 1
        if k == 1 and ft >= 1:
            if ft == 5 and not role: assert safe0[0], "slot 0 reuse unsafe"
            wr(ft-1)
        if k == (X.get('tkx', 3) if role else X.get('tkc', 4)) and ft >= 1:
            j = ft
            if not role and consumed(0) and not (X.get('p4nobar', 10) >> j) & 1: safe0[0] = True
            T(j)
        if not role and n == X.get('z1fn', 21):
            assert not any("z1s" in l for l in fill)
            p(f"@wait vm=z1s\ns_mov_b32 s{sU}, s{SSD+2}"); flag_store(p, FL_F3B, not X.get('m84', 0))
        if not role and ft == 4 and k == 2: p(f"buffer_load_dword v15, v9, {sr(SW,4)}, 0 offen sc1 @@f3b")
        if not role and ft == 5 and k == 0:
            assert '@FLAG' not in fill
            a, b = p.label("f3b"), p.label("f3bok")
            p(f"@wait vm=f3b\ns_mov_b32 s{sSPIN}, 0x100000\n{a}:\nv_cmp_ne_u32 vcc, s{sEP}, v15\ns_cbranch_vccz {b}\n@cond_begin")
            p(f"buffer_load_dword v15, v9, {sr(SW,4)}, 0 offen sc1\ns_waitcnt vmcnt(0)\ns_sub_u32 s{sSPIN}, s{sSPIN}, 1\ns_cbranch_scc0 {a}\n@cond_end\n{b}:")
            for f in range(6): p(f"buffer_load_dwordx2 {vr(C_Z1+2*f,2)}, v8, {sr(SW,4)}, s70 offen offset:{512*f} sc1 @@z1l")
    def vout(u):
        o = RING + 4*u
        for ff in range(2):
            ft = 2*u+ff; z = RING+16+4*ff; g = C_OWN+4*ft
            for h in range(2): p(f"v_lshlrev_b32 v{z+2*h}, 16, v{C_Z1+2*ft+h}\nv_and_b32 v{z+2*h+1}, s{sMASKHI}, v{C_Z1+2*ft+h}")
            if u == 2 and ff == 0: p("\n".join(m5[2:]))
            for h in range(2): p(f"v_pk_mul_f32 {vr(z+2*h,2)}, {vr(z+2*h,2)}, {vr(g+2*h,2)}")
            for h in range(2): p(f"v_cvt_pk_bf16_f32 v{o+2*ff+h}, v{z+2*h}, v{z+2*h+1}")
        p(f"buffer_store_dwordx4 {vr(o,4)}, v{vL16}, {sr(SW,4)}, s70 offen offset:{1024*u} @@vs")
    wr(5)
    if not role:
        pump(1000)
        p("@wait vm=z1l")
        vout(0); vout(1)
    p("s_waitcnt lgkmcnt(0)"); bar(p, "Bf")
    if role: return
    m5 = mb(5, True)
    p(m5[0]); p(m5[1])
    vout(2)

HRES = 16
HP = [36, 37, 38, 39, 104, 105, 106, 107, 108, 109]
sT5, sJ5, sR5 = SCS, SCS+1, SCS+2
def hload(p):
    A, B = 16, 26
    map5(p, sT5, sJ5, sR5)
    p(f"s_cmp_ge_u32 s{sJ5}, 4\ns_cselect_b32 s{t}, -1, 1\ns_cselect_b32 s{t+1}, 956, 0\ns_cselect_b64 vcc, -1, 0")
    p(f"s_mov_b64 s[94:95], vcc")
    p(f"s_mul_i32 s{t+2}, s{sJ5}, 80\nv_lshrrev_b32 v36, 4, v{vLANE}\nv_lshl_add_u32 v36, v36, 2, s{t+2}\nv_mul_lo_u32 v36, v36, s{t}\nv_add_u32 v36, s{t+1}, v36")
    p(f"v_and_b32 v37, 15, v{vLANE}\nv_lshlrev_b32 v37, 4, v37\ns_lshl_b32 s{t}, s{t}, 4")
    p(f"s_mul_i32 s{t+3}, s{sT5}, 20480\ns_add_u32 s{t+3}, s{t+3}, {WS_H}")
    for et in range(5):
        for (dst, add) in ((A+2*et, 0), (B+2*et, 4)):
            p(f"v_add_u32 v10, {add}, v36")
            if et == 0 and add: p(f"v_cmp_eq_u32 vcc, 640, v10\nv_mov_b32 v11, 320\nv_cndmask_b32 v10, v10, v11, vcc")
            p(f"v_lshrrev_b32 v11, 3, v10\nv_lshl_add_u32 v11, v11, 8, v37\nv_and_b32 v10, 7, v10\nv_lshl_add_u32 v10, v10, 1, v11")
            p(f"buffer_load_dword{'x2' if not add else ''} {vr(dst, 1 if add else 2)}, v10, {sr(SW,4)}, s{t+3} offen sc1 @@hres")
        if et < 4: p(f"v_add_u32 v36, s{t}, v36")
def hpack(p):
    A, B = 16, 26
    p(f"s_mov_b32 s{t}, 0x07060100\n@wait vm=hres")
    for et in range(5):
        a, b = A+2*et, B+2*et
        p(f"v_perm_b32 v10, v{a+1}, v{b}, s{t}\nv_perm_b32 v11, v{a}, v{a+1}, s{t}")
        p(f"v_cndmask_b32 v{HP[2*et]}, v{a}, v10, s[94:95]\nv_cndmask_b32 v{HP[2*et+1]}, v{a+1}, v11, s[94:95]")
def P5_prep(p):
    for i in range(10): p(f"v_lshlrev_b32 v{HRES+2*i}, 16, v{HP[i]}\nv_and_b32 v{HRES+2*i+1}, s{sMASKHI}, v{HP[i]}")
    p(f"v_add_u32 v5, {WZ}, v{vL16}")
    p(f"v_and_b32 v10, 15, v{vLANE}\nv_mul_u32_u24 v10, 2560, v10\nv_lshrrev_b32 v11, 4, v{vLANE}\nv_lshl_add_u32 v6, v11, 3, v10")
    p(f"s_lshr_b32 s86, s{sT5}, 1\ns_lshl_b32 s86, s86, 5\ns_and_b32 s{t+1}, s{sT5}, 1\ns_add_u32 s86, s86, s{t+1}\ns_mul_i32 s86, s86, 1280\ns_mul_i32 s{t+1}, s{sJ5}, 160\ns_add_u32 s86, s86, s{t+1}")
    p(f"s_mul_i32 s80, s{sT5}, 24576\ns_add_u32 s80, s80, {WS_V}")
    for i in range(1, 6): p(f"s_add_u32 s{80+i}, s80, {4096*i}")
def P5_main(p):
    NB = 24
    breg = lambda i: ar(4*(i % NB), 4) if (i % NB) < 16 else vr(160+4*((i % NB)-16), 4)
    def vl(ks):
        if ks < 24: p(f"buffer_load_dwordx4 {vr(64+4*ks,4)}, v{vL16}, {sr(SW,4)}, s{80+(ks>>2)} offen offset:{(ks&3)*1024} sc1 @@v{ks}")
    def bl(i):
        if i < 120:
            o = i*1024
            p(f"ds_read_b128 {breg(i)}, v{vL16 if o < WZ else 5} offset:{o % WZ} @@wb{i}")
    VA = X.get('va', 8); BA = X.get('ba', 12)
    for ks in range(VA): vl(ks)
    bar(p, "B10")
    for i in range(BA): bl(i)
    for i in range(120):
        ks, et = i // 5, i % 5
        a = vr(HRES+4*et, 4)
        p(f"@wait vm=v{ks} lg=wb{i}")
        p(f"{MF16} {a}, {breg(i)}, {vr(64+4*ks,4)}, {a}")
        if i + BA == 60: bar(p, "B11")
        bl(i+BA)
        if et == 0: vl(ks+VA)
    for et in range(5):
        a = HRES+4*et; o = 36+2*et
        p(f"v_cvt_pk_bf16_f32 v{o}, v{a}, v{a+1}\nv_cvt_pk_bf16_f32 v{o+1}, v{a+2}, v{a+3}")
        p(f"buffer_store_dwordx2 {vr(o,2)}, v6, {sr(SOUT,4)}, s86 offen offset:{32*et} {['', 'sc1', 'nt', 'sc0 sc1'][X.get('osc', 0)]}")

def thr(p, n=None):
    n = X.get('xthr', 0) if n is None else n
    if n: p(f"s_waitcnt vmcnt({n})")
def LIN(p, tag, which, part=(0, 15), th=None):
    if part[0] == 0:
        if tag == 'wz': p(f"s_mul_i32 s{sB0}, s{sJ3}, 61440\ns_add_u32 s{sB0}, s{sB0}, {WS_WI + (48*20480 if which == 0 else 0)}\ns_lshr_b32 s{sB2}, s{sL}, 4\ns_lshl_b32 s{sB2}, s{sB2}, 13")
        else: p(f"s_mul_i32 s{sB0}, s{sJ4}, 122880\ns_add_u32 s{sB0}, s{sB0}, {WS_WO + which*61440}\ns_lshl_b32 s{sB2}, s{sRG4}, 12")
        p(f"s_mul_i32 s{sB1}, s{sWAVE}, 15360\ns_add_u32 s{sB0}, s{sB0}, s{sB1}")
        if which: p(f"s_add_u32 s{sB1}, s{sB1}, {WZ}")
    for i in range(*part):
        p(f"s_add_u32 m0, s{sB1}, s{sB2}\ns_add_u32 s{sB3}, s{sB0}, s{sB2}\nbuffer_load_dwordx4 v{vL16}, {sr(SW,4)}, s{sB3} offen sc1 lds @@{tag}{which}")
        thr(p, th)
        if i < 14: p(f"s_add_u32 s{sB2}, s{sB2}, 1024\ns_cmp_eq_u32 s{sB2}, 15360\ns_cselect_b32 s{sB2}, 0, s{sB2}")
def ws_tile(p, slot):
    p(f"s_add_u32 s{sB0}, s{sWAVE}, {slot}\ns_and_b32 s{sB0}, s{sB0}, 3\ns_lshr_b32 s{sB1}, s{sB0}, 1\ns_add_u32 s{sB1}, s{sB1}, s{sRB4}\ns_lshl_b32 s{sB1}, s{sB1}, 5")
    p(f"s_and_b32 s{sB0}, s{sB0}, 1\ns_add_u32 s{sB0}, s{sB0}, s{sB1}\ns_lshl_b32 s{sB0}, s{sB0}, 12\ns_lshl_b32 s{sB1}, s{sWAVE}, 10\ns_add_u32 s{sB0}, s{sB0}, s{sB1}")
    p(f"s_mov_b32 s{sB2}, s{sRG4}")
def ws_piece(p, pc, sbase, off, tag, vs=12):
    p(f"s_add_u32 s{sB3}, s{sB2}, {pc}\ns_and_b32 s{sB3}, s{sB3}, 7\ns_lshl_b32 s{sB3}, s{sB3}, 7\ns_add_u32 s{sB3}, s{sB3}, s{sB0}")
    for hf in range(2): p(f"s_add_u32 m0, s{sbase}, {off+hf*1024}\nbuffer_load_dwordx4 v{vs+hf}, {sr(SWS,4)}, s{sB3} offen lds @@{tag}"); thr(p)
def xchunk_dma(p, slot, expr, vs=None):
    p(expr)
    ws_tile(p, slot)
    for i in range(5): ws_piece(p, KC//2 + i, t, i*2048, f"xc{slot}", vWSS if vs is None else vs)
def xchunk_read(p, slot, expr, wait=True):
    p(expr)
    p(f"v_add_u32 v8, s{t}, v{vWSR}\nv_add_u32 v9, s{t}, v{vWSR+1}" + (f"\n@wait vm=xc{slot}" if wait else ""))
    for k in range(10): p(f"ds_read_b128 {WXr(slot,k)}, v{8+(k&1)} offset:{2048*(k>>1)} @@xr{slot}")
def split_emit(p, fn, n):
    L = p.capture(fn); idx = [i for i, l in enumerate(L) if l.startswith("buffer_load")]
    if n >= len(idx): p("\n".join(L)); return []
    cut = idx[n-1]+1 if n else 0
    p("\n".join(L[:cut] + [f"s_mov_b32 s87, s{t}"])); return [f"s_mov_b32 s{t}, s87"] + L[cut:]
def colsum(p, z1):
    with cond(p, f"s_cmp_eq_u32 s{sWAVE}, 3"):
        p(f"s_mul_i32 s{t}, s{sWAVE}, 20480\ns_add_u32 s{t}, s{t}, {WZ if z1 else 0}\nv_add_u32 v8, s{t}, v{vL16}")
        for r in range(4): p(f"v_mov_b32 v{88+r}, 0x3f803f80")
        for hb in range(2):
            for k in range(10): p(f"ds_read_b128 {vr(16+4*k,4)}, v8 offset:{(hb*10+k)*1024}")
            for k in range(10):
                p(f"s_waitcnt lgkmcnt({9-k})")
                p(f"{MF16} v[92:95], {vr(16+4*k,4)}, v[88:91], {'v[92:95]' if (k or hb) else 0}")
        p(f"s_lshl_b32 s{t}, s{sWAVE}, 6\ns_add_u32 s{t}, s{t}, {CST + (192 if z1 else 0)}\nv_add_u32 v8, s{t}, v{vLANE}")
        p("s_mov_b32 exec_lo, 0x00010001\ns_mov_b32 exec_hi, 0x00010001\nds_write_b128 v8, v[92:95]\ns_mov_b64 exec, -1\ns_waitcnt lgkmcnt(0)")
def touch_h(p, dst):
    a, b = 10, 11
    p(f"s_and_b32 s{t}, s{sL}, 15\ns_lshl_b32 s{t}, s{t}, 2\ns_add_u32 s{t}, s{t}, s{sWAVE}\ns_mul_i32 s{t}, s{t}, 2560\ns_sub_u32 s{t+1}, s{sRB3}, s{sWAVE}\ns_mul_i32 s{t+1}, s{t+1}, 40960\ns_add_u32 s{t}, s{t}, s{t+1}\ns_add_u32 s{t}, s{t}, {WS_H}")
    p(f"s_lshl_b32 s{t+1}, s{sRB3}, 12\ns_lshl_b32 s{t+2}, s{sJ3}, 8\ns_add_u32 s{t+1}, s{t+1}, s{t+2}\ns_add_u32 s{t+1}, s{t+1}, {WS_ZS-20*128}")
    p(f"s_lshl_b32 s{t+2}, s{sRB3}, 10\ns_add_u32 s{t+2}, s{t+2}, {WS_HS-22*128}")
    p(f"v_mov_b32 v{a}, s{t}\nv_mov_b32 v{b}, s{t+1}\nv_cmp_lt_u32 vcc, 19, v{vLANE}\nv_cndmask_b32 v{a}, v{a}, v{b}, vcc\nv_mov_b32 v{b}, s{t+2}\nv_cmp_lt_u32 vcc, 21, v{vLANE}\nv_cndmask_b32 v{a}, v{a}, v{b}, vcc")
    p(f"v_lshl_add_u32 v{a}, v{vLANE}, 7, v{a}\ns_mov_b64 exec, 0x3fffffff\nbuffer_load_dword v{dst}, v{a}, {sr(SW,4)}, 0 offen\ns_mov_b64 exec, -1")
def touch_ws(p, dst):
    p(f"s_sub_u32 s{t}, s{sRB3}, s{sWAVE}\ns_lshl_b32 s{t}, s{t}, 2\ns_and_b32 s{t+1}, s{sL}, 15\ns_add_u32 s{t}, s{t}, s{t+1}\ns_lshl_b32 s{t}, s{t}, 15\ns_lshl_b32 s{t+1}, s{sWAVE}, 13\ns_add_u32 s{t}, s{t}, s{t+1}")
    p(f"v_lshlrev_b32 v10, 7, v{vLANE}\nbuffer_load_dword v{dst}, v10, {sr(SWS,4)}, s{t} offen")
def touch_z1(p, dst):
    p(f"s_mul_i32 s{t}, s{sTT}, 24576\ns_mul_i32 s{t+1}, s{sJ4}, 3072\ns_add_u32 s{t}, s{t}, s{t+1}\ns_add_u32 s{t}, s{t}, {WS_Z1}\nv_lshlrev_b32 v10, 7, v{vLANE}")
    p(f"s_mov_b64 exec, 0xffffff\nbuffer_load_dword v{dst}, v10, {sr(SW,4)}, s{t} offen\ns_mov_b64 exec, -1")
def code_touch(p, dst):
    if not X.get('ct', 1): return
    with only_wave(p, 0):
        p(f"s_lshl_b32 s{t}, s{sL}, 7\nv_lshlrev_b32 v10, 12, v{vLANE}\ns_mov_b64 exec, 0xffff\nbuffer_load_dword v{dst}, v10, {sr(SX,4)}, s{t} offen\ns_mov_b64 exec, -1")

def xprog(p):
    sPHI, sPL, sRLa, sRLb = 87, 86, 84, 85
    p(f"s_mov_b32 s{SX}, s{ST}\ns_mov_b32 s{SX+1}, s{ST+1}".replace("s_mov_b32", "s_mov_b32") if False else "")
    if X.get('xst'): p(f"v_mov_b32 v{vSTMP}, 0")
    p(f"s_mov_b64 s[94:95], {sr(ST,2)}")
    p(f"s_mul_i32 s{sPL}, s{sWAVE}, {P2S_W}\ns_add_u32 s{sPL}, s{sPL}, {P2S}")
    p(f"s_lshl_b32 s{sPHI}, s{sQ}, 6\ns_add_u32 s{sPHI}, s{sPHI}, s{sRG}")
    p(f"s_lshl_b32 s{t}, s{sPHI}, 2\ns_add_u32 s{t}, s{t}, s{sWAVE}\ns_mul_i32 s{t+1}, s{t}, 3277\ns_lshr_b32 s{t+1}, s{t+1}, 16\ns_mul_i32 s{t+2}, s{t+1}, 20\ns_sub_u32 s{t+2}, s{t}, s{t+2}")
    p(f"s_mul_i32 s{sRLa}, s{t+1}, 40\ns_add_u32 s{sRLa}, s{sRLa}, s{t+2}\ns_lshl_b32 s{sRLa}, s{sRLa}, 10\ns_add_u32 s{sRLa}, s{sRLa}, {WS_WI}")
    p(f"s_lshl_b32 s{t+3}, s{t+2}, 5\ns_sub_u32 s{t+4}, 960, s{t+3}\ns_cmp_ge_u32 s{t+2}, 10\ns_cselect_b32 s{t+3}, s{t+4}, s{t+3}\ns_cselect_b32 s{t+4}, -1, 1")
    p(f"v_lshrrev_b32 v10, 2, v{vLANE}\nv_mul_lo_u32 v11, v10, s{t+4}\nv_add_u32 v11, s{t+3}, v11\ns_lshl_b32 s{t+4}, s{t+4}, 4\nv_add_u32 v12, s{t+4}, v11")
    p(f"v_cmp_eq_u32 vcc, 640, v11\nv_mov_b32 v13, 320\nv_cndmask_b32 v11, v11, v13, vcc")
    p(f"v_and_b32 v13, 3, v{vLANE}\nv_lshlrev_b32 v13, 4, v13\ns_lshl_b32 s{t+1}, s{t+1}, 6\ns_movk_i32 s{t+5}, 3072")
    p(f"v_mad_u32_u24 v4, v11, s{t+5}, v13\nv_mad_u32_u24 v5, v12, s{t+5}, v13\nv_add_u32 v4, s{t+1}, v4\nv_add_u32 v5, s{t+1}, v5")
    p(f"s_lshl_b32 s{t}, s{sPHI}, 1\ns_and_b32 s{t+1}, s{sWAVE}, 1\ns_add_u32 s{t}, s{t}, s{t+1}\ns_mul_i32 s{t+1}, s{t}, 2731\ns_lshr_b32 s{t+1}, s{t+1}, 16\ns_mul_i32 s{t+2}, s{t+1}, 24\ns_sub_u32 s{t+2}, s{t}, s{t+2}")
    for c_, d in ((0, sRLb), (1, 83)):
        p(f"s_lshl_b32 s{t+3}, s{t+1}, 1\ns_add_u32 s{t+3}, s{t+3}, {c_}\ns_mul_i32 s{t+4}, s{t+3}, 52\ns_lshr_b32 s{t+4}, s{t+4}, 8\ns_mul_i32 s{t+4}, s{t+4}, 115\ns_add_u32 s{t+3}, s{t+3}, s{t+4}")
        p(f"s_mul_i32 s{t+4}, s{t+2}, 5\ns_add_u32 s{t+3}, s{t+3}, s{t+4}\ns_lshl_b32 s{d}, s{t+3}, 10\ns_add_u32 s{d}, s{d}, {WS_WO}")
    p(f"s_mul_i32 s{t+2}, s{t+2}, {32*1280}\ns_lshl_b32 s{t+1}, s{t+1}, 6\ns_add_u32 s{t+2}, s{t+2}, s{t+1}\nv_mul_u32_u24 v6, 1280, v10\nv_add3_u32 v6, v6, v13, s{t+2}\nv_add_u32 v7, {16*1280}, v6")
    p(f"s_cmp_ge_u32 s{sPHI}, 240\ns_cselect_b32 s{t}, 0x40000000, 0\ns_cmp_lt_u32 s{sWAVE}, 2\ns_cselect_b32 s{t+1}, 0x40000000, s{t}")
    p(f"s_add_u32 s{sRLa}, s{sRLa}, s{t}\ns_add_u32 s{sRLb}, s{sRLb}, s{t+1}\ns_add_u32 s83, s83, s{t+1}")
    p("s_waitcnt lgkmcnt(0)")
    xstamp(p, 0)
    p(f"s_load_dword s{sEP}, {sr(SW,2)}, 0\ns_getreg_b32 s{sU}, hwreg(HW_REG_XCC_ID, 0, 4)")
    p(f"s_mov_b64 {sr(SX,2)}, s[94:95]\ns_mov_b32 s{SX+2}, CODE_BYTES")
    for k in range(2): p(f"s_add_u32 m0, s{sPL}, {1024*k}\nbuffer_load_dwordx4 v{4+k}, {sr(SWI,4)}, s{t} offen lds @@rl")
    for k in range(2): p(f"s_add_u32 m0, s{sPL}, {2048+1024*k}\nbuffer_load_dwordx4 v{6+k}, {sr(SWO,4)}, s{t+1} offen lds @@rl")
    BC, BS_, BX, FC, TMP = 16, 56, 96, 136, 136
    p(f"s_mul_i32 s{t}, s{sQ}, 80\ns_lshl_b32 s{t+1}, s{sWAVE}, 4\ns_add_u32 s{t+1}, s{t+1}, s{t}\nv_and_b32 v8, 15, v{vLANE}\nv_add_u32 v9, s{t+1}, v8\nv_cmp_eq_u32 vcc, 0, v9\nv_mov_b32 v10, 320\nv_cndmask_b32 v9, v9, v10, vcc\nv_cvt_f32_u32 v9, v9")
    p(f"s_add_u32 s{t}, s{t}, 64\nv_add_u32 v8, s{t}, v8\nv_cvt_f32_u32 v8, v8")
    if X.get('xprio', 1): p(f"s_setprio {X.get('xprio', 1)}")
    if X.get('wst') == 4: touch_ws(p, 15)
    gen_hid(p, 9, BC, BS_, TMP)
    xstamp(p, 22)
    with only_wave(p, 0): gen_hid(p, 8, BX, None, TMP)
    with only_wave(p, 1): gen_hid(p, 8, None, BX, TMP)
    xstamp(p, 23)
    p("s_waitcnt lgkmcnt(0)"); epoch_fix(p)
    with only_wave(p, 3):
        p(f"s_lshl_b32 s{t}, s{sC}, 5\ns_add_u32 s{t}, s{t}, s{sL}\ns_lshl_b32 s{t}, s{t}, 2\ns_add_u32 s{t}, s{t}, {FL_X}\ns_add_u32 s{sU}, s{sU}, s{sEP}")
        p(f"v_mov_b32 v10, s{sU}\nv_mov_b32 v11, 0\ns_mov_b64 exec, 1\nbuffer_store_dword v10, v11, {sr(SW,4)}, s{t} offen sc1\ns_mov_b64 exec, -1")
    p(f"v_lshrrev_b32 v10, 4, v{vLANE}\nv_bfe_u32 v11, v{vLANE}, 2, 2\nv_lshl_add_u32 v12, v10, 3, v11\nv_lshl_add_u32 v13, v10, 2, v11\nv_and_b32 v10, 3, v{vLANE}\nv_lshlrev_b32 v10, 3, v10\nv_add_u32 v10, s{sPL}, v10")
    p(f"v_lshl_add_u32 v12, v12, 6, v10\nv_lshl_add_u32 v13, v13, 6, v10\n@wait vm=rl")
    for c_ in range(2):
        for h in range(2):
            p(f"ds_read_b64_tr_b16 {vr(176+4*c_+2*h,2)}, v12 offset:{256*h+32*c_}\nds_read_b64_tr_b16 {vr(184+4*c_+2*h,2)}, v13 offset:{2048+1024*h+32*c_}")
    p("s_waitcnt lgkmcnt(0)")
    p(f"s_add_u32 s{t}, s{sRLa}, 20480\ns_mov_b32 s{t+1}, s83")
    p(f"buffer_store_dwordx4 v[176:179], v{vL16}, {sr(SW,4)}, s{sRLa} offen sc1\nbuffer_store_dwordx4 v[180:183], v{vL16}, {sr(SW,4)}, s{t} offen sc1")
    p(f"buffer_store_dwordx4 v[184:187], v{vL16}, {sr(SW,4)}, s{sRLb} offen sc1\nbuffer_store_dwordx4 v[188:191], v{vL16}, {sr(SW,4)}, s{t+1} offen sc1 @@rls")
    xstamp(p, 20)
    vA, vSG, vT, vST, vST2, vXS, vCX = 4, 5, 6, 7, 8, 9, 3
    p(f"v_and_b32 v10, 7, v{vLANE}\nv_lshrrev_b32 v11, 1, v10\nv_mul_u32_u24 v{vA}, {P1_XR}, v11\nv_and_b32 v10, 1, v{vLANE}\nv_mul_u32_u24 v11, 640, v10\nv_add_u32 v{vA}, v{vA}, v11")
    p(f"v_lshlrev_b32 v{vSG}, 31, v10\nv_or_b32 v{vSG}, 1.0, v{vSG}\nv_bfe_u32 v10, v{vLANE}, 3, 1\nv_mul_u32_u24 v11, 1280, v10\nv_add_u32 v{vA}, v{vA}, v11")
    p(f"v_lshrrev_b32 v10, 4, v{vLANE}\nv_lshl_add_u32 v{vA}, v10, 4, v{vA}\nv_lshlrev_b32 v{vT}, 4, v10")
    p(f"s_mul_i32 s{t+4}, s{sQ}, 81920\ns_lshr_b32 s{t}, s{sRG}, 2\ns_mul_i32 s{t}, s{t}, 5120\ns_add_u32 s{t+4}, s{t+4}, s{t}\ns_and_b32 s{t}, s{sRG}, 3\ns_lshl_b32 s{t}, s{t}, 8\ns_add_u32 s{t+4}, s{t+4}, s{t}\ns_add_u32 s{t+4}, s{t+4}, {WS_AB}")
    p(f"s_lshl_b32 s88, s{sWAVE}, 10\ns_add_u32 s88, s88, s{t+4}\ns_mul_i32 s89, s{sWAVE}, 655360\ns_add_u32 s89, s89, s{t+4}\ns_add_u32 s89, s89, 4096")
    p(f"v_lshrrev_b32 v10, 5, v{vLANE}\nv_mul_u32_u24 v{vST}, 327680, v10\nv_and_b32 v10, 15, v{vLANE}\nv_lshlrev_b32 v{vXS}, 2, v10\nv_lshl_add_u32 v{vST}, v10, 4, v{vST}")
    p(f"v_bfe_u32 v10, v{vLANE}, 4, 1\nv_lshl_add_u32 v{vST2}, v10, 3, v{vST}\nv_mul_u32_u24 v10, 655360, v10\nv_add_u32 v{vST}, v{vST}, v10")
    p(f"s_cmp_eq_u32 s{sWAVE}, 0\ns_cselect_b32 s{t}, 1.0, 0\nv_mul_f32 v{vCX}, s{t}, v{vSG}")
    bar(p, "B1")
    AC, TI = 176, 188
    p(f"ds_read_b128 {vr(TI,4)}, v{vT} offset:{P1_T-131072} @@ti".replace(f"v{vT} offset:{P1_T-131072}", "v10") if False else "")
    p(f"v_add_u32 v10, {P1_T}, v{vT}\nds_read_b128 {vr(TI,4)}, v10 @@ti")
    for ks in range(10): p(f"ds_read_b128 {vr(FC+4*ks,4)}, v{vA} offset:{64*ks} @@fc{ks}\nds_read_b128 {ar(4*ks,4)}, v{vA} offset:{2560+64*ks} @@fs{ks}")
    p("@wait vm=rls lg=ti")
    for r_ in range(4): p(f"v_mul_f32 v{AC+r_}, v{vSG}, v{TI+r_}\nv_mul_f32 v{AC+8+r_}, v{vCX}, v{TI+r_}")
    for ks in range(10):
        p(f"@wait lg=fc{ks}\n{MF16} {vr(AC,4)}, {vr(FC+4*ks,4)}, {vr(BC+4*ks,4)}, {vr(AC,4)}")
        p(f"@wait lg=fs{ks}\n{MF16} {vr(AC+4,4)}, {ar(4*ks,4)}, {vr(BS_+4*ks,4)}, {vr(AC+4,4) if ks else 0}")
    with only_wave(p, 0):
        for ks in range(10): p(f"{MF16} {vr(AC+8,4)}, {vr(FC+4*ks,4)}, {vr(BX+4*ks,4)}, {vr(AC+8,4)}")
    with only_wave(p, 1):
        for ks in range(10): p(f"{MF16} {vr(AC+8,4)}, {ar(4*ks,4)}, {vr(BX+4*ks,4)}, {vr(AC+8,4)}")
    p(f"v_cvt_pk_bf16_f32 v12, v{AC}, v{AC+1}\nv_cvt_pk_bf16_f32 v13, v{AC+2}, v{AC+3}\nv_cvt_pk_bf16_f32 v14, v{AC+4}, v{AC+5}\nv_cvt_pk_bf16_f32 v15, v{AC+6}, v{AC+7}")
    p(f"v_permlane16_swap_b32 v12, v14\nv_permlane16_swap_b32 v13, v15\nbuffer_store_dwordx4 v[12:15], v{vST}, {sr(SW,4)}, s88 offen sc1")
    with cond(p, f"s_cmp_ge_u32 s{sWAVE}, 2"):
        p(f"s_nop 4\nv_cvt_pk_bf16_f32 v10, v{AC+8}, v{AC+9}\nv_cvt_pk_bf16_f32 v11, v{AC+10}, v{AC+11}\nbuffer_store_dwordx2 v[10:11], v{vST2}, {sr(SW,4)}, s89 offen sc1")
    with cond(p, f"s_cmp_lg_u32 s{sRG}, 0"):
        p(f"s_mul_i32 s{t+2}, s{sQ}, 320\ns_add_u32 s{t+3}, s{t+2}, {WS_XB}\ns_lshl_b32 s{t+2}, s{sWAVE}, 6\ns_add_u32 s{t+2}, s{t+2}, s{t+3}")
        p(f"s_mov_b32 exec_lo, 0\ns_mov_b32 exec_hi, 0xffff\nbuffer_store_dword v{AC+4}, v{vXS}, {sr(SW,4)}, s{t+2} offen offset:1280 sc1")
        with only_wave(p, 1): p(f"buffer_store_dword v{AC+8}, v{vXS}, {sr(SW,4)}, s{t+3} offen offset:{1280+256} sc1")
        p(f"s_mov_b64 exec, -1\nv_add_u32 v{vT}, {P1_XA}, v{vT}\nv_mov_b32 v{vA}, {P1_T+64}\nds_read_b32 v{TI}, v{vA}")
        for ks in range(10): p(f"ds_read_b128 {ar(4*ks,4)}, v{vT} offset:{64*ks}")
        p("s_waitcnt lgkmcnt(0)")
        for r_ in range(4): p(f"v_mul_f32 v{FC+r_}, v{vSG}, v{TI}\nv_mul_f32 v{FC+4+r_}, v{vSG}, v{TI}")
        for ks in range(10): p(f"{MF16} {vr(FC,4)}, {ar(4*ks,4)}, {vr(BC+4*ks,4)}, {vr(FC,4)}\n{MF16} {vr(FC+4,4)}, {ar(4*ks,4)}, {vr(BX+4*ks,4)}, {vr(FC+4,4)}")
        p(f"s_mov_b64 exec, 0xffff\nbuffer_store_dword v{FC}, v{vXS}, {sr(SW,4)}, s{t+2} offen sc1")
        with only_wave(p, 0): p(f"buffer_store_dword v{FC+4}, v{vXS}, {sr(SW,4)}, s{t+3} offen offset:256 sc1")
        p("s_mov_b64 exec, -1")
    if X.get('xprio', 1): p("s_setprio 0")
    xstamp(p, 21)
    map4(p)
    p(f"v_mov_b32 v4, {CNT}\nv_mov_b32 v5, 1\ns_mov_b32 s{sU}, s{sPHI}\ns_waitcnt vmcnt(0)\ns_mov_b64 exec, 1\nds_add_rtn_u32 v5, v4, v5\ns_mov_b64 exec, -1\ns_waitcnt lgkmcnt(0)\nv_readfirstlane_b32 s{t+1}, v5")
    with cond(p, f"s_cmp_lg_u32 s{t+1}, 3"): gflag_store(p, FL_F1)
    xstamp(p, 24)
    swz_src(p, vWSX, 8192, 10); swz_rd(p, vWSR, 10)
    bar(p, "B2")
    nC = X.get('nc', 0); nX = X.get('nx', 2)
    for s_ in range(nC): xchunk_read(p, s_, XBUF[s_], wait=False)
    p("s_waitcnt lgkmcnt(0)")
    if X.get('th0', 0): touch_h(p, 4)
    rest = split_emit(p, lambda q: [xchunk_dma(q, s_, XBUF[(s_-nC) % 2], vWSX) for s_ in range(nC, nX)], X.get('xq3', 99))
    if not rest and not X.get('th0', 0): touch_h(p, 4)
    bar(p, "B3")
    p("\n".join(rest))
    if rest and not X.get('th0', 0): touch_h(p, 4)
    code_touch(p, 4)
    for s_ in range(nC, nX): xchunk_read(p, s_, XBUF[(s_-nC) % 2])
    p("s_waitcnt lgkmcnt(0)")
    if X.get('wst') == 2: touch_ws(p, 4)
    if X.get('b3b', 4) < 8: bar(p, "B3b"); LIN(p, 'wz', 0, th=0); bar(p, "B4")
    else: bar(p, "B4"); LIN(p, 'wz', 0, th=0)
    if X.get('wst') == 3: touch_ws(p, 4)
    p("@wait vm=wz0"); bar(p, "B5")
    colsum(p, 0)
    def adma(us, q=p):
        last = -1
        for u in us:
            if u // 3 != last: ws_tile(q, u // 3); last = u // 3
            b, off = unit_loc(u)
            ws_piece(q, u % 3, 88+b, off, "wa")
    unit_bases(p, 88)
    if X.get('xs5'): p(f"s_sleep {X['xs5']}")
    n1 = X.get('wz1a', 15)
    W2E = f"s_mul_i32 s{t}, s{sWAVE}, 14336"
    if X.get('b5a', 4) < 20: bar(p, "B5a")
    LIN(p, 'wz', 1, (0, n1), th=X.get('thz1', 0)) if n1 else None
    early = [7, 8, 9, 10]
    if X.get('wst') == 1: touch_ws(p, 4)
    if X.get('ea', 0): adma(early)
    bar(p, "B5b")
    if n1 < 15:
        if X.get('ea', 0): assert n1 == 0
        LIN(p, 'wz', 1, (n1, 15), th=0)
    rest = split_emit(p, lambda q: (xchunk_dma(q, nX, W2E, vWSX), adma(early + [11], q)), X.get('xq6', 99))
    p("@wait vm=wz1"); bar(p, "B6")
    p("\n".join(rest)); colsum(p, 1)
    b7 = False
    for s_ in range(nX, 4):
        if s_ > nX: xchunk_dma(p, s_, W2E, vWSX)
        if s_ == X.get('b7at', 3): p("@wait vm=wz1"); bar(p, "B7"); b7 = True; (colsum(p, 1) if not X.get('k1', 6) else None)
        xchunk_read(p, s_, W2E); p(f"@wait lg=xr{s_}")
    if not b7: p("@wait vm=wz1"); bar(p, "B7"); (colsum(p, 1) if not X.get('k1', 6) else None)
    adma(range(7)); touch_z1(p, 8)
    if X.get('wot'):
        p(f"s_lshl_b32 s{t}, s{sL}, 2\ns_add_u32 s{t}, s{t}, s{sWAVE}\ns_mul_i32 s{t}, s{t}, 7680\ns_add_u32 s{t}, s{t}, {WS_WO}\nv_lshlrev_b32 v9, 7, v{vLANE}")
        p(f"s_mov_b32 exec_hi, 0x0fffffff\nbuffer_load_dword v8, v9, {sr(SW,4)}, s{t} offen sc1\ns_mov_b32 exec_hi, -1")
    z2_offsets(p, KC, 16-KC); mb_waddr(p, 1); code_touch(p, 8)
    if X.get('ztouch'):
        p(f"v_lshlrev_b32 v9, 16, v{vLANE}\ns_mov_b64 exec, 0x3f\nbuffer_load_dword v8, v9, {sr(SW,4)}, s80 offen sc1\ns_mov_b64 exec, -1")
    p("s_waitcnt vmcnt(0)"); bar(p, "B8")
    with only_wave(p, 0):
        p(f"s_lshl_b32 s{sU}, s{sJ4}, 5"); gpoll(p, FL_F3, 32)
    bar(p, "B9")
    if X.get('p4prio', 0): p(f"s_setprio {X.get('p4prio', 0)}")
    P4(p, 1)
    p("s_setprio 0")
    map5(p, t+4, sJ4, sRG4)
    if X.get('bv'):
        LIN(p, 'wo', 0, (0, X['bv']), th=0); bar(p, "Bv"); LIN(p, 'wo', 0, (X['bv'], 15), th=0)
    else: LIN(p, 'wo', 0, th=0)
    LIN(p, 'wo', 1, th=0)
    p("@wait vm=wo0"); bar(p, "B10")
    p("s_waitcnt vmcnt(0)"); bar(p, "B11")
    if X.get('wb') == 1:
        with only_wave(p, 0): p("buffer_wbl2 sc1\ns_waitcnt vmcnt(0)")
    if X.get('wb') == 2:
        with cond(p, f"s_or_b32 s{t}, s{sWAVE}, s{sL}\ns_cmp_lg_u32 s{t}, 0"): p("buffer_wbl2 sc1\ns_waitcnt vmcnt(0)")
    if X.get('xst'):
        p(f"s_lshl_b32 s{t}, s{sL}, 3\ns_add_u32 s{t}, s{t}, s{sC}\ns_lshl_b32 s{t}, s{t}, 2\ns_add_u32 s{t}, s{t}, s{sWAVE}\ns_lshl_b32 s{t+1}, s{t}, 8\ns_add_u32 s{t+1}, s{t+1}, {WS_STAMP+0x40000}\nv_lshlrev_b32 v10, 2, v{vLANE}")
        p(f"buffer_store_dword v{vSTMP}, v10, {sr(SW,4)}, s{t+1} offen")

def cprog(p):
    P1(p)
    p(f"s_lshl_b32 s{sU}, s{sQ}, 6\ns_add_u32 s{sU}, s{sU}, s{sRG}")
    P2_xload(p)
    p(f"s_lshl_b32 s95, s{sC}, 7\ns_add_u32 s95, s95, {FL_X}\nv_and_b32 v28, 31, v{vLANE}\nv_lshlrev_b32 v28, 2, v28\nbuffer_load_dword v29, v28, {sr(SW,4)}, s95 offen sc1 @@xc")
    P2_prepA(p)
    if X.get('gs', 1) == 1: gen_seq(p)
    p("s_waitcnt vmcnt(7)"); bar(p, "B2")
    stamp(p, 2)
    if not X.get('gs', 1): gen_seq(p)
    a, b = p.label("xp"), p.label("xpd")
    p(f"@wait vm=xc\ns_mov_b32 s{sSPIN}, 0x100000\n{a}:\nv_subrev_u32 v30, s{sEP}, v29\nv_cmp_lt_u32 vcc, 15, v30\ns_cbranch_vccz {b}\n@cond_begin")
    p(f"buffer_load_dword v29, v28, {sr(SW,4)}, s95 offen sc1\ns_waitcnt vmcnt(0)\ns_sub_u32 s{sSPIN}, s{sSPIN}, 1\ns_cbranch_scc0 {a}\n@cond_end\n{b}:")
    p(f"v_readfirstlane_b32 s{t}, v30\nv_cmp_ne_u32 vcc, s{t}, v30\ns_cmp_eq_u64 vcc, 0\ns_cselect_b32 s{sFAST}, 1, 0")
    if X.get('slow'): p(f"s_mov_b32 s{sFAST}, 0")
    P2_prepB(p)
    stamp(p, 3)
    with only_wave(p, 1):
        p(f"s_lshl_b32 s{sU}, s{sQ2}, 6"); gpoll(p, FL_F1, 64)
    with only_wave(p, 2):
        p(f"s_mul_i32 s{sU}, s{sJ3}, 3\ns_add_u32 s{sU}, s{sU}, 48\ns_lshr_b32 s{sU}, s{sU}, 1\ns_mul_i32 s{sU}, s{sU}, 5"); gpoll(p, FL_F1, 10)
    stamp(p, 4)
    p("s_waitcnt lgkmcnt(0)"); bar(p, "B3")
    stamp(p, 5)
    P2_main(p)
    stamp(p, 6)
    P3_prep(p)
    p("s_waitcnt vmcnt(0)"); bar(p, "B5")
    with only_wave(p, 0):
        p(f"s_lshl_b32 s{sU}, s{sC}, 5\ns_add_u32 s{sU}, s{sU}, s{sL}"); flag_store(p, FL_F2, True)
    stamp(p, 7)
    p(f"s_sub_u32 s{t}, 63, s{sRB3}\ns_min_u32 s{sU}, s{t}, s{sRB3}\ns_lshl_b32 s{sU}, s{sU}, 3"); poll(p, FL_F2, 8)
    stamp(p, 8)
    P3_loads(p); P3_pass(p, 0)
    bar(p, "B5b")
    stamp(p, 9)
    P3_z2a(p)
    K1 = X.get('k1', 6)
    if K1: bar(p, "B6")
    stamp(p, 10)
    if K1: P3_pass(p, 1, 0, K1)
    stamp(p, 11)
    P3_z2b(p)
    P4_prepA(p)
    p("@wait vm=z2s")
    P4_prepA2(p)
    if X.get('rer'):
        for nt in range(3): p(f"buffer_load_dwordx4 v[4:7], v{vL16}, {sr(SW,4)}, s{[85,92,93][nt]} offen sc1")
    bar(p, "B7")
    with only_wave(p, 0):
        p(f"s_lshr_b32 s{sU}, s{sJ3}, 1\ns_lshl_b32 s{sU}, s{sU}, 5\ns_lshr_b32 s{t}, s{sRB3}, 2\ns_lshl_b32 s{t}, s{t}, 1\ns_add_u32 s{sU}, s{sU}, s{t}\ns_and_b32 s{t}, s{sJ3}, 1\ns_add_u32 s{sU}, s{sU}, s{t}")
        if X.get('z2m', 0) >= 3: p("buffer_wbl2 sc1\ns_waitcnt vmcnt(0)")
        gflag_store(p, FL_F3)
    stamp(p, 12)
    P3_pass(p, 1, K1, 20)
    P4_prepB(p)
    stamp(p, 13)
    bar(p, "B8")
    stamp(p, 14)
    P4_prepC(p)
    stamp(p, 15)
    if not X.get('z1p4', 1):
        p(f"s_lshl_b32 s{sU}, s{sRB3}, 4\ns_add_u32 s{sU}, s{sU}, s{sJ3}\n@wait vm=z1s"); flag_store(p, FL_F3B, not X.get('m84', 0))
    p("s_waitcnt lgkmcnt(0)"); bar(p, "B9")
    stamp(p, 16)
    P4(p, 0)
    stamp(p, 17)
    p(f"s_lshl_b32 s{sU}, s{sTT}, 3\ns_add_u32 s{sU}, s{sU}, s{sJ4}\n@wait vm=vs"); flag_store(p, FL_F4, not X.get('m84', 0))
    if X.get('bv'): bar(p, "Bv")
    P5_prep(p)
    p(f"s_lshl_b32 s{sU}, s{sT5}, 3"); poll(p, FL_F4, 8)
    stamp(p, 18)
    P5_main(p)
    stamp(p, 19)
    with cond(p, f"s_or_b32 s{t}, s{sC}, s{sWAVE}\ns_or_b32 s{t}, s{t}, s{sL}\ns_cmp_lg_u32 s{t}, 0"):
        p(f"v_mov_b32 v10, s{sEP}\nv_mov_b32 v11, 0\ns_mov_b64 exec, 1\nbuffer_store_dword v10, v11, {sr(SW,4)}, 0 offen\ns_mov_b64 exec, -1")
    if X.get('stamp'):
        p("s_waitcnt vmcnt(0)")
        stamp(p, 24)
        p(f"s_lshl_b32 s{t}, s{sL}, 3\ns_add_u32 s{t}, s{t}, s{sC}\ns_lshl_b32 s{t}, s{t}, 2\ns_add_u32 s{t}, s{t}, s{sWAVE}\ns_lshl_b32 s{t+1}, s{t}, 8\ns_add_u32 s{t+1}, s{t+1}, {WS_STAMP}\nv_lshlrev_b32 v10, 2, v{vLANE}")
        p(f"buffer_store_dword v{vSTMP}, v10, {sr(SW,4)}, s{t+1} offen")
        if X.get('dbg'):
            lab = p.label("dbg")
            order = [0, 20, 21, 22, 1, 2, 3, 4, 5, 23, 6, 7, 8, 9, 10, 11, 12, 13, 14, 15, 16, 17, 18, 19, 24]
            idx = [i for i in order if (X['stamp'] >> i) & 1 or i in (0, 24)][:16]
            p(f"s_cmp_lg_u32 s{t}, {X['dbg']-1}\ns_cbranch_scc1 {lab}\ns_mov_b32 s{ST}, s2\ns_mov_b32 s{ST+1}, s3\ns_mov_b32 s{ST+2}, 256\nv_readlane_b32 s{t+2}, v{vSTMP}, 31\nv_mov_b32 v11, 0")
            for n_, i in enumerate(idx):
                p(f"v_readlane_b32 s{t+3}, v{vSTMP}, {i}\ns_nop 1\ns_sub_u32 s{t+3}, s{t+3}, s{t+2}\nv_writelane_b32 v11, s{t+3}, {n_}")
            p(f"buffer_store_dword v11, v10, {sr(ST,4)}, 0 offen\n{lab}:")

def build():
    kn = NAME + "_kernel"
    p = Prog(); prologue(p, kn); cprog(p); p("END:\ns_endpgm")
    q = Prog(); q.nlabel = 5000; q.isx = True; q("XPROG:\ns_nop 4"); xprog(q); q("s_endpgm\nCODE_END:\n.set CODE_BYTES, CODE_END - " + kn + " - 128")
    assert NBAR[id(p)] == NBAR[id(q)], (NBAR[id(p)], NBAR[id(q)])
    return ("; @launch grid=(256,1,1) block=(512,1,1) lds=163840\n" + '.amdgcn_target "amdgcn-amd-amdhsa--gfx950"\n.text\n' + p.finish() + q.finish() +
f""".section .rodata,"a"
.p2align 6
.amdhsa_kernel {kn}
  .amdhsa_next_free_vgpr 256
  .amdhsa_next_free_sgpr 102
  .amdhsa_accum_offset 192
  .amdhsa_group_segment_fixed_size 0
  .amdhsa_kernarg_size 104
  .amdhsa_user_sgpr_count 2
  .amdhsa_user_sgpr_kernarg_segment_ptr 1
  .amdhsa_system_sgpr_workgroup_id_x 1
.end_amdhsa_kernel
""")
if __name__ == "__main__":
    for a in sys.argv[2:]:
        k, v = a.split("="); X[k] = int(v)
    open(sys.argv[1], "w").write(build())
```
